```python
import torch

def _softmax(x, axis=-1):
    return torch.softmax(x, dim=axis)
def _gelu(x):
    return torch.nn.functional.gelu(x, approximate="tanh")
def _silu(x):
    return torch.nn.functional.silu(x)
def _sigmoid(x):
    return torch.sigmoid(x)
def _layernorm(x, axis=-1, eps=1e-5):
    m = x.mean(dim=axis, keepdim=True)
    v = x.var(dim=axis, keepdim=True, unbiased=False)
    return (x - m) / torch.sqrt(v + eps)
def _scatter_add(tgt, idx, src, axis=0):
    return tgt.clone().index_add_(axis, idx, src)
def _segment_sum(src, seg, n):
    out = torch.zeros((n,) + src.shape[1:], dtype=src.dtype)
    return out.index_add_(0, seg, src)
def _pad(x, pw):
    flat = tuple(v for pair in reversed(pw) for v in pair)
    return torch.nn.functional.pad(x, flat)

kernel_name = 'recurrent_scan__sliding_local_dilated__swiglu_ffn__prompt'

def setup_inputs():

    _w = (lambda a: (lambda t: t.to(torch.bfloat16) if t.is_floating_point() else t)(torch.as_tensor(a)))
    def _A_setup():
        B, S, D = 1, 2048, 576
        return {
            "x": _w((lambda *s: torch.randn(*s, dtype=torch.bfloat16) * 0.05)(B, S, D)),
            "wqkv": _w((lambda *s: torch.randn(*s, dtype=torch.bfloat16) * 0.05)(D, 3 * D)),
            "wo": _w((lambda *s: torch.randn(*s, dtype=torch.bfloat16) * 0.05)(D, D)),
        }
    _A_in = _A_setup()

    def _B_setup():
        B, S, D, F = 1, 2048, 576, 4608
        return {
            "x": _w((lambda *s: torch.randn(*s, dtype=torch.bfloat16) * 0.05)(B, S, D)),
            "w_gate": _w((lambda *s: torch.randn(*s, dtype=torch.bfloat16) * 0.05)(D, F)),
            "w_up": _w((lambda *s: torch.randn(*s, dtype=torch.bfloat16) * 0.05)(D, F)),
            "w_down": _w((lambda *s: torch.randn(*s, dtype=torch.bfloat16) * 0.05)(F, D)),
        }
    _B_in = _B_setup()

    return {
        "A_x": _A_in["x"],
        "A_wqkv": _A_in["wqkv"],
        "A_wo": _A_in["wo"],
        "B_x": _B_in["x"],
        "B_w_gate": _B_in["w_gate"],
        "B_w_up": _B_in["w_up"],
        "B_w_down": _B_in["w_down"],
    }

def reference(A_x, A_wqkv, A_wo, B_x, B_w_gate, B_w_up, B_w_down):
    def _A_ref(x, wqkv, wo):
        B, S, D = x.shape
        H = 32; Dh = D // H
        W, dil = 8, 2
        qkv = (lambda x, *d: x.permute(*d))((x @ wqkv).reshape(B, S, 3, H, Dh), 2, 0, 3, 1, 4)
        q, k, v = qkv[0], qkv[1], qkv[2]
        scale = Dh ** -0.5
        pos = torch.arange(S)
        off = torch.arange(W) * dil
        idx = pos[:, None] - off[None, :]
        mask = idx >= 0
        idx_c = torch.where(mask, idx, 0).reshape(-1)
        kg = k[:, :, idx_c, :].reshape(B, H, S, W, Dh)
        vg = v[:, :, idx_c, :].reshape(B, H, S, W, Dh)
        logits = torch.einsum("bhsd,bhswd->bhsw", q, kg) * scale
        logits = torch.where(mask[None, None, :, :], logits, -1e9)
        attn = _softmax(logits, axis=-1)
        o = torch.einsum("bhsw,bhswd->bhsd", attn, vg)
        return (lambda x, *d: x.permute(*d))(o, 0, 2, 1, 3).reshape(B, S, D) @ wo

    def _B_ref(x, w_gate, w_up, w_down):
        g = _silu(x @ w_gate)
        u = x @ w_up
        return (g * u) @ w_down

    x = A_x
    xn = _layernorm(x, axis=-1)
    s = _A_ref(xn, A_wqkv, A_wo)
    g = _silu(_B_ref(xn, B_w_gate, B_w_up, B_w_down))
    return x + s * g
```

```python
class Asm:
    def __init__(self):
        self.L = []
        self.nlab = 0
    def __call__(self, s):
        for line in s.split('\n'):
            line = line.strip()
            if line: self.L.append('    ' + line if not line.endswith(':') else line)
    def label(self, base='L'):
        self.nlab += 1
        return f'{base}_{self.nlab}'
    def text(self):
        return '\n'.join(self.L) + '\n'

def vr(b, n=1):
    return f'v{b}' if n == 1 else f'v[{b}:{b+n-1}]'
def ar(b, n=1):
    return f'a{b}' if n == 1 else f'a[{b}:{b+n-1}]'
def sr(b, n=1):
    return f's{b}' if n == 1 else f's[{b}:{b+n-1}]'

def kernel_header(name):
    return f".globl {name}\n.p2align 8\n.type {name},@function\n{name}:"

def kernel_desc(name, vgpr, sgpr, accum):
    return (f'.amdhsa_kernel {name}\n'
            f'  .amdhsa_next_free_vgpr {vgpr}\n  .amdhsa_next_free_sgpr {sgpr}\n  .amdhsa_accum_offset {accum}\n'
            '  .amdhsa_group_segment_fixed_size 0\n  .amdhsa_kernarg_size 80\n  .amdhsa_user_sgpr_count 2\n'
            '  .amdhsa_user_sgpr_kernarg_segment_ptr 1\n  .amdhsa_system_sgpr_workgroup_id_x 1\n'
            '.end_amdhsa_kernel\n')

def interleave(main, fillers):
    pass
```

```python
import sys
from asmlib import *

XN_OFF  = 0
O_OFF   = 0x240000
QKV_OFF = 0x480000
H_OFF   = 0xB40000
P_OFF   = 0x1D40000
S_OFF   = 0x33C0000
WS_BYTES = 268435456
LOG2E = 0x3fb8aa3b
NLOG2E = 0xbfb8aa3b

def gen_ln(a, mimic=True):
    a(kernel_header('ln_kernel'))
    a('''
    s_cmp_ge_u32 s2, 256
    s_cbranch_scc1 LN_end
    s_load_dwordx2 s[4:5], s[0:1], 0
    s_load_dwordx2 s[6:7], s[0:1], 72
    v_and_b32 v1, 31, v0
    v_lshrrev_b32 v7, 5, v0
    s_lshr_b32 s10, s2, 1
    s_and_b32 s11, s2, 1
    s_lshl_b32 s3, s10, 4
    s_add_u32 s3, s3, s11
    v_lshl_add_u32 v2, v7, 1, s3
    v_mul_u32_u24 v3, 1152, v2
    v_lshl_add_u32 v3, v1, 4, v3
    v_mov_b32 v16, 0
    v_mov_b32 v17, 0
    v_mov_b32 v18, 0
    v_mov_b32 v19, 0
    v_cmp_gt_u32 vcc, 8, v1
    s_waitcnt lgkmcnt(0)
    global_load_dwordx4 v[8:11], v3, s[4:5]
    global_load_dwordx4 v[12:15], v3, s[4:5] offset:512
    s_and_saveexec_b64 s[8:9], vcc
    global_load_dwordx4 v[16:19], v3, s[4:5] offset:1024
    s_mov_b64 exec, s[8:9]
    ''')
    a('''
    s_mul_i32 s10, s10, 18
    v_lshrrev_b32 v5, 2, v1
    v_add_u32 v4, s10, v5
    v_lshlrev_b32 v4, 10, v4
    s_lshl_b32 s11, s11, 3
    v_add_u32 v5, s11, v7
    v_and_b32 v6, 3, v1
    v_lshl_add_u32 v5, v6, 4, v5
    v_lshl_add_u32 v4, v5, 4, v4
    v_add_u32 v5, 8192, v4
    v_add_u32 v6, 16384, v4
    s_waitcnt vmcnt(0)
    ''')
    for i in range(12):
        a(f'v_lshlrev_b32 v{20+2*i}, 16, v{8+i}')
        a(f'v_and_b32 v{21+2*i}, 0xffff0000, v{8+i}')
    a('v_add_f32 v44, v20, v21\nv_add_f32 v45, v22, v23')
    for i in range(24, 44, 2):
        a(f'v_add_f32 v44, v44, v{i}\nv_add_f32 v45, v45, v{i+1}')
    a('v_add_f32 v44, v44, v45')
    def reduce32(r, t):
        a('s_nop 1')
        a(f'v_add_f32_dpp v{r}, v{r}, v{r} quad_perm:[1,0,3,2] row_mask:0xf bank_mask:0xf')
        a('s_nop 1')
        a(f'v_add_f32_dpp v{r}, v{r}, v{r} quad_perm:[2,3,0,1] row_mask:0xf bank_mask:0xf')
        a('s_nop 1')
        a(f'v_add_f32_dpp v{r}, v{r}, v{r} row_half_mirror row_mask:0xf bank_mask:0xf')
        a('s_nop 1')
        a(f'v_add_f32_dpp v{r}, v{r}, v{r} row_mirror row_mask:0xf bank_mask:0xf')
        a(f'ds_swizzle_b32 v{t}, v{r} offset:0x401F')
        a('s_waitcnt lgkmcnt(0)')
        a(f'v_add_f32 v{r}, v{r}, v{t}')
    reduce32(44, 45)
    a('v_mul_f32 v44, 0x3ae38e39, v44')
    a('v_mov_b32 v46, 0\nv_mov_b32 v47, 0\nv_mov_b32 v48, 0')
    for i in range(16):
        a(f'v_sub_f32 v50, v{20+i}, v44')
        a(f'v_fmac_f32 v{46+(i&1)}, v50, v50')
    for i in range(16, 24):
        a(f'v_sub_f32 v50, v{20+i}, v44')
        a(f'v_fmac_f32 v48, v50, v50')
    a('v_cndmask_b32 v48, 0, v48, vcc')
    a('v_add_f32 v46, v46, v47\nv_add_f32 v46, v46, v48')
    reduce32(46, 45)
    a('v_mul_f32 v46, 0x3ae38e39, v46')
    def rb(r):
        a(f'v_cvt_pk_bf16_f32 v{r}, v{r}, v{r}\nv_lshlrev_b32 v{r}, 16, v{r}')
    if mimic:
        rb(44); rb(46)
        a('v_add_f32 v46, 0x3727c5ac, v46')
        rb(46)
        a('v_sqrt_f32 v46, v46\ns_nop 0')
        rb(46)
        a('v_rcp_f32 v46, v46\ns_nop 0')
        for i in range(12):
            a(f'v_sub_f32 v{20+2*i}, v{20+2*i}, v44\nv_sub_f32 v{21+2*i}, v{21+2*i}, v44')
            a(f'v_cvt_pk_bf16_f32 v50, v{20+2*i}, v{21+2*i}')
            a(f'v_lshlrev_b32 v51, 16, v50\nv_and_b32 v52, 0xffff0000, v50')
            a(f'v_mul_f32 v51, v51, v46\nv_mul_f32 v52, v52, v46')
            a(f'v_cvt_pk_bf16_f32 v{8+i}, v51, v52')
    else:
        a('v_add_f32 v46, 0x3727c5ac, v46')
        a('v_rsq_f32 v46, v46\ns_nop 0')
        for i in range(12):
            a(f'v_sub_f32 v{20+2*i}, v{20+2*i}, v44\nv_sub_f32 v{21+2*i}, v{21+2*i}, v44')
            a(f'v_mul_f32 v51, v{20+2*i}, v46\nv_mul_f32 v52, v{21+2*i}, v46')
            a(f'v_cvt_pk_bf16_f32 v{8+i}, v51, v52')
    a('''
    global_store_dwordx4 v4, v[8:11], s[6:7]
    global_store_dwordx4 v5, v[12:15], s[6:7]
    s_and_saveexec_b64 s[8:9], vcc
    global_store_dwordx4 v6, v[16:19], s[6:7]
    LN_end:
    s_endpgm
    ''')
    return kernel_desc('ln_kernel', 56, 16, 56)

V_AD   = 2
V_NB   = 6
V_DA   = 10
V_DI   = 12
V_HST  = 14
V_QST  = 15
V_WF   = 16
V_SG   = 32
V_ACC  = (64, 128)
V_X    = 192
V_T    = 224
V_BN   = 240
V_BQ   = 244
V_MA   = 246
V_QA   = 248
V_MI   = 250
V_XO   = 251
HALF = 73728

def xreg(i, ks):
    if ks < 16: return ar((ks*4+i)*4, 4)
    return vr(V_X + ((ks-16)*4+i)*4, 4)

class VM:
    def __init__(self): self.ops=[]
    def issue(self, tag): self.ops.append(tag)
    def wait_n(self, tag):
        idx = max(i for i,t in enumerate(self.ops) if t==tag)
        return min(63, len(self.ops)-1-idx)

def epiG(acc):
    out=[]
    n=0
    for b in range(4):
        for i in range(4):
            A = acc + (b*4+i)*4
            T = V_T + (n&1)*4; n+=1
            for r in range(4): out.append((f'v_mul_f32 v{T+r}, s40, v{A+r}',1))
            for r in range(4): out.append((f'v_exp_f32 v{T+r}, v{T+r}',2))
            for r in range(4): out.append((f'v_add_f32 v{T+r}, 1.0, v{T+r}',1))
            for r in range(4): out.append((f'v_rcp_f32 v{T+r}, v{T+r}',2))
            for r in range(4): out.append((f'v_mul_f32 v{T+r}, v{T+r}, v{A+r}',1))
            S = V_SG + (b*4+i)*2
            out.append((f'v_cvt_pk_bf16_f32 v{S}, v{T}, v{T+1}',1))
            out.append((f'v_cvt_pk_bf16_f32 v{S+1}, v{T+2}, v{T+3}',1))
    return out

def epiU(acc):
    out=[]
    n=0
    for p in range(2):
        for i in range(4):
            D = V_T + 8 + (n&1)*4; n+=1
            for hb in range(2):
                b = 2*p+hb
                A = acc + (b*4+i)*4
                S = V_SG + (b*4+i)*2
                T = V_T + hb*4
                out.append((f'v_lshlrev_b32 v{T}, 16, v{S}',1))
                out.append((f'v_and_b32 v{T+1}, s41, v{S}',1))
                out.append((f'v_lshlrev_b32 v{T+2}, 16, v{S+1}',1))
                out.append((f'v_and_b32 v{T+3}, s41, v{S+1}',1))
                for r in range(4): out.append((f'v_mul_f32 v{T+r}, v{T+r}, v{A+r}',1))
                out.append((f'v_cvt_pk_bf16_f32 v{D+2*hb}, v{T}, v{T+1}',1))
                out.append((f'v_cvt_pk_bf16_f32 v{D+2*hb+1}, v{T+2}, v{T+3}',1))
            out.append((f'buffer_store_dwordx4 v[{D}:{D+3}], v{V_HST}, s[20:23], s{44+i} offen offset:{p*1024}',2,'st'))
    return out

def epiQ(acc, b0, soff):
    out=[]
    for i in range(4):
        D = V_T + 8 + (i&1)*4
        for hb in range(2):
            A = acc + ((b0+hb)*4+i)*4
            out.append((f'v_cvt_pk_bf16_f32 v{D+2*hb}, v{A}, v{A+1}',1))
            out.append((f'v_cvt_pk_bf16_f32 v{D+2*hb+1}, v{A+2}, v{A+3}',1))
        out.append((f'buffer_store_dwordx4 v[{D}:{D+3}], v{V_QST}, s[20:23], s{soff+i} offen',2,'st'))
    return out

def epiM(acc):
    out=[]
    for i in range(4):
        G = acc + (0*4+i)*4; U = acc + (1*4+i)*4
        T = V_T + (i&1)*4
        for r in range(4): out.append((f'v_mul_f32 v{T+r}, s40, v{G+r}',1))
        for r in range(4): out.append((f'v_exp_f32 v{T+r}, v{T+r}',2))
        for r in range(4): out.append((f'v_add_f32 v{T+r}, 1.0, v{T+r}',1))
        for r in range(4): out.append((f'v_rcp_f32 v{T+r}, v{T+r}',2))
        for r in range(4): out.append((f'v_mul_f32 v{T+r}, v{T+r}, v{G+r}',1))
        for r in range(4): out.append((f'v_mul_f32 v{T+r}, v{T+r}, v{U+r}',1))
        D = V_SG + 2*i
        out.append((f'v_cvt_pk_bf16_f32 v{D}, v{T}, v{T+1}',1))
        out.append((f'v_cvt_pk_bf16_f32 v{D+1}, v{T+2}, v{T+3}',1))
        out.append((f'buffer_store_dwordx2 v[{D}:{D+1}], v{V_HST}, s[20:23], s{44+i} offen',2,'st'))
    out += epiQ(acc, 2, 48)
    return out

def dma_site(skip=None, a=None):
    L=[('s_add_u32 m0, m0, 4096',1),
       (f'global_load_lds_dwordx4 v[{V_DA}:{V_DA+1}], off',2,'dma'),
       (f'v_lshl_add_u64 v[{V_DA}:{V_DA+1}], v[{V_DI}:{V_DI+1}], 0, v[{V_DA}:{V_DA+1}]',1)]
    return L

def body(a, vm, accset, epi, kind='full', dma='yes', first=False, last=False):
    acc = V_ACC[accset]
    ns = 72 if kind=='full' else 36
    def slot_info(t):
        if kind=='full': return t//4, t%4
        return t//2, 2+(t%2)
    def rd_off(t):
        g = t//4
        step = 4096 if kind=='full' else 8192
        ng = ns//4
        mid = (ng+1)//2 if kind!='full' else 9
        return (g*step if g < mid else (g-mid)*step), g>=mid, mid*step
    nm = ns*4
    pre = [[] for _ in range(nm+1)]
    post = [[] for _ in range(nm)]
    for t in range(ns):
        m0 = t*4
        if t%2==0:
            pre[m0].append('WAITLGKM')
        tn = t+4
        w = V_WF + (t%4)*4; ad = V_AD + (t%4)
        if tn < ns:
            off, hi, bump = rd_off(tn)
            offp, hip, _ = rd_off(t)
            if hi and not hip:
                post[m0+1].append(f'v_add_u32 v{ad}, {bump}, v{ad}')
            post[m0+3].append(f'ds_read_b64_tr_b16 v[{w}:{w+1}], v{ad} offset:{off}')
            (post[m0+4] if m0+4<nm else pre[nm]).append(f'ds_read_b64_tr_b16 v[{w+2}:{w+3}], v{ad} offset:{off+512}')
        elif not last:
            post[m0+1].append(f'v_mov_b32 v{ad}, v{V_NB+(t%4)}')
            if tn==ns:
                post[m0+3].append('SUBARRIER')
            post[m0+3].append(f'ds_read_b64_tr_b16 v[{w}:{w+1}], v{ad} offset:0')
            (post[m0+4] if m0+4<nm else pre[nm]).append(f'ds_read_b64_tr_b16 v[{w+2}:{w+3}], v{ad} offset:512')
    fl = [[] for _ in range(nm)]
    if dma!='no':
        ks0 = 6 if first else 0
        for n in range(18):
            m = (ks0 + n//2)*16 + (n%2)*8 + 1
            site = dma_site()
            if dma=='skip':
                lab = a.label('SK')
                fl[m].append((f's_cbranch_vccz {lab}',1))
                fl[m].append(site[0]); fl[m].append(('s_nop 0',1)); fl[m].append(site[1]); fl[m].append(site[2]); fl[m].append((f'{lab}:',0))
            else:
                fl[m].append(site[0]); fl[m+1].append(site[1]); fl[m+1].append(site[2])
    if first:
        for ks in range(0,6):
            g = ks+12
            m = ks*16+1
            fl[m].append(('s_add_u32 m0, m0, 4096',1))
            fl[m+1].append((f'global_load_lds_dwordx4 v[{V_DA}:{V_DA+1}], off',2,f'g{g}'))
            fl[m+1].append((f'v_lshl_add_u64 v[{V_DA}:{V_DA+1}], v[{V_DI}:{V_DI+1}], 0, v[{V_DA}:{V_DA+1}]',1))
            for i in range(4):
                fl[m+4+2*i].append((f'buffer_load_dwordx4 {xreg(i,g)}, v{V_XO+i}, s[20:23], s{52+g//4} offen offset:{(g%4)*1024}',2,f'g{g}'))
        fl[5*16+13].append((f'v_lshl_add_u64 v[{V_DA}:{V_DA+1}], v[{V_DA}:{V_DA+1}], 0, s[58:59]',1))
        for ks in range(0,17):
            pre[ks*16+2].append(f'READY{ks+1}')
    if epi:
        tot = sum(e[1] for e in epi)
        lo, hi = 2, nm-10
        base = [sum(x[1] for x in fl[m]) + len(post[m]) + len(pre[m+1]) for m in range(nm)]
        allc = tot + sum(base[lo:hi])
        per = allc/(hi-lo)
        k=0; acc_c=0.0
        for m in range(lo,hi):
            acc_c += per - base[m]
            while k<len(epi) and acc_c >= epi[k][1]-1e-9:
                fl[m].append(epi[k]); acc_c -= epi[k][1]; k+=1
        while k<len(epi):
            fl[hi-1].append(epi[k]); k+=1
    lds_out = []
    for t in range(4): lds_out += [t,t]
    rd_count = {}
    def emit_pinned(s, t_for_read=None):
        nonlocal lds_out
        if s=='WAITLGKM':
            raise AssertionError
        a(s)
    nread = 0
    for m in range(nm+1):
        t = m//4
        for s in pre[m]:
            if s=='WAITLGKM':
                need = min(t+1, ns-1)
                cand = [i for i,x in enumerate(lds_out) if x<=need]
                if cand:
                    idx = max(cand)
                    a(f's_waitcnt lgkmcnt({len(lds_out)-1-idx})')
                    lds_out = lds_out[idx+1:]
            elif s.startswith('READY'):
                g = int(s[5:])
                a(f's_waitcnt vmcnt({vm.wait_n("g%d"%g)})')
                a('s_barrier')
            else:
                a(s)
                if s.startswith('ds_read'):
                    lds_out.append(4+nread//2); nread+=1
        if m==nm: break
        ks, b = slot_info(t); i = m%4
        D = acc + (b*4+i)*4
        w = V_WF + (t%4)*4
        c = '0' if ks==0 else vr(D,4)
        a(f'v_mfma_f32_16x16x32_bf16 {vr(D,4)}, {vr(w,4)}, {xreg(i,ks)}, {c}')
        for f in fl[m]:
            a(f[0])
            if len(f)>2: vm.issue(f[2])
        for s in post[m]:
            if s=='SUBARRIER':
                n = vm.wait_n('dma') if 'dma' in vm.ops else 0
                a(f's_waitcnt vmcnt({n})')
                a('s_barrier')
            else:
                a(s)
                if s.startswith('ds_read'):
                    lds_out.append(4+nread//2); nread+=1

PROF=False
PROF_OFF=0x8000000
def stamp(a, idx, rt=False):
    if not PROF: return
    a(f's_memrealtime s[{70+2*idx}:{71+2*idx}]' if rt else f's_memtime s[{70+2*idx}:{71+2*idx}]')
    a('s_waitcnt lgkmcnt(0)')
def dump_stamps(a, n, wreg='s33', kidx=0):
    if not PROF: return
    lab=a.label('PS')
    a(f's_cmp_lg_u32 {wreg}, 0\ns_cbranch_scc1 {lab}')
    a(f's_lshl_b32 s3, s2, 6\ns_add_u32 s3, s3, {PROF_OFF+kidx*0x10000}')
    a('v_mov_b32 v1, 0')
    for i in range(n):
        a(f'v_mov_b32 v2, s{70+2*i}')
        a(f'buffer_store_dword v2, v1, s[20:23], s3 offen offset:{4*i}')
    a(f'{lab}:')

def gen_k1(a):
    a(kernel_header('k1_kernel'))
    a('''
    s_cmp_ge_u32 s2, 256
    s_cbranch_scc1 K1_end
    s_load_dwordx2 s[4:5], s[0:1], 8
    s_load_dwordx4 s[8:11], s[0:1], 32
    s_load_dwordx2 s[20:21], s[0:1], 72
    v_lshrrev_b32 v1, 6, v0
    v_and_b32 v0, 63, v0
    s_and_b32 s30, s2, 7
    s_lshr_b32 s31, s2, 3
    s_and_b32 s31, s31, 3
    s_lshr_b32 s32, s2, 5
    v_readfirstlane_b32 s33, v1
    s_mov_b32 s22, 0x10000000
    s_mov_b32 s23, 0x20000
    s_mov_b32 s40, 0xbfb8aa3b
    s_mov_b32 s41, 0xffff0000
    ''')
    stamp(a,0,True); stamp(a,1)
    T=V_T
    a(f'''
    s_lshl_b32 s34, s32, 4
    s_lshl_b32 s35, s33, 2
    s_add_u32 s34, s34, s35
    s_mul_i32 s35, s34, 18432
    v_lshlrev_b32 v{T}, 4, v0
    v_add_u32 v{V_XO}, s35, v{T}
    v_add_u32 v{V_XO+1}, 18432, v{V_XO}
    v_add_u32 v{V_XO+2}, 36864, v{V_XO}
    v_add_u32 v{V_XO+3}, 55296, v{V_XO}
    s_mul_i32 s35, s34, 147456
    v_add_u32 v{V_HST}, s35, v{T}
    ''')
    for g in range(5): a(f's_mov_b32 s{52+g}, {XN_OFF+g*4096}')
    a(f'''
    v_lshrrev_b32 v{T}, 3, v0
    s_lshl_b32 s35, s33, 3
    v_add_u32 v{T}, s35, v{T}
    v_bfe_u32 v{T+1}, v0, 1, 2
    v_bfe_u32 v{T+2}, v0, 4, 1
    s_and_b32 s35, s33, 1
    s_lshl_b32 s35, s35, 1
    v_or_b32 v{T+2}, s35, v{T+2}
    v_xor_b32 v{T+1}, v{T+1}, v{T+2}
    v_and_b32 v{T+2}, 1, v0
    v_lshlrev_b32 v{T+2}, 4, v{T+2}
    v_mul_u32_u24 v{T+4}, 9216, v{T}
    v_add_u32 v{T+4}, v{T+4}, v{T+2}
    v_mov_b32 v{T+5}, 0
    v_mul_u32_u24 v{T+6}, 3456, v{T}
    v_add_u32 v{T+6}, v{T+6}, v{T+2}
    v_and_b32 v{T+3}, 1, v{T+1}
    v_lshl_add_u32 v{T+6}, v{T+3}, 5, v{T+6}
    v_mov_b32 v{T+7}, 0
    v_lshl_add_u32 v{T+8}, v{T+1}, 5, v{T+4}
    v_mov_b32 v{T+9}, 0
    ''')
    a(f'''
    s_mul_i32 s36, s30, 1152
    s_lshl_b32 s37, s31, 8
    s_add_u32 s37, s37, s36
    s_lshl_b32 s38, s31, 5
    s_add_u32 s38, s38, s36
    s_add_u32 s38, s38, 1024
    s_lshl_b32 s39, s30, 2
    s_add_u32 s39, s39, s31
    s_waitcnt lgkmcnt(0)
    s_add_u32 s12, s8, s37
    s_addc_u32 s13, s9, 0
    v_lshl_add_u64 v[{V_DA}:{V_DA+1}], v[{T+8}:{T+9}], 0, s[12:13]
    v_mov_b32 v{V_DI}, 294912
    v_mov_b32 v{V_DI+1}, 0
    s_lshl_b32 s35, s33, 10
    s_sub_u32 m0, s35, 4096
    ''')
    vm = VM()
    for g in range(12):
        a('s_add_u32 m0, m0, 4096')
        if g==0: a('s_nop 0')
        else:
            a(f'v_lshl_add_u64 v[{V_DA}:{V_DA+1}], v[{V_DI}:{V_DI+1}], 0, v[{V_DA}:{V_DA+1}]')
        a(f'global_load_lds_dwordx4 v[{V_DA}:{V_DA+1}], off'); vm.issue(f'g{g}')
        for i in range(4):
            a(f'buffer_load_dwordx4 {xreg(i,g)}, v{V_XO+i}, s[20:23], s{52+g//4} offen offset:{(g%4)*1024}'); vm.issue(f'g{g}')
    a(f'v_lshl_add_u64 v[{V_DA}:{V_DA+1}], v[{V_DI}:{V_DI+1}], 0, v[{V_DA}:{V_DA+1}]')
    a('''
    s_sub_u32 s58, s10, s8
    s_subb_u32 s59, s11, s9
    s_sub_u32 s58, s58, 5308416
    s_subb_u32 s59, s59, 0
    s_sub_u32 s60, s8, s10
    s_subb_u32 s61, s9, s11
    s_sub_u32 s60, s60, 5308288
    s_subb_u32 s61, s61, 0
    ''')
    a(f'''
    s_add_u32 s12, s8, s38
    s_addc_u32 s13, s9, 0
    s_add_u32 s14, s10, s38
    s_addc_u32 s15, s11, 0
    s_lshl_b32 s35, s39, 6
    s_add_u32 s16, s4, s35
    s_addc_u32 s17, s5, 0
    v_lshl_add_u64 v[{V_MA}:{V_MA+1}], v[{T+6}:{T+7}], 0, s[16:17]
    v_lshl_add_u64 v[{T+10}:{T+11}], v[{T+4}:{T+5}], 0, s[12:13]
    v_lshl_add_u64 v[{T+12}:{T+13}], v[{T+4}:{T+5}], 0, s[14:15]
    v_mov_b32 v{V_MI}, 110592
    v_mov_b32 v{T+14}, 294912
    v_cmp_eq_u32 vcc, 0, v{T+1}
    s_nop 1
    v_cndmask_b32 v{V_MA}, v{V_MA}, v{T+10}, vcc
    v_cndmask_b32 v{V_MA+1}, v{V_MA+1}, v{T+11}, vcc
    v_cndmask_b32 v{V_MI}, v{V_MI}, v{T+14}, vcc
    v_cmp_eq_u32 vcc, 1, v{T+1}
    s_nop 1
    v_cndmask_b32 v{V_MA}, v{V_MA}, v{T+12}, vcc
    v_cndmask_b32 v{V_MA+1}, v{V_MA+1}, v{T+13}, vcc
    v_cndmask_b32 v{V_MI}, v{V_MI}, v{T+14}, vcc
    ''')
    a(f'''
    s_mul_i32 s62, s30, 3
    s_add_u32 s62, s62, s31
    s_add_u32 s62, s62, 32
    s_cmp_lt_u32 s31, 3
    s_cselect_b32 s63, 1, 0
    s_cmp_lt_u32 s30, 6
    s_cbranch_scc1 K1_qok
    s_lshl_b32 s62, s30, 1
    s_add_u32 s62, s62, s31
    s_add_u32 s62, s62, 38
    s_cmp_lt_u32 s31, 2
    s_cselect_b32 s63, 1, 0
    K1_qok:
    s_cmp_eq_u32 s63, 0
    s_cselect_b32 s62, 0, s62
    s_lshl_b32 s35, s62, 6
    s_add_u32 s16, s4, s35
    s_addc_u32 s17, s5, 0
    v_lshl_add_u64 v[{V_QA}:{V_QA+1}], v[{T+6}:{T+7}], 0, s[16:17]
    ''')
    a(f'''
    v_lshrrev_b32 v{T}, 4, v0
    v_bfe_u32 v{T+1}, v0, 2, 2
    v_lshl_add_u32 v{T+2}, v{T}, 3, v{T+1}
    v_lshlrev_b32 v{T+2}, 7, v{T+2}
    v_lshrrev_b32 v{T+1}, 1, v{T+1}
    v_and_b32 v{T}, 1, v{T}
    v_lshl_or_b32 v{T+1}, v{T}, 1, v{T+1}
    v_and_b32 v{T+3}, 3, v0
    ''')
    for b in range(4):
        a(f'''
        v_xor_b32 v{T+4}, {b}, v{T+1}
        v_lshl_add_u32 v{T+4}, v{T+4}, 5, v{T+2}
        v_lshl_add_u32 v{V_BN+b}, v{T+3}, 3, v{T+4}
        ''')
    a(f'''
    v_lshrrev_b32 v{T+4}, 1, v{T+3}
    v_add_u32 v{T+4}, 2, v{T+4}
    v_xor_b32 v{T+4}, v{T+4}, v{T+1}
    v_lshl_add_u32 v{T+4}, v{T+4}, 5, v{T+2}
    v_and_b32 v{T+5}, 1, v{T+3}
    v_lshl_add_u32 v{V_BQ}, v{T+5}, 4, v{T+4}
    v_add_u32 v{V_BQ+1}, 8, v{V_BQ}
    ''')
    for b in range(4):
        a(f'v_mov_b32 v{V_AD+b}, v{V_BN+b}')
        a(f'v_add_u32 v{V_NB+b}, {HALF}, v{V_BN+b}')
    a(f'''
    v_and_b32 v{T}, 7, v0
    s_lshl_b32 s35, s34, 3
    v_add_u32 v{T}, s35, v{T}
    v_bfe_u32 v{T+1}, v0, 3, 1
    v_lshl_add_u32 v{T}, v{T+1}, 10, v{T}
    v_mul_u32_u24 v{T}, 3456, v{T}
    v_lshrrev_b32 v{T+1}, 4, v0
    v_lshl_add_u32 v{V_QST}, v{T+1}, 4, v{T}
    ''')
    a(f'''
    s_mul_i32 s35, s30, 18
    s_lshl_b32 s42, s31, 2
    s_add_u32 s35, s35, s42
    s_lshl_b32 s35, s35, 10
    s_add_u32 s44, s35, {H_OFF}
    s_add_u32 s45, s44, 147456
    s_add_u32 s46, s44, 294912
    s_add_u32 s47, s44, 442368
    s_lshl_b32 s35, s39, 6
    s_add_u32 s48, s35, {QKV_OFF}
    s_add_u32 s49, s48, 27648
    s_add_u32 s50, s48, 55296
    s_add_u32 s51, s48, 82944
    ''')
    a(f's_waitcnt vmcnt({vm.wait_n("g0")})\ns_barrier')
    stamp(a,2)
    for b in range(4):
        w=V_WF+4*b
        a(f'ds_read_b64_tr_b16 v[{w}:{w+1}], v{V_AD+b} offset:0')
        a(f'ds_read_b64_tr_b16 v[{w+2}:{w+3}], v{V_AD+b} offset:512')
    body(a, vm, 0, None, first=True)
    stamp(a,3)
    a('s_mov_b32 s43, 0')
    a('K1_loop:')
    a(f'''
    s_lshl_b32 s35, s33, 10
    s_sub_u32 m0, s35, 4096
    s_cmp_eq_u32 s43, 0
    s_cbranch_scc0 K1_setM
    v_lshl_add_u64 v[{V_DA}:{V_DA+1}], v[{V_DA}:{V_DA+1}], 0, s[60:61]
    v_mov_b32 v{V_NB+2}, v{V_BN+2}
    v_mov_b32 v{V_NB+3}, v{V_BN+3}
    s_branch K1_setY
    K1_setM:
    v_mov_b32 v{V_DA}, v{V_MA}
    v_mov_b32 v{V_DA+1}, v{V_MA+1}
    v_mov_b32 v{V_DI}, v{V_MI}
    v_mov_b32 v{V_NB+2}, v{V_BQ}
    v_mov_b32 v{V_NB+3}, v{V_BQ+1}
    K1_setY:
    v_mov_b32 v{V_NB}, v{V_BN}
    v_mov_b32 v{V_NB+1}, v{V_BN+1}
    ''')
    vmY = VM()
    body(a, vmY, 1, epiG(V_ACC[0]))
    if PROF:
        a('s_mov_b32 s78, s82'); stamp(a,6)
    a(f'''
    s_cmp_eq_u32 s43, 0
    s_cbranch_scc0 K1_setQ
    v_lshl_add_u64 v[{V_DA}:{V_DA+1}], v[{V_DA}:{V_DA+1}], 0, s[58:59]
    v_add_u32 v{V_NB}, {HALF}, v{V_BN}
    v_add_u32 v{V_NB+1}, {HALF}, v{V_BN+1}
    v_add_u32 v{V_NB+2}, {HALF}, v{V_BN+2}
    v_add_u32 v{V_NB+3}, {HALF}, v{V_BN+3}
    s_mov_b64 vcc, -1
    s_branch K1_setX
    K1_setQ:
    v_mov_b32 v{V_DA}, v{V_QA}
    v_mov_b32 v{V_DA+1}, v{V_QA+1}
    v_mov_b32 v{V_DI}, 110592
    v_add_u32 v{V_NB}, {HALF}, v{V_BQ}
    v_add_u32 v{V_NB+1}, {HALF}, v{V_BQ+1}
    v_add_u32 v{V_NB+2}, {HALF+4096}, v{V_BQ}
    v_add_u32 v{V_NB+3}, {HALF+4096}, v{V_BQ+1}
    s_mov_b32 s64, s63
    s_mov_b32 s65, 0
    s_mov_b64 vcc, s[64:65]
    K1_setX:
    ''')
    vmX = VM()
    body(a, vmX, 0, epiU(V_ACC[1]), dma='skip')
    if PROF:
        a('s_mov_b32 s80, s84'); stamp(a,7)
    a(f'''
    s_add_u32 s44, s44, 2048
    s_add_u32 s45, s45, 2048
    s_add_u32 s46, s46, 2048
    s_add_u32 s47, s47, 2048
    s_add_u32 s43, s43, 1
    s_cmp_lt_u32 s43, 2
    s_cbranch_scc1 K1_loop
    ''')
    a(f'''
    s_mul_i32 s35, s30, 18
    s_lshr_b32 s42, s31, 1
    s_add_u32 s35, s35, s42
    s_add_u32 s35, s35, 16
    s_lshl_b32 s35, s35, 10
    s_and_b32 s42, s31, 1
    s_lshl_b32 s42, s42, 3
    s_add_u32 s35, s35, s42
    s_add_u32 s44, s35, {H_OFF}
    s_add_u32 s45, s44, 147456
    s_add_u32 s46, s44, 294912
    s_add_u32 s47, s44, 442368
    s_cmp_eq_u32 s63, 0
    s_cbranch_scc1 K1_noQ
    ''')
    vmZ = VM()
    body(a, vmZ, 1, epiM(V_ACC[0]), kind='half', dma='no', last=True)
    a(f'''
    s_lshl_b32 s35, s62, 6
    s_add_u32 s48, s35, {QKV_OFF}
    s_add_u32 s49, s48, 27648
    s_add_u32 s50, s48, 55296
    s_add_u32 s51, s48, 82944
    s_nop 7
    ''')
    for e in epiQ(V_ACC[1], 2, 48): a(e[0])
    stamp(a,8)
    if PROF: a('s_waitcnt vmcnt(0)')
    stamp(a,9); stamp(a,10,True); dump_stamps(a,11)
    a('s_endpgm')
    a('K1_noQ:')
    for e in epiM(V_ACC[0]): a(e[0])
    stamp(a,8)
    if PROF: a('s_waitcnt vmcnt(0)')
    stamp(a,9); stamp(a,10,True); dump_stamps(a,11)
    a('K1_end:\ns_endpgm')
    return kernel_desc('k1_kernel', 512, 100, 256)

def gen_att(a):
    a(kernel_header('att_kernel'))
    OST = 53248
    a(f'''
    s_cmp_ge_u32 s2, 256
    s_cbranch_scc1 AT_end
    s_load_dwordx2 s[20:21], s[0:1], 72
    v_lshrrev_b32 v1, 6, v0
    v_and_b32 v2, 63, v0
    v_lshlrev_b32 v2, 4, v2
    s_mov_b32 s22, 0x10000000
    s_mov_b32 s23, 0x20000
    v_readfirstlane_b32 s33, v1
    s_lshr_b32 s10, s2, 1
    s_and_b32 s11, s2, 1
    s_lshl_b32 s12, s11, 10
    s_lshl_b32 s13, s10, 3
    s_add_u32 s12, s12, s13
    s_mul_i32 s12, s12, 3456
    s_add_u32 s12, s12, {QKV_OFF-7*3456}
    s_lshl_b32 s14, s33, 10
    s_add_u32 s12, s12, s14
    s_mov_b32 m0, s14
    s_waitcnt lgkmcnt(0)
    ''')
    for n in range(13):
        a('buffer_load_dwordx4 v2, s[20:23], s12 offen lds')
        if n<12: a('s_add_u32 m0, m0, 4096\ns_add_u32 s12, s12, 4096')
    a(f'''
    v_lshrrev_b32 v3, 5, v0
    v_and_b32 v4, 31, v0
    v_mul_u32_u24 v4, 36, v4
    v_add_u32 v5, s13, v3
    v_add_u32 v6, 7, v3
    s_mov_b32 s15, 3456
    s_mov_b32 s16, 0x05040100
    s_mov_b32 s17, 0x07060302
    s_mov_b32 s18, 0x3eae1a93
    ''')
    for w in range(8):
        a(f'v_min_u32 v7, {w}, v5\nv_sub_u32 v7, v6, v7\nv_mad_u32_u24 v{8+w}, v7, s15, v4')
        a(f'v_add_u32 v{8+w}, 1152, v{8+w}\nv_add_u32 v{16+w}, 1152, v{8+w}')
    a('v_subrev_u32 v7, 1152, v8')
    a('s_waitcnt vmcnt(0)\ns_barrier')
    Q=24; K=34; V=114; L=194; O=204
    def rd(dst, ad):
        for j in range(4): a(f'ds_read2_b32 v[{dst+2*j}:{dst+2*j+1}], v{ad} offset0:{2*j} offset1:{2*j+1}')
        a(f'ds_read_b32 v{dst+8}, v{ad} offset:32')
    rd(Q,7)
    for w in range(8): rd(K+10*w, 8+w)
    a('s_waitcnt lgkmcnt(0)')
    for w in range(8): rd(V+10*w, 16+w)
    for j in range(9):
        for w in range(8):
            c = '0' if j==0 else f'v{L+w}'
            a(f'v_dot2_f32_bf16 v{L+w}, v{Q+j}, v{K+10*w+j}, {c}')
    a('s_nop 3')
    a('v_mov_b32 v7, 0xff800000')
    for w in range(1,8):
        a(f'v_cmp_le_u32 vcc, {w}, v5\ns_nop 1\nv_cndmask_b32 v{L+w}, v7, v{L+w}, vcc')
    a(f'v_max3_f32 v7, v{L}, v{L+1}, v{L+2}\nv_max3_f32 v7, v7, v{L+3}, v{L+4}\nv_max3_f32 v7, v7, v{L+5}, v{L+6}\nv_max_f32 v7, v7, v{L+7}')
    for w in range(8): a(f'v_sub_f32 v{L+w}, v{L+w}, v7')
    for w in range(8): a(f'v_mul_f32 v{L+w}, s18, v{L+w}')
    for w in range(8): a(f'v_exp_f32 v{L+w}, v{L+w}')
    a('s_nop 0')
    a(f'v_add_f32 v7, v{L}, v{L+1}')
    for w in range(2,8): a(f'v_add_f32 v7, v7, v{L+w}')
    a('v_rcp_f32 v7, v7\ns_nop 0')
    for w in range(8): a(f'v_mul_f32 v{L+w}, v{L+w}, v7')
    for w in range(4): a(f'v_cvt_pk_bf16_f32 v{L+w}, v{L+2*w}, v{L+2*w+1}')
    a('s_waitcnt lgkmcnt(0)')
    for wp in range(4):
        for j in range(9):
            t = K + 2*j
            a(f'v_perm_b32 v{t}, v{V+10*(2*wp+1)+j}, v{V+10*(2*wp)+j}, s16')
            a(f'v_perm_b32 v{t+1}, v{V+10*(2*wp+1)+j}, v{V+10*(2*wp)+j}, s17')
        for j in range(18):
            c = '0' if wp==0 else f'v{O+j}'
            a(f'v_dot2_f32_bf16 v{O+j}, v{K+j}, v{L+wp}, {c}')
    a('s_nop 3')
    for j in range(9): a(f'v_cvt_pk_bf16_f32 v{Q+j}, v{O+2*j}, v{O+2*j+1}')
    a(f'v_mul_u32_u24 v7, 1152, v3\nv_add_u32 v7, v7, v4\nv_add_u32 v7, {OST}, v7')
    for j in range(4): a(f'ds_write2_b32 v7, v{Q+2*j}, v{Q+2*j+1} offset0:{2*j} offset1:{2*j+1}')
    a(f'ds_write_b32 v7, v{Q+8} offset:32')
    a(f'''
    v_and_b32 v3, 7, v0
    v_lshrrev_b32 v4, 3, v0
    v_mul_u32_u24 v5, 1152, v3
    v_lshrrev_b32 v6, 2, v4
    v_lshl_add_u32 v5, v6, 6, v5
    v_and_b32 v6, 3, v4
    v_lshl_add_u32 v5, v6, 3, v5
    v_add_u32 v5, {OST}, v5
    v_lshlrev_b32 v6, 8, v4
    v_lshl_add_u32 v6, v3, 4, v6
    s_mul_i32 s12, s10, 18432
    s_lshl_b32 s11, s11, 7
    s_add_u32 s12, s12, s11
    s_add_u32 s12, s12, {O_OFF}
    s_add_u32 s13, s12, 8192
    s_add_u32 s14, s12, 16384
    v_cmp_gt_u32 vcc, 8, v4
    s_waitcnt lgkmcnt(0)
    s_barrier
    ds_read2_b64 v[8:11], v5 offset0:0 offset1:4
    ds_read2_b64 v[12:15], v5 offset0:64 offset1:68
    ds_read2_b64 v[16:19], v5 offset0:128 offset1:132
    s_waitcnt lgkmcnt(0)
    buffer_store_dwordx4 v[8:11], v6, s[20:23], s12 offen
    buffer_store_dwordx4 v[12:15], v6, s[20:23], s13 offen
    s_and_saveexec_b64 s[8:9], vcc
    s_cbranch_execz AT_end
    buffer_store_dwordx4 v[16:19], v6, s[20:23], s14 offen
    AT_end:
    s_endpgm
    ''')
    return kernel_desc('att_kernel', 224, 40, 224)

K2_NS = 4
K2_SPLITS = [(0,17),(17,17),(34,16),(50,16),(66,6)]
def gen_k2(a):
    NS = K2_NS
    STG = 24576
    AD = 2
    nAD = 4*(NS//2)
    DV = AD+nAD
    HV = DV+3
    PV = HV+2
    TT = PV+1
    WF = 32
    ACC = 64
    HF = 160
    OOB = 0x7ffff000
    a(kernel_header('k2_kernel'))
    a(f'''
    s_cmp_ge_u32 s2, 240
    s_cbranch_scc1 K2_end
    s_load_dwordx2 s[4:5], s[0:1], 16
    s_load_dwordx2 s[6:7], s[0:1], 48
    s_load_dwordx2 s[20:21], s[0:1], 72
    v_lshrrev_b32 v1, 6, v0
    v_and_b32 v0, 63, v0
    s_mov_b32 s22, 0x10000000
    s_mov_b32 s23, 0x20000
    v_readfirstlane_b32 s33, v1
    s_and_b32 s3, s2, 7
    s_mul_i32 s3, s3, 30
    s_lshr_b32 s30, s2, 3
    s_add_u32 s3, s3, s30
    s_mul_hi_u32 s30, s3, {(2**32+47)//48}
    s_mul_i32 s31, s30, 48
    s_sub_u32 s31, s3, s31
    s_mul_hi_u32 s32, s31, {(2**32+2)//3}
    s_mul_i32 s34, s32, 3
    s_sub_u32 s34, s31, s34
    ''')
    stamp(a,0,True); stamp(a,1)
    a('s_mov_b32 s35, 0\ns_mov_b32 s36, 17')
    for sp in range(1,5):
        a(f's_cmp_eq_u32 s30, {sp}\ns_cselect_b32 s35, {K2_SPLITS[sp][0]}, s35\ns_cselect_b32 s36, {K2_SPLITS[sp][1]}, s36')
    T=TT
    a(f'''
    v_lshrrev_b32 v{T}, 3, v0
    s_lshl_b32 s37, s33, 3
    v_add_u32 v{T}, s37, v{T}
    v_mul_u32_u24 v{T}, 1152, v{T}
    v_bfe_u32 v{T+1}, v0, 1, 2
    v_lshrrev_b32 v{T+2}, 4, v0
    v_xor_b32 v{T+1}, v{T+1}, v{T+2}
    v_lshl_add_u32 v{T}, v{T+1}, 5, v{T}
    v_and_b32 v{T+1}, 1, v0
    v_lshl_add_u32 v{T}, v{T+1}, 4, v{T}
    v_add_u32 v{DV}, 2048, v{T}
    v_add_u32 v{DV+1}, {2048+128-1024}, v{T}
    v_add_u32 v{DV+2}, {2048+256-2048}, v{T}
    ''')
    a(f'''
    v_lshrrev_b32 v{T}, 5, v0
    v_mul_u32_u24 v{T}, 3072, v{T}
    v_bfe_u32 v{T+1}, v0, 2, 3
    v_lshl_add_u32 v{T}, v{T+1}, 7, v{T}
    v_lshrrev_b32 v{T+1}, 1, v{T+1}
    v_and_b32 v{T+2}, 3, v0
    v_lshl_add_u32 v{T}, v{T+2}, 3, v{T}
    ''')
    for b in range(4):
        a(f'v_xor_b32 v{T+2}, {b}, v{T+1}\nv_lshl_add_u32 v{AD+b}, v{T+2}, 5, v{T}')
        for hs in range(1,NS//2):
            a(f'v_add_u32 v{AD+4*hs+b}, {2*STG*hs}, v{AD+b}')
    a(f'''
    s_lshl_b32 s37, s32, 3
    s_lshl_b32 s38, s33, 1
    s_add_u32 s37, s37, s38
    v_lshlrev_b32 v{T}, 4, v0
    s_mul_i32 s38, s37, 147456
    v_add_u32 v{HV}, s38, v{T}
    v_add_u32 v{HV+1}, 147456, v{HV}
    s_mul_i32 s39, s31, 5
    s_add_u32 s39, s39, s30
    s_mul_i32 s39, s39, 98304
    s_mul_i32 s38, s33, 24576
    s_add_u32 s39, s39, s38
    s_add_u32 s39, s39, {P_OFF}
    v_mov_b32 v{PV}, v{T}
    s_mul_i32 s42, s34, 384
    s_mul_i32 s43, s33, 3072
    s_waitcnt lgkmcnt(0)
    s_sub_u32 s8, s6, 2048
    s_subb_u32 s9, s7, 0
    s_mov_b32 s10, {4608*1152+2048}
    s_mov_b32 s11, 0x20000
    s_mul_i32 s44, s35, {64*1152}
    s_add_u32 s44, s44, s42
    s_lshl_b32 s45, s35, 11
    s_add_u32 s45, s45, {H_OFF}
    s_mov_b32 s48, 0
    K2_pass:
    s_mov_b32 s46, 0
    s_mov_b32 s47, 0
    ''')
    def prefetch(slot):
        L=[]
        L.append('s_cmp_lt_u32 s46, s36')
        L.append(f's_cselect_b32 s50, s44, {OOB}')
        L.append(f's_cselect_b32 s51, s45, {OOB}')
        L.append(f's_add_u32 m0, s43, {slot*STG}')
        L.append('s_add_u32 s46, s46, 1')
        for l in range(3): L.append(('v',f'buffer_load_dwordx4 v{DV+l}, s[8:11], s50 offen offset:{1024*l} lds'))
        L.append(f's_add_u32 m0, s43, {slot*STG+4*3072}')
        L.append('s_add_u32 s50, s50, 36864')
        for l in range(3): L.append(('v',f'buffer_load_dwordx4 v{DV+l}, s[8:11], s50 offen offset:{1024*l} lds'))
        L.append(f's_add_u32 s44, s44, {64*1152}')
        L.append('s_add_u32 s45, s45, 2048')
        return L
    def hload(slot, ks, i):
        r = HF + slot*16 + (ks*2+i)*4
        return f'buffer_load_dwordx4 v[{r}:{r+3}], v{HV+i}, s[20:23], s51 offen offset:{ks*1024}'
    for r in range(96): a(f'v_mov_b32 v{ACC+r}, 0')
    for st in range(NS-1):
        for x in prefetch(st): a(x[1] if isinstance(x,tuple) else x)
        for ks in range(2):
            for i in range(2): a(hload(st,ks,i))
    a(f's_waitcnt vmcnt({10*(NS-2)})\ns_barrier')
    stamp(a,2)
    def rd(slot, t, half):
        ks, b = t//12, t%12
        w = WF + (t%6)*4 + 2*half
        ad = AD + 4*(slot//2) + (b&3)
        off = (slot%2)*STG + ks*12288 + (b//4)*1024 + half*6144
        return f'ds_read_b64_tr_b16 v[{w}:{w+1}], v{ad} offset:{off}'
    for t in range(6): a(rd(0,t,0)); a(rd(0,t,1))
    a('K2_loop:')
    for slot in range(NS):
        ps = (slot-1)%NS
        pf = prefetch(ps)
        hl = [('v',hload(ps,ks,i)) for ks in range(2) for i in range(2)]
        extra = pf[:8] + hl[:2] + pf[8:13] + hl[2:] + pf[13:]
        k=0
        for t in range(24):
            if t%2==0: a('s_waitcnt lgkmcnt(8)' if t>0 or True else '')
            ks, b = t//12, t%12
            w = WF + (t%6)*4
            for i in range(2):
                D = ACC + (b*2+i)*4
                h = HF + slot*16 + (ks*2+i)*4
                a(f'v_mfma_f32_16x16x32_bf16 {vr(D,4)}, {vr(w,4)}, {vr(h,4)}, {vr(D,4)}')
                if i==0 and t>=1 and k<len(extra):
                    x=extra[k]; k+=1; a(x[1] if isinstance(x,tuple) else x)
                    if t%2==1 and k<len(extra):
                        x=extra[k]; k+=1; a(x[1] if isinstance(x,tuple) else x)
                if i==1:
                    tn=t+6
                    if tn==24:
                        a(f's_waitcnt vmcnt({10*(NS-2)})\ns_barrier')
                    s2 = slot if tn<24 else (slot+1)%NS
                    a(rd(s2,tn%24,0)); a(rd(s2,tn%24,1))
        assert k==len(extra)
        a('s_add_u32 s47, s47, 1\ns_cmp_ge_u32 s47, s36')
        if slot<NS-1: a('s_cbranch_scc1 K2_done')
        else: a('s_cbranch_scc0 K2_loop')
    a('K2_done:')
    stamp(a,3)
    a('s_waitcnt vmcnt(0) lgkmcnt(0)\ns_nop 7\ns_barrier')
    for g in range(6):
        for j in range(4):
            r = ACC + (g*4+j)*4
            a(f'buffer_store_dwordx4 v[{r}:{r+3}], v{PV}, s[20:23], s39 offen offset:{j*1024}')
        a('s_add_u32 s39, s39, 4096')
    a(f'''
    s_cmp_lg_u32 s30, 4
    s_cbranch_scc1 K2_fin
    s_cmp_lg_u32 s48, 0
    s_cbranch_scc1 K2_fin
    s_mov_b32 s48, 1
    s_sub_u32 s8, s4, 2048
    s_subb_u32 s9, s5, 0
    s_mov_b32 s10, {576*1152+2048}
    s_mov_b32 s44, s42
    s_mov_b32 s45, {O_OFF}
    s_mov_b32 s36, 9
    s_mul_i32 s38, s37, 18432
    v_lshlrev_b32 v{T}, 4, v0
    v_add_u32 v{HV}, s38, v{T}
    v_add_u32 v{HV+1}, 18432, v{HV}
    s_mul_i32 s39, s31, 98304
    s_mul_i32 s38, s33, 24576
    s_add_u32 s39, s39, s38
    s_add_u32 s39, s39, {S_OFF}
    s_branch K2_pass
    K2_fin:
    ''')
    stamp(a,4)
    if PROF: a('s_waitcnt vmcnt(0)')
    stamp(a,5); stamp(a,6,True); dump_stamps(a,7,kidx=1)
    a('K2_end:\ns_endpgm')
    return kernel_desc('k2_kernel', 160+16*NS, 100, 160+16*NS)

def gen_k3(a):
    a(kernel_header('k3_kernel'))
    a(f'''
    s_cmp_ge_u32 s2, 1152
    s_cbranch_scc1 K3_end
    s_load_dwordx2 s[4:5], s[0:1], 0
    s_load_dwordx2 s[6:7], s[0:1], 56
    s_load_dwordx2 s[20:21], s[0:1], 72
    v_lshrrev_b32 v1, 6, v0
    v_and_b32 v0, 63, v0
    s_mov_b32 s22, 0x10000000
    s_mov_b32 s23, 0x20000
    v_readfirstlane_b32 s33, v1
    s_mul_hi_u32 s30, s2, {(2**32+23)//24}
    s_mul_i32 s31, s30, 24
    s_sub_u32 s31, s2, s31
    s_lshl_b32 s31, s31, 2
    s_add_u32 s31, s31, s33
    v_lshlrev_b32 v2, 4, v0
    s_lshl_b32 s32, s31, 10
    s_mul_i32 s34, s30, {5*98304}
    s_add_u32 s34, s34, s32
    s_add_u32 s34, s34, {P_OFF}
    s_add_u32 s35, s34, 98304
    s_add_u32 s36, s34, {2*98304}
    s_add_u32 s37, s34, {3*98304}
    s_add_u32 s38, s34, {4*98304}
    s_mul_i32 s39, s30, 98304
    s_add_u32 s39, s39, s32
    s_add_u32 s39, s39, {S_OFF}
    s_waitcnt lgkmcnt(0)
    buffer_load_dwordx4 v[8:11], v2, s[20:23], s34 offen
    buffer_load_dwordx4 v[12:15], v2, s[20:23], s35 offen
    buffer_load_dwordx4 v[16:19], v2, s[20:23], s36 offen
    buffer_load_dwordx4 v[20:23], v2, s[20:23], s37 offen
    buffer_load_dwordx4 v[24:27], v2, s[20:23], s38 offen
    buffer_load_dwordx4 v[28:31], v2, s[20:23], s39 offen
    s_mul_hi_u32 s40, s30, {(2**32+2)//3}
    s_mul_i32 s41, s40, 3
    s_sub_u32 s41, s30, s41
    s_mul_hi_u32 s42, s31, {(2**32+23)//24}
    s_mul_i32 s43, s42, 24
    s_sub_u32 s43, s31, s43
    s_lshl_b32 s44, s40, 3
    s_lshl_b32 s45, s42, 1
    s_add_u32 s44, s44, s45
    s_and_b32 s45, s43, 1
    s_add_u32 s44, s44, s45
    s_lshl_b32 s44, s44, 4
    s_lshr_b32 s45, s43, 1
    s_lshl_b32 s45, s45, 5
    s_mul_i32 s46, s41, 384
    s_add_u32 s45, s45, s46
    v_and_b32 v3, 7, v0
    v_lshlrev_b32 v3, 1, v3
    v_bfe_u32 v4, v0, 3, 1
    v_add3_u32 v3, v3, v4, s44
    v_mul_u32_u24 v3, 1152, v3
    v_lshrrev_b32 v4, 4, v0
    v_lshl_add_u32 v3, v4, 3, v3
    v_add_u32 v3, s45, v3
    global_load_dwordx2 v[32:33], v3, s[4:5]
    s_mov_b32 s40, 0xbfb8aa3b
    s_waitcnt vmcnt(2)
    ''')
    for r in range(4):
        a(f'v_add_f32 v{8+r}, v{8+r}, v{12+r}\nv_add_f32 v{16+r}, v{16+r}, v{20+r}\nv_add_f32 v{8+r}, v{8+r}, v{24+r}\nv_add_f32 v{8+r}, v{8+r}, v{16+r}')
    for r in range(4): a(f'v_mul_f32 v{12+r}, s40, v{8+r}')
    for r in range(4): a(f'v_exp_f32 v{12+r}, v{12+r}')
    for r in range(4): a(f'v_add_f32 v{12+r}, 1.0, v{12+r}')
    for r in range(4): a(f'v_rcp_f32 v{12+r}, v{12+r}')
    for r in range(4): a(f'v_mul_f32 v{12+r}, v{12+r}, v{8+r}')
    a('''
    s_waitcnt vmcnt(0)
    v_lshlrev_b32 v16, 16, v32
    v_and_b32 v17, 0xffff0000, v32
    v_lshlrev_b32 v18, 16, v33
    v_and_b32 v19, 0xffff0000, v33
    ''')
    for r in range(4): a(f'v_fmac_f32 v{16+r}, v{12+r}, v{28+r}')
    a('''
    v_cvt_pk_bf16_f32 v20, v16, v17
    v_cvt_pk_bf16_f32 v21, v18, v19
    global_store_dwordx2 v3, v[20:21], s[6:7]
    K3_end:
    s_endpgm
    ''')
    return kernel_desc('k3_kernel', 40, 56, 40)

def build(kernels):
    a = Asm()
    hdr = open('recurrent_scan__sliding_local_dilated__swiglu_ffn__prompt.s.ref').read().split('\n')
    head = [l for l in hdr if l.startswith(';') and '@launch' not in l and 'Override' not in l and 'grid=ceil' not in l]
    launches = {
        'ln': '; @launch kernel=ln_kernel grid=(256,1,1) block=(256,1,1) lds=0',
        'k1': '; @launch kernel=k1_kernel grid=(256,1,1) block=(256,1,1) lds=147456',
        'att': '; @launch kernel=att_kernel grid=(256,1,1) block=(256,1,1) lds=63488',
        'k2': f'; @launch kernel=k2_kernel grid=(240,1,1) block=(256,1,1) lds={24576*K2_NS}',
        'k3': '; @launch kernel=k3_kernel grid=(1152,1,1) block=(256,1,1) lds=0',
    }
    gens = {'ln': gen_ln, 'k1': gen_k1, 'att': gen_att, 'k2': gen_k2, 'k3': gen_k3}
    descs = []
    for k in kernels: descs.append(gens[k](a))
    s = '\n'.join(head) + '\n' + '\n'.join(launches[k] for k in kernels) + '\n'
    s += '.amdgcn_target "amdgcn-amd-amdhsa--gfx950"\n.text\n' + a.text()
    s += '.section .rodata,"a"\n' + ''.join('.p2align 6\n' + d for d in descs)
    return s

if __name__ == '__main__':
    if len(sys.argv)>3 and sys.argv[3]=='prof': PROF=True
    open(sys.argv[1], 'w').write(build(sys.argv[2].split(',')))
```

```python
import sys
from asmlib import *
import gen as G1
from gen import XN_OFF,O_OFF,QKV_OFF,H_OFF,P_OFF,S_OFF,PROF_OFF,VM
import gen

def stamp(a,i,rt=False): gen.stamp(a,i,rt)

FREE_NV=0
class Sched:
    def __init__(self, nm, cap=2):
        self.nm=nm; self.cap=cap
        self.fill=[[] for _ in range(nm)]
        self.post=[[] for _ in range(nm)]
        self.pre=[[] for _ in range(nm+1)]
        self.load=[0]*nm
        self.nv=[0]*nm
        self.tail=[]
    def _acct(self,m,ins,cost):
        if ins.startswith('v_'): self.load[m]+=cost
        else:
            self.nv[m]+=cost
            if self.nv[m]>FREE_NV: self.load[m]+=min(cost,self.nv[m]-FREE_NV)
    def add_post(self,m,ins,cost=1):
        m=min(m,self.nm-1); self.post[m].append(ins); self._acct(m,ins,cost)
    def add_pre(self,m,ins,cost=1):
        self.pre[m].append(ins)
        if m>0: self._acct(m-1,ins,cost)
    def add_fill(self,m,item):
        self.fill[m].append(item); self._acct(m,item[0],item[1])
    def chains(self, chains, lo, hi, nq, pace=False):
        total=sum(x[1] for c in chains for p in c for x in p)
        free=sum(max(0,self.cap-self.load[m]) for m in range(lo,hi))
        over=max(0,total-int(free*0.97))
        st=[[0,0,-1] for _ in chains]
        done_gap=[None]*len(chains)
        placed=0; ov=0.0
        m=lo
        while any(d is None for d in done_gap):
            mm=min(m,self.nm-1)
            capl=self.cap-self.load[mm]
            ov+=over/(hi-lo)
            if ov>=1: capl+=1; ov-=1
            if m>=hi: capl=max(capl,3)
            if pace and over==0 and m<hi:
                allowed=total*(m-lo+1)/(hi-lo)-placed
                capl=min(capl,int(allowed+0.999))
            while capl>0:
                cands=[]
                for k,c in enumerate(chains):
                    if done_gap[k] is not None: continue
                    if k>=nq and (done_gap[k-nq] is None or done_gap[k-nq]>m-2): break
                    ph,ix,pg=st[k]
                    if ix==0 and pg>=m: continue
                    cands.append(k)
                pick=None
                if capl>=2:
                    for k in cands:
                        if chains[k][st[k][0]][st[k][1]][1]>=2: pick=k;break
                if pick is None:
                    for k in cands:
                        if chains[k][st[k][0]][st[k][1]][1]<=capl: pick=k;break
                if pick is None: break
                ph,ix,pg=st[pick]
                it=chains[pick][ph][ix]
                if m<self.nm:
                    self.fill[mm].append(it); self.load[mm]+=it[1]
                else: self.tail.append(it)
                capl-=it[1]; placed+=it[1]
                ix+=1
                if ix==len(chains[pick][ph]):
                    ph+=1; ix=0; pg=m
                    if ph==len(chains[pick]): done_gap[pick]=m
                st[pick]=[ph,ix,pg]
            m+=1
            assert m<hi+400
        return m
    def emit(self,a,vm,mfma,lds_init,special):
        lds=list(lds_init)
        def out(s):
            nonlocal lds
            if s.startswith('WAITL'):
                need=int(s[5:].split(':')[0]); slack=int(s.split(':')[1]) if ':' in s else 0
                c=[i for i,x in enumerate(lds) if x<=need]
                if c:
                    idx=max(c); n=max(0,len(lds)-1-idx-slack)
                    a(f's_waitcnt lgkmcnt({min(n,15)})'); lds=lds[idx+1:]
            elif s.startswith('@'):
                special(s[1:])
            else:
                if ';tag=' in s:
                    s,t=s.split(';tag='); lds.append(int(t))
                a(s)
        for s in self.pre[0]: out(s)
        for m in range(self.nm):
            a(mfma(m))
            items=[(f[0],f[2] if len(f)>2 else None) for f in self.fill[m]]+[(s,None) for s in self.post[m]]
            late=[s for s in self.pre[m+1] if s.startswith('@')]
            waits=[s for s in self.pre[m+1] if not s.startswith('@')]
            nv=[x for x in items if not x[0].startswith('v_')]
            va=[x for x in items if x[0].startswith('v_')]
            if not late:
                for s in waits: out(s)
            for x in nv+va:
                out(x[0])
                if x[1]: vm.issue(x[1])
            if late:
                for s in late+waits: out(s)
        for f in self.tail:
            out(f[0])
            if len(f)>2: vm.issue(f[2])

V_AD=2; V_NB=6; V_DA=10; V_DI=12; V_HST=14; V_QST=15; V_WF=16; V_SG=32; V_ACC=(64,128); V_X=192; V_T=224
V_BN=240
V_ZA=244
V_QA=246
V_UA=248
V_QI=250
V_XO=252
HALF=73728
def xreg(i,ks): return G1.xreg(i,ks)

def ch_epiG(acc):
    ch=[]
    n=0
    for b in range(4):
        for i in range(4):
            A=acc+(b*4+i)*4; T=V_T+(n%4)*4; n+=1; S=V_SG+(b*4+i)*2
            ch.append([
              [(f'v_mul_f32 v{T+r}, s40, v{A+r}',1) for r in range(4)],
              [(f'v_exp_f32 v{T+r}, v{T+r}',2) for r in range(4)],
              [(f'v_add_f32 v{T+r}, 1.0, v{T+r}',1) for r in range(4)],
              [(f'v_rcp_f32 v{T+r}, v{T+r}',2) for r in range(4)],
              [(f'v_mul_f32 v{T+r}, v{T+r}, v{A+r}',1) for r in range(4)],
              [(f'v_cvt_pk_bf16_f32 v{S}, v{T}, v{T+1}',1),(f'v_cvt_pk_bf16_f32 v{S+1}, v{T+2}, v{T+3}',1)]])
    return ch,4
STF=''
def ch_epiU(acc):
    ch=[]; n=0
    for p in range(2):
        for i in range(4):
            T=V_T+(n%2)*8; n+=1
            p1=[];p2=[]
            for hb in range(2):
                b=2*p+hb; A=acc+(b*4+i)*4; S=V_SG+(b*4+i)*2; t=T+4*hb
                p1+=[(f'v_lshlrev_b32 v{t}, 16, v{S}',1),(f'v_and_b32 v{t+1}, s41, v{S}',1),
                     (f'v_lshlrev_b32 v{t+2}, 16, v{S+1}',1),(f'v_and_b32 v{t+3}, s41, v{S+1}',1)]
                p2+=[(f'v_mul_f32 v{t+r}, v{t+r}, v{A+r}',1) for r in range(4)]
            p3=[(f'v_cvt_pk_bf16_f32 v{T+j}, v{T+2*j}, v{T+2*j+1}',1) for j in range(4)]
            p4=[(f'buffer_store_dwordx4 v[{T}:{T+3}], v{V_HST}, s[20:23], s{44+i} offen offset:{p*1024}{STF}',2,'st')]
            ch.append([p1,p2,p3,p4])
    return ch,2
def ch_epiQ(acc,b0,coff):
    ch=[]
    for i in range(4):
        D=V_T+(i%4)*4
        p1=[]
        for hb in range(2):
            A=acc+((b0+hb)*4+i)*4
            p1+=[(f'v_cvt_pk_bf16_f32 v{D+2*hb}, v{A}, v{A+1}',1),(f'v_cvt_pk_bf16_f32 v{D+2*hb+1}, v{A+2}, v{A+3}',1)]
        ch.append([p1,[(f'buffer_store_dwordx4 v[{D}:{D+3}], v{V_QST}, s[20:23], s{48+i} offen offset:{coff}{STF}',2,'st')]])
    return ch,4
def flat(ch):
    out=[]
    np_=max(len(c) for c in ch)
    for p in range(np_):
        for c in ch:
            if p<len(c): out+= [x[0] for x in c[p]]
    return out
def epiZ_tail(a,acc):
    ch=[]
    for i in range(4):
        Gr=acc+i*4; U=acc+(4+i)*4; T=V_T+i*4; D=V_SG+2*i
        ch.append([
          [(f'v_mul_f32 v{T+r}, s40, v{Gr+r}',1) for r in range(4)],
          [(f'v_exp_f32 v{T+r}, v{T+r}',2) for r in range(4)],
          [(f'v_add_f32 v{T+r}, 1.0, v{T+r}',1) for r in range(4)],
          [(f'v_rcp_f32 v{T+r}, v{T+r}',2) for r in range(4)],
          [(f'v_mul_f32 v{T+r}, v{T+r}, v{Gr+r}',1) for r in range(4)],
          [(f'v_cvt_pk_bf16_f32 v{T}, v{T}, v{T+1}',1),(f'v_cvt_pk_bf16_f32 v{T+2}, v{T+2}, v{T+3}',1)],
          [(f'v_and_b32 v{T+1}, s41, v{T}',1),(f'v_lshlrev_b32 v{T}, 16, v{T}',1),(f'v_and_b32 v{T+3}, s41, v{T+2}',1),(f'v_lshlrev_b32 v{T+2}, 16, v{T+2}',1)],
          [(f'v_mul_f32 v{T+r}, v{T+r}, v{U+r}',1) for r in range(4)],
          [(f'v_cvt_pk_bf16_f32 v{D}, v{T}, v{T+1}',1),(f'v_cvt_pk_bf16_f32 v{D+1}, v{T+2}, v{T+3}',1)],
          [(f'buffer_store_dwordx2 v[{D}:{D+1}], v{V_HST}, s[20:23], s{44+i} offen{STF}',2,'st')]])
    for s in flat(ch): a(s)

def body(a, vm, accset, epi, kind='full', dma=True, last=False, midbar=False, extra=None):
    acc=V_ACC[accset]
    ns=72 if kind=='full' else 36
    nm=ns*4
    S=Sched(nm)
    step=4096 if kind=='full' else 8192
    mid=9 if kind=='full' else 5
    def rd_off(t):
        g=t//4
        return (g*step if g<mid else (g-mid)*step), g>=mid
    for t in range(ns):
        m0=t*4
        if t%2==0: S.add_pre(m0,f'WAITL{min(t+1,ns-1)}')
        tn=t+4; w=V_WF+(t%4)*4; ad=V_AD+(t%4)
        if tn<ns:
            off,hi=rd_off(tn); _,hip=rd_off(t)
            if hi and not hip: S.add_post(m0+1,f'v_add_u32 v{ad}, {mid*step}, v{ad}')
            S.add_post(m0+3,f'ds_read_b64_tr_b16 v[{w}:{w+1}], v{ad} offset:{off};tag={tn}')
            S.add_post(m0+4,f'ds_read_b64_tr_b16 v[{w+2}:{w+3}], v{ad} offset:{off+512};tag={tn}')
        elif not last:
            S.add_post(m0+1,f'v_mov_b32 v{ad}, v{V_NB+(t%4)}')
            if tn==ns: S.add_post(m0+2,'@SUB',2)
            S.add_post(m0+3,f'ds_read_b64_tr_b16 v[{w}:{w+1}], v{ad} offset:0;tag={tn}')
            S.add_post(m0+4,f'ds_read_b64_tr_b16 v[{w+2}:{w+3}], v{ad} offset:512;tag={tn}')
    if dma:
        for n in range(18):
            m=(n//2)*16+(n%2)*8+1
            S.add_fill(m,('s_add_u32 m0, m0, 4096',1))
            S.add_fill(m+1,(f'global_load_lds_dwordx4 v[{V_DA}:{V_DA+1}], off',1,'dma'))
            S.add_fill(m+1,(f'v_lshl_add_u64 v[{V_DA}:{V_DA+1}], v[{V_DI}:{V_DI+1}], 0, v[{V_DA}:{V_DA+1}]',1))
    if midbar: S.add_post(9*16+1,'@MID',2)
    if extra:
        for m,it in extra: S.add_fill(m,it)
    if epi:
        ch,nq=epi
        S.chains(ch,1,nm-6,nq,pace=True)
    def mf(m):
        t=m//4;i=m%4
        ks,b=(t//4,t%4) if kind=='full' else (t//2,t%2)
        D=acc+(b*4+i)*4; w=V_WF+(t%4)*4
        return f'v_mfma_f32_16x16x32_bf16 {vr(D,4)}, {vr(w,4)}, {xreg(i,ks)}, {"0" if ks==0 else vr(D,4)}'
    def special(n):
        if n=='SUB':
            a(f's_waitcnt vmcnt({vm.wait_n("dma")})\ns_barrier')
        elif n=='MID':
            a(f's_waitcnt vmcnt({min(63,len(vm.ops))})\ns_barrier')
    S.emit(a,vm,mf,[0,0,1,1,2,2,3,3],special)

FD=5
def grp_items(g):
    L=[(f's_add_u32 m0, s66, {g*4096}',1),
       (f'global_load_lds_dwordx4 v[{V_DA}:{V_DA+1}], off',1,f'g{g}'),
       (f's_add_u32 m0, s66, {HALF+g*4096}',1),
       (f'v_lshl_add_u64 v[{V_DA}:{V_DA+1}], v[{V_DI}:{V_DI+1}], 0, v[{V_DA}:{V_DA+1}]',1),
       (f'global_load_lds_dwordx4 v[{V_QA}:{V_QA+1}], off',1,f'g{g}'),
       (f'v_lshl_add_u64 v[{V_QA}:{V_QA+1}], v[{V_QI}:{V_QI+1}], 0, v[{V_QA}:{V_QA+1}]',1)]
    for i in range(4):
        L.append((f'buffer_load_dwordx4 {xreg(i,g)}, v{V_XO+i}, s[20:23], s{52+g//4} offen offset:{(g%4)*1024}',1,f'g{g}'))
    return L
def u0_items(g):
    return [(f's_add_u32 m0, s66, {HALF+g*4096}',1),
            (f'global_load_lds_dwordx4 v[{V_UA}:{V_UA+1}], off',1,f'u{g}'),
            (f'v_lshl_add_u64 v[{V_UA}:{V_UA+1}], v[{V_DI}:{V_DI+1}], 0, v[{V_UA}:{V_UA+1}]',1)]

def bodyF(a, vm):
    nm=18*32
    S=Sched(nm)
    def regs(sl):
        if sl<4: return V_SG+sl*4, V_NB+sl, V_ACC[1]+sl*16
        return V_WF+(sl-4)*4, V_AD+(sl-4), V_ACC[0]+(sl-4)*16
    for ks in range(18):
        for sl in range(8):
            t=ks*8+sl; m0=t*4
            w,ad,_=regs(sl)
            if sl==2: S.add_pre(m0,f'@SKIP{ks}')
            if sl==4: S.pre[m0].append(f'@LAB{ks}')
            if sl%2==0: S.add_pre(m0,f'WAITL{t+1}:4')
            kn=ks+1
            m2 = m0+4 if sl not in (1,3) else m0+3
            if kn<18:
                if kn==9: S.add_post(m0+1,f'v_add_u32 v{ad}, 36864, v{ad}')
                off=(kn%9)*4096
                S.add_post(m0+3,f'ds_read_b64_tr_b16 v[{w}:{w+1}], v{ad} offset:{off};tag={t+8}')
                S.add_post(m2,f'ds_read_b64_tr_b16 v[{w+2}:{w+3}], v{ad} offset:{off+512};tag={t+8}')
            elif sl>=4:
                S.add_post(m0+1,f'v_add_u32 v{ad}, {HALF}, v{V_BN+sl-4}')
                if sl==4: S.add_post(m0+2,'@SUB',2)
                S.add_post(m0+3,f'ds_read_b64_tr_b16 v[{w}:{w+1}], v{ad} offset:0;tag={t+8}')
                S.add_post(m2,f'ds_read_b64_tr_b16 v[{w+2}:{w+3}], v{ad} offset:512;tag={t+8}')
        base=ks*32
        if ks<17: S.add_post(base+1,f'@READY{ks+1}',2)
        mand=[base+2,base+4,base+5,base+6]+[base+16+j for j in (0,1,2,4,5,6,8,9,10,12,13,14)]
        items=[]
        if ks+FD<18: items+=grp_items(ks+FD)
        if 1<=ks<17: items+=u0_items(ks-1)
        if ks<17:
            for j,it in enumerate(items): S.add_fill(mand[j],it)
        else:
            its=u0_items(16)+u0_items(17)
            for j,it in enumerate(its): S.add_fill(base+16+4+j,it)
    ch,nq=ch_epiQ(V_ACC[1],0,0)
    S.chains(ch,17*32+18,nm,nq)
    def mf(m):
        t=m//4;i=m%4;ks=t//8;sl=t%8
        w,_,ac=regs(sl); D=ac+i*4
        return f'v_mfma_f32_16x16x32_bf16 {vr(D,4)}, {vr(w,4)}, {xreg(i,ks)}, {"0" if ks==0 else vr(D,4)}'
    def special(n):
        if n.startswith('SKIP'): a(f's_cbranch_vccz KF_s{n[4:]}')
        elif n.startswith('LAB'): a(f'KF_s{n[3:]}:')
        elif n.startswith('READY'):
            a(f's_waitcnt vmcnt({vm.wait_n("g"+n[5:])})\ns_barrier')
        elif n=='SUB':
            a(f's_waitcnt vmcnt({vm.wait_n("u10")})\ns_barrier')
    S.emit(a,vm,mf,[t for t in range(8) for _ in range(2)],special)

MAP42=False
def decode_cg(a):
    if not MAP42:
        a('s_and_b32 s30, s2, 7\ns_lshr_b32 s31, s2, 3\ns_and_b32 s31, s31, 3\ns_lshr_b32 s32, s2, 5')
    else:
        a('''
        s_bfe_u32 s30, s2, 0x20001
        s_lshl_b32 s30, s30, 1
        s_bfe_u32 s31, s2, 0x10005
        s_add_u32 s30, s30, s31
        s_bfe_u32 s31, s2, 0x20003
        s_and_b32 s32, s2, 1
        s_lshl_b32 s32, s32, 2
        s_lshr_b32 s3, s2, 6
        s_add_u32 s32, s32, s3
        ''')
def decode_q(a, lab):
    a(f'''
    s_mul_i32 s62, s30, 3
    s_add_u32 s62, s62, s31
    s_lshl_b32 s62, s62, 7
    s_add_u32 s64, s30, 44
    s_lshl_b32 s64, s64, 6
    s_cmp_lt_u32 s31, 3
    s_cselect_b32 s63, 1, 0
    s_cmp_lt_u32 s30, 6
    s_cbranch_scc1 {lab}
    s_lshl_b32 s62, s30, 1
    s_add_u32 s62, s62, s31
    s_add_u32 s64, s62, 36
    s_lshl_b32 s64, s64, 6
    s_add_u32 s62, s62, 6
    s_lshl_b32 s62, s62, 7
    s_cmp_lt_u32 s31, 2
    s_cselect_b32 s63, 1, 0
    {lab}:
    s_cmp_eq_u32 s63, 1
    s_cselect_b32 s62, s62, s64
    ''')
TOUCH0=True
_old_ln=gen.gen_ln
def gen_ln(a, mimic=True):
    b=Asm()
    d=_old_ln(b,mimic)
    txt=b.L
    if TOUCH0:
        t=Asm()
        t('s_load_dwordx2 s[12:13], s[0:1], 8\ns_load_dwordx4 s[16:19], s[0:1], 32')
        i0=[i for i,l in enumerate(txt) if 's_load_dwordx2 s[6:7]' in l][0]
        txt[i0+1:i0+1]=t.L
        t=Asm()
        decode_cg(t); decode_q(t,'LN_qok')
        nrow = 144 if MAP42 else 72
        t(f'''
        s_and_b32 s33, s32, {3 if MAP42 else 7}
        s_mul_i32 s33, s33, {nrow}
        v_add_u32 v53, s33, v0
        s_mul_i32 s36, s30, 1152
        s_lshl_b32 s37, s31, 8
        s_add_u32 s37, s37, s36
        v_mul_u32_u24 v54, 9216, v53
        v_add_u32 v54, s37, v54
        v_mul_u32_u24 v53, 3456, v53
        v_add_u32 v53, s62, v53
        v_cmp_gt_u32 s[34:35], {nrow if nrow<=64 else 's38'}, v0
        '''.replace('v_cmp_gt_u32', f's_mov_b32 s38, {nrow}\nv_cmp_gt_u32'))
        t('''
        s_and_saveexec_b64 s[36:37], s[34:35]
        s_cbranch_execz LN_not
        global_load_dword v55, v54, s[16:17]
        global_load_dword v55, v53, s[12:13]
        global_load_dword v55, v54, s[18:19]
        LN_not:
        s_mov_b64 exec, s[36:37]
        ''')
        i1=[i for i,l in enumerate(txt) if 's_mov_b64 exec, s[8:9]' in l][0]
        txt[i1+1:i1+1]=t.L
        i2=[i for i,l in enumerate(txt) if 's_waitcnt vmcnt(0)' in l][0]
        txt[i2]='    LN_WAIT'
        d=d.replace('next_free_sgpr 16','next_free_sgpr 72')
    for l in txt:
        if 'LN_WAIT' in l:
            a('s_cmp_eq_u64 s[34:35], 0\ns_cbranch_scc1 LN_w0\ns_waitcnt vmcnt(3)\ns_branch LN_w1\nLN_w0:\ns_waitcnt vmcnt(0)\nLN_w1:')
        else: a.L.append(l)
    return d
gen.gen_ln=gen_ln
def gen_k1(a):
    a(kernel_header('k1_kernel'))
    a('''
    s_cmp_ge_u32 s2, 256
    s_cbranch_scc1 K1_end
    s_load_dwordx2 s[4:5], s[0:1], 8
    s_load_dwordx4 s[8:11], s[0:1], 32
    s_load_dwordx2 s[20:21], s[0:1], 72
    v_lshrrev_b32 v1, 6, v0
    v_and_b32 v0, 63, v0
    ''')
    decode_cg(a)
    a('''
    v_readfirstlane_b32 s33, v1
    s_mov_b32 s22, 0x10000000
    s_mov_b32 s23, 0x20000
    s_mov_b32 s40, 0xbfb8aa3b
    s_mov_b32 s41, 0xffff0000
    ''')
    stamp(a,0,True); stamp(a,1)
    T=V_T
    a(f'''
    s_lshl_b32 s34, s32, 4
    s_lshl_b32 s35, s33, 2
    s_add_u32 s34, s34, s35
    s_mul_i32 s35, s34, 18432
    v_lshlrev_b32 v{T}, 4, v0
    v_add_u32 v{V_XO}, s35, v{T}
    v_add_u32 v{V_XO+1}, 18432, v{V_XO}
    v_add_u32 v{V_XO+2}, 36864, v{V_XO}
    v_add_u32 v{V_XO+3}, 55296, v{V_XO}
    s_mul_i32 s35, s34, 147456
    v_add_u32 v{V_HST}, s35, v{T}
    s_lshl_b32 s66, s33, 10
    ''')
    for g in range(5): a(f's_mov_b32 s{52+g}, {XN_OFF+g*4096}')
    decode_q(a,'K1_qok')
    a('''
    s_cselect_b32 s67, 3, 1
    s_mov_b32 s64, s63
    s_mov_b32 s65, 0
    ''')
    a(f'''
    v_lshrrev_b32 v{T}, 3, v0
    s_lshl_b32 s35, s33, 3
    v_add_u32 v{T}, s35, v{T}
    v_bfe_u32 v{T+1}, v0, 1, 2
    v_bfe_u32 v{T+2}, v0, 4, 1
    s_and_b32 s35, s33, 1
    s_lshl_b32 s35, s35, 1
    v_or_b32 v{T+2}, s35, v{T+2}
    v_xor_b32 v{T+1}, v{T+1}, v{T+2}
    v_and_b32 v{T+2}, 1, v0
    v_lshlrev_b32 v{T+2}, 4, v{T+2}
    v_mul_u32_u24 v{T+4}, 9216, v{T}
    v_add_u32 v{T+4}, v{T+4}, v{T+2}
    v_mov_b32 v{T+5}, 0
    v_mul_u32_u24 v{T+6}, 3456, v{T}
    v_add_u32 v{T+6}, v{T+6}, v{T+2}
    v_and_b32 v{T+3}, s67, v{T+1}
    v_lshl_add_u32 v{T+6}, v{T+3}, 5, v{T+6}
    v_mov_b32 v{T+7}, 0
    v_lshl_add_u32 v{T+8}, v{T+1}, 5, v{T+4}
    v_mov_b32 v{T+9}, 0
    s_mul_i32 s36, s30, 1152
    s_lshl_b32 s37, s31, 8
    s_add_u32 s37, s37, s36
    s_lshl_b32 s38, s31, 5
    s_add_u32 s38, s38, s36
    s_add_u32 s38, s38, 1024
    v_mov_b32 v{V_DI}, 294912
    v_mov_b32 v{V_DI+1}, 0
    v_mov_b32 v{V_QI}, 110592
    v_mov_b32 v{V_QI+1}, 0
    s_waitcnt lgkmcnt(0)
    s_add_u32 s12, s8, s37
    s_addc_u32 s13, s9, 0
    s_add_u32 s16, s4, s62
    s_addc_u32 s17, s5, 0
    v_lshl_add_u64 v[{V_DA}:{V_DA+1}], v[{T+8}:{T+9}], 0, s[12:13]
    v_lshl_add_u64 v[{V_QA}:{V_QA+1}], v[{T+6}:{T+7}], 0, s[16:17]
    ''')
    vm=VM()
    for g in range(FD):
        its=grp_items(g)
        for j,it in enumerate(its):
            a(it[0])
            if j==0: a('s_nop 0')
            if len(it)>2: vm.issue(it[2])
    a(f'''
    s_add_u32 s14, s10, s37
    s_addc_u32 s15, s11, 0
    v_lshl_add_u64 v[{V_UA}:{V_UA+1}], v[{T+8}:{T+9}], 0, s[14:15]
    s_sub_u32 s58, s10, s8
    s_subb_u32 s59, s11, s9
    s_sub_u32 s58, s58, 5308416
    s_subb_u32 s59, s59, 0
    s_mov_b32 s60, {(-5308416+128)&0xffffffff}
    s_mov_b32 s61, -1
    s_add_u32 s12, s8, s38
    s_addc_u32 s13, s9, 0
    s_add_u32 s14, s10, s38
    s_addc_u32 s15, s11, 0
    v_lshl_add_u64 v[{V_ZA}:{V_ZA+1}], v[{T+4}:{T+5}], 0, s[12:13]
    v_lshl_add_u64 v[{T+12}:{T+13}], v[{T+4}:{T+5}], 0, s[14:15]
    v_and_b32 v{T+3}, 1, v{T+1}
    v_cmp_eq_u32 vcc, 1, v{T+3}
    s_nop 1
    v_cndmask_b32 v{V_ZA}, v{V_ZA}, v{T+12}, vcc
    v_cndmask_b32 v{V_ZA+1}, v{V_ZA+1}, v{T+13}, vcc
    v_lshrrev_b32 v{T}, 4, v0
    v_bfe_u32 v{T+1}, v0, 2, 2
    v_lshl_add_u32 v{T+2}, v{T}, 3, v{T+1}
    v_lshlrev_b32 v{T+2}, 7, v{T+2}
    v_lshrrev_b32 v{T+1}, 1, v{T+1}
    v_and_b32 v{T}, 1, v{T}
    v_lshl_or_b32 v{T+1}, v{T}, 1, v{T+1}
    v_and_b32 v{T+3}, 3, v0
    ''')
    for b in range(4):
        a(f'''
        v_xor_b32 v{T+4}, {b}, v{T+1}
        v_lshl_add_u32 v{T+4}, v{T+4}, 5, v{T+2}
        v_lshl_add_u32 v{V_BN+b}, v{T+3}, 3, v{T+4}
        v_mov_b32 v{V_AD+b}, v{V_BN+b}
        ''')
    for u in range(2):
        a(f'''
        v_lshrrev_b32 v{T+4}, 1, v{T+3}
        v_add_u32 v{T+4}, {2*u}, v{T+4}
        v_xor_b32 v{T+4}, v{T+4}, v{T+1}
        v_lshl_add_u32 v{T+4}, v{T+4}, 5, v{T+2}
        v_and_b32 v{T+5}, 1, v{T+3}
        v_lshl_add_u32 v{T+4}, v{T+5}, 4, v{T+4}
        v_add_u32 v{V_NB+2*u}, {HALF}, v{T+4}
        v_add_u32 v{V_NB+2*u+1}, {HALF+8}, v{T+4}
        ''')
    a(f'''
    v_and_b32 v{T}, 7, v0
    s_lshl_b32 s35, s34, 3
    v_add_u32 v{T}, s35, v{T}
    v_bfe_u32 v{T+1}, v0, 3, 1
    v_lshl_add_u32 v{T}, v{T+1}, 10, v{T}
    v_mul_u32_u24 v{T}, 3456, v{T}
    v_lshrrev_b32 v{T+1}, 4, v0
    v_lshl_add_u32 v{V_QST}, v{T+1}, 4, v{T}
    s_mul_i32 s35, s30, 18
    s_lshl_b32 s42, s31, 2
    s_add_u32 s35, s35, s42
    s_lshl_b32 s35, s35, 10
    s_add_u32 s44, s35, {H_OFF}
    s_add_u32 s45, s44, 147456
    s_add_u32 s46, s44, 294912
    s_add_u32 s47, s44, 442368
    s_add_u32 s48, s62, {QKV_OFF}
    s_add_u32 s49, s48, 27648
    s_add_u32 s50, s48, 55296
    s_add_u32 s51, s48, 82944
    s_mov_b64 vcc, s[64:65]
    ''')
    a(f's_waitcnt vmcnt({vm.wait_n("g0")})\ns_barrier')
    stamp(a,2)
    for sl in range(8):
        w,ad=(V_SG+sl*4,V_NB+sl) if sl<4 else (V_WF+(sl-4)*4,V_AD+sl-4)
        a(f'ds_read_b64_tr_b16 v[{w}:{w+1}], v{ad} offset:0')
        a(f'ds_read_b64_tr_b16 v[{w+2}:{w+3}], v{ad} offset:512')
    bodyF(a,vm)
    a('s_cbranch_vccz K1_noq2')
    ch,_=ch_epiQ(V_ACC[1],2,64)
    a('s_nop 1')
    for s in flat(ch): a(s)
    a('K1_noq2:')
    stamp(a,3)
    a(f'''
    s_mov_b32 s43, 0
    v_lshl_add_u64 v[{V_DA}:{V_DA+1}], v[{V_DA}:{V_DA+1}], 0, s[60:61]
    v_mov_b32 v{V_NB}, v{V_BN}
    v_mov_b32 v{V_NB+1}, v{V_BN+1}
    v_mov_b32 v{V_NB+2}, v{V_BN+2}
    v_mov_b32 v{V_NB+3}, v{V_BN+3}
    K1_loop:
    s_sub_u32 m0, s66, 4096
    ''')
    body(a,VM(),1,ch_epiG(V_ACC[0]),midbar=True)
    if gen.PROF:
        a('s_mov_b32 s78, s82'); stamp(a,6)
    a(f'''
    s_cmp_lg_u32 s43, 0
    s_cbranch_scc1 K1_z
    v_lshl_add_u64 v[{V_DA}:{V_DA+1}], v[{V_DA}:{V_DA+1}], 0, s[58:59]
    v_add_u32 v{V_NB}, {HALF}, v{V_BN}
    v_add_u32 v{V_NB+1}, {HALF}, v{V_BN+1}
    v_add_u32 v{V_NB+2}, {HALF}, v{V_BN+2}
    v_add_u32 v{V_NB+3}, {HALF}, v{V_BN+3}
    ''')
    body(a,VM(),0,ch_epiU(V_ACC[1]))
    stamp(a,5)
    a(f'''
    s_add_u32 s44, s44, 2048
    s_add_u32 s45, s45, 2048
    s_add_u32 s46, s46, 2048
    s_add_u32 s47, s47, 2048
    s_mov_b32 s43, 1
    v_mov_b32 v{V_DA}, v{V_ZA}
    v_mov_b32 v{V_DA+1}, v{V_ZA+1}
    v_mov_b32 v{V_NB}, v{V_BN}
    v_mov_b32 v{V_NB+1}, v{V_BN+1}
    v_add_u32 v{V_NB+2}, 4096, v{V_BN}
    v_add_u32 v{V_NB+3}, 4096, v{V_BN+1}
    s_branch K1_loop
    K1_z:
    ''')
    body(a,VM(),0,ch_epiU(V_ACC[1]),kind='half',dma=False,last=True)
    stamp(a,7)
    a(f'''
    s_mul_i32 s35, s30, 18
    s_lshr_b32 s42, s31, 1
    s_add_u32 s35, s35, s42
    s_add_u32 s35, s35, 16
    s_lshl_b32 s35, s35, 10
    s_and_b32 s42, s31, 1
    s_lshl_b32 s42, s42, 3
    s_add_u32 s35, s35, s42
    s_add_u32 s44, s35, {H_OFF}
    s_add_u32 s45, s44, 147456
    s_add_u32 s46, s44, 294912
    s_add_u32 s47, s44, 442368
    ''')
    epiZ_tail(a,V_ACC[0])
    stamp(a,8)
    if gen.PROF: a('s_waitcnt vmcnt(0)')
    stamp(a,9); stamp(a,10,True); gen.dump_stamps(a,11)
    a('K1_end:\ns_endpgm')
    return kernel_desc('k1_kernel',512,100,256)

gen.gen_k1=gen_k1
if __name__=='__main__':
    for o in sys.argv[3:]:
        if o=='prof': gen.PROF=True
        elif o=='map42': MAP42=True
        elif o.startswith('fd'): FD=int(o[2:])
        elif o=='notouch': TOUCH0=False
    open(sys.argv[1],'w').write(gen.build(sys.argv[2].split(',')))
```

```python
import sys
from asmlib import *
import gen as G1
from gen import XN_OFF,O_OFF,QKV_OFF,H_OFF,P_OFF,S_OFF,PROF_OFF,VM
import gen

def stamp(a,i,rt=False): gen.stamp(a,i,rt)

FREE_NV=0
class Sched:
    def __init__(self, nm, cap=2):
        self.nm=nm; self.cap=cap
        self.fill=[[] for _ in range(nm)]
        self.post=[[] for _ in range(nm)]
        self.pre=[[] for _ in range(nm+1)]
        self.load=[0]*nm
        self.nv=[0]*nm
        self.tail=[]
    def _acct(self,m,ins,cost):
        if ins.startswith('v_'): self.load[m]+=cost
        else:
            self.nv[m]+=cost
            if self.nv[m]>FREE_NV: self.load[m]+=min(cost,self.nv[m]-FREE_NV)
    def add_post(self,m,ins,cost=1):
        m=min(m,self.nm-1); self.post[m].append(ins); self._acct(m,ins,cost)
    def add_pre(self,m,ins,cost=1):
        self.pre[m].append(ins)
        if m>0: self._acct(m-1,ins,cost)
    def add_fill(self,m,item):
        self.fill[m].append(item); self._acct(m,item[0],item[1])
    def chains(self, chains, lo, hi, nq, pace=False):
        total=sum(x[1] for c in chains for p in c for x in p)
        free=sum(max(0,self.cap-self.load[m]) for m in range(lo,hi))
        over=max(0,total-int(free*0.97))
        st=[[0,0,-1] for _ in chains]
        done_gap=[None]*len(chains)
        placed=0; ov=0.0
        m=lo
        while any(d is None for d in done_gap):
            mm=min(m,self.nm-1)
            capl=self.cap-self.load[mm]
            ov+=over/(hi-lo)
            if ov>=1: capl+=1; ov-=1
            if m>=hi: capl=max(capl,3)
            if pace and over==0 and m<hi:
                allowed=total*(m-lo+1)/(hi-lo)-placed
                capl=min(capl,int(allowed+0.999))
            while capl>0:
                cands=[]
                for k,c in enumerate(chains):
                    if done_gap[k] is not None: continue
                    if k>=nq and (done_gap[k-nq] is None or done_gap[k-nq]>m-2): break
                    ph,ix,pg=st[k]
                    if ix==0 and pg>=m: continue
                    cands.append(k)
                pick=None
                if capl>=2:
                    for k in cands:
                        if chains[k][st[k][0]][st[k][1]][1]>=2: pick=k;break
                if pick is None:
                    for k in cands:
                        if chains[k][st[k][0]][st[k][1]][1]<=capl: pick=k;break
                if pick is None: break
                ph,ix,pg=st[pick]
                it=chains[pick][ph][ix]
                if m<self.nm:
                    self.fill[mm].append(it); self.load[mm]+=it[1]
                else: self.tail.append(it)
                capl-=it[1]; placed+=it[1]
                ix+=1
                if ix==len(chains[pick][ph]):
                    ph+=1; ix=0; pg=m
                    if ph==len(chains[pick]): done_gap[pick]=m
                st[pick]=[ph,ix,pg]
            m+=1
            assert m<hi+400
        return m
    def emit(self,a,vm,mfma,lds_init,special):
        lds=list(lds_init)
        def out(s):
            nonlocal lds
            if s.startswith('WAITL'):
                need=int(s[5:].split(':')[0]); slack=int(s.split(':')[1]) if ':' in s else 0
                c=[i for i,x in enumerate(lds) if x<=need]
                if c:
                    idx=max(c); n=max(0,len(lds)-1-idx-slack)
                    a(f's_waitcnt lgkmcnt({min(n,15)})'); lds=lds[idx+1:]
            elif s.startswith('@'):
                special(s[1:])
            else:
                if ';tag=' in s:
                    s,t=s.split(';tag='); lds.append(int(t))
                a(s)
        for s in self.pre[0]: out(s)
        for m in range(self.nm):
            a(mfma(m))
            items=[(f[0],f[2] if len(f)>2 else None) for f in self.fill[m]]+[(s,None) for s in self.post[m]]
            late=[s for s in self.pre[m+1] if s.startswith('@')]
            waits=[s for s in self.pre[m+1] if not s.startswith('@')]
            nv=[x for x in items if not x[0].startswith('v_')]
            va=[x for x in items if x[0].startswith('v_')]
            if not late:
                for s in waits: out(s)
            for x in nv+va:
                out(x[0])
                if x[1]: vm.issue(x[1])
            if late:
                for s in late+waits: out(s)
        for f in self.tail:
            out(f[0])
            if len(f)>2: vm.issue(f[2])

V_AD=2; V_NB=6; V_DA=10; V_DI=12; V_HST=14; V_QST=15; V_WF=16; V_SG=32; V_ACC=(64,128); V_X=192; V_T=224
V_BN=240
V_ZA=244
V_QA=246
V_UA=248
V_QI=250
V_XO=252
HALF=73728
def xreg(i,ks): return G1.xreg(i,ks)

def ch_epiG(acc):
    ch=[]
    n=0
    for b in range(4):
        for i in range(4):
            A=acc+(b*4+i)*4; T=V_T+(n%4)*4; n+=1; S=V_SG+(b*4+i)*2
            ch.append([
              [(f'v_mul_f32 v{T+r}, s40, v{A+r}',1) for r in range(4)],
              [(f'v_exp_f32 v{T+r}, v{T+r}',2) for r in range(4)],
              [(f'v_add_f32 v{T+r}, 1.0, v{T+r}',1) for r in range(4)],
              [(f'v_rcp_f32 v{T+r}, v{T+r}',2) for r in range(4)],
              [(f'v_mul_f32 v{T+r}, v{T+r}, v{A+r}',1) for r in range(4)],
              [(f'v_cvt_pk_bf16_f32 v{S}, v{T}, v{T+1}',1),(f'v_cvt_pk_bf16_f32 v{S+1}, v{T+2}, v{T+3}',1)]])
    return ch,4
STF=''
def ch_epiU(acc):
    ch=[]; n=0
    for p in range(2):
        for i in range(4):
            T=V_T+(n%2)*8; n+=1
            p1=[];p2=[]
            for hb in range(2):
                b=2*p+hb; A=acc+(b*4+i)*4; S=V_SG+(b*4+i)*2; t=T+4*hb
                p1+=[(f'v_lshlrev_b32 v{t}, 16, v{S}',1),(f'v_and_b32 v{t+1}, s41, v{S}',1),
                     (f'v_lshlrev_b32 v{t+2}, 16, v{S+1}',1),(f'v_and_b32 v{t+3}, s41, v{S+1}',1)]
                p2+=[(f'v_mul_f32 v{t+r}, v{t+r}, v{A+r}',1) for r in range(4)]
            p3=[(f'v_cvt_pk_bf16_f32 v{T+j}, v{T+2*j}, v{T+2*j+1}',1) for j in range(4)]
            p4=[(f'buffer_store_dwordx4 v[{T}:{T+3}], v{V_HST}, s[20:23], s{44+i} offen offset:{p*1024}{STF}',2,'st')]
            ch.append([p1,p2,p3,p4])
    return ch,2
def ch_epiQ(acc,b0,coff):
    ch=[]
    for i in range(4):
        D=V_T+(i%4)*4
        p1=[]
        for hb in range(2):
            A=acc+((b0+hb)*4+i)*4
            p1+=[(f'v_cvt_pk_bf16_f32 v{D+2*hb}, v{A}, v{A+1}',1),(f'v_cvt_pk_bf16_f32 v{D+2*hb+1}, v{A+2}, v{A+3}',1)]
        ch.append([p1,[(f'buffer_store_dwordx4 v[{D}:{D+3}], v{V_QST}, s[20:23], s{48+i} offen offset:{coff}{STF}',2,'st')]])
    return ch,4
def flat(ch):
    out=[]
    np_=max(len(c) for c in ch)
    for p in range(np_):
        for c in ch:
            if p<len(c): out+= [x[0] for x in c[p]]
    return out
def epiZ_tail(a,acc):
    ch=[]
    for i in range(4):
        Gr=acc+i*4; U=acc+(4+i)*4; T=V_T+i*4; D=V_SG+2*i
        ch.append([
          [(f'v_mul_f32 v{T+r}, s40, v{Gr+r}',1) for r in range(4)],
          [(f'v_exp_f32 v{T+r}, v{T+r}',2) for r in range(4)],
          [(f'v_add_f32 v{T+r}, 1.0, v{T+r}',1) for r in range(4)],
          [(f'v_rcp_f32 v{T+r}, v{T+r}',2) for r in range(4)],
          [(f'v_mul_f32 v{T+r}, v{T+r}, v{Gr+r}',1) for r in range(4)],
          [(f'v_cvt_pk_bf16_f32 v{T}, v{T}, v{T+1}',1),(f'v_cvt_pk_bf16_f32 v{T+2}, v{T+2}, v{T+3}',1)],
          [(f'v_and_b32 v{T+1}, s41, v{T}',1),(f'v_lshlrev_b32 v{T}, 16, v{T}',1),(f'v_and_b32 v{T+3}, s41, v{T+2}',1),(f'v_lshlrev_b32 v{T+2}, 16, v{T+2}',1)],
          [(f'v_mul_f32 v{T+r}, v{T+r}, v{U+r}',1) for r in range(4)],
          [(f'v_cvt_pk_bf16_f32 v{D}, v{T}, v{T+1}',1),(f'v_cvt_pk_bf16_f32 v{D+1}, v{T+2}, v{T+3}',1)],
          [(f'buffer_store_dwordx2 v[{D}:{D+1}], v{V_HST}, s[20:23], s{44+i} offen{STF}',2,'st')]])
    for s in flat(ch): a(s)

def body(a, vm, accset, epi, kind='full', dma=True, last=False, midbar=False, extra=None):
    acc=V_ACC[accset]
    ns=72 if kind=='full' else 36
    nm=ns*4
    S=Sched(nm)
    step=4096 if kind=='full' else 8192
    mid=9 if kind=='full' else 5
    def rd_off(t):
        g=t//4
        return (g*step if g<mid else (g-mid)*step), g>=mid
    for t in range(ns):
        m0=t*4
        if t%2==0: S.add_pre(m0,f'WAITL{min(t+1,ns-1)}')
        tn=t+4; w=V_WF+(t%4)*4; ad=V_AD+(t%4)
        if tn<ns:
            off,hi=rd_off(tn); _,hip=rd_off(t)
            if hi and not hip: S.add_post(m0+1,f'v_add_u32 v{ad}, {mid*step}, v{ad}')
            S.add_post(m0+3,f'ds_read_b64_tr_b16 v[{w}:{w+1}], v{ad} offset:{off};tag={tn}')
            S.add_post(m0+4,f'ds_read_b64_tr_b16 v[{w+2}:{w+3}], v{ad} offset:{off+512};tag={tn}')
        elif not last:
            S.add_post(m0+1,f'v_mov_b32 v{ad}, v{V_NB+(t%4)}')
            if tn==ns: S.add_post(m0+2,'@SUB',2)
            S.add_post(m0+3,f'ds_read_b64_tr_b16 v[{w}:{w+1}], v{ad} offset:0;tag={tn}')
            S.add_post(m0+4,f'ds_read_b64_tr_b16 v[{w+2}:{w+3}], v{ad} offset:512;tag={tn}')
    if dma:
        for n in range(18):
            m=(n//2)*16+(n%2)*8+1
            S.add_fill(m,('s_add_u32 m0, m0, 4096',1))
            S.add_fill(m+1,(f'global_load_lds_dwordx4 v[{V_DA}:{V_DA+1}], off',1,'dma'))
            S.add_fill(m+1,(f'v_lshl_add_u64 v[{V_DA}:{V_DA+1}], v[{V_DI}:{V_DI+1}], 0, v[{V_DA}:{V_DA+1}]',1))
    if midbar: S.add_post(9*16+1,'@MID',2)
    if extra:
        for m,it in extra: S.add_fill(m,it)
    if epi:
        ch,nq=epi
        S.chains(ch,1,nm-6,nq,pace=True)
    def mf(m):
        t=m//4;i=m%4
        ks,b=(t//4,t%4) if kind=='full' else (t//2,t%2)
        D=acc+(b*4+i)*4; w=V_WF+(t%4)*4
        return f'v_mfma_f32_16x16x32_bf16 {vr(D,4)}, {vr(w,4)}, {xreg(i,ks)}, {"0" if ks==0 else vr(D,4)}'
    def special(n):
        if n=='SUB':
            a(f's_waitcnt vmcnt({vm.wait_n("dma")})\ns_barrier')
        elif n=='MID':
            a(f's_waitcnt vmcnt({min(63,len(vm.ops))})\ns_barrier')
    S.emit(a,vm,mf,[0,0,1,1,2,2,3,3],special)

FD=5
def grp_items(g):
    L=[(f's_add_u32 m0, s66, {g*4096}',1),
       (f'global_load_lds_dwordx4 v[{V_DA}:{V_DA+1}], off',1,f'g{g}'),
       (f's_add_u32 m0, s66, {HALF+g*4096}',1),
       (f'v_lshl_add_u64 v[{V_DA}:{V_DA+1}], v[{V_DI}:{V_DI+1}], 0, v[{V_DA}:{V_DA+1}]',1),
       (f'global_load_lds_dwordx4 v[{V_QA}:{V_QA+1}], off',1,f'g{g}'),
       (f'v_lshl_add_u64 v[{V_QA}:{V_QA+1}], v[{V_QI}:{V_QI+1}], 0, v[{V_QA}:{V_QA+1}]',1)]
    for i in range(4):
        L.append((f'buffer_load_dwordx4 {xreg(i,g)}, v{V_XO+i}, s[20:23], s{52+g//4} offen offset:{(g%4)*1024}',1,f'g{g}'))
    return L
def u0_items(g):
    return [(f's_add_u32 m0, s66, {HALF+g*4096}',1),
            (f'global_load_lds_dwordx4 v[{V_UA}:{V_UA+1}], off',1,f'u{g}'),
            (f'v_lshl_add_u64 v[{V_UA}:{V_UA+1}], v[{V_DI}:{V_DI+1}], 0, v[{V_UA}:{V_UA+1}]',1)]

def bodyF(a, vm):
    nm=18*32
    S=Sched(nm)
    def regs(sl):
        if sl<4: return V_SG+sl*4, V_NB+sl, V_ACC[1]+sl*16
        return V_WF+(sl-4)*4, V_AD+(sl-4), V_ACC[0]+(sl-4)*16
    for ks in range(18):
        for sl in range(8):
            t=ks*8+sl; m0=t*4
            w,ad,_=regs(sl)
            if sl==2: S.add_pre(m0,f'@SKIP{ks}')
            if sl==4: S.pre[m0].append(f'@LAB{ks}')
            if sl%2==0: S.add_pre(m0,f'WAITL{t+1}:4')
            kn=ks+1
            m2 = m0+4 if sl not in (1,3) else m0+3
            if kn<18:
                if kn==9: S.add_post(m0+1,f'v_add_u32 v{ad}, 36864, v{ad}')
                off=(kn%9)*4096
                S.add_post(m0+3,f'ds_read_b64_tr_b16 v[{w}:{w+1}], v{ad} offset:{off};tag={t+8}')
                S.add_post(m2,f'ds_read_b64_tr_b16 v[{w+2}:{w+3}], v{ad} offset:{off+512};tag={t+8}')
            elif sl>=4:
                S.add_post(m0+1,f'v_add_u32 v{ad}, {HALF}, v{V_BN+sl-4}')
                if sl==4: S.add_post(m0+2,'@SUB',2)
                S.add_post(m0+3,f'ds_read_b64_tr_b16 v[{w}:{w+1}], v{ad} offset:0;tag={t+8}')
                S.add_post(m2,f'ds_read_b64_tr_b16 v[{w+2}:{w+3}], v{ad} offset:512;tag={t+8}')
        base=ks*32
        if ks<17: S.add_post(base+1,f'@READY{ks+1}',2)
        mand=[base+2,base+4,base+5,base+6]+[base+16+j for j in (0,1,2,4,5,6,8,9,10,12,13,14)]
        items=[]
        if ks+FD<18: items+=grp_items(ks+FD)
        if 1<=ks<17: items+=u0_items(ks-1)
        if ks<17:
            for j,it in enumerate(items): S.add_fill(mand[j],it)
        else:
            its=u0_items(16)+u0_items(17)
            for j,it in enumerate(its): S.add_fill(base+16+4+j,it)
    ch,nq=ch_epiQ(V_ACC[1],0,0)
    S.chains(ch,17*32+18,nm,nq)
    def mf(m):
        t=m//4;i=m%4;ks=t//8;sl=t%8
        w,_,ac=regs(sl); D=ac+i*4
        return f'v_mfma_f32_16x16x32_bf16 {vr(D,4)}, {vr(w,4)}, {xreg(i,ks)}, {"0" if ks==0 else vr(D,4)}'
    def special(n):
        if n.startswith('SKIP'): a(f's_cbranch_vccz KF_s{n[4:]}')
        elif n.startswith('LAB'): a(f'KF_s{n[3:]}:')
        elif n.startswith('READY'):
            a(f's_waitcnt vmcnt({vm.wait_n("g"+n[5:])})\ns_barrier')
        elif n=='SUB':
            a(f's_waitcnt vmcnt({vm.wait_n("u12")})\ns_barrier')
    S.emit(a,vm,mf,[t for t in range(8) for _ in range(2)],special)

MAP42=False
def decode_cg(a):
    if not MAP42:
        a('s_and_b32 s30, s2, 7\ns_lshr_b32 s31, s2, 3\ns_and_b32 s31, s31, 3\ns_lshr_b32 s32, s2, 5')
    else:
        a('''
        s_bfe_u32 s30, s2, 0x20001
        s_lshl_b32 s30, s30, 1
        s_bfe_u32 s31, s2, 0x10005
        s_add_u32 s30, s30, s31
        s_bfe_u32 s31, s2, 0x20003
        s_and_b32 s32, s2, 1
        s_lshl_b32 s32, s32, 2
        s_lshr_b32 s3, s2, 6
        s_add_u32 s32, s32, s3
        ''')
def decode_q(a, lab):
    a(f'''
    s_mul_i32 s62, s30, 3
    s_add_u32 s62, s62, s31
    s_lshl_b32 s62, s62, 7
    s_add_u32 s64, s30, 44
    s_lshl_b32 s64, s64, 6
    s_cmp_lt_u32 s31, 3
    s_cselect_b32 s63, 1, 0
    s_cmp_lt_u32 s30, 6
    s_cbranch_scc1 {lab}
    s_lshl_b32 s62, s30, 1
    s_add_u32 s62, s62, s31
    s_add_u32 s64, s62, 36
    s_lshl_b32 s64, s64, 6
    s_add_u32 s62, s62, 6
    s_lshl_b32 s62, s62, 7
    s_cmp_lt_u32 s31, 2
    s_cselect_b32 s63, 1, 0
    {lab}:
    s_cmp_eq_u32 s63, 1
    s_cselect_b32 s62, s62, s64
    ''')
TOUCH0=True
_old_ln=gen.gen_ln
def gen_ln(a, mimic=True):
    b=Asm()
    d=_old_ln(b,mimic)
    txt=b.L
    if TOUCH0:
        t=Asm()
        t('s_load_dwordx2 s[12:13], s[0:1], 8\ns_load_dwordx4 s[16:19], s[0:1], 32')
        i0=[i for i,l in enumerate(txt) if 's_load_dwordx2 s[6:7]' in l][0]
        txt[i0+1:i0+1]=t.L
        t=Asm()
        decode_cg(t); decode_q(t,'LN_qok')
        nrow = 144 if MAP42 else 72
        t(f'''
        s_and_b32 s33, s32, {3 if MAP42 else 7}
        s_mul_i32 s33, s33, {nrow}
        v_add_u32 v53, s33, v0
        s_mul_i32 s36, s30, 1152
        s_lshl_b32 s37, s31, 8
        s_add_u32 s37, s37, s36
        v_mul_u32_u24 v54, 9216, v53
        v_add_u32 v54, s37, v54
        v_mul_u32_u24 v53, 3456, v53
        v_add_u32 v53, s62, v53
        v_cmp_gt_u32 s[34:35], {nrow if nrow<=64 else 's38'}, v0
        '''.replace('v_cmp_gt_u32', f's_mov_b32 s38, {nrow}\nv_cmp_gt_u32'))
        t('''
        s_and_saveexec_b64 s[36:37], s[34:35]
        s_cbranch_execz LN_not
        global_load_dword v55, v54, s[16:17]
        global_load_dword v55, v53, s[12:13]
        global_load_dword v55, v54, s[18:19]
        LN_not:
        s_mov_b64 exec, s[36:37]
        ''')
        i1=[i for i,l in enumerate(txt) if 's_mov_b64 exec, s[8:9]' in l][0]
        txt[i1+1:i1+1]=t.L
        i2=[i for i,l in enumerate(txt) if 's_waitcnt vmcnt(0)' in l][0]
        txt[i2]='    LN_WAIT'
        d=d.replace('next_free_sgpr 16','next_free_sgpr 72')
    for l in txt:
        if 'LN_WAIT' in l:
            a('s_cmp_eq_u64 s[34:35], 0\ns_cbranch_scc1 LN_w0\ns_waitcnt vmcnt(3)\ns_branch LN_w1\nLN_w0:\ns_waitcnt vmcnt(0)\nLN_w1:')
        else: a.L.append(l)
    return d
gen.gen_ln=gen_ln
def gen_k1(a):
    a(kernel_header('k1_kernel'))
    a('''
    s_cmp_ge_u32 s2, 256
    s_cbranch_scc1 K1_end
    s_load_dwordx2 s[4:5], s[0:1], 8
    s_load_dwordx4 s[8:11], s[0:1], 32
    s_load_dwordx2 s[20:21], s[0:1], 72
    v_lshrrev_b32 v1, 6, v0
    v_and_b32 v0, 63, v0
    ''')
    decode_cg(a)
    a('''
    v_readfirstlane_b32 s33, v1
    s_mov_b32 s22, 0x10000000
    s_mov_b32 s23, 0x20000
    s_mov_b32 s40, 0xbfb8aa3b
    s_mov_b32 s41, 0xffff0000
    ''')
    stamp(a,0,True); stamp(a,1)
    T=V_T
    a(f'''
    s_lshl_b32 s34, s32, 4
    s_lshl_b32 s35, s33, 2
    s_add_u32 s34, s34, s35
    s_mul_i32 s35, s34, 18432
    v_lshlrev_b32 v{T}, 4, v0
    v_add_u32 v{V_XO}, s35, v{T}
    v_add_u32 v{V_XO+1}, 18432, v{V_XO}
    v_add_u32 v{V_XO+2}, 36864, v{V_XO}
    v_add_u32 v{V_XO+3}, 55296, v{V_XO}
    s_mul_i32 s35, s34, 147456
    v_add_u32 v{V_HST}, s35, v{T}
    s_lshl_b32 s66, s33, 10
    ''')
    for g in range(5): a(f's_mov_b32 s{52+g}, {XN_OFF+g*4096}')
    decode_q(a,'K1_qok')
    a('''
    s_cselect_b32 s67, 3, 1
    s_mov_b32 s64, s63
    s_mov_b32 s65, 0
    ''')
    a(f'''
    v_lshrrev_b32 v{T}, 3, v0
    s_lshl_b32 s35, s33, 3
    v_add_u32 v{T}, s35, v{T}
    v_bfe_u32 v{T+1}, v0, 1, 2
    v_bfe_u32 v{T+2}, v0, 4, 1
    s_and_b32 s35, s33, 1
    s_lshl_b32 s35, s35, 1
    v_or_b32 v{T+2}, s35, v{T+2}
    v_xor_b32 v{T+1}, v{T+1}, v{T+2}
    v_and_b32 v{T+2}, 1, v0
    v_lshlrev_b32 v{T+2}, 4, v{T+2}
    v_mul_u32_u24 v{T+4}, 9216, v{T}
    v_add_u32 v{T+4}, v{T+4}, v{T+2}
    v_mov_b32 v{T+5}, 0
    v_mul_u32_u24 v{T+6}, 3456, v{T}
    v_add_u32 v{T+6}, v{T+6}, v{T+2}
    v_and_b32 v{T+3}, s67, v{T+1}
    v_lshl_add_u32 v{T+6}, v{T+3}, 5, v{T+6}
    v_mov_b32 v{T+7}, 0
    v_lshl_add_u32 v{T+8}, v{T+1}, 5, v{T+4}
    v_mov_b32 v{T+9}, 0
    s_mul_i32 s36, s30, 1152
    s_lshl_b32 s37, s31, 8
    s_add_u32 s37, s37, s36
    s_lshl_b32 s38, s31, 5
    s_add_u32 s38, s38, s36
    s_add_u32 s38, s38, 1024
    v_mov_b32 v{V_DI}, 294912
    v_mov_b32 v{V_DI+1}, 0
    v_mov_b32 v{V_QI}, 110592
    v_mov_b32 v{V_QI+1}, 0
    s_waitcnt lgkmcnt(0)
    s_add_u32 s12, s8, s37
    s_addc_u32 s13, s9, 0
    s_add_u32 s16, s4, s62
    s_addc_u32 s17, s5, 0
    v_lshl_add_u64 v[{V_DA}:{V_DA+1}], v[{T+8}:{T+9}], 0, s[12:13]
    v_lshl_add_u64 v[{V_QA}:{V_QA+1}], v[{T+6}:{T+7}], 0, s[16:17]
    ''')
    vm=VM()
    for g in range(FD):
        its=grp_items(g)
        for j,it in enumerate(its):
            a(it[0])
            if j==0: a('s_nop 0')
            if len(it)>2: vm.issue(it[2])
    a(f'''
    s_add_u32 s14, s10, s37
    s_addc_u32 s15, s11, 0
    v_lshl_add_u64 v[{V_UA}:{V_UA+1}], v[{T+8}:{T+9}], 0, s[14:15]
    s_sub_u32 s58, s10, s8
    s_subb_u32 s59, s11, s9
    s_sub_u32 s58, s58, 5308416
    s_subb_u32 s59, s59, 0
    s_mov_b32 s60, {(-5308416+128)&0xffffffff}
    s_mov_b32 s61, -1
    s_add_u32 s12, s8, s38
    s_addc_u32 s13, s9, 0
    s_add_u32 s14, s10, s38
    s_addc_u32 s15, s11, 0
    v_lshl_add_u64 v[{V_ZA}:{V_ZA+1}], v[{T+4}:{T+5}], 0, s[12:13]
    v_lshl_add_u64 v[{T+12}:{T+13}], v[{T+4}:{T+5}], 0, s[14:15]
    v_and_b32 v{T+3}, 1, v{T+1}
    v_cmp_eq_u32 vcc, 1, v{T+3}
    s_nop 1
    v_cndmask_b32 v{V_ZA}, v{V_ZA}, v{T+12}, vcc
    v_cndmask_b32 v{V_ZA+1}, v{V_ZA+1}, v{T+13}, vcc
    v_lshrrev_b32 v{T}, 4, v0
    v_bfe_u32 v{T+1}, v0, 2, 2
    v_lshl_add_u32 v{T+2}, v{T}, 3, v{T+1}
    v_lshlrev_b32 v{T+2}, 7, v{T+2}
    v_lshrrev_b32 v{T+1}, 1, v{T+1}
    v_and_b32 v{T}, 1, v{T}
    v_lshl_or_b32 v{T+1}, v{T}, 1, v{T+1}
    v_and_b32 v{T+3}, 3, v0
    ''')
    for b in range(4):
        a(f'''
        v_xor_b32 v{T+4}, {b}, v{T+1}
        v_lshl_add_u32 v{T+4}, v{T+4}, 5, v{T+2}
        v_lshl_add_u32 v{V_BN+b}, v{T+3}, 3, v{T+4}
        v_mov_b32 v{V_AD+b}, v{V_BN+b}
        ''')
    for u in range(2):
        a(f'''
        v_lshrrev_b32 v{T+4}, 1, v{T+3}
        v_add_u32 v{T+4}, {2*u}, v{T+4}
        v_xor_b32 v{T+4}, v{T+4}, v{T+1}
        v_lshl_add_u32 v{T+4}, v{T+4}, 5, v{T+2}
        v_and_b32 v{T+5}, 1, v{T+3}
        v_lshl_add_u32 v{T+4}, v{T+5}, 4, v{T+4}
        v_add_u32 v{V_NB+2*u}, {HALF}, v{T+4}
        v_add_u32 v{V_NB+2*u+1}, {HALF+8}, v{T+4}
        ''')
    a(f'''
    v_and_b32 v{T}, 7, v0
    s_lshl_b32 s35, s34, 3
    v_add_u32 v{T}, s35, v{T}
    v_bfe_u32 v{T+1}, v0, 3, 1
    v_lshl_add_u32 v{T}, v{T+1}, 10, v{T}
    v_mul_u32_u24 v{T}, 3456, v{T}
    v_lshrrev_b32 v{T+1}, 4, v0
    v_lshl_add_u32 v{V_QST}, v{T+1}, 4, v{T}
    s_mul_i32 s35, s30, 18
    s_lshl_b32 s42, s31, 2
    s_add_u32 s35, s35, s42
    s_lshl_b32 s35, s35, 10
    s_add_u32 s44, s35, {H_OFF}
    s_add_u32 s45, s44, 147456
    s_add_u32 s46, s44, 294912
    s_add_u32 s47, s44, 442368
    s_add_u32 s48, s62, {QKV_OFF}
    s_add_u32 s49, s48, 27648
    s_add_u32 s50, s48, 55296
    s_add_u32 s51, s48, 82944
    s_mov_b64 vcc, s[64:65]
    ''')
    a(f's_waitcnt vmcnt({vm.wait_n("g0")})\ns_barrier')
    stamp(a,2)
    for sl in range(8):
        w,ad=(V_SG+sl*4,V_NB+sl) if sl<4 else (V_WF+(sl-4)*4,V_AD+sl-4)
        a(f'ds_read_b64_tr_b16 v[{w}:{w+1}], v{ad} offset:0')
        a(f'ds_read_b64_tr_b16 v[{w+2}:{w+3}], v{ad} offset:512')
    bodyF(a,vm)
    a('s_cbranch_vccz K1_noq2')
    ch,_=ch_epiQ(V_ACC[1],2,64)
    a('s_nop 1')
    for s in flat(ch): a(s)
    a('K1_noq2:')
    stamp(a,3)
    a(f'''
    s_mov_b32 s43, 0
    v_lshl_add_u64 v[{V_DA}:{V_DA+1}], v[{V_DA}:{V_DA+1}], 0, s[60:61]
    v_mov_b32 v{V_NB}, v{V_BN}
    v_mov_b32 v{V_NB+1}, v{V_BN+1}
    v_mov_b32 v{V_NB+2}, v{V_BN+2}
    v_mov_b32 v{V_NB+3}, v{V_BN+3}
    K1_loop:
    s_sub_u32 m0, s66, 4096
    ''')
    body(a,VM(),1,ch_epiG(V_ACC[0]),midbar=True)
    if gen.PROF:
        a('s_mov_b32 s78, s82'); stamp(a,6)
    a(f'''
    s_cmp_lg_u32 s43, 0
    s_cbranch_scc1 K1_z
    v_lshl_add_u64 v[{V_DA}:{V_DA+1}], v[{V_DA}:{V_DA+1}], 0, s[58:59]
    v_add_u32 v{V_NB}, {HALF}, v{V_BN}
    v_add_u32 v{V_NB+1}, {HALF}, v{V_BN+1}
    v_add_u32 v{V_NB+2}, {HALF}, v{V_BN+2}
    v_add_u32 v{V_NB+3}, {HALF}, v{V_BN+3}
    ''')
    body(a,VM(),0,ch_epiU(V_ACC[1]))
    stamp(a,5)
    a(f'''
    s_add_u32 s44, s44, 2048
    s_add_u32 s45, s45, 2048
    s_add_u32 s46, s46, 2048
    s_add_u32 s47, s47, 2048
    s_mov_b32 s43, 1
    v_mov_b32 v{V_DA}, v{V_ZA}
    v_mov_b32 v{V_DA+1}, v{V_ZA+1}
    v_mov_b32 v{V_NB}, v{V_BN}
    v_mov_b32 v{V_NB+1}, v{V_BN+1}
    v_add_u32 v{V_NB+2}, 4096, v{V_BN}
    v_add_u32 v{V_NB+3}, 4096, v{V_BN+1}
    s_branch K1_loop
    K1_z:
    ''')
    body(a,VM(),0,ch_epiU(V_ACC[1]),kind='half',dma=False,last=True)
    stamp(a,7)
    a(f'''
    s_mul_i32 s35, s30, 18
    s_lshr_b32 s42, s31, 1
    s_add_u32 s35, s35, s42
    s_add_u32 s35, s35, 16
    s_lshl_b32 s35, s35, 10
    s_and_b32 s42, s31, 1
    s_lshl_b32 s42, s42, 3
    s_add_u32 s35, s35, s42
    s_add_u32 s44, s35, {H_OFF}
    s_add_u32 s45, s44, 147456
    s_add_u32 s46, s44, 294912
    s_add_u32 s47, s44, 442368
    ''')
    epiZ_tail(a,V_ACC[0])
    stamp(a,8)
    if gen.PROF: a('s_waitcnt vmcnt(0)')
    stamp(a,9); stamp(a,10,True); gen.dump_stamps(a,11)
    a('K1_end:\ns_endpgm')
    return kernel_desc('k1_kernel',512,100,256)

gen.gen_k1=gen_k1
if __name__=='__main__':
    for o in sys.argv[3:]:
        if o=='prof': gen.PROF=True
        elif o=='map42': MAP42=True
        elif o.startswith('fd'): FD=int(o[2:])
        elif o=='notouch': TOUCH0=False
        elif o=='sc1': STF=' sc1'
        elif o=='sc01': STF=' sc0 sc1'
        elif o=='nt': STF=' nt'
    open(sys.argv[1],'w').write(gen.build(sys.argv[2].split(',')))
```

```python
import sys
from asmlib import *
import gen, gen2
from gen import XN_OFF,O_OFF,QKV_OFF,H_OFF,PROF_OFF,VM
from gen2 import stamp
X_OFF   = 0x1D40000
FLG_OFF = 0x3000000
OFL_OFF = FLG_OFF+0x2000
FLG_BYTES = 0x3000
ROT=True
SPREAD0=3
SPREAD1=33

def att_part(a, LB, stf):
    OST = LB+53248
    a(f'''
    v_lshrrev_b32 v3, 5, v0
    v_and_b32 v4, 31, v0
    v_mul_u32_u24 v4, 36, v4
    s_lshl_b32 s13, s10, 3
    v_add_u32 v5, s13, v3
    v_add_u32 v6, 7, v3
    s_mov_b32 s15, 3456
    s_mov_b32 s16, 0x05040100
    s_mov_b32 s17, 0x07060302
    s_mov_b32 s18, 0x3eae1a93
    v_add_u32 v223, {LB+1152}, v4
    ''')
    for w in range(8):
        a(f'v_min_u32 v7, {w}, v5\nv_sub_u32 v7, v6, v7\nv_mad_u32_u24 v{8+w}, v7, s15, v223')
        a(f'v_add_u32 v{16+w}, 1152, v{8+w}')
    a('v_subrev_u32 v7, 1152, v8')
    a('@WAITQ')
    Q=24; K=34; V=114; L=194; O=204
    def rd(dst, ad):
        for j in range(4): a(f'ds_read2_b32 v[{dst+2*j}:{dst+2*j+1}], v{ad} offset0:{2*j} offset1:{2*j+1}')
        a(f'ds_read_b32 v{dst+8}, v{ad} offset:32')
    rd(Q,7)
    for w in range(8): rd(K+10*w, 8+w)
    a('s_waitcnt lgkmcnt(0)')
    for w in range(8): rd(V+10*w, 16+w)
    for j in range(9):
        for w in range(8):
            c = '0' if j==0 else f'v{L+w}'
            a(f'v_dot2_f32_bf16 v{L+w}, v{Q+j}, v{K+10*w+j}, {c}')
    a('s_nop 3')
    a('v_mov_b32 v7, 0xff800000')
    for w in range(1,8):
        a(f'v_cmp_le_u32 vcc, {w}, v5\ns_nop 1\nv_cndmask_b32 v{L+w}, v7, v{L+w}, vcc')
    a(f'v_max3_f32 v7, v{L}, v{L+1}, v{L+2}\nv_max3_f32 v7, v7, v{L+3}, v{L+4}\nv_max3_f32 v7, v7, v{L+5}, v{L+6}\nv_max_f32 v7, v7, v{L+7}')
    for w in range(8): a(f'v_sub_f32 v{L+w}, v{L+w}, v7')
    for w in range(8): a(f'v_mul_f32 v{L+w}, s18, v{L+w}')
    for w in range(8): a(f'v_exp_f32 v{L+w}, v{L+w}')
    a('s_nop 0')
    a(f'v_add_f32 v7, v{L}, v{L+1}')
    for w in range(2,8): a(f'v_add_f32 v7, v7, v{L+w}')
    a('v_rcp_f32 v7, v7\ns_nop 0')
    for w in range(8): a(f'v_mul_f32 v{L+w}, v{L+w}, v7')
    for w in range(4): a(f'v_cvt_pk_bf16_f32 v{L+w}, v{L+2*w}, v{L+2*w+1}')
    a('s_waitcnt lgkmcnt(0)')
    for wp in range(4):
        for j in range(9):
            t = K + 2*j
            a(f'v_perm_b32 v{t}, v{V+10*(2*wp+1)+j}, v{V+10*(2*wp)+j}, s16')
            a(f'v_perm_b32 v{t+1}, v{V+10*(2*wp+1)+j}, v{V+10*(2*wp)+j}, s17')
        for j in range(18):
            c = '0' if wp==0 else f'v{O+j}'
            a(f'v_dot2_f32_bf16 v{O+j}, v{K+j}, v{L+wp}, {c}')
    a('s_nop 3')
    for j in range(9): a(f'v_cvt_pk_bf16_f32 v{Q+j}, v{O+2*j}, v{O+2*j+1}')
    a(f'v_mul_u32_u24 v7, 1152, v3\nv_add_u32 v7, v7, v4\nv_add_u32 v7, {OST}, v7')
    for j in range(4): a(f'ds_write2_b32 v7, v{Q+2*j}, v{Q+2*j+1} offset0:{2*j} offset1:{2*j+1}')
    a(f'ds_write_b32 v7, v{Q+8} offset:32')
    a(f'''
    v_and_b32 v3, 7, v0
    v_lshrrev_b32 v4, 3, v0
    v_mul_u32_u24 v5, 1152, v3
    v_lshrrev_b32 v6, 2, v4
    v_lshl_add_u32 v5, v6, 6, v5
    v_and_b32 v6, 3, v4
    v_lshl_add_u32 v5, v6, 3, v5
    v_add_u32 v5, {OST}, v5
    v_lshlrev_b32 v6, 8, v4
    v_lshl_add_u32 v6, v3, 4, v6
    s_mul_i32 s12, s10, 18432
    s_lshl_b32 s13, s11, 7
    s_add_u32 s12, s12, s13
    s_add_u32 s12, s12, {O_OFF}
    s_add_u32 s13, s12, 8192
    s_add_u32 s14, s12, 16384
    s_cmp_eq_u32 s33, 0
    s_cselect_b32 s14, s14, 0x7ffff000
    s_waitcnt lgkmcnt(0)
    s_barrier
    ds_read2_b64 v[8:11], v5 offset0:0 offset1:4
    ds_read2_b64 v[12:15], v5 offset0:64 offset1:68
    ds_read2_b64 v[16:19], v5 offset0:128 offset1:132
    s_waitcnt lgkmcnt(0)
    buffer_store_dwordx4 v[8:11], v6, s[20:23], s12 offen{stf}
    buffer_store_dwordx4 v[12:15], v6, s[20:23], s13 offen{stf}
    buffer_store_dwordx4 v[16:19], v6, s[20:23], s14 offen{stf}
    ''')

def gen_k2f(a):
    NS=6; STG=24576; LB=4*STG
    AD=2
    TT=14
    WF=32
    ACC=64
    RX=160
    DV=224; HV=227; LV=229; XV=232
    OA=244
    OOB=0x7ffff000
    a(kernel_header('k2_kernel'))
    a(f'''
    s_cmp_ge_u32 s2, 256
    s_cbranch_scc1 K2_end
    s_load_dwordx2 s[4:5], s[0:1], 16
    s_load_dwordx2 s[6:7], s[0:1], 48
    s_load_dwordx2 s[20:21], s[0:1], 72
    s_load_dwordx2 s[24:25], s[0:1], 0
    s_load_dwordx2 s[26:27], s[0:1], 56
    v_lshrrev_b32 v1, 6, v0
    v_and_b32 v230, 63, v0
    v_lshlrev_b32 v{LV}, 4, v230
    v_mov_b32 v{OA}, 0
    v_mov_b32 v{OA+1}, 0
    s_mov_b32 s22, 0x10000000
    s_mov_b32 s23, 0x20000
    v_readfirstlane_b32 s33, v1
    s_and_b32 s28, s2, 7
    s_lshr_b32 s29, s2, 3
    s_lshl_b32 s10, s28, 4
    s_lshr_b32 s11, s29, 1
    s_add_u32 s10, s10, s11
    s_and_b32 s11, s29, 1
    s_lshl_b32 s12, s11, 10
    s_lshl_b32 s13, s10, 3
    s_add_u32 s12, s12, s13
    s_mul_i32 s12, s12, 3456
    s_add_u32 s12, s12, {QKV_OFF-7*3456}
    s_lshl_b32 s14, s33, 10
    s_add_u32 s12, s12, s14
    s_add_u32 m0, s14, {LB}
    s_waitcnt lgkmcnt(0)
    ''')
    stamp(a,0,True); stamp(a,1)
    for n in range(13):
        a(f'buffer_load_dwordx4 v{LV}, s[20:23], s12 offen lds')
        if n<12: a('s_add_u32 m0, m0, 4096\ns_add_u32 s12, s12, 4096')
    a(f'''
    s_lshr_b32 s30, s28, 1
    s_and_b32 s32, s28, 1
    s_lshl_b32 s32, s32, 3
    s_mov_b32 s35, s29
    s_cmp_lt_u32 s29, 24
    s_cbranch_scc1 K2_role
    s_mov_b32 s30, 4
    s_lshl_b32 s32, s28, 1
    s_sub_u32 s35, s29, 24
    s_cmp_lt_u32 s29, 30
    s_cselect_b32 s30, 4, 5
    s_cselect_b32 s35, s35, 0
    K2_role:
    s_mul_hi_u32 s36, s35, {(2**32+2)//3}
    s_add_u32 s32, s32, s36
    s_mul_i32 s36, s36, 3
    s_sub_u32 s34, s35, s36
    s_mul_i32 s31, s32, 3
    s_add_u32 s31, s31, s34
    ''')
    T=TT
    a(f'''
    v_lshrrev_b32 v{T}, 3, v230
    s_lshl_b32 s37, s33, 3
    v_add_u32 v{T}, s37, v{T}
    v_mul_u32_u24 v{T}, 1152, v{T}
    v_bfe_u32 v{T+1}, v230, 1, 2
    v_lshrrev_b32 v{T+2}, 4, v230
    v_xor_b32 v{T+1}, v{T+1}, v{T+2}
    v_lshl_add_u32 v{T}, v{T+1}, 5, v{T}
    v_and_b32 v{T+1}, 1, v230
    v_lshl_add_u32 v{T}, v{T+1}, 4, v{T}
    v_add_u32 v{DV}, 2048, v{T}
    v_add_u32 v{DV+1}, {2048+128-1024}, v{T}
    v_add_u32 v{DV+2}, {2048+256-2048}, v{T}
    s_lshl_b32 s37, s32, 3
    s_lshl_b32 s38, s33, 1
    s_add_u32 s37, s37, s38
    s_mul_i32 s42, s34, 384
    s_mul_i32 s43, s33, 3072
    s_mov_b32 s39, 147456
    s_mov_b32 s36, 18
    s_mul_i32 s52, s30, {18*64*1152}
    s_add_u32 s52, s52, s42
    s_mul_i32 s53, s30, {18*2048}
    s_add_u32 s53, s53, {H_OFF}
    s_sub_u32 s8, s6, 2048
    s_subb_u32 s9, s7, 0
    s_mov_b32 s54, {4608*1152+2048}
    s_cmp_lt_u32 s30, 4
    s_cbranch_scc1 K2_hv
    s_mov_b32 s39, 18432
    s_mov_b32 s36, 9
    s_mov_b32 s52, s42
    s_mov_b32 s53, {O_OFF}
    s_sub_u32 s8, s4, 2048
    s_subb_u32 s9, s5, 0
    s_mov_b32 s54, {576*1152+2048}
    K2_hv:
    s_mov_b32 s56, s8
    s_mov_b32 s57, s9
    s_mov_b32 s58, s54
    s_mov_b32 s59, 0x20000
    s_mul_i32 s38, s37, s39
    v_add_u32 v{HV}, s38, v{LV}
    v_add_u32 v{HV+1}, s39, v{HV}
    s_mul_hi_u32 s49, s36, {(2**32+2)//3}
    s_mul_i32 s49, s49, s34
    ''')
    if not ROT: a('s_mov_b32 s49, 0')
    a(f'''
    s_mul_i32 s44, s49, {64*1152}
    s_add_u32 s44, s44, s52
    s_lshl_b32 s45, s49, 11
    s_add_u32 s45, s45, s53
    s_mov_b32 s46, 0
    s_mov_b32 s47, 0
    ''')
    def prefetch(slot):
        W=lambda l: f'buffer_load_dwordx4 v{DV+l}, s[56:59], s50 offen offset:{1024*l} lds'
        def H(n):
            ks,i=n//2,n%2; r=slot*16+n*4
            return f'buffer_load_dwordx4 a[{r}:{r+3}], v{HV+i}, s[20:23], s51 offen offset:{ks*1024} sc1'
        return ['s_cmp_lt_u32 s46, s36', f's_cselect_b32 s50, s44, {OOB}', f's_cselect_b32 s51, s45, {OOB}',
                f's_add_u32 m0, s43, {slot*STG}', H(0), W(0), 's_add_u32 s46, s46, 1', W(1), f's_add_u32 s44, s44, {64*1152}', W(2),
                f's_add_u32 m0, s43, {slot*STG+4*3072}', H(1), 's_add_u32 s50, s50, 36864', W(0), 's_add_u32 s45, s45, 2048', W(1),
                's_add_u32 s49, s49, 1', W(2), 's_cmp_eq_u32 s49, s36', 's_cselect_b32 s44, s52, s44', H(2), 's_cselect_b32 s45, s53, s45',
                's_cselect_b32 s49, 0, s49', H(3)]
    a('s_cmp_lt_u32 s30, 4\ns_cbranch_scc0 K2_nopf')
    for st in range(4):
        for x in prefetch(st): a(x)
    a(f'''
    v_and_b32 v{T}, 7, v230
    v_lshlrev_b32 v{T}, 1, v{T}
    v_bfe_u32 v{T+1}, v230, 3, 1
    s_lshl_b32 s38, s37, 4
    v_add3_u32 v{T}, v{T}, v{T+1}, s38
    v_mul_u32_u24 v{T}, 1152, v{T}
    v_lshrrev_b32 v{T+1}, 4, v230
    v_lshl_add_u32 v{T}, v{T+1}, 3, v{T}
    s_lshl_b32 s38, s30, 5
    s_add_u32 s38, s38, s42
    v_add_u32 v{OA}, s38, v{T}
    v_add_u32 v{OA+1}, 18432, v{OA}
    ''')
    for l in range(3):
        for i in range(2):
            r=XV+(l*2+i)*2
            a(f'global_load_dwordx2 v[{r}:{r+1}], v{OA+i}, s[24:25] offset:{l*128}')
    a('K2_nopf:')
    b=Asm(); att_part(b,LB,' sc1')
    for l in b.L:
        if '@WAITQ' in l:
            a('s_cmp_lt_u32 s30, 4\ns_cbranch_scc1 K2_w1\ns_waitcnt vmcnt(0)\nK2_w1:\ns_waitcnt vmcnt(46)\ns_barrier')
            stamp(a,2)
        else: a.L.append(l)
    stamp(a,3)
    a(f'''
    s_lshr_b32 s60, s10, 3
    s_lshl_b32 s60, s60, 7
    s_and_b32 s61, s10, 7
    s_lshl_b32 s61, s61, 3
    s_add_u32 s60, s60, s61
    s_lshl_b32 s61, s11, 2
    s_add_u32 s60, s60, s61
    s_add_u32 s60, s60, {OFL_OFF}
    v_mov_b32 v{T+4}, 1
    v_mov_b32 v{T+5}, 0
    s_cmp_lt_u32 s30, 4
    s_cbranch_scc1 K2_go
    s_waitcnt vmcnt(0)
    s_barrier
    s_cmp_lg_u32 s33, 0
    s_cbranch_scc1 K2_nf
    buffer_store_dword v{T+4}, v{T+5}, s[20:23], s60 offen sc1
    K2_nf:
    s_cmp_eq_u32 s30, 5
    s_cbranch_scc1 K2_end
    s_lshl_b32 s61, s32, 7
    s_add_u32 s61, s61, {OFL_OFF}
    v_and_b32 v{T}, 15, v230
    v_lshlrev_b32 v{T}, 2, v{T}
    K2_poll:
    buffer_load_dword v{T+1}, v{T}, s[20:23], s61 offen sc1
    s_waitcnt vmcnt(0)
    v_cmp_ne_u32 vcc, 1, v{T+1}
    s_nop 1
    s_cmp_eq_u64 vcc, 0
    s_cbranch_scc1 K2_pd
    s_sleep 4
    s_branch K2_poll
    K2_pd:
    ''')
    for st in range(4):
        for x in prefetch(st): a(x)
    a('s_mov_b32 s60, 0x7ffff000')
    a('K2_go:')
    a('s_barrier')
    for x in prefetch(4): a(x)
    a(f'''
    v_lshrrev_b32 v{T}, 5, v230
    v_mul_u32_u24 v{T}, 3072, v{T}
    v_bfe_u32 v{T+1}, v230, 2, 3
    v_lshl_add_u32 v{T}, v{T+1}, 7, v{T}
    v_lshrrev_b32 v{T+1}, 1, v{T+1}
    s_and_b32 s62, s30, 3
    v_xor_b32 v{T+1}, s62, v{T+1}
    v_and_b32 v{T+2}, 3, v230
    v_lshl_add_u32 v{T}, v{T+2}, 3, v{T}
    s_cmp_eq_u32 s33, 0
    s_cselect_b32 s60, s60, 0x7ffff000
    ''')
    for b_ in range(4):
        a(f'v_xor_b32 v{T+2}, {b_}, v{T+1}\nv_lshl_add_u32 v{AD+b_}, v{T+2}, 5, v{T}')
        for hs in range(1,3): a(f'v_add_u32 v{AD+4*hs+b_}, {2*STG*hs}, v{AD+b_}')
    for r in range(96): a(f'v_mov_b32 v{ACC+r}, 0')
    a('s_waitcnt vmcnt(40)\ns_barrier')
    stamp(a,4)
    def rd(slot,t,half):
        ks,b_=t//12,t%12
        w=WF+(t%6)*4+2*half
        ad=AD+4*(slot//2)+(b_&3)
        off=(slot%2)*STG+ks*12288+(b_//4)*1024+half*6144
        return f'ds_read_b64_tr_b16 v[{w}:{w+1}], v{ad} offset:{off}'
    for t in range(6): a(rd(0,t,0)); a(rd(0,t,1))
    a('s_waitcnt lgkmcnt(8)')
    a('K2_loop:')
    for slot in range(NS):
        ps=(slot-1)%NS
        extra=prefetch(ps)
        if slot==4:
            extra=[f'buffer_store_dword v{T+4}, v{T+5}, s[20:23], s60 offen sc1','s_mov_b32 s60, 0x7ffff000']+extra
        free=[(t,i) for t in range(24) for i in range(2) if (i==0 or (t%2==0 and t!=18)) and (t,i)>=(1,0)]
        place={}
        nv=[k for k,x in enumerate(extra) if x.startswith('buffer')]
        pos=0; tgt={}
        for n_,k in enumerate(nv): tgt[k]=int(SPREAD0+n_*(SPREAD1-SPREAD0)/max(1,len(nv)-1))
        idx=[None]*len(extra)
        nxt=len(free)
        for k in range(len(extra)-1,-1,-1):
            want=tgt.get(k,nxt-1)
            want=min(want,nxt-1)
            idx[k]=want; nxt=want
        cur=-1
        for k in range(len(extra)):
            idx[k]=max(idx[k],cur+1); cur=idx[k]
        assert cur<len(free)
        for k,x in enumerate(extra): place[free[idx[k]]]=x
        nbefore=sum(1 for k in nv if free[idx[k]]<(18,1) and 'store' not in extra[k])
        pend=None
        for t in range(24):
            ks,b_=t//12,t%12
            w=WF+(t%6)*4
            for i in range(2):
                D=ACC+(b_*2+i)*4; h=slot*16+(ks*2+i)*4
                a(f'v_mfma_f32_16x16x32_bf16 {vr(D,4)}, {vr(w,4)}, {ar(h,4)}, {vr(D,4)}')
                if i==0:
                    if pend: a(pend); pend=None
                    if (t,i) in place: a(place[(t,i)])
                else:
                    tn=t+6
                    if tn==24:
                        a(f's_waitcnt vmcnt({30+nbefore})\ns_barrier')
                    s2=slot if tn<24 else (slot+1)%NS
                    if t%2==1: a('s_waitcnt lgkmcnt(6)')
                    a(rd(s2,tn%24,0)); pend=rd(s2,tn%24,1)
                    if (t,i) in place: a(place[(t,i)])
        a(pend)
        if slot in (2,5):
            a('s_add_u32 s47, s47, 3\ns_cmp_ge_u32 s47, s36')
            a('s_cbranch_scc1 K2_done' if slot==2 else 's_cbranch_scc0 K2_loop')
    a('K2_done:')
    stamp(a,5)
    a(f'''
    s_mul_i32 s63, s31, {4*4*4*3072}
    s_add_u32 s63, s63, s43
    s_add_u32 s63, s63, {X_OFF}
    s_nop 4
    ''')
    def send(j, sreg):
        for l in range(3):
            be=l*4+j; D=TT+6+(l%3)*4 if False else RX+(j*3+l)*4
            for i in range(2):
                A=ACC+(be*2+i)*4
                a(f'v_cvt_pk_bf16_f32 v{D+2*i}, v{A}, v{A+1}\nv_cvt_pk_bf16_f32 v{D+2*i+1}, v{A+2}, v{A+3}')
            a(f'buffer_store_dwordx4 v[{D}:{D+3}], v{LV}, s[20:23], {sreg} offen offset:{l*1024} sc1')
    for j in (1,2,3,0):
        if j==0: a('s_cmp_lt_u32 s30, 4\ns_cbranch_scc1 K2_sent')
        a(f'''
        s_xor_b32 s64, s62, {j}
        s_lshl_b32 s64, s64, 2
        s_cmp_lt_u32 s30, 4
        s_cselect_b32 s65, {j}, 0
        s_add_u32 s64, s64, s65
        s_mul_i32 s64, s64, {4*3072}
        s_add_u32 s64, s64, s63
        ''')
        send(j,'s64')
    a('K2_sent:')
    a(f'''
    s_lshl_b32 s64, s31, 2
    s_add_u32 s64, s64, s33
    s_lshl_b32 s64, s64, 5
    s_add_u32 s64, s64, {FLG_OFF}
    s_lshl_b32 s65, s30, 2
    s_add_u32 s65, s65, s64
    v_min_u32 v{T}, 4, v230
    v_lshlrev_b32 v{T}, 2, v{T}
    s_mul_i32 s66, s62, {4*4*3072}
    s_add_u32 s66, s66, s63
    s_mov_b32 s40, 0xbfb8aa3b
    s_mov_b32 s41, 0xffff0000
    s_waitcnt vmcnt(0)
    buffer_store_dword v{T+4}, v{T+5}, s[20:23], s65 offen sc1
    s_cmp_lt_u32 s30, 4
    s_cbranch_scc0 K2_fin
    ''')
    stamp(a,6)
    a(f'''
    K2_poll2:
    buffer_load_dword v{T+1}, v{T}, s[20:23], s64 offen sc1
    s_waitcnt vmcnt(0)
    v_cmp_ne_u32 vcc, 1, v{T+1}
    s_nop 1
    s_cmp_eq_u64 vcc, 0
    s_cbranch_scc1 K2_pd2
    s_sleep 2
    s_branch K2_poll2
    K2_pd2:
    ''')
    stamp(a,7)
    for l in range(3):
        for sl in range(4):
            r=RX+(l*4+sl)*4
            if l==0: a(f's_add_u32 s{44+sl}, s66, {sl*4*3072}')
            a(f'buffer_load_dwordx4 v[{r}:{r+3}], v{LV}, s[20:23], s{44+sl} offen offset:{l*1024} sc1')
    for l in range(3):
        a(f's_waitcnt vmcnt({8-2*l})')
        for i in range(2):
            A=ACC+((l*4)*2+i)*4
            t=TT+6
            for sl in (1,2,3):
                r=RX+(l*4+sl)*4+2*i
                a(f'v_lshlrev_b32 v{t}, 16, v{r}\nv_and_b32 v{t+1}, s41, v{r}\nv_lshlrev_b32 v{t+2}, 16, v{r+1}\nv_and_b32 v{t+3}, s41, v{r+1}')
                for e in range(4): a(f'v_add_f32 v{A+e}, v{A+e}, v{t+e}')
            for e in range(4): a(f'v_mul_f32 v{t+e}, s40, v{A+e}')
            for e in range(4): a(f'v_exp_f32 v{t+e}, v{t+e}')
            for e in range(4): a(f'v_add_f32 v{t+e}, 1.0, v{t+e}')
            for e in range(4): a(f'v_rcp_f32 v{t+e}, v{t+e}')
            r=RX+(l*4)*4+2*i; x=XV+(l*2+i)*2; u=t+4; y=t+8
            a(f'v_lshlrev_b32 v{u}, 16, v{r}\nv_and_b32 v{u+1}, s41, v{r}\nv_lshlrev_b32 v{u+2}, 16, v{r+1}\nv_and_b32 v{u+3}, s41, v{r+1}')
            a(f'v_lshlrev_b32 v{y}, 16, v{x}\nv_and_b32 v{y+1}, s41, v{x}\nv_lshlrev_b32 v{y+2}, 16, v{x+1}\nv_and_b32 v{y+3}, s41, v{x+1}')
            for e in range(4): a(f'v_mul_f32 v{t+e}, v{t+e}, v{A+e}')
            for e in range(4): a(f'v_fmac_f32 v{y+e}, v{t+e}, v{u+e}')
            a(f'v_cvt_pk_bf16_f32 v{x}, v{y}, v{y+1}\nv_cvt_pk_bf16_f32 v{x+1}, v{y+2}, v{y+3}')
            a(f'global_store_dwordx2 v{OA+i}, v[{x}:{x+1}], s[26:27] offset:{l*128}')
    stamp(a,8)
    if gen.PROF: a('s_waitcnt vmcnt(0)')
    stamp(a,9); stamp(a,10,True); gen.dump_stamps(a,11,kidx=1)
    a('K2_fin:\nK2_end:\ns_endpgm')
    return kernel_desc('k2_kernel',256+96,100,256)

_ln2=gen.gen_ln
def gen_ln(a,mimic=True):
    b=Asm(); d=_ln2(b,mimic)
    i=[k for k,l in enumerate(b.L) if 'global_store_dwordx4 v4, v[8:11], s[6:7]' in l][0]
    t=Asm()
    t(f'''
    s_cmp_ge_u32 s2, {FLG_BYTES//1024}
    s_cbranch_scc1 LN_nz
    s_lshl_b32 s3, s2, 10
    s_add_u32 s3, s3, {FLG_OFF}
    v_lshl_add_u32 v50, v0, 2, s3
    v_mov_b32 v51, 0
    global_store_dword v50, v51, s[6:7]
    LN_nz:
    ''')
    b.L[i:i]=t.L
    a.L+=b.L
    return d
gen.gen_ln=gen_ln

TOUCH1=True
def patch_k1_touch(txt):
    i=[k for k,l in enumerate(txt) if 'v[10:11], v[10:11], 0, s[58:59]' in l][0]
    t=Asm()
    t(f'''
    s_load_dwordx2 s[12:13], s[0:1], 48
    s_load_dwordx2 s[14:15], s[0:1], 16
    s_lshl_b32 s3, s33, 6
    v_add_u32 v224, s3, v0
    s_bfe_u32 s16, s2, 0x20001
    s_mul_i32 s16, s16, {1152*1152}
    s_lshr_b32 s17, s2, 3
    s_mul_i32 s18, s17, {324*128}
    s_add_u32 s16, s16, s18
    v_lshlrev_b32 v225, 7, v224
    v_add_u32 v225, s16, v225
    v_min_u32 v226, 67, v224
    v_lshlrev_b32 v226, 7, v226
    s_add_u32 s16, s16, 32768
    v_add_u32 v226, s16, v226
    v_min_u32 v227, 161, v224
    v_lshlrev_b32 v227, 7, v227
    s_mul_i32 s18, s17, {162*128}
    v_add_u32 v227, s18, v227
    s_waitcnt lgkmcnt(0)
    global_load_dword v1, v225, s[12:13]
    global_load_dword v1, v226, s[12:13]
    global_load_dword v1, v227, s[14:15]
    ''')
    txt[i+1:i+1]=t.L
def gen_k1(a):
    b=Asm(); b.nlab=1000
    d=gen2.gen_k1(b)
    if TOUCH1: patch_k1_touch(b.L)
    a.L+=b.L
    return d
def build(kernels):
    a=Asm()
    hdr=open('recurrent_scan__sliding_local_dilated__swiglu_ffn__prompt.s.ref').read().split('\n')
    head=[l for l in hdr if l.startswith(';') and '@launch' not in l and 'Override' not in l and 'grid=ceil' not in l]
    launches={'ln':'; @launch kernel=ln_kernel grid=(256,1,1) block=(256,1,1) lds=0',
              'k1':'; @launch kernel=k1_kernel grid=(256,1,1) block=(256,1,1) lds=147456',
              'k2':'; @launch kernel=k2_kernel grid=(256,1,1) block=(256,1,1) lds=161792'}
    gens={'ln':gen.gen_ln,'k1':gen_k1,'k2':gen_k2f}
    descs=[gens[k](a) for k in kernels]
    s='\n'.join(head)+'\n'+'\n'.join(launches[k] for k in kernels)+'\n'
    s+='.amdgcn_target "amdgcn-amd-amdhsa--gfx950"\n.text\n'+a.text()
    s+='.section .rodata,"a"\n'+''.join('.p2align 6\n'+d for d in descs)
    return s
if __name__=='__main__':
    for o in sys.argv[2:]:
        if o=='prof': gen.PROF=True
        elif o=='map42': gen2.MAP42=True
        elif o=='notouch': gen2.TOUCH0=False
        elif o=='sc1': gen2.STF=' sc1'
        elif o=='norot': ROT=False
        elif o=='notouch1': TOUCH1=False
        elif o.startswith('fd'): gen2.FD=int(o[2:])
    open(sys.argv[1],'w').write(build(['ln','k1','k2']))
```

```python
import sys
from asmlib import *
import gen, gen2
from gen import XN_OFF,O_OFF,QKV_OFF,H_OFF,PROF_OFF,VM
from gen2 import Sched
X_OFF   = 0x1D40000
FLG_OFF = 0x3000000
OFL_OFF = FLG_OFF+0x2000
HFL_OFF = FLG_OFF+0x3000
QFL_OFF = FLG_OFF+0x4000
FLG_BYTES = 0x4400+0x400
OOB=0x7ffff000
PROF=False
def stamp(a,i,kidx=1,rt=False):
    if not PROF: return
    a(f'''
    {"s_memrealtime" if rt else "s_memtime"} s[98:99]
    s_waitcnt lgkmcnt(0)
    v_mov_b32 v1, s98
    s_lshl_b32 s98, s2, 6
    s_add_u32 s98, s98, {PROF_OFF+kidx*0x10000+4*i}
    s_cmp_eq_u32 s33, 0
    s_cselect_b32 s98, s98, {OOB}
    buffer_store_dword v1, off, s[20:23], s98
    ''')

C_AD=40; C_WF=[16,20,24,28,52,56]; C_ACC=96; C_RX=192; C_XV=64; C_T=2
C_DV=246; C_HV=249; C_LV=251; C_OA=252
STG=24576; NS=6
ORDER=[3,4,5,0,1,2]
LAM_H=[0,2,4,6,9,11,13,15,1,3,5,7,10,12,14,16,8,17]
LAM_S=list(range(9))
def lamword(seq,start):
    w=0
    for k in range(6):
        v=seq[start+k] if start+k<len(seq) else 31
        w|=v<<(5*k)
    return w

def c_roles(a):
    T=224
    a(f'''
    s_load_dwordx2 s[88:89], s[0:1], 16
    s_load_dwordx2 s[90:91], s[0:1], 48
    s_and_b32 s92, s2, 1
    s_bfe_u32 s69, s2, 0x20001
    s_bfe_u32 s93, s2, 0x20003
    s_bfe_u32 s94, s2, 0x10005
    s_lshr_b32 s95, s2, 6
    s_lshl_b32 s95, s95, 1
    s_add_u32 s95, s95, s94
    s_lshl_b32 s96, s92, 3
    s_add_u32 s96, s96, s95
    s_mov_b32 s68, 0
    s_mov_b32 s97, 147456
    s_mul_i32 s73, s69, {18*64*1152}
    s_mul_i32 s74, s69, {18*2048}
    s_add_u32 s74, s74, {H_OFF}
    s_mov_b32 s86, {4608*1152+2048}
    s_mov_b32 s75, {lamword(LAM_H,5)}
    s_mov_b32 s76, {lamword(LAM_H,11)}
    s_mov_b32 s77, {lamword(LAM_H,17)}
    s_mov_b32 s78, {lamword(LAM_H,0)}
    s_mov_b32 s82, 18
    s_waitcnt lgkmcnt(0)
    s_cmp_lt_u32 s93, 3
    s_cbranch_scc1 C_rh
    s_lshl_b32 s96, s92, 2
    s_add_u32 s96, s96, s69
    s_lshl_b32 s83, s96, 3
    s_add_u32 s83, s83, s95
    s_lshl_b32 s96, s96, 1
    s_cmp_ge_u32 s95, 3
    s_cselect_b32 s94, 1, 0
    s_add_u32 s96, s96, s94
    s_mul_i32 s94, s94, 3
    s_sub_u32 s93, s95, s94
    s_cmp_lt_u32 s95, 6
    s_cselect_b32 s68, 1, 2
    s_cselect_b32 s93, s93, 0
    s_mov_b32 s69, 0
    s_mov_b32 s97, 18432
    s_mov_b32 s73, 0
    s_mov_b32 s74, {O_OFF}
    s_mov_b32 s86, {576*1152+2048}
    s_mov_b32 s75, {lamword(LAM_S,5)}
    s_mov_b32 s76, {lamword(LAM_S,11)}
    s_mov_b32 s77, {lamword(LAM_S,17)}
    s_mov_b32 s78, {lamword(LAM_S,0)}
    s_mov_b32 s82, 9
    s_mov_b32 s90, s88
    s_mov_b32 s91, s89
    C_rh:
    s_sub_u32 s84, s90, 2048
    s_subb_u32 s85, s91, 0
    s_mov_b32 s87, 0x20000
    s_mul_i32 s70, s96, 3
    s_add_u32 s70, s70, s93
    s_mul_i32 s71, s93, 384
    s_add_u32 s73, s73, s71
    s_mul_i32 s72, s33, 3072
    s_mov_b32 s57, s96
    v_lshlrev_b32 v{C_LV}, 4, v0
    v_lshrrev_b32 v{T}, 3, v0
    s_lshl_b32 s92, s33, 3
    v_add_u32 v{T}, s92, v{T}
    v_bfe_u32 v{T+1}, v{T}, 2, 2
    v_lshlrev_b32 v{T+1}, 3, v{T+1}
    v_lshrrev_b32 v{T+2}, 4, v{T}
    v_lshl_add_u32 v{T+1}, v{T+2}, 2, v{T+1}
    v_and_b32 v{T+2}, 3, v{T}
    v_add_u32 v{T+1}, v{T+1}, v{T+2}
    s_cmp_eq_u32 s68, 0
    s_cselect_b64 s[92:93], -1, 0
    s_nop 0
    v_cndmask_b32 v{T}, v{T+1}, v{T}, s[92:93]
    v_mul_u32_u24 v{T}, 1152, v{T}
    v_bfe_u32 v{T+1}, v0, 1, 2
    v_lshrrev_b32 v{T+2}, 4, v0
    v_xor_b32 v{T+1}, v{T+1}, v{T+2}
    v_lshl_add_u32 v{T}, v{T+1}, 5, v{T}
    v_and_b32 v{T+1}, 1, v0
    v_lshl_add_u32 v{T}, v{T+1}, 4, v{T}
    v_add_u32 v{C_DV}, 2048, v{T}
    v_add_u32 v{C_DV+1}, {2048+128-1024}, v{T}
    v_add_u32 v{C_DV+2}, {2048+256-2048}, v{T}
    s_lshl_b32 s92, s96, 3
    s_lshl_b32 s93, s33, 1
    s_add_u32 s92, s92, s93
    s_mul_i32 s93, s92, s97
    v_add_u32 v{C_HV}, s93, v{C_LV}
    v_add_u32 v{C_HV+1}, s97, v{C_HV}
    v_and_b32 v{T}, 7, v0
    v_lshlrev_b32 v{T}, 1, v{T}
    v_bfe_u32 v{T+1}, v0, 3, 1
    s_lshl_b32 s92, s92, 4
    v_add3_u32 v{T}, v{T}, v{T+1}, s92
    v_mul_u32_u24 v{T}, 1152, v{T}
    v_lshrrev_b32 v{T+1}, 4, v0
    v_lshl_add_u32 v{T}, v{T+1}, 3, v{T}
    s_lshl_b32 s92, s69, 5
    s_add_u32 s92, s92, s71
    v_add_u32 v{C_OA}, s92, v{T}
    v_add_u32 v{C_OA+1}, 18432, v{C_OA}
    ''')

def prefetch(slot, tabreg='s75', parts='WH'):
    W=lambda l: f'buffer_load_dwordx4 v{C_DV+l}, s[84:87], s80 offen offset:{1024*l} lds'
    def H(n):
        ks,i=n//2,n%2; r=slot*16+n*4
        return f'buffer_load_dwordx4 a[{r}:{r+3}], v{C_HV+i}, s[20:23], s81 offen offset:{ks*1024} sc1'
    L=[f's_and_b32 s79, {tabreg}, 31', f's_mul_i32 s80, s79, {64*1152}', 's_lshl_b32 s81, s79, 11', 's_add_u32 s80, s80, s73', 's_add_u32 s81, s81, s74',
       's_cmp_lt_u32 s79, 18', f's_cselect_b32 s80, s80, {OOB}', f's_cselect_b32 s81, s81, {OOB}',
       f's_add_u32 m0, s72, {slot*STG}', H(0), W(0), f's_lshr_b32 {tabreg}, {tabreg}, 5', W(1), W(2),
       f's_add_u32 m0, s72, {slot*STG+4*3072}', H(1), 's_add_u32 s80, s80, 36864', W(0), W(1), W(2), H(2), H(3)]
    if 'W' not in parts: L=[x for x in L if ' lds' not in x]
    if 'H' not in parts: L=[x if not x.startswith('buffer_load_dwordx4 a') else 's_nop 0' for x in L]
    return L

def c_addr_items():
    T=60
    L=[f'v_lshrrev_b32 v{T}, 5, v0', f'v_mul_u32_u24 v{T}, 3072, v{T}', f'v_bfe_u32 v{T+1}, v0, 2, 3', f'v_lshl_add_u32 v{T}, v{T+1}, 7, v{T}',
       f'v_lshrrev_b32 v{T+1}, 1, v{T+1}', f'v_xor_b32 v{T+1}, s69, v{T+1}', f'v_and_b32 v{T+2}, 3, v0', f'v_lshl_add_u32 v{T}, v{T+2}, 3, v{T}']
    for b_ in range(4):
        L+=[f'v_xor_b32 v{T+2}, {b_}, v{T+1}', f'v_lshl_add_u32 v{C_AD+b_}, v{T+2}, 5, v{T}']
        for hs in range(1,3): L.append(f'v_add_u32 v{C_AD+4*hs+b_}, {2*STG*hs}, v{C_AD+b_}')
    return L
def c_rd(slot,t,half):
    ks,b_=t//12,t%12
    w=C_WF[t%6]+2*half
    ad=C_AD+4*(slot//2)+(b_&3)
    off=(slot%2)*STG+ks*12288+(b_//4)*1024+half*6144
    return f'ds_read_b64_tr_b16 v[{w}:{w+1}], v{ad} offset:{off}'

def attention(a, rows_split=None):
    Q=8; KB=(44,80); L=116; O=148; AW=220
    V0,V1=44,80
    a(f'''
    v_lshrrev_b32 v2, 3, v0
    v_and_b32 v3, 7, v0
    v_mul_u32_u24 v3, 144, v3
    s_lshl_b32 s92, s33, 3
    v_add_u32 v2, s92, v2
    s_lshr_b32 s93, s83, 1
    s_lshl_b32 s93, s93, 5
    v_add_u32 v229, s93, v2
    v_add_u32 v4, 7, v2
    s_mov_b32 s94, 3456
    s_mov_b32 s95, 0x05040100
    s_mov_b32 s96, 0x07060302
    s_mov_b32 s97, 0x3eae1a93
    ''')
    for w in range(8):
        a(f'v_min_u32 v5, {w}, v229\nv_sub_u32 v5, v4, v5\nv_mad_u32_u24 v{AW+w}, v5, s94, v3')
        if rows_split:
            n1,b1,b2=rows_split
            a(f'v_cmp_gt_u32 vcc, {n1}, v5\nv_mov_b32 v6, {(b2-n1*3456)&0xffffffff}\nv_mov_b32 v7, {b1}\nv_cndmask_b32 v6, v6, v7, vcc\nv_add_u32 v{AW+w}, v{AW+w}, v6')
    a('@WAITQ')
    def rd(dst,ad,off):
        for m in range(9): a(f'ds_read_b128 v[{dst+4*m}:{dst+4*m+3}], v{ad} offset:{off+16*m}')
    rd(Q,AW,0); rd(KB[0],AW,1152)
    for w in range(8):
        if w<7: rd(KB[(w+1)%2],AW+w+1,1152); a('s_waitcnt lgkmcnt(9)')
        else: a('s_waitcnt lgkmcnt(0)')
        k=KB[w%2]
        for j in range(9):
            for hh in range(4):
                c='0' if j==0 else f'v{L+hh*8+w}'
                a(f'v_dot2_f32_bf16 v{L+hh*8+w}, v{Q+9*hh+j}, v{k+9*hh+j}, {c}')
    rd(V0,AW,2304); rd(V1,AW+1,2304)
    a('v_mov_b32 v5, 0xff800000')
    for w in range(1,8):
        a(f'v_cmp_le_u32 vcc, {w}, v229\ns_nop 1')
        for hh in range(4): a(f'v_cndmask_b32 v{L+hh*8+w}, v5, v{L+hh*8+w}, vcc')
    M=Q
    for hh in range(4):
        l=L+hh*8
        a(f'v_max3_f32 v{M+hh}, v{l}, v{l+1}, v{l+2}\nv_max3_f32 v{M+hh}, v{M+hh}, v{l+3}, v{l+4}\nv_max3_f32 v{M+hh}, v{M+hh}, v{l+5}, v{l+6}\nv_max_f32 v{M+hh}, v{M+hh}, v{l+7}')
    for hh in range(4): a(f'v_mul_f32 v{M+hh}, s97, v{M+hh}')
    for hh in range(4):
        for w in range(8): a(f'v_fma_f32 v{L+hh*8+w}, v{L+hh*8+w}, s97, -v{M+hh}')
    for r in range(32): a(f'v_exp_f32 v{L+r}, v{L+r}')
    for hh in range(4): a(f'v_add_f32 v{M+hh}, v{L+hh*8}, v{L+hh*8+1}')
    for w in range(2,8):
        for hh in range(4): a(f'v_add_f32 v{M+hh}, v{M+hh}, v{L+hh*8+w}')
    for hh in range(4): a(f'v_rcp_f32 v{M+hh}, v{M+hh}')
    a('s_nop 0')
    for hh in range(4):
        for w in range(8): a(f'v_mul_f32 v{L+hh*8+w}, v{L+hh*8+w}, v{M+hh}')
    for hh in range(4):
        for wp in range(4): a(f'v_cvt_pk_bf16_f32 v{L+hh*8+wp}, v{L+hh*8+2*wp}, v{L+hh*8+2*wp+1}')
    for wp in range(4):
        a('s_waitcnt lgkmcnt(0)')
        for j in range(36):
            a(f'v_perm_b32 v{Q+j}, v{V1+j}, v{V0+j}, s95')
            a(f'v_perm_b32 v{230+(j%2)}, v{V1+j}, v{V0+j}, s96')
            c='0' if wp==0 else f'v{O+2*j+1}'
            a(f'v_dot2_f32_bf16 v{O+2*j+1}, v{230+(j%2)}, v{L+(j//9)*8+wp}, {c}')
        if wp<3: rd(V0,AW+2*wp+2,2304); rd(V1,AW+2*wp+3,2304)
        for j in range(36):
            c='0' if wp==0 else f'v{O+2*j}'
            a(f'v_dot2_f32_bf16 v{O+2*j}, v{Q+j}, v{L+(j//9)*8+wp}, {c}')
    a('s_nop 3')
    for j in range(36): a(f'v_cvt_pk_bf16_f32 v{Q+j}, v{O+2*j}, v{O+2*j+1}')
    a(f'''
    v_and_b32 v3, 7, v0
    v_mul_u32_u24 v3, 2304, v3
    v_lshrrev_b32 v2, 3, v0
    v_lshl_add_u32 v3, v2, 4, v3
    s_lshr_b32 s92, s83, 1
    s_lshl_b32 s92, s92, 2
    s_add_u32 s92, s92, s33
    s_mul_i32 s92, s92, 18432
    s_and_b32 s93, s83, 1
    s_lshl_b32 s93, s93, 7
    s_add_u32 s92, s92, s93
    s_add_u32 s92, s92, {O_OFF}
    ''')
    for m in range(9): a(f'buffer_store_dwordx4 v[{Q+4*m}:{Q+4*m+3}], v3, s[20:23], s92 offen offset:{256*m} sc1')

def c_loop(a, hook=None):
    a('C_loop:')
    for pos,slot in enumerate(ORDER):
        ps=(slot-1)%NS
        extra=prefetch(ps)
        pre_h=hook(pos) if hook else []
        extra=pre_h+extra
        free=[(t,i) for t in range(24) for i in range(2) if (i==0 or (t%2==0 and t!=18)) and (t,i)>=(0,1)]
        nv=[k for k,x in enumerate(extra) if x.startswith('buffer_load')]
        first=nv[0]
        tgt={k:int(first+n_*(len(free)-1-first)/(len(nv)-1)) for n_,k in enumerate(nv)}
        idx=[None]*len(extra); nxt=len(free)
        for k in range(len(extra)-1,-1,-1):
            want=min(tgt.get(k,nxt-1),nxt-1); idx[k]=want; nxt=want
        cur=-1
        for k in range(len(extra)):
            idx[k]=max(idx[k],cur+1); cur=idx[k]
        assert cur<len(free),(cur,len(free))
        place={free[idx[k]]:x for k,x in enumerate(extra)}
        nbefore=sum(1 for k in nv if free[idx[k]]<(18,1))
        pend=None
        for t in range(24):
            ks,b_=t//12,t%12
            w=C_WF[t%6]
            for i in range(2):
                D=C_ACC+(b_*2+i)*4; h=slot*16+(ks*2+i)*4
                a(f'v_mfma_f32_16x16x32_bf16 {vr(D,4)}, {vr(w,4)}, {ar(h,4)}, {vr(D,4)}')
                if i==0:
                    if pend: a(pend); pend=None
                    if (t,i) in place: a(place[(t,i)])
                else:
                    tn=t+6
                    if tn==24: a(f's_waitcnt vmcnt({30+nbefore})\ns_barrier')
                    s2=slot if tn<24 else (slot+1)%NS
                    if t%2==1: a('s_waitcnt lgkmcnt(6)')
                    a(c_rd(s2,tn%24,0)); pend=c_rd(s2,tn%24,1)
                    if (t,i) in place: a(place[(t,i)])
        a(pend)
        if pos==2:
            a('s_sub_u32 s82, s82, 3\ns_cmp_eq_u32 s82, 0\ns_cbranch_scc1 C_done')
        if pos==5:
            a('s_mov_b32 s75, s76\ns_mov_b32 s76, s77\ns_sub_u32 s82, s82, 3\ns_cmp_eq_u32 s82, 0\ns_cbranch_scc0 C_loop')
    a('C_done:\ns_waitcnt lgkmcnt(0)')

def c_finish(a):
    T=C_T
    stamp(a,5)
    a(f'''
    s_load_dwordx2 s[88:89], s[0:1], 0
    s_load_dwordx2 s[90:91], s[0:1], 56
    s_mul_i32 s92, s70, {4*4*4*3072}
    s_add_u32 s92, s92, s72
    s_add_u32 s92, s92, {X_OFF}
    v_mov_b32 v{T}, 1
    s_nop 2
    ''')
    def send(j):
        for l in range(3):
            be=l*4+j; D=C_RX+(j*3+l)*4
            for i in range(2):
                A=C_ACC+(be*2+i)*4
                a(f'v_cvt_pk_bf16_f32 v{D+2*i}, v{A}, v{A+1}\nv_cvt_pk_bf16_f32 v{D+2*i+1}, v{A+2}, v{A+3}')
            a(f'buffer_store_dwordx4 v[{D}:{D+3}], v{C_LV}, s[20:23], s93 offen offset:{l*1024} sc1')
    for j in (1,2,3,0):
        if j==0: a('s_cmp_eq_u32 s68, 0\ns_cbranch_scc1 C_sent')
        a(f'''
        s_xor_b32 s93, s69, {j}
        s_lshl_b32 s93, s93, 2
        s_cmp_eq_u32 s68, 0
        s_cselect_b32 s94, {j}, 0
        s_add_u32 s93, s93, s94
        s_mul_i32 s93, s93, {4*3072}
        s_add_u32 s93, s93, s92
        ''')
        send(j)
    a('C_sent:')
    a(f'''
    s_lshl_b32 s93, s70, 2
    s_add_u32 s93, s93, s33
    s_lshl_b32 s93, s93, 5
    s_add_u32 s93, s93, {FLG_OFF}
    s_lshl_b32 s94, s69, 2
    s_cmp_eq_u32 s68, 0
    s_cselect_b32 s94, s94, 16
    s_add_u32 s94, s94, s93
    v_min_u32 v{T+1}, 4, v0
    v_lshlrev_b32 v{T+1}, 2, v{T+1}
    s_mul_i32 s95, s69, {4*4*3072}
    s_add_u32 s95, s95, s92
    s_waitcnt vmcnt(0) lgkmcnt(0)
    buffer_store_dword v{T}, off, s[20:23], s94 sc1
    s_cmp_eq_u32 s68, 0
    s_cbranch_scc0 C_fin
    ''')
    for l in range(3):
        for i in range(2):
            r=C_XV+(l*2+i)*2
            a(f'global_load_dwordx2 v[{r}:{r+1}], v{C_OA+i}, s[88:89] offset:{l*128}')
    stamp(a,6)
    a(f'''
    s_mov_b32 s3, 0
    C_poll2:
    s_add_u32 s3, s3, 1
    s_cmp_gt_u32 s3, 20000
    s_cbranch_scc1 C_pd2
    buffer_load_dword v{T+2}, v{T+1}, s[20:23], s93 offen sc1
    s_waitcnt vmcnt(0)
    v_cmp_ne_u32 vcc, 1, v{T+2}
    s_nop 1
    s_cmp_eq_u64 vcc, 0
    s_cbranch_scc1 C_pd2
    s_sleep 8
    s_branch C_poll2
    C_pd2:
    ''')
    for l in range(3):
        for sl in range(4):
            r=C_RX+(l*4+sl)*4
            if l==0: a(f's_add_u32 s{76+sl}, s95, {sl*4*3072}')
            a(f'buffer_load_dwordx4 v[{r}:{r+3}], v{C_LV}, s[20:23], s{76+sl} offen offset:{l*1024} sc1')
    for l in range(3):
        a(f's_waitcnt vmcnt({8-2*l})')
        for i in range(2):
            A=C_ACC+((l*4)*2+i)*4
            t=16
            for sl in (1,2,3):
                r=C_RX+(l*4+sl)*4+2*i
                a(f'v_lshlrev_b32 v{t}, 16, v{r}\nv_and_b32 v{t+1}, s41, v{r}\nv_lshlrev_b32 v{t+2}, 16, v{r+1}\nv_and_b32 v{t+3}, s41, v{r+1}')
                for e in range(4): a(f'v_add_f32 v{A+e}, v{A+e}, v{t+e}')
            for e in range(4): a(f'v_mul_f32 v{t+e}, s40, v{A+e}')
            for e in range(4): a(f'v_exp_f32 v{t+e}, v{t+e}')
            for e in range(4): a(f'v_add_f32 v{t+e}, 1.0, v{t+e}')
            for e in range(4): a(f'v_rcp_f32 v{t+e}, v{t+e}')
            r=C_RX+(l*4)*4+2*i; x=C_XV+(l*2+i)*2; u=t+4; y=t+8
            a(f'v_lshlrev_b32 v{u}, 16, v{r}\nv_and_b32 v{u+1}, s41, v{r}\nv_lshlrev_b32 v{u+2}, 16, v{r+1}\nv_and_b32 v{u+3}, s41, v{r+1}')
            a(f'v_lshlrev_b32 v{y}, 16, v{x}\nv_and_b32 v{y+1}, s41, v{x}\nv_lshlrev_b32 v{y+2}, 16, v{x+1}\nv_and_b32 v{y+3}, s41, v{x+1}')
            for e in range(4): a(f'v_mul_f32 v{t+e}, v{t+e}, v{A+e}')
            for e in range(4): a(f'v_fmac_f32 v{y+e}, v{t+e}, v{u+e}')
            a(f'v_cvt_pk_bf16_f32 v{x}, v{y}, v{y+1}\nv_cvt_pk_bf16_f32 v{x+1}, v{y+2}, v{y+3}')
            a(f'global_store_dwordx2 v{C_OA+i}, v[{x}:{x+1}], s[90:91] offset:{l*128}')
    stamp(a,7)
    a('C_fin:')
    stamp(a,8); stamp(a,10,rt=True)

def light_after_att(a):
    T=C_T
    a(f'''
    s_lshr_b32 s92, s83, 2
    s_lshl_b32 s92, s92, 7
    s_and_b32 s93, s83, 3
    s_lshl_b32 s93, s93, 2
    s_add_u32 s93, s93, s33
    s_lshl_b32 s93, s93, 2
    s_add_u32 s92, s92, s93
    s_add_u32 s92, s92, {OFL_OFF}
    v_mov_b32 v{T}, 1
    s_barrier
    s_cmp_eq_u32 s68, 2
    s_cbranch_scc1 L_flag
    s_mov_b32 s94, s78
    ''')
    for st in range(5):
        for x in prefetch(ORDER[st],'s94','W'): a(x)
    a(f'''
    s_waitcnt vmcnt(30)
    L_flag:
    s_cmp_eq_u32 s68, 2
    s_cbranch_scc0 L_f2
    s_waitcnt vmcnt(0)
    L_f2:
    buffer_store_dword v{T}, off, s[20:23], s92 sc1
    s_cmp_eq_u32 s68, 2
    s_cbranch_scc1 C_fin
    s_lshl_b32 s93, s57, 7
    s_add_u32 s93, s93, {OFL_OFF}
    v_and_b32 v{T+1}, 15, v0
    v_lshlrev_b32 v{T+1}, 2, v{T+1}
    ''')
    for x in c_addr_items(): a(x)
    for r in range(96): a(f'v_mov_b32 v{C_ACC+r}, 0')
    a(f'''
    s_mov_b32 s3, 0
    L_poll:
    s_add_u32 s3, s3, 1
    s_cmp_gt_u32 s3, 20000
    s_cbranch_scc1 L_pd
    buffer_load_dword v{T+2}, v{T+1}, s[20:23], s93 offen sc1
    s_waitcnt vmcnt(0)
    v_cmp_ne_u32 vcc, 1, v{T+2}
    s_nop 1
    s_cmp_eq_u64 vcc, 0
    s_cbranch_scc1 L_pd
    s_sleep 1
    s_branch L_poll
    L_pd:
    ''')
    for st in range(5):
        for x in prefetch(ORDER[st],'s78','H'): a(x)
    a('s_waitcnt vmcnt(0)\ns_barrier')

def gen_k2(a):
    a(kernel_header('k2_kernel'))
    a(f'''
    s_cmp_ge_u32 s2, 256
    s_cbranch_scc1 K2_end
    s_load_dwordx2 s[20:21], s[0:1], 72
    v_lshrrev_b32 v1, 6, v0
    v_and_b32 v0, 63, v0
    s_mov_b32 s22, 0x10000000
    s_mov_b32 s23, 0x20000
    v_readfirstlane_b32 s33, v1
    s_mov_b32 s40, 0xbfb8aa3b
    s_mov_b32 s41, 0xffff0000
    s_mov_b32 s83, 0
    ''')
    c_roles(a)
    stamp(a,0,rt=True); stamp(a,1)
    a('s_cmp_eq_u32 s68, 0\ns_cbranch_scc0 K2_light')
    for st in range(5):
        for x in prefetch(ORDER[st],'s78'): a(x)
        if st==1:
            for x in c_addr_items(): a(x)
            for r in range(96): a(f'v_mov_b32 v{C_ACC+r}, 0')
    a('s_waitcnt vmcnt(40)\ns_barrier\ns_branch C_start')
    a('K2_light:')
    a(f'''
    s_and_b32 s92, s83, 1
    s_lshl_b32 s92, s92, 10
    s_lshr_b32 s93, s83, 1
    s_lshl_b32 s93, s93, 5
    s_add_u32 s92, s92, s93
    s_mul_i32 s92, s92, 3456
    s_add_u32 s92, s92, {QKV_OFF-7*3456}
    s_lshl_b32 s93, s33, 10
    s_add_u32 s92, s92, s93
    s_mov_b32 m0, s93
    s_nop 0
    ''')
    for n in range(33):
        a(f'buffer_load_dwordx4 v{C_LV}, s[20:23], s92 offen lds')
        if n<32: a('s_add_u32 m0, m0, 4096\ns_add_u32 s92, s92, 4096')
    b=Asm(); attention(b)
    for l in b.L:
        if '@WAITQ' in l:
            a('s_waitcnt vmcnt(0)\ns_barrier'); stamp(a,2)
        else: a.L.append(l)
    stamp(a,3)
    light_after_att(a)
    a('C_start:')
    stamp(a,4)
    for t in range(6): a(c_rd(ORDER[0],t,0)); a(c_rd(ORDER[0],t,1))
    a('s_waitcnt lgkmcnt(8)')
    c_loop(a)
    c_finish(a)
    a('K2_end:\ns_endpgm')
    return kernel_desc('k2_kernel',256+96,100,256)

import gen3
gen3.FLG_BYTES=FLG_BYTES
def build(kernels):
    a=Asm()
    hdr=open('recurrent_scan__sliding_local_dilated__swiglu_ffn__prompt.s.ref').read().split('\n')
    head=[l for l in hdr if l.startswith(';') and '@launch' not in l and 'Override' not in l and 'grid=ceil' not in l]
    launches={'ln':'; @launch kernel=ln_kernel grid=(256,1,1) block=(256,1,1) lds=0',
              'k1':'; @launch kernel=k1_kernel grid=(256,1,1) block=(256,1,1) lds=147456',
              'k2':'; @launch kernel=k2_kernel grid=(256,1,1) block=(256,1,1) lds=147456'}
    gens={'ln':gen.gen_ln,'k1':gen3.gen_k1,'k2':gen_k2}
    descs=[gens[k](a) for k in kernels]
    s='\n'.join(head)+'\n'+'\n'.join(launches[k] for k in kernels)+'\n'
    s+='.amdgcn_target "amdgcn-amd-amdhsa--gfx950"\n.text\n'+a.text()
    s+='.section .rodata,"a"\n'+''.join('.p2align 6\n'+d for d in descs)
    return s
if __name__=='__main__':
    gen2.MAP42=True
    for o in sys.argv[2:]:
        if o=='prof': PROF=True; gen.PROF=True
        elif o=='notouch1': gen3.TOUCH1=False
    open(sys.argv[1],'w').write(build(['ln','k1','k2']))
```

```python
import sys
from asmlib import *
import gen as G1
from gen import XN_OFF,O_OFF,QKV_OFF,H_OFF,P_OFF,S_OFF,PROF_OFF,VM
import gen

def stamp(a,i,rt=False): gen.stamp(a,i,rt)

FREE_NV=0
class Sched:
    def __init__(self, nm, cap=2):
        self.nm=nm; self.cap=cap
        self.fill=[[] for _ in range(nm)]
        self.post=[[] for _ in range(nm)]
        self.pre=[[] for _ in range(nm+1)]
        self.load=[0]*nm
        self.nv=[0]*nm
        self.tail=[]
    def _acct(self,m,ins,cost):
        if ins.startswith('v_'): self.load[m]+=cost
        else:
            self.nv[m]+=cost
            if self.nv[m]>FREE_NV: self.load[m]+=min(cost,self.nv[m]-FREE_NV)
    def add_post(self,m,ins,cost=1):
        m=min(m,self.nm-1); self.post[m].append(ins); self._acct(m,ins,cost)
    def add_pre(self,m,ins,cost=1):
        self.pre[m].append(ins)
        if m>0: self._acct(m-1,ins,cost)
    def add_fill(self,m,item):
        self.fill[m].append(item); self._acct(m,item[0],item[1])
    def chains(self, chains, lo, hi, nq, pace=False):
        total=sum(x[1] for c in chains for p in c for x in p)
        free=sum(max(0,self.cap-self.load[m]) for m in range(lo,hi))
        over=max(0,total-int(free*0.97))
        st=[[0,0,-1] for _ in chains]
        done_gap=[None]*len(chains)
        placed=0; ov=0.0
        m=lo
        while any(d is None for d in done_gap):
            mm=min(m,self.nm-1)
            capl=self.cap-self.load[mm]
            ov+=over/(hi-lo)
            if ov>=1: capl+=1; ov-=1
            if m>=hi: capl=max(capl,3)
            if pace and over==0 and m<hi:
                allowed=total*(m-lo+1)/(hi-lo)-placed
                capl=min(capl,int(allowed+0.999))
            while capl>0:
                cands=[]
                for k,c in enumerate(chains):
                    if done_gap[k] is not None: continue
                    if k>=nq and (done_gap[k-nq] is None or done_gap[k-nq]>m-2): break
                    ph,ix,pg=st[k]
                    if ix==0 and pg>=m: continue
                    cands.append(k)
                pick=None
                if capl>=2:
                    for k in cands:
                        if chains[k][st[k][0]][st[k][1]][1]>=2: pick=k;break
                if pick is None:
                    for k in cands:
                        if chains[k][st[k][0]][st[k][1]][1]<=capl: pick=k;break
                if pick is None: break
                ph,ix,pg=st[pick]
                it=chains[pick][ph][ix]
                if m<self.nm:
                    self.fill[mm].append(it); self.load[mm]+=it[1]
                else: self.tail.append(it)
                capl-=it[1]; placed+=it[1]
                ix+=1
                if ix==len(chains[pick][ph]):
                    ph+=1; ix=0; pg=m
                    if ph==len(chains[pick]): done_gap[pick]=m
                st[pick]=[ph,ix,pg]
            m+=1
            assert m<hi+400
        return m
    def emit(self,a,vm,mfma,lds_init,special):
        lds=list(lds_init)
        def out(s):
            nonlocal lds
            if s.startswith('WAITL'):
                need=int(s[5:].split(':')[0]); slack=int(s.split(':')[1]) if ':' in s else 0
                c=[i for i,x in enumerate(lds) if x<=need]
                if c:
                    idx=max(c); n=max(0,len(lds)-1-idx-slack)
                    a(f's_waitcnt lgkmcnt({min(n,15)})'); lds=lds[idx+1:]
            elif s.startswith('@'):
                special(s[1:])
            else:
                if ';tag=' in s:
                    s,t=s.split(';tag='); lds.append(int(t))
                a(s)
        for s in self.pre[0]: out(s)
        for m in range(self.nm):
            a(mfma(m))
            items=[(f[0],f[2] if len(f)>2 else None) for f in self.fill[m]]+[(s,None) for s in self.post[m]]
            late=[s for s in self.pre[m+1] if s.startswith('@')]
            waits=[s for s in self.pre[m+1] if not s.startswith('@')]
            nv=[x for x in items if not x[0].startswith('v_')]
            va=[x for x in items if x[0].startswith('v_')]
            if not late:
                for s in waits: out(s)
            for x in nv+va:
                out(x[0])
                if x[1]: vm.issue(x[1])
            if late:
                for s in late+waits: out(s)
        for f in self.tail:
            out(f[0])
            if len(f)>2: vm.issue(f[2])

V_AD=2; V_NB=6; V_DA=10; V_DI=12; V_HST=14; V_QST=15; V_WF=16; V_SG=32; V_ACC=(64,128); V_X=192; V_T=224
V_BN=240
V_ZA=244
V_QA=246
V_UA=248
V_QI=250
V_XO=252
HALF=73728
S_DI='s[100:101]'
S_QI='s[4:5]'
F_EXTRA={}
def xreg(i,ks): return G1.xreg(i,ks)

def ch_epiG(acc):
    ch=[]
    n=0
    for b in range(4):
        for i in range(4):
            A=acc+(b*4+i)*4; T=V_T+(n%4)*4; n+=1; S=V_SG+(b*4+i)*2
            ch.append([
              [(f'v_mul_f32 v{T+r}, s40, v{A+r}',1) for r in range(4)],
              [(f'v_exp_f32 v{T+r}, v{T+r}',2) for r in range(4)],
              [(f'v_add_f32 v{T+r}, 1.0, v{T+r}',1) for r in range(4)],
              [(f'v_rcp_f32 v{T+r}, v{T+r}',2) for r in range(4)],
              [(f'v_mul_f32 v{T+r}, v{T+r}, v{A+r}',1) for r in range(4)],
              [(f'v_cvt_pk_bf16_f32 v{S}, v{T}, v{T+1}',1),(f'v_cvt_pk_bf16_f32 v{S+1}, v{T+2}, v{T+3}',1)]])
    return ch,4
STF=''
def ch_epiU(acc):
    ch=[]; n=0
    for p in range(2):
        for i in range(4):
            T=V_T+(n%2)*8; n+=1
            p1=[];p2=[]
            for hb in range(2):
                b=2*p+hb; A=acc+(b*4+i)*4; S=V_SG+(b*4+i)*2; t=T+4*hb
                p1+=[(f'v_lshlrev_b32 v{t}, 16, v{S}',1),(f'v_and_b32 v{t+1}, s41, v{S}',1),
                     (f'v_lshlrev_b32 v{t+2}, 16, v{S+1}',1),(f'v_and_b32 v{t+3}, s41, v{S+1}',1)]
                p2+=[(f'v_mul_f32 v{t+r}, v{t+r}, v{A+r}',1) for r in range(4)]
            p3=[(f'v_cvt_pk_bf16_f32 v{T+j}, v{T+2*j}, v{T+2*j+1}',1) for j in range(4)]
            p4=[(f'buffer_store_dwordx4 v[{T}:{T+3}], v{V_HST}, s[20:23], s{44+i} offen offset:{p*1024}{STF}',2,'st')]
            ch.append([p1,p2,p3,p4])
    return ch,2
def ch_epiQ(acc,b0,coff):
    ch=[]
    for i in range(4):
        D=V_T+(i%4)*4
        p1=[]
        for hb in range(2):
            A=acc+((b0+hb)*4+i)*4
            p1+=[(f'v_cvt_pk_bf16_f32 v{D+2*hb}, v{A}, v{A+1}',1),(f'v_cvt_pk_bf16_f32 v{D+2*hb+1}, v{A+2}, v{A+3}',1)]
        ch.append([p1,[(f'buffer_store_dwordx4 v[{D}:{D+3}], v{V_QST}, s[20:23], s{48+i} offen offset:{coff}{STF}',2,'st')]])
    return ch,4
def flat(ch):
    out=[]
    np_=max(len(c) for c in ch)
    for p in range(np_):
        for c in ch:
            if p<len(c): out+= [x[0] for x in c[p]]
    return out
def epiZ_tail(a,acc):
    ch=[]
    for i in range(4):
        Gr=acc+i*4; U=acc+(4+i)*4; T=V_T+i*4; D=V_SG+2*i
        ch.append([
          [(f'v_mul_f32 v{T+r}, s40, v{Gr+r}',1) for r in range(4)],
          [(f'v_exp_f32 v{T+r}, v{T+r}',2) for r in range(4)],
          [(f'v_add_f32 v{T+r}, 1.0, v{T+r}',1) for r in range(4)],
          [(f'v_rcp_f32 v{T+r}, v{T+r}',2) for r in range(4)],
          [(f'v_mul_f32 v{T+r}, v{T+r}, v{Gr+r}',1) for r in range(4)],
          [(f'v_cvt_pk_bf16_f32 v{T}, v{T}, v{T+1}',1),(f'v_cvt_pk_bf16_f32 v{T+2}, v{T+2}, v{T+3}',1)],
          [(f'v_and_b32 v{T+1}, s41, v{T}',1),(f'v_lshlrev_b32 v{T}, 16, v{T}',1),(f'v_and_b32 v{T+3}, s41, v{T+2}',1),(f'v_lshlrev_b32 v{T+2}, 16, v{T+2}',1)],
          [(f'v_mul_f32 v{T+r}, v{T+r}, v{U+r}',1) for r in range(4)],
          [(f'v_cvt_pk_bf16_f32 v{D}, v{T}, v{T+1}',1),(f'v_cvt_pk_bf16_f32 v{D+1}, v{T+2}, v{T+3}',1)],
          [(f'buffer_store_dwordx2 v[{D}:{D+1}], v{V_HST}, s[20:23], s{44+i} offen{STF}',2,'st')]])
    for s in flat(ch): a(s)

def body(a, vm, accset, epi, kind='full', dma=True, last=False, midbar=False, extra=None):
    acc=V_ACC[accset]
    ns=72 if kind=='full' else 36
    nm=ns*4
    S=Sched(nm)
    step=4096 if kind=='full' else 8192
    mid=9 if kind=='full' else 5
    def rd_off(t):
        g=t//4
        return (g*step if g<mid else (g-mid)*step), g>=mid
    for t in range(ns):
        m0=t*4
        if t%2==0: S.add_pre(m0,f'WAITL{min(t+1,ns-1)}')
        tn=t+4; w=V_WF+(t%4)*4; ad=V_AD+(t%4)
        if tn<ns:
            off,hi=rd_off(tn); _,hip=rd_off(t)
            if hi and not hip: S.add_post(m0+1,f'v_add_u32 v{ad}, {mid*step}, v{ad}')
            S.add_post(m0+3,f'ds_read_b64_tr_b16 v[{w}:{w+1}], v{ad} offset:{off};tag={tn}')
            S.add_post(m0+4,f'ds_read_b64_tr_b16 v[{w+2}:{w+3}], v{ad} offset:{off+512};tag={tn}')
        elif not last:
            S.add_post(m0+1,f'v_mov_b32 v{ad}, v{V_NB+(t%4)}')
            if tn==ns: S.add_post(m0+2,'@SUB',2)
            S.add_post(m0+3,f'ds_read_b64_tr_b16 v[{w}:{w+1}], v{ad} offset:0;tag={tn}')
            S.add_post(m0+4,f'ds_read_b64_tr_b16 v[{w+2}:{w+3}], v{ad} offset:512;tag={tn}')
    if dma:
        for n in range(18):
            m=(n//2)*16+(n%2)*8+1
            S.add_fill(m,('s_add_u32 m0, m0, 4096',1))
            S.add_fill(m+1,(f'global_load_lds_dwordx4 v[{V_DA}:{V_DA+1}], off',1,'dma'))
            S.add_fill(m+1,(f'v_lshl_add_u64 v[{V_DA}:{V_DA+1}], v[{V_DA}:{V_DA+1}], 0, {S_DI}',1))
    if midbar: S.add_post(9*16+1,'@MID',2)
    if extra:
        for m,it in extra: S.add_fill(m,it)
    if epi:
        ch,nq=epi
        S.chains(ch,1,nm-6,nq,pace=True)
    def mf(m):
        t=m//4;i=m%4
        ks,b=(t//4,t%4) if kind=='full' else (t//2,t%2)
        D=acc+(b*4+i)*4; w=V_WF+(t%4)*4
        return f'v_mfma_f32_16x16x32_bf16 {vr(D,4)}, {vr(w,4)}, {xreg(i,ks)}, {"0" if ks==0 else vr(D,4)}'
    def special(n):
        if n=='SUB':
            a(f's_waitcnt vmcnt({vm.wait_n("dma")})\ns_barrier')
        elif n=='MID':
            a(f's_waitcnt vmcnt({min(63,len(vm.ops))})\ns_barrier')
    S.emit(a,vm,mf,[0,0,1,1,2,2,3,3],special)

FD=5
def grp_items(g):
    L=[(f's_add_u32 m0, s66, {g*4096}',1),
       (f'global_load_lds_dwordx4 v[{V_DA}:{V_DA+1}], off',1,f'g{g}'),
       (f's_add_u32 m0, s66, {HALF+g*4096}',1),
       (f'v_lshl_add_u64 v[{V_DA}:{V_DA+1}], v[{V_DA}:{V_DA+1}], 0, {S_DI}',1),
       (f'global_load_lds_dwordx4 v[{V_QA}:{V_QA+1}], off',1,f'g{g}'),
       (f'v_lshl_add_u64 v[{V_QA}:{V_QA+1}], v[{V_QA}:{V_QA+1}], 0, {S_QI}',1)]
    for i in range(4):
        L.append((f'buffer_load_dwordx4 {xreg(i,g)}, v{V_XO+i}, s[20:23], s{52+g//4} offen offset:{(g%4)*1024}',1,f'g{g}'))
    return L
def u0_items(g):
    return [(f's_add_u32 m0, s66, {HALF+g*4096}',1),
            (f'global_load_lds_dwordx4 v[{V_UA}:{V_UA+1}], off',1,f'u{g}'),
            (f'v_lshl_add_u64 v[{V_UA}:{V_UA+1}], v[{V_UA}:{V_UA+1}], 0, {S_DI}',1)]

def bodyF(a, vm):
    nm=18*32
    S=Sched(nm)
    def regs(sl):
        if sl<4: return V_SG+sl*4, V_NB+sl, V_ACC[1]+sl*16
        return V_WF+(sl-4)*4, V_AD+(sl-4), V_ACC[0]+(sl-4)*16
    for ks in range(18):
        for sl in range(8):
            t=ks*8+sl; m0=t*4
            w,ad,_=regs(sl)
            if sl==2: S.add_pre(m0,f'@SKIP{ks}')
            if sl==4: S.pre[m0].append(f'@LAB{ks}')
            if sl%2==0: S.add_pre(m0,f'WAITL{t+1}:4')
            kn=ks+1
            m2 = m0+4 if sl not in (1,3) else m0+3
            if kn<18:
                if kn==9: S.add_post(m0+1,f'v_add_u32 v{ad}, 36864, v{ad}')
                off=(kn%9)*4096
                S.add_post(m0+3,f'ds_read_b64_tr_b16 v[{w}:{w+1}], v{ad} offset:{off};tag={t+8}')
                S.add_post(m2,f'ds_read_b64_tr_b16 v[{w+2}:{w+3}], v{ad} offset:{off+512};tag={t+8}')
            elif sl>=4:
                S.add_post(m0+1,f'v_add_u32 v{ad}, {HALF}, v{V_BN+sl-4}')
                if sl==4: S.add_post(m0+2,'@SUB',2)
                S.add_post(m0+3,f'ds_read_b64_tr_b16 v[{w}:{w+1}], v{ad} offset:0;tag={t+8}')
                S.add_post(m2,f'ds_read_b64_tr_b16 v[{w+2}:{w+3}], v{ad} offset:512;tag={t+8}')
        base=ks*32
        if ks<17: S.add_post(base+1,f'@READY{ks+1}',2)
        mand=[base+2,base+4,base+5,base+6]+[base+16+j for j in (0,1,2,4,5,6,8,9,10,12,13,14)]
        items=[]
        if ks+FD<18: items+=grp_items(ks+FD)
        if 1<=ks<17: items+=u0_items(ks-1)
        if ks in F_EXTRA: items+=[F_EXTRA[ks]]
        if ks<17:
            for j,it in enumerate(items): S.add_fill(mand[j],it)
        else:
            its=u0_items(16)+u0_items(17)
            for j,it in enumerate(its): S.add_fill(base+16+4+j,it)
    ch,nq=ch_epiQ(V_ACC[1],0,0)
    S.chains(ch,17*32+18,nm,nq)
    def mf(m):
        t=m//4;i=m%4;ks=t//8;sl=t%8
        w,_,ac=regs(sl); D=ac+i*4
        return f'v_mfma_f32_16x16x32_bf16 {vr(D,4)}, {vr(w,4)}, {xreg(i,ks)}, {"0" if ks==0 else vr(D,4)}'
    def special(n):
        if n.startswith('SKIP'): a(f's_cbranch_vccz KF_s{n[4:]}')
        elif n.startswith('LAB'): a(f'KF_s{n[3:]}:')
        elif n.startswith('READY'):
            a(f's_waitcnt vmcnt({vm.wait_n("g"+n[5:])})\ns_barrier')
        elif n=='SUB':
            a(f's_waitcnt vmcnt({vm.wait_n("u12")})\ns_barrier')
    S.emit(a,vm,mf,[t for t in range(8) for _ in range(2)],special)

MAP42=False
def decode_cg(a):
    if not MAP42:
        a('s_and_b32 s30, s2, 7\ns_lshr_b32 s31, s2, 3\ns_and_b32 s31, s31, 3\ns_lshr_b32 s32, s2, 5')
    else:
        a('''
        s_bfe_u32 s30, s2, 0x20001
        s_lshl_b32 s30, s30, 1
        s_bfe_u32 s31, s2, 0x10005
        s_add_u32 s30, s30, s31
        s_bfe_u32 s31, s2, 0x20003
        s_and_b32 s32, s2, 1
        s_lshl_b32 s32, s32, 2
        s_lshr_b32 s3, s2, 6
        s_add_u32 s32, s32, s3
        ''')
def decode_q(a, lab):
    a(f'''
    s_mul_i32 s62, s30, 3
    s_add_u32 s62, s62, s31
    s_lshl_b32 s62, s62, 7
    s_add_u32 s64, s30, 44
    s_lshl_b32 s64, s64, 6
    s_cmp_lt_u32 s31, 3
    s_cselect_b32 s63, 1, 0
    s_cmp_lt_u32 s30, 6
    s_cbranch_scc1 {lab}
    s_lshl_b32 s62, s30, 1
    s_add_u32 s62, s62, s31
    s_add_u32 s64, s62, 36
    s_lshl_b32 s64, s64, 6
    s_add_u32 s62, s62, 6
    s_lshl_b32 s62, s62, 7
    s_cmp_lt_u32 s31, 2
    s_cselect_b32 s63, 1, 0
    {lab}:
    s_cmp_eq_u32 s63, 1
    s_cselect_b32 s62, s62, s64
    ''')
TOUCH0=True
_old_ln=gen.gen_ln
def gen_ln(a, mimic=True):
    b=Asm()
    d=_old_ln(b,mimic)
    txt=b.L
    if TOUCH0:
        t=Asm()
        t('s_load_dwordx2 s[12:13], s[0:1], 8\ns_load_dwordx4 s[16:19], s[0:1], 32')
        i0=[i for i,l in enumerate(txt) if 's_load_dwordx2 s[6:7]' in l][0]
        txt[i0+1:i0+1]=t.L
        t=Asm()
        decode_cg(t); decode_q(t,'LN_qok')
        nrow = 144 if MAP42 else 72
        t(f'''
        s_and_b32 s33, s32, {3 if MAP42 else 7}
        s_mul_i32 s33, s33, {nrow}
        v_add_u32 v53, s33, v0
        s_mul_i32 s36, s30, 1152
        s_lshl_b32 s37, s31, 8
        s_add_u32 s37, s37, s36
        v_mul_u32_u24 v54, 9216, v53
        v_add_u32 v54, s37, v54
        v_mul_u32_u24 v53, 3456, v53
        v_add_u32 v53, s62, v53
        v_cmp_gt_u32 s[34:35], {nrow if nrow<=64 else 's38'}, v0
        '''.replace('v_cmp_gt_u32', f's_mov_b32 s38, {nrow}\nv_cmp_gt_u32'))
        t('''
        s_and_saveexec_b64 s[36:37], s[34:35]
        s_cbranch_execz LN_not
        global_load_dword v55, v54, s[16:17]
        global_load_dword v55, v53, s[12:13]
        global_load_dword v55, v54, s[18:19]
        LN_not:
        s_mov_b64 exec, s[36:37]
        ''')
        i1=[i for i,l in enumerate(txt) if 's_mov_b64 exec, s[8:9]' in l][0]
        txt[i1+1:i1+1]=t.L
        i2=[i for i,l in enumerate(txt) if 's_waitcnt vmcnt(0)' in l][0]
        txt[i2]='    LN_WAIT'
        d=d.replace('next_free_sgpr 16','next_free_sgpr 72')
    for l in txt:
        if 'LN_WAIT' in l:
            a('s_cmp_eq_u64 s[34:35], 0\ns_cbranch_scc1 LN_w0\ns_waitcnt vmcnt(3)\ns_branch LN_w1\nLN_w0:\ns_waitcnt vmcnt(0)\nLN_w1:')
        else: a.L.append(l)
    return d
gen.gen_ln=gen_ln
def gen_k1(a):
    a(kernel_header('k1_kernel'))
    a('''
    s_cmp_ge_u32 s2, 256
    s_cbranch_scc1 K1_end
    s_load_dwordx2 s[4:5], s[0:1], 8
    s_load_dwordx4 s[8:11], s[0:1], 32
    s_load_dwordx2 s[20:21], s[0:1], 72
    v_lshrrev_b32 v1, 6, v0
    v_and_b32 v0, 63, v0
    ''')
    decode_cg(a)
    a('''
    v_readfirstlane_b32 s33, v1
    s_mov_b32 s22, 0x10000000
    s_mov_b32 s23, 0x20000
    s_mov_b32 s40, 0xbfb8aa3b
    s_mov_b32 s41, 0xffff0000
    ''')
    stamp(a,0,True); stamp(a,1)
    T=V_T
    a(f'''
    s_lshl_b32 s34, s32, 4
    s_lshl_b32 s35, s33, 2
    s_add_u32 s34, s34, s35
    s_mul_i32 s35, s34, 18432
    v_lshlrev_b32 v{T}, 4, v0
    v_add_u32 v{V_XO}, s35, v{T}
    v_add_u32 v{V_XO+1}, 18432, v{V_XO}
    v_add_u32 v{V_XO+2}, 36864, v{V_XO}
    v_add_u32 v{V_XO+3}, 55296, v{V_XO}
    s_mul_i32 s35, s34, 147456
    v_add_u32 v{V_HST}, s35, v{T}
    s_lshl_b32 s66, s33, 10
    ''')
    for g in range(5): a(f's_mov_b32 s{52+g}, {XN_OFF+g*4096}')
    decode_q(a,'K1_qok')
    a('''
    s_cselect_b32 s67, 3, 1
    s_mov_b32 s64, s63
    s_mov_b32 s65, 0
    ''')
    a(f'''
    v_lshrrev_b32 v{T}, 3, v0
    s_lshl_b32 s35, s33, 3
    v_add_u32 v{T}, s35, v{T}
    v_bfe_u32 v{T+1}, v0, 1, 2
    v_bfe_u32 v{T+2}, v0, 4, 1
    s_and_b32 s35, s33, 1
    s_lshl_b32 s35, s35, 1
    v_or_b32 v{T+2}, s35, v{T+2}
    v_xor_b32 v{T+1}, v{T+1}, v{T+2}
    v_and_b32 v{T+2}, 1, v0
    v_lshlrev_b32 v{T+2}, 4, v{T+2}
    v_mul_u32_u24 v{T+4}, 9216, v{T}
    v_add_u32 v{T+4}, v{T+4}, v{T+2}
    v_mov_b32 v{T+5}, 0
    v_mul_u32_u24 v{T+6}, 3456, v{T}
    v_add_u32 v{T+6}, v{T+6}, v{T+2}
    v_and_b32 v{T+3}, s67, v{T+1}
    v_lshl_add_u32 v{T+6}, v{T+3}, 5, v{T+6}
    v_mov_b32 v{T+7}, 0
    v_lshl_add_u32 v{T+8}, v{T+1}, 5, v{T+4}
    v_mov_b32 v{T+9}, 0
    s_mul_i32 s36, s30, 1152
    s_lshl_b32 s37, s31, 8
    s_add_u32 s37, s37, s36
    s_lshl_b32 s38, s31, 5
    s_add_u32 s38, s38, s36
    s_add_u32 s38, s38, 1024
    v_mov_b32 v{V_DI}, 294912
    v_mov_b32 v{V_DI+1}, 0
    v_mov_b32 v{V_QI}, 110592
    v_mov_b32 v{V_QI+1}, 0
    s_waitcnt lgkmcnt(0)
    s_add_u32 s12, s8, s37
    s_addc_u32 s13, s9, 0
    s_add_u32 s16, s4, s62
    s_addc_u32 s17, s5, 0
    v_lshl_add_u64 v[{V_DA}:{V_DA+1}], v[{T+8}:{T+9}], 0, s[12:13]
    v_lshl_add_u64 v[{V_QA}:{V_QA+1}], v[{T+6}:{T+7}], 0, s[16:17]
    ''')
    vm=VM()
    for g in range(FD):
        its=grp_items(g)
        for j,it in enumerate(its):
            a(it[0])
            if j==0: a('s_nop 0')
            if len(it)>2: vm.issue(it[2])
    a(f'''
    s_add_u32 s14, s10, s37
    s_addc_u32 s15, s11, 0
    v_lshl_add_u64 v[{V_UA}:{V_UA+1}], v[{T+8}:{T+9}], 0, s[14:15]
    s_sub_u32 s58, s10, s8
    s_subb_u32 s59, s11, s9
    s_sub_u32 s58, s58, 5308416
    s_subb_u32 s59, s59, 0
    s_mov_b32 s60, {(-5308416+128)&0xffffffff}
    s_mov_b32 s61, -1
    s_add_u32 s12, s8, s38
    s_addc_u32 s13, s9, 0
    s_add_u32 s14, s10, s38
    s_addc_u32 s15, s11, 0
    v_lshl_add_u64 v[{V_ZA}:{V_ZA+1}], v[{T+4}:{T+5}], 0, s[12:13]
    v_lshl_add_u64 v[{T+12}:{T+13}], v[{T+4}:{T+5}], 0, s[14:15]
    v_and_b32 v{T+3}, 1, v{T+1}
    v_cmp_eq_u32 vcc, 1, v{T+3}
    s_nop 1
    v_cndmask_b32 v{V_ZA}, v{V_ZA}, v{T+12}, vcc
    v_cndmask_b32 v{V_ZA+1}, v{V_ZA+1}, v{T+13}, vcc
    v_lshrrev_b32 v{T}, 4, v0
    v_bfe_u32 v{T+1}, v0, 2, 2
    v_lshl_add_u32 v{T+2}, v{T}, 3, v{T+1}
    v_lshlrev_b32 v{T+2}, 7, v{T+2}
    v_lshrrev_b32 v{T+1}, 1, v{T+1}
    v_and_b32 v{T}, 1, v{T}
    v_lshl_or_b32 v{T+1}, v{T}, 1, v{T+1}
    v_and_b32 v{T+3}, 3, v0
    ''')
    for b in range(4):
        a(f'''
        v_xor_b32 v{T+4}, {b}, v{T+1}
        v_lshl_add_u32 v{T+4}, v{T+4}, 5, v{T+2}
        v_lshl_add_u32 v{V_BN+b}, v{T+3}, 3, v{T+4}
        v_mov_b32 v{V_AD+b}, v{V_BN+b}
        ''')
    for u in range(2):
        a(f'''
        v_lshrrev_b32 v{T+4}, 1, v{T+3}
        v_add_u32 v{T+4}, {2*u}, v{T+4}
        v_xor_b32 v{T+4}, v{T+4}, v{T+1}
        v_lshl_add_u32 v{T+4}, v{T+4}, 5, v{T+2}
        v_and_b32 v{T+5}, 1, v{T+3}
        v_lshl_add_u32 v{T+4}, v{T+5}, 4, v{T+4}
        v_add_u32 v{V_NB+2*u}, {HALF}, v{T+4}
        v_add_u32 v{V_NB+2*u+1}, {HALF+8}, v{T+4}
        ''')
    a(f'''
    v_and_b32 v{T}, 7, v0
    s_lshl_b32 s35, s34, 3
    v_add_u32 v{T}, s35, v{T}
    v_bfe_u32 v{T+1}, v0, 3, 1
    v_lshl_add_u32 v{T}, v{T+1}, 10, v{T}
    v_mul_u32_u24 v{T}, 3456, v{T}
    v_lshrrev_b32 v{T+1}, 4, v0
    v_lshl_add_u32 v{V_QST}, v{T+1}, 4, v{T}
    s_mul_i32 s35, s30, 18
    s_lshl_b32 s42, s31, 2
    s_add_u32 s35, s35, s42
    s_lshl_b32 s35, s35, 10
    s_add_u32 s44, s35, {H_OFF}
    s_add_u32 s45, s44, 147456
    s_add_u32 s46, s44, 294912
    s_add_u32 s47, s44, 442368
    s_add_u32 s48, s62, {QKV_OFF}
    s_add_u32 s49, s48, 27648
    s_add_u32 s50, s48, 55296
    s_add_u32 s51, s48, 82944
    s_mov_b64 vcc, s[64:65]
    ''')
    a(f's_waitcnt vmcnt({vm.wait_n("g0")})\ns_barrier')
    stamp(a,2)
    for sl in range(8):
        w,ad=(V_SG+sl*4,V_NB+sl) if sl<4 else (V_WF+(sl-4)*4,V_AD+sl-4)
        a(f'ds_read_b64_tr_b16 v[{w}:{w+1}], v{ad} offset:0')
        a(f'ds_read_b64_tr_b16 v[{w+2}:{w+3}], v{ad} offset:512')
    bodyF(a,vm)
    a('s_cbranch_vccz K1_noq2')
    ch,_=ch_epiQ(V_ACC[1],2,64)
    a('s_nop 1')
    for s in flat(ch): a(s)
    a('K1_noq2:')
    stamp(a,3)
    a(f'''
    s_mov_b32 s43, 0
    v_lshl_add_u64 v[{V_DA}:{V_DA+1}], v[{V_DA}:{V_DA+1}], 0, s[60:61]
    v_mov_b32 v{V_NB}, v{V_BN}
    v_mov_b32 v{V_NB+1}, v{V_BN+1}
    v_mov_b32 v{V_NB+2}, v{V_BN+2}
    v_mov_b32 v{V_NB+3}, v{V_BN+3}
    K1_loop:
    s_sub_u32 m0, s66, 4096
    ''')
    body(a,VM(),1,ch_epiG(V_ACC[0]),midbar=True)
    if gen.PROF:
        a('s_mov_b32 s78, s82'); stamp(a,6)
    a(f'''
    s_cmp_lg_u32 s43, 0
    s_cbranch_scc1 K1_z
    v_lshl_add_u64 v[{V_DA}:{V_DA+1}], v[{V_DA}:{V_DA+1}], 0, s[58:59]
    v_add_u32 v{V_NB}, {HALF}, v{V_BN}
    v_add_u32 v{V_NB+1}, {HALF}, v{V_BN+1}
    v_add_u32 v{V_NB+2}, {HALF}, v{V_BN+2}
    v_add_u32 v{V_NB+3}, {HALF}, v{V_BN+3}
    ''')
    body(a,VM(),0,ch_epiU(V_ACC[1]))
    stamp(a,5)
    a(f'''
    s_add_u32 s44, s44, 2048
    s_add_u32 s45, s45, 2048
    s_add_u32 s46, s46, 2048
    s_add_u32 s47, s47, 2048
    s_mov_b32 s43, 1
    v_mov_b32 v{V_DA}, v{V_ZA}
    v_mov_b32 v{V_DA+1}, v{V_ZA+1}
    v_mov_b32 v{V_NB}, v{V_BN}
    v_mov_b32 v{V_NB+1}, v{V_BN+1}
    v_add_u32 v{V_NB+2}, 4096, v{V_BN}
    v_add_u32 v{V_NB+3}, 4096, v{V_BN+1}
    s_branch K1_loop
    K1_z:
    ''')
    body(a,VM(),0,ch_epiU(V_ACC[1]),kind='half',dma=False,last=True)
    stamp(a,7)
    a(f'''
    s_mul_i32 s35, s30, 18
    s_lshr_b32 s42, s31, 1
    s_add_u32 s35, s35, s42
    s_add_u32 s35, s35, 16
    s_lshl_b32 s35, s35, 10
    s_and_b32 s42, s31, 1
    s_lshl_b32 s42, s42, 3
    s_add_u32 s35, s35, s42
    s_add_u32 s44, s35, {H_OFF}
    s_add_u32 s45, s44, 147456
    s_add_u32 s46, s44, 294912
    s_add_u32 s47, s44, 442368
    ''')
    epiZ_tail(a,V_ACC[0])
    stamp(a,8)
    if gen.PROF: a('s_waitcnt vmcnt(0)')
    stamp(a,9); stamp(a,10,True); gen.dump_stamps(a,11)
    a('K1_end:\ns_endpgm')
    return kernel_desc('k1_kernel',512,100,256)

gen.gen_k1=gen_k1
if __name__=='__main__':
    for o in sys.argv[3:]:
        if o=='prof': gen.PROF=True
        elif o=='map42': MAP42=True
        elif o.startswith('fd'): FD=int(o[2:])
        elif o=='notouch': TOUCH0=False
        elif o=='sc1': STF=' sc1'
        elif o=='sc01': STF=' sc0 sc1'
        elif o=='nt': STF=' nt'
    open(sys.argv[1],'w').write(gen.build(sys.argv[2].split(',')))
```

```python
import sys
from asmlib import *
import gen, gen2, gen3, gen4
from gen import XN_OFF,O_OFF,QKV_OFF,H_OFF,PROF_OFF,VM
from gen2 import *
from gen2 import Sched, decode_cg, decode_q, grp_items, u0_items, xreg, flat
from gen4 import *
import gen4 as G4
gen2.MAP42=True
gen2.STF=' sc1'
V_ONE=254
SPIN=20000
MIDKS=11
def st(a,i,rt=False): G4.stamp(a,i,1,rt)

def seq_chain(L):
    return [[(x,1) if not x.startswith('buffer') and not x.startswith('global') else (x,1,'x')] for x in L]

def body5(a, vm, accset, epi, kind='full', dma=True, last=False, mid=None, seqs=(), pace=True, cap=2, epilo=1):
    acc=V_ACC[accset]
    ns=72 if kind=='full' else 36
    nm=ns*4
    S=Sched(nm,cap)
    step=4096 if kind=='full' else 8192
    midg=9 if kind=='full' else 5
    def rd_off(t):
        g=t//4
        return (g*step if g<midg else (g-midg)*step), g>=midg
    for t in range(ns):
        m0=t*4
        if t%2==0: S.add_pre(m0,f'WAITL{min(t+1,ns-1)}')
        tn=t+4; w=V_WF+(t%4)*4; ad=V_AD+(t%4)
        if tn<ns:
            off,hi=rd_off(tn); _,hip=rd_off(t)
            if hi and not hip: S.add_post(m0+1,f'v_add_u32 v{ad}, {midg*step}, v{ad}')
            S.add_post(m0+3,f'ds_read_b64_tr_b16 v[{w}:{w+1}], v{ad} offset:{off};tag={tn}')
            S.add_post(m0+4,f'ds_read_b64_tr_b16 v[{w+2}:{w+3}], v{ad} offset:{off+512};tag={tn}')
        elif not last:
            S.add_post(m0+1,f'v_mov_b32 v{ad}, v{V_NB+(t%4)}')
            if tn==ns: S.add_post(m0+2,'@SUB',2)
            S.add_post(m0+3,f'ds_read_b64_tr_b16 v[{w}:{w+1}], v{ad} offset:0;tag={tn}')
            S.add_post(m0+4,f'ds_read_b64_tr_b16 v[{w+2}:{w+3}], v{ad} offset:512;tag={tn}')
    if dma:
        for n in range(18):
            m=(n//3)*16+(n%3)*5+1
            S.add_fill(m,('s_add_u32 m0, m0, 4096',1))
            S.add_fill(m+1,(f'global_load_lds_dwordx4 v[{V_DA}:{V_DA+1}], off',1,'dma'))
            S.add_fill(m+1,(f'v_lshl_add_u64 v[{V_DA}:{V_DA+1}], v[{V_DA}:{V_DA+1}], 0, {S_DI}',1))
    if mid: S.add_post(MIDKS*16+1,'@MID',3)
    endm=0
    if epi:
        ch,nq=epi
        endm=S.chains(ch,epilo,nm-6,nq,pace=pace)
    for lo,hi,L in seqs:
        if lo=='epi': lo=endm+1
        if lo=='epi140': lo=max(endm+1,140)
        n=len(L)
        m=lo
        for k,x in enumerate(L):
            tgt=lo+int(k*(hi-lo)/n)
            m=max(m,tgt)
            lim=max(m,lo+int((k+1)*(hi-lo)/n)-1)
            best=min(range(m,min(lim,nm-1)+1),key=lambda g:(S.load[g],g)) if m<nm else None
            if best is None: S.tail.append((x,1)); continue
            tag='x' if x.startswith(('buffer','global')) else None
            if x.startswith('@'): S.add_post(best,x,2)
            elif tag: S.add_fill(best,(x,1,(x.split(';vt=')[1] if ';vt=' in x else 'x')))
            else: S.add_fill(best,(x,1))
            m=best+1
    def mf(m):
        t=m//4;i=m%4
        ks,b=(t//4,t%4) if kind=='full' else (t//2,t%2)
        D=acc+(b*4+i)*4; w=V_WF+(t%4)*4
        return f'v_mfma_f32_16x16x32_bf16 {vr(D,4)}, {vr(w,4)}, {xreg(i,ks)}, {"0" if ks==0 else vr(D,4)}'
    def special(n):
        if n=='SUB': a(f's_waitcnt vmcnt({vm.wait_n("dma")})\ns_barrier')
        elif n=='MID':
            a(f's_waitcnt vmcnt({min(63,len(vm.ops))})\ns_barrier')
            a(f'buffer_store_dword v{V_ONE}, off, s[20:23], s24 sc1'); vm.issue('fl')
        elif n=='CHK8': chk8(a,'s26','1','Zh')
        elif n=='CHKQ': chkq(a)
    S.emit(a,vm,mf,[0,0,1,1,2,2,3,3],special)

def chk8(a, off, thr, lab):
    a(f'''
    s_mov_b32 s3, 0
    K_{lab}_c:
    s_waitcnt lgkmcnt(0)
    s_min_u32 s88, s88, s89
    s_min_u32 s90, s90, s91
    s_min_u32 s92, s92, s93
    s_min_u32 s94, s94, s95
    s_min_u32 s88, s88, s90
    s_min_u32 s92, s92, s94
    s_min_u32 s88, s88, s92
    s_cmp_ge_u32 s88, {thr}
    s_cbranch_scc1 K_{lab}_ok
    s_add_u32 s3, s3, 1
    s_cmp_gt_u32 s3, {SPIN}
    s_cbranch_scc1 K_{lab}_ok
    s_load_dwordx8 s[88:95], s[20:21], {off} glc
    s_branch K_{lab}_c
    K_{lab}_ok:
    ''')
def chkq(a):
    a(f'''
    s_mov_b32 s3, 0
    K_q_c:
    s_add_u32 s3, s3, 1
    s_cmp_gt_u32 s3, {SPIN}
    s_cbranch_scc1 K_q_ok
    buffer_load_dword v255, v253, s[20:23], s26 offen sc1
    s_waitcnt vmcnt(0)
    v_cmp_ne_u32 vcc, 1, v255
    s_nop 1
    s_cmp_eq_u64 vcc, 0
    s_cbranch_scc0 K_q_c
    K_q_ok:
    ''')

def split_roles():
    b=Asm(); c_roles(b)
    L=[l.strip() for l in b.L]
    i=[k for k,l in enumerate(L) if l.startswith(f'v_lshlrev_b32 v{C_LV}')][0]
    sc,ve=L[:i],L[i:]
    ve=[l.replace('v224','v1').replace('v225','v255').replace('v226','v253') for l in ve]
    return sc,ve

def gen_kf(a):
    a(kernel_header('kf_kernel'))
    a('''
    s_cmp_ge_u32 s2, 256
    s_cbranch_scc1 KF_end
    s_load_dwordx2 s[4:5], s[0:1], 8
    s_load_dwordx4 s[8:11], s[0:1], 32
    s_load_dwordx2 s[20:21], s[0:1], 72
    v_lshrrev_b32 v1, 6, v0
    v_and_b32 v0, 63, v0
    ''')
    decode_cg(a)
    a('''
    v_readfirstlane_b32 s33, v1
    s_mov_b32 s22, 0x10000000
    s_mov_b32 s23, 0x20000
    s_mov_b32 s40, 0xbfb8aa3b
    s_mov_b32 s41, 0xffff0000
    ''')
    T=V_T
    a(f'''
    s_lshl_b32 s34, s32, 4
    s_lshl_b32 s35, s33, 2
    s_add_u32 s34, s34, s35
    s_mul_i32 s35, s34, 18432
    v_lshlrev_b32 v{T}, 4, v0
    v_add_u32 v{V_XO}, s35, v{T}
    v_add_u32 v{V_XO+1}, 18432, v{V_XO}
    v_add_u32 v{V_XO+2}, 36864, v{V_XO}
    v_add_u32 v{V_XO+3}, 55296, v{V_XO}
    s_mul_i32 s35, s34, 147456
    v_add_u32 v{V_HST}, s35, v{T}
    s_lshl_b32 s66, s33, 10
    ''')
    for g in range(5): a(f's_mov_b32 s{52+g}, {XN_OFF+g*4096}')
    decode_q(a,'KF_qok')
    a(f'''
    s_cselect_b32 s67, 3, 1
    s_mov_b32 s64, s63
    s_mov_b32 s65, 0
    v_lshrrev_b32 v{T}, 3, v0
    s_lshl_b32 s35, s33, 3
    v_add_u32 v{T}, s35, v{T}
    v_bfe_u32 v{T+1}, v0, 1, 2
    v_bfe_u32 v{T+2}, v0, 4, 1
    s_and_b32 s35, s33, 1
    s_lshl_b32 s35, s35, 1
    v_or_b32 v{T+2}, s35, v{T+2}
    v_xor_b32 v{T+1}, v{T+1}, v{T+2}
    v_and_b32 v{T+2}, 1, v0
    v_lshlrev_b32 v{T+2}, 4, v{T+2}
    v_mul_u32_u24 v{T+4}, 9216, v{T}
    v_add_u32 v{T+4}, v{T+4}, v{T+2}
    v_mov_b32 v{T+5}, 0
    v_mul_u32_u24 v{T+6}, 3456, v{T}
    v_add_u32 v{T+6}, v{T+6}, v{T+2}
    v_and_b32 v{T+3}, s67, v{T+1}
    v_lshl_add_u32 v{T+6}, v{T+3}, 5, v{T+6}
    v_mov_b32 v{T+7}, 0
    v_lshl_add_u32 v{T+8}, v{T+1}, 5, v{T+4}
    v_mov_b32 v{T+9}, 0
    s_mul_i32 s36, s30, 1152
    s_lshl_b32 s37, s31, 8
    s_add_u32 s37, s37, s36
    s_lshl_b32 s38, s31, 5
    s_add_u32 s38, s38, s36
    s_add_u32 s38, s38, 1024
    s_mov_b32 s100, 294912
    s_mov_b32 s101, 0
    s_waitcnt lgkmcnt(0)
    ''')
    st(a,0,True); st(a,1)
    a(f'''
    s_add_u32 s12, s8, s37
    s_addc_u32 s13, s9, 0
    s_add_u32 s16, s4, s62
    s_addc_u32 s17, s5, 0
    v_lshl_add_u64 v[{V_DA}:{V_DA+1}], v[{T+8}:{T+9}], 0, s[12:13]
    v_lshl_add_u64 v[{V_QA}:{V_QA+1}], v[{T+6}:{T+7}], 0, s[16:17]
    s_mov_b32 s4, 110592
    s_mov_b32 s5, 0
    ''')
    vm=VM()
    for g in range(gen2.FD):
        for j,it in enumerate(grp_items(g)):
            a(it[0])
            if j==0: a('s_nop 0')
            if len(it)>2: vm.issue(it[2])
    a(f'''
    s_add_u32 s14, s10, s37
    s_addc_u32 s15, s11, 0
    v_lshl_add_u64 v[{V_UA}:{V_UA+1}], v[{T+8}:{T+9}], 0, s[14:15]
    s_sub_u32 s58, s10, s8
    s_subb_u32 s59, s11, s9
    s_sub_u32 s58, s58, 5308416
    s_subb_u32 s59, s59, 0
    s_mov_b32 s60, {(-5308416+128)&0xffffffff}
    s_mov_b32 s61, -1
    s_add_u32 s12, s8, s38
    s_addc_u32 s13, s9, 0
    s_add_u32 s14, s10, s38
    s_addc_u32 s15, s11, 0
    v_lshl_add_u64 v[{V_ZA}:{V_ZA+1}], v[{T+4}:{T+5}], 0, s[12:13]
    v_lshl_add_u64 v[{T+12}:{T+13}], v[{T+4}:{T+5}], 0, s[14:15]
    v_and_b32 v{T+3}, 1, v{T+1}
    v_cmp_eq_u32 vcc, 1, v{T+3}
    s_nop 1
    v_cndmask_b32 v{V_ZA}, v{V_ZA}, v{T+12}, vcc
    v_cndmask_b32 v{V_ZA+1}, v{V_ZA+1}, v{T+13}, vcc
    v_lshrrev_b32 v{T}, 4, v0
    v_bfe_u32 v{T+1}, v0, 2, 2
    v_lshl_add_u32 v{T+2}, v{T}, 3, v{T+1}
    v_lshlrev_b32 v{T+2}, 7, v{T+2}
    v_lshrrev_b32 v{T+1}, 1, v{T+1}
    v_and_b32 v{T}, 1, v{T}
    v_lshl_or_b32 v{T+1}, v{T}, 1, v{T+1}
    v_and_b32 v{T+3}, 3, v0
    ''')
    for b in range(4):
        a(f'''
        v_xor_b32 v{T+4}, {b}, v{T+1}
        v_lshl_add_u32 v{T+4}, v{T+4}, 5, v{T+2}
        v_lshl_add_u32 v{V_BN+b}, v{T+3}, 3, v{T+4}
        v_mov_b32 v{V_AD+b}, v{V_BN+b}
        ''')
    for u in range(2):
        a(f'''
        v_lshrrev_b32 v{T+4}, 1, v{T+3}
        v_add_u32 v{T+4}, {2*u}, v{T+4}
        v_xor_b32 v{T+4}, v{T+4}, v{T+1}
        v_lshl_add_u32 v{T+4}, v{T+4}, 5, v{T+2}
        v_and_b32 v{T+5}, 1, v{T+3}
        v_lshl_add_u32 v{T+4}, v{T+5}, 4, v{T+4}
        v_add_u32 v{V_NB+2*u}, {HALF}, v{T+4}
        v_add_u32 v{V_NB+2*u+1}, {HALF+8}, v{T+4}
        ''')
    a(f'''
    v_and_b32 v{T}, 7, v0
    s_lshl_b32 s35, s34, 3
    v_add_u32 v{T}, s35, v{T}
    v_bfe_u32 v{T+1}, v0, 3, 1
    v_lshl_add_u32 v{T}, v{T+1}, 10, v{T}
    v_mul_u32_u24 v{T}, 3456, v{T}
    v_lshrrev_b32 v{T+1}, 4, v0
    v_lshl_add_u32 v{V_QST}, v{T+1}, 4, v{T}
    s_mul_i32 s35, s30, 18
    s_lshl_b32 s42, s31, 2
    s_add_u32 s35, s35, s42
    s_lshl_b32 s35, s35, 10
    s_add_u32 s44, s35, {H_OFF}
    s_add_u32 s45, s44, 147456
    s_add_u32 s46, s44, 294912
    s_add_u32 s47, s44, 442368
    s_add_u32 s48, s62, {QKV_OFF}
    s_add_u32 s49, s48, 27648
    s_add_u32 s50, s48, 55296
    s_add_u32 s51, s48, 82944
    s_mov_b32 s83, 0
    ''')
    sc,ve=split_roles()
    for l in sc: a(l)
    ve=[l.replace('s96','s6').replace('s97','s7') for l in ve]
    a(f'''
    s_mov_b32 s6, s96
    s_mov_b32 s7, s97
    s_lshl_b32 s24, s32, 5
    s_lshl_b32 s3, s30, 2
    s_add_u32 s24, s24, s3
    s_add_u32 s24, s24, s31
    s_lshl_b32 s24, s24, 2
    s_add_u32 s24, s24, {QFL_OFF}
    s_cmp_eq_u32 s33, 0
    s_cselect_b32 s24, s24, {OOB}
    s_lshl_b32 s25, s32, 2
    s_add_u32 s25, s25, s33
    s_lshl_b32 s25, s25, 5
    s_add_u32 s25, s25, s3
    s_add_u32 s25, s25, s31
    s_lshl_b32 s25, s25, 2
    s_add_u32 s25, s25, {HFL_OFF}
    s_and_b32 s26, s57, 1
    s_lshl_b32 s26, s26, 1
    s_lshr_b32 s3, s33, 1
    s_add_u32 s26, s26, s3
    s_lshl_b32 s3, s32, 2
    s_add_u32 s26, s26, s3
    s_lshl_b32 s26, s26, 7
    s_lshl_b32 s3, s69, 5
    s_add_u32 s26, s26, s3
    s_add_u32 s26, s26, {HFL_OFF}
    s_mov_b32 s27, 2
    s_cmp_eq_u32 s68, 0
    s_cselect_b32 s27, s27, 0
    s_mov_b64 vcc, s[64:65]
    s_and_b32 s3, s32, 3
    s_lshl_b32 s3, s3, 2
    s_add_u32 s3, s3, s33
    s_mul_i32 s3, s3, 36
    v_min_u32 v13, 35, v0
    v_add_u32 v13, s3, v13
    v_mul_u32_u24 v13, 9216, v13
    s_add_u32 s16, s8, s37
    s_addc_u32 s17, s9, 0
    s_add_u32 s18, s10, s37
    s_addc_u32 s19, s11, 0
    s_and_b32 s28, s57, 7
    s_mul_i32 s28, s28, 3
    s_add_u32 s28, s28, s31
    s_lshl_b32 s28, s28, 2
    s_add_u32 s28, s28, s33
    s_mul_i32 s28, s28, {108*128}
    s_mul_i32 s3, s69, {1152*1152}
    s_add_u32 s28, s28, s3
    s_and_b32 s3, s83, 7
    s_lshl_b32 s3, s3, 2
    s_add_u32 s3, s3, s33
    s_mul_i32 s3, s3, {162*128}
    s_cmp_eq_u32 s68, 0
    s_cselect_b32 s28, s28, s3
    s_add_u32 s28, s28, 2048
    s_add_u32 s29, s28, 16384
    s_cmp_eq_u32 s68, 0
    s_cselect_b32 s29, {OOB}, s29
    ''')
    a(f's_waitcnt vmcnt({vm.wait_n("g0")})\ns_barrier')
    st(a,2)
    for sl in range(8):
        w,ad=(V_SG+sl*4,V_NB+sl) if sl<4 else (V_WF+(sl-4)*4,V_AD+sl-4)
        a(f'ds_read_b64_tr_b16 v[{w}:{w+1}], v{ad} offset:0')
        a(f'ds_read_b64_tr_b16 v[{w+2}:{w+3}], v{ad} offset:512')
    if TOUCH: gen2.F_EXTRA={8:('global_load_dword v12, v13, s[16:17] offset:128',1,'t')}
    b=Asm(); gen2.bodyF(b,vm)
    a.L+=b.L
    a('s_cbranch_vccz KF_noq2')
    ch,_=ch_epiQ(V_ACC[1],2,64)
    a('s_nop 1')
    for s in flat(ch): a(s)
    a('KF_noq2:')
    st(a,3)
    a(f'''
    s_mov_b32 s43, 0
    v_mov_b32 v{V_ONE}, 1
    v_lshlrev_b32 v15, 7, v0
    v_lshl_add_u64 v[{V_DA}:{V_DA+1}], v[{V_DA}:{V_DA+1}], 0, s[60:61]
    v_mov_b32 v{V_NB}, v{V_BN}
    v_mov_b32 v{V_NB+1}, v{V_BN+1}
    v_mov_b32 v{V_NB+2}, v{V_BN+2}
    v_mov_b32 v{V_NB+3}, v{V_BN+3}
    KF_loop:
    s_sub_u32 m0, s66, 4096
    ''')
    ty=[(100,130,['global_load_dword v12, v13, s[18:19] offset:128','buffer_load_dword v12, v15, s[84:87], s28 offen'])] if TOUCH else []
    body5(a,VM(),1,ch_epiG(V_ACC[0]),mid=True,seqs=ty)
    a(f'''
    s_cmp_lg_u32 s43, 0
    s_cbranch_scc1 KF_z
    v_lshl_add_u64 v[{V_DA}:{V_DA+1}], v[{V_DA}:{V_DA+1}], 0, s[58:59]
    v_add_u32 v{V_NB}, {HALF}, v{V_BN}
    v_add_u32 v{V_NB+1}, {HALF}, v{V_BN+1}
    v_add_u32 v{V_NB+2}, {HALF}, v{V_BN+2}
    v_add_u32 v{V_NB+3}, {HALF}, v{V_BN+3}
    ''')
    st(a,11)
    tx=[(98,138,['global_load_dword v12, v13, s[12:13]','global_load_dword v12, v13, s[14:15]','s_add_u32 s28, s28, 8192','buffer_load_dword v12, v15, s[84:87], s28 offen','s_mov_b32 s28, s29'])] if TOUCH else []
    body5(a,VM(),0,ch_epiU(V_ACC[1]),pace=True,epilo=XEPI,seqs=tx+[(140,280,ve)])
    st(a,12)
    a(f'''
    s_add_u32 s44, s44, 2048
    s_add_u32 s45, s45, 2048
    s_add_u32 s46, s46, 2048
    s_add_u32 s47, s47, 2048
    s_mov_b32 s43, 1
    s_mov_b32 s24, s25
    v_mov_b32 v{V_DA}, v{V_ZA}
    v_mov_b32 v{V_DA+1}, v{V_ZA+1}
    v_mov_b32 v{V_NB}, v{V_BN}
    v_mov_b32 v{V_NB+1}, v{V_BN+1}
    v_add_u32 v{V_NB+2}, 4096, v{V_BN}
    v_add_u32 v{V_NB+3}, 4096, v{V_BN+1}
    s_branch KF_loop
    KF_z:
    ''')
    st(a,13)
    ztail=f'''
    s_mul_i32 s35, s30, 18
    s_lshr_b32 s42, s31, 1
    s_add_u32 s35, s35, s42
    s_add_u32 s35, s35, 16
    s_lshl_b32 s35, s35, 10
    s_and_b32 s42, s31, 1
    s_lshl_b32 s42, s42, 3
    s_add_u32 s35, s35, s42
    s_add_u32 s44, s35, {H_OFF}
    s_add_u32 s45, s44, 147456
    s_add_u32 s46, s44, 294912
    s_add_u32 s47, s44, 442368
    '''
    a('s_cmp_eq_u32 s68, 0\ns_cbranch_scc0 KF_zl')
    a('s_load_dwordx8 s[88:95], s[20:21], s26 glc\ns_mov_b32 s39, s78')
    pw=[]; ph=[]
    for k in range(3):
        pw+=[x for x in prefetch(ORDER[k],'s39','W') if x!='s_nop 0']
        ph+=[x for x in prefetch(ORDER[k],'s78','H') if 'm0' not in x and 's80' not in x]
    pw=[x for x in pw if 's81' not in x]
    zero1=[f'v_mov_b64 v[{r}:{r+1}], 0' for r in range(96,128,2)]
    zero2=[f'v_mov_b64 v[{r}:{r+1}], 0' for r in range(128,192,2)]
    vmz=VM()
    body5(a,vmz,0,ch_epiU(V_ACC[1]),kind='half',dma=False,last=True,pace=False,cap=3,
          seqs=[(1,90,pw),(90,142,['@CHK8']+ph),('epi',143,zero1+zero2),('epi',143,c_addr_items())])
    st(a,14)
    assert 'st' not in vmz.ops[-4:], vmz.ops
    a(ztail)
    epiZ_tail(a,V_ACC[0])
    a('s_waitcnt vmcnt(8)\ns_barrier')
    for t in range(6): a(c_rd(ORDER[0],t,0)); a(c_rd(ORDER[0],t,1))
    for k in (3,4):
        for x in prefetch(ORDER[k],'s78'): a(x)
    a(f'v_mov_b32 v{V_ONE}, 2\nv_mov_b32 v255, 3\ns_mov_b32 s24, s25')
    a('s_waitcnt lgkmcnt(0)\ns_branch C_go')
    a('KF_zl:')
    a(f'''
    s_lshr_b32 s26, s83, 3
    s_max_u32 s26, s26, 1
    s_sub_u32 s26, s26, 1
    s_lshl_b32 s26, s26, 7
    s_add_u32 s26, s26, {QFL_OFF}
    v_lshlrev_b32 v253, 2, v0
    s_lshr_b32 s3, s83, 3
    s_cmp_eq_u32 s3, 0
    s_movk_i32 s3, 255
    s_cselect_b32 s3, 127, s3
    v_and_b32 v253, s3, v253
    s_and_b32 s92, s83, 1
    s_lshl_b32 s92, s92, 10
    s_lshr_b32 s93, s83, 1
    s_lshl_b32 s93, s93, 5
    s_add_u32 s92, s92, s93
    s_mul_i32 s92, s92, 3456
    s_add_u32 s92, s92, {QKV_OFF-7*3456}
    s_add_u32 s92, s92, s66
    s_add_u32 s93, s92, 86400
    ''')
    chkq(a)
    ql=[]
    for n in range(22):
        ql+=[f's_add_u32 m0, s66, {HALF+n*4096}', f'buffer_load_dwordx4 v{C_LV}, s[20:23], s92 offen sc1 lds', 's_add_u32 s92, s92, 4096']
    body5(a,VM(),0,ch_epiU(V_ACC[1]),kind='half',dma=False,last=True,pace=False,seqs=[(1,140,ql)])
    a('s_barrier')
    for n in range(12):
        a(f's_add_u32 m0, s66, {n*4096}\ns_nop 0\nbuffer_load_dwordx4 v{C_LV}, s[20:23], s93 offen sc1 lds\ns_add_u32 s93, s93, 4096')
    a(ztail)
    epiZ_tail(a,V_ACC[0])
    a('v_mov_b32 v255, 3\ns_nop 1')
    st(a,14)
    b=Asm(); attention(b,rows_split=(25,HALF,0))
    for l in b.L:
        if '@WAITQ' in l:
            a('s_waitcnt vmcnt(0)\nbuffer_store_dword v255, off, s[20:23], s25 sc1\ns_barrier')
        else: a.L.append(l)
    st(a,15)
    light_after_att(a)
    a(f's_mov_b32 s24, {OOB}\ns_mov_b32 s25, {OOB}\ns_mov_b32 s26, {HFL_OFF}')
    for t in range(6): a(c_rd(ORDER[0],t,0)); a(c_rd(ORDER[0],t,1))
    a('s_waitcnt lgkmcnt(8)')
    a('C_go:')
    st(a,4)
    def hook(pos):
        if pos==1: return [f'buffer_store_dword v{V_ONE}, off, s[20:23], s24 sc1', f's_mov_b32 s24, {OOB}']
        if pos==2: return ['@SLD']
        if pos==3: return ['@CHK', f'buffer_store_dword v255, off, s[20:23], s25 sc1', f's_mov_b32 s25, {OOB}']
        return []
    b=Asm(); c_loop(b,hook)
    for l in b.L:
        if '@CHK' in l:
            a('s_cmp_eq_u32 s27, 0\ns_cbranch_scc1 K_C_skip')
            chk8(a,'s26','s27','C'); a('s_cmp_eq_u32 s27, 2\ns_cselect_b32 s27, 3, 0\nK_C_skip:')
        elif '@SLD' in l:
            a('s_cmp_eq_u32 s27, 0\ns_cbranch_scc1 K_C_nl\ns_load_dwordx8 s[88:95], s[20:21], s26 glc\nK_C_nl:')
        else: a.L.append(l)
    c_finish(a)
    a('KF_end:\nKF_last:\ns_endpgm')
    return kernel_desc('kf_kernel',512,102,256)

TOUCH=True
XEPI=80
CODEPF=True
def gen_ln5(a):
    b=Asm(); d=gen.gen_ln(b)
    if CODEPF:
        i=[k for k,l in enumerate(b.L) if l.startswith('LN_not:')][0]
        t=Asm()
        t('''
        s_getpc_b64 s[40:41]
        LN_pc:
        s_add_u32 s40, s40, kf_kernel-LN_pc
        s_addc_u32 s41, s41, 0
        s_lshr_b32 s42, s2, 3
        s_lshl_b32 s42, s42, 4
        v_and_b32 v53, 15, v0
        v_add_u32 v53, s42, v53
        v_lshlrev_b32 v53, 7, v53
        v_min_u32 v53, KF_last-kf_kernel, v53
        v_mov_b32 v54, 0
        v_lshl_add_u64 v[56:57], v[53:54], 0, s[40:41]
        ''')
        t.L=[l.replace('v53','v58').replace('v54','v59').replace('v[53:54]','v[58:59]') for l in t.L]
        t('global_load_dword v55, v[56:57], off')
        b.L[i+2:i+2]=t.L
        b.L=[l.replace('s_waitcnt vmcnt(3)','s_waitcnt vmcnt(4)') for l in b.L]
        j=[k for k,l in enumerate(b.L) if l.startswith('LN_w0:')][0]
        b.L[j+1]='    s_waitcnt vmcnt(1)'
        d=d.replace('next_free_vgpr 56','next_free_vgpr 64').replace('accum_offset 56','accum_offset 64')
    a.L+=b.L
    return d
def build():
    a=Asm()
    hdr=open('recurrent_scan__sliding_local_dilated__swiglu_ffn__prompt.s.ref').read().split('\n')
    head=[l for l in hdr if l.startswith(';') and '@launch' not in l and 'Override' not in l and 'grid=ceil' not in l]
    launches=['; @launch kernel=ln_kernel grid=(256,1,1) block=(256,1,1) lds=0',
              '; @launch kernel=kf_kernel grid=(256,1,1) block=(256,1,1) lds=163840']
    descs=[gen_ln5(a),gen_kf(a)]
    s='\n'.join(head)+'\n'+'\n'.join(launches)+'\n'
    s+='.amdgcn_target "amdgcn-amd-amdhsa--gfx950"\n.text\n'+a.text()
    s+='.section .rodata,"a"\n'+''.join('.p2align 6\n'+d for d in descs)
    return s
if __name__=='__main__':
    for o in sys.argv[2:]:
        if o=='prof': G4.PROF=True
        if o=='nocpf': CODEPF=False
        if o=='notouch': TOUCH=False
    open(sys.argv[1],'w').write(build())
```

```python
import sys
from asmlib import *

NAME='recurrent_scan__sliding_local_dilated__swiglu_ffn__prompt_kernel'
XN_OFF=0; O_OFF=0x240000; QKV_OFF=0x480000; H_OFF=0xB40000; X_OFF=0x1D40000
FLG_OFF=0x3000000; OFL_OFF=FLG_OFF+0x2000; HFL_OFF=FLG_OFF+0x3000; QFL_OFF=FLG_OFF+0x4000; XFL_OFF=FLG_OFF+0x5000
PROF_OFF=0x8000000
OOB=0x7ffff000
OPT=dict(prof=False, FD=5, MIDKS=11, XEPI=80, SPIN=200000, ftouch=8)
STF=' sc1'
HALF=73728
V_AD=2; V_NB=6; V_DA=10; V_DUM=12; V_TR=13; V_HST=14; V_QST=15; V_WF=16; V_SG=32; V_ACC=(64,128); V_X=192; V_T=224
V_BN=240; V_ZA=244; V_QA=246; V_UA=248; V_XO=252; V_ONE=254
S_DI='s[100:101]'; S_QI='s[4:5]'
C_AD=40; C_WF=[16,20,24,28,52,56]; C_ACC=96; C_RX=192; C_XV=64; C_T=2
C_DV=246; C_HV=249; C_LV=251; C_OA=252
STG=24576; NS=6; ORDER=[3,4,5,0,1,2]
LAM_H=[0,2,4,6,9,11,13,15,1,3,5,7,10,12,14,16,8,17]; LAM_S=list(range(9))

def st(a,i,rt=False):
    if not OPT['prof']: return
    a(f'''
    {"s_memrealtime" if rt else "s_memtime"} s[98:99]
    s_waitcnt lgkmcnt(0)
    v_mov_b32 v1, s98
    s_lshl_b32 s98, s2, 7
    s_add_u32 s98, s98, {PROF_OFF+4*i}
    s_cmp_eq_u32 s33, 0
    s_cselect_b32 s98, s98, {OOB}
    buffer_store_dword v1, off, s[20:23], s98
    ''')

class VM:
    def __init__(self): self.ops=[]
    def issue(self,t): self.ops.append(t)
    def wait_n(self,tag):
        idx=max(i for i,t in enumerate(self.ops) if t==tag)
        return min(63,len(self.ops)-1-idx)

class Sched:
    def __init__(self,nm,cap=2):
        self.nm=nm; self.cap=cap
        self.fill=[[] for _ in range(nm)]; self.post=[[] for _ in range(nm)]; self.pre=[[] for _ in range(nm+1)]
        self.load=[0]*nm; self.tail=[]
    def add_post(self,m,ins,cost=1):
        m=min(m,self.nm-1); self.post[m].append(ins); self.load[m]+=cost
    def add_pre(self,m,ins,cost=1):
        self.pre[m].append(ins)
        if m>0: self.load[m-1]+=cost
    def add_fill(self,m,item):
        self.fill[m].append(item); self.load[m]+=item[1]
    def chains(self,chains,lo,hi,nq,pace=False):
        total=sum(x[1] for c in chains for p in c for x in p)
        free=sum(max(0,self.cap-self.load[m]) for m in range(lo,hi))
        over=max(0,total-int(free*0.97))
        stt=[[0,0,-1] for _ in chains]; done=[None]*len(chains)
        placed=0; ov=0.0; m=lo
        while any(d is None for d in done):
            mm=min(m,self.nm-1)
            capl=self.cap-self.load[mm]
            ov+=over/(hi-lo)
            if ov>=1: capl+=1; ov-=1
            if m>=hi: capl=max(capl,3)
            if pace and over==0 and m<hi:
                capl=min(capl,int(total*(m-lo+1)/(hi-lo)-placed+0.999))
            while capl>0:
                cands=[]
                for k,c in enumerate(chains):
                    if done[k] is not None: continue
                    if k>=nq and (done[k-nq] is None or done[k-nq]>m-2): break
                    ph,ix,pg=stt[k]
                    if ix==0 and pg>=m: continue
                    cands.append(k)
                pick=None
                if capl>=2:
                    for k in cands:
                        if chains[k][stt[k][0]][stt[k][1]][1]>=2: pick=k;break
                if pick is None:
                    for k in cands:
                        if chains[k][stt[k][0]][stt[k][1]][1]<=capl: pick=k;break
                if pick is None: break
                ph,ix,pg=stt[pick]; it=chains[pick][ph][ix]
                if m<self.nm: self.fill[mm].append(it); self.load[mm]+=it[1]
                else: self.tail.append(it)
                capl-=it[1]; placed+=it[1]; ix+=1
                if ix==len(chains[pick][ph]):
                    ph+=1; ix=0; pg=m
                    if ph==len(chains[pick]): done[pick]=m
                stt[pick]=[ph,ix,pg]
            m+=1
            assert m<hi+400
        return m
    def seq(self,lo,hi,L):
        n=len(L); m=lo; nm=self.nm
        for k,x in enumerate(L):
            m=max(m,lo+int(k*(hi-lo)/n))
            lim=max(m,lo+int((k+1)*(hi-lo)/n)-1)
            if m>=nm: self.tail.append((x,1,'x') if x.startswith(('buffer','global')) else (x,1)); continue
            best=min(range(m,min(lim,nm-1)+1),key=lambda g:(self.load[g],g))
            if x.startswith('@'): self.add_post(best,x,2)
            elif x.startswith(('buffer','global')): self.add_fill(best,(x,1,'x'))
            else: self.add_fill(best,(x,1))
            m=best+1
    def emit(self,a,vm,mfma,lds_init,special):
        lds=list(lds_init)
        def out(s):
            nonlocal lds
            if s.startswith('WAITL'):
                need=int(s[5:].split(':')[0]); slack=int(s.split(':')[1]) if ':' in s else 0
                c=[i for i,x in enumerate(lds) if x<=need]
                if c:
                    idx=max(c); n=max(0,len(lds)-1-idx-slack)
                    a(f's_waitcnt lgkmcnt({min(n,15)})'); lds=lds[idx+1:]
            elif s.startswith('@'): special(s[1:])
            else:
                if ';tag=' in s:
                    s,t=s.split(';tag='); lds.append(int(t))
                a(s)
        for s in self.pre[0]: out(s)
        for m in range(self.nm):
            a(mfma(m))
            items=[(f[0],f[2] if len(f)>2 else None) for f in self.fill[m]]+[(s,None) for s in self.post[m]]
            late=[s for s in self.pre[m+1] if s.startswith('@')]
            waits=[s for s in self.pre[m+1] if not s.startswith('@')]
            nv=[x for x in items if not x[0].startswith('v_')]; va=[x for x in items if x[0].startswith('v_')]
            if not late:
                for s in waits: out(s)
            for x in nv+va:
                out(x[0])
                if x[1]: vm.issue(x[1])
            if late:
                for s in late+waits: out(s)
        for f in self.tail:
            out(f[0])
            if len(f)>2: vm.issue(f[2])

def xreg(i,ks):
    if ks<16: return ar((ks*4+i)*4,4)
    return vr(V_X+((ks-16)*4+i)*4,4)

def ch_epiG(acc):
    ch=[]; n=0
    for b in range(4):
        for i in range(4):
            A=acc+(b*4+i)*4; T=V_T+(n%4)*4; n+=1; S=V_SG+(b*4+i)*2
            ch.append([[(f'v_mul_f32 v{T+r}, s40, v{A+r}',1) for r in range(4)],
              [(f'v_exp_f32 v{T+r}, v{T+r}',2) for r in range(4)],
              [(f'v_add_f32 v{T+r}, 1.0, v{T+r}',1) for r in range(4)],
              [(f'v_rcp_f32 v{T+r}, v{T+r}',2) for r in range(4)],
              [(f'v_mul_f32 v{T+r}, v{T+r}, v{A+r}',1) for r in range(4)],
              [(f'v_cvt_pk_bf16_f32 v{S}, v{T}, v{T+1}',1),(f'v_cvt_pk_bf16_f32 v{S+1}, v{T+2}, v{T+3}',1)]])
    return ch,4
def ch_epiU(acc):
    ch=[]; n=0
    for p in range(2):
        for i in range(4):
            T=V_T+(n%2)*8; n+=1; p1=[];p2=[]
            for hb in range(2):
                b=2*p+hb; A=acc+(b*4+i)*4; S=V_SG+(b*4+i)*2; t=T+4*hb
                p1+=[(f'v_lshlrev_b32 v{t}, 16, v{S}',1),(f'v_and_b32 v{t+1}, s41, v{S}',1),
                     (f'v_lshlrev_b32 v{t+2}, 16, v{S+1}',1),(f'v_and_b32 v{t+3}, s41, v{S+1}',1)]
                p2+=[(f'v_mul_f32 v{t+r}, v{t+r}, v{A+r}',1) for r in range(4)]
            p3=[(f'v_cvt_pk_bf16_f32 v{T+j}, v{T+2*j}, v{T+2*j+1}',1) for j in range(4)]
            p4=[(f'buffer_store_dwordx4 v[{T}:{T+3}], v{V_HST}, s[20:23], s{44+i} offen offset:{p*1024}{STF}',2,'st')]
            ch.append([p1,p2,p3,p4])
    return ch,2
def ch_epiQ(acc,b0,coff):
    ch=[]
    for i in range(4):
        D=V_T+i*4; p1=[]
        for hb in range(2):
            A=acc+((b0+hb)*4+i)*4
            p1+=[(f'v_cvt_pk_bf16_f32 v{D+2*hb}, v{A}, v{A+1}',1),(f'v_cvt_pk_bf16_f32 v{D+2*hb+1}, v{A+2}, v{A+3}',1)]
        ch.append([p1,[(f'buffer_store_dwordx4 v[{D}:{D+3}], v{V_QST}, s[20:23], s{48+i} offen offset:{coff}{STF}',2,'st')]])
    return ch,4
def flat(ch):
    out=[]
    for p in range(max(len(c) for c in ch)):
        for c in ch:
            if p<len(c): out+=[x[0] for x in c[p]]
    return out
def epiZ_tail(a,acc):
    a(f'''
    s_mul_i32 s35, s30, 18
    s_lshr_b32 s42, s31, 1
    s_add_u32 s35, s35, s42
    s_add_u32 s35, s35, 16
    s_lshl_b32 s35, s35, 10
    s_and_b32 s42, s31, 1
    s_lshl_b32 s42, s42, 3
    s_add_u32 s35, s35, s42
    s_add_u32 s44, s35, {H_OFF}
    s_add_u32 s45, s44, 147456
    s_add_u32 s46, s44, 294912
    s_add_u32 s47, s44, 442368
    ''')
    ch=[]
    for i in range(4):
        Gr=acc+i*4; U=acc+(4+i)*4; T=V_T+i*4; D=V_SG+2*i
        ch.append([[(f'v_mul_f32 v{T+r}, s40, v{Gr+r}',1) for r in range(4)],
          [(f'v_exp_f32 v{T+r}, v{T+r}',2) for r in range(4)],
          [(f'v_add_f32 v{T+r}, 1.0, v{T+r}',1) for r in range(4)],
          [(f'v_rcp_f32 v{T+r}, v{T+r}',2) for r in range(4)],
          [(f'v_mul_f32 v{T+r}, v{T+r}, v{Gr+r}',1) for r in range(4)],
          [(f'v_cvt_pk_bf16_f32 v{T}, v{T}, v{T+1}',1),(f'v_cvt_pk_bf16_f32 v{T+2}, v{T+2}, v{T+3}',1)],
          [(f'v_and_b32 v{T+1}, s41, v{T}',1),(f'v_lshlrev_b32 v{T}, 16, v{T}',1),(f'v_and_b32 v{T+3}, s41, v{T+2}',1),(f'v_lshlrev_b32 v{T+2}, 16, v{T+2}',1)],
          [(f'v_mul_f32 v{T+r}, v{T+r}, v{U+r}',1) for r in range(4)],
          [(f'v_cvt_pk_bf16_f32 v{D}, v{T}, v{T+1}',1),(f'v_cvt_pk_bf16_f32 v{D+1}, v{T+2}, v{T+3}',1)],
          [(f'buffer_store_dwordx2 v[{D}:{D+1}], v{V_HST}, s[20:23], s{44+i} offen{STF}',2,'st')]])
    for s in flat(ch): a(s)

def chk8(a,off,thr,lab):
    a(f's_mov_b32 s3, 0\nK_{lab}_c:\ns_waitcnt lgkmcnt(0)')
    for i in range(8): a(f's_sub_u32 s{88+i}, s{88+i}, {thr}')
    a(f'''
    s_max_u32 s88, s88, s89
    s_max_u32 s90, s90, s91
    s_max_u32 s92, s92, s93
    s_max_u32 s94, s94, s95
    s_max_u32 s88, s88, s90
    s_max_u32 s92, s92, s94
    s_max_u32 s88, s88, s92
    s_cmp_le_u32 s88, 2
    s_cbranch_scc1 K_{lab}_ok
    s_add_u32 s3, s3, 1
    s_cmp_gt_u32 s3, {OPT['SPIN']}
    s_cbranch_scc1 K_{lab}_ok
    s_load_dwordx8 s[88:95], s[20:21], {off} glc
    s_branch K_{lab}_c
    K_{lab}_ok:
    ''')
def vpoll(a,lab,vdst,vaddr,soff,sleep=0,first_loaded=False):
    a('s_mov_b32 s3, 0')
    if first_loaded: a(f's_branch P_{lab}_t')
    a(f'''
    P_{lab}:
    s_add_u32 s3, s3, 1
    s_cmp_gt_u32 s3, {OPT['SPIN']}
    s_cbranch_scc1 P_{lab}_ok
    buffer_load_dword v{vdst}, v{vaddr}, s[20:23], {soff} offen sc1
    s_waitcnt vmcnt(0)
    P_{lab}_t:
    v_cmp_ne_u32 vcc, s39, v{vdst}
    s_nop 1
    s_cmp_eq_u64 vcc, 0
    s_cbranch_scc1 P_{lab}_ok
    ''')
    if sleep: a(f's_sleep {sleep}')
    a(f's_branch P_{lab}\nP_{lab}_ok:')

def body(a,vm,accset,epi,kind='full',dma=True,last=False,mid=False,seqs=(),pace=True,cap=2,epilo=1):
    acc=V_ACC[accset]; ns=72 if kind=='full' else 36; nm=ns*4
    S=Sched(nm,cap)
    step=4096 if kind=='full' else 8192; midg=9 if kind=='full' else 5
    def rd_off(t):
        g=t//4
        return (g*step if g<midg else (g-midg)*step), g>=midg
    for t in range(ns):
        m0=t*4
        if t%2==0: S.add_pre(m0,f'WAITL{min(t+1,ns-1)}')
        tn=t+4; w=V_WF+(t%4)*4; ad=V_AD+(t%4)
        if tn<ns:
            off,hi=rd_off(tn); _,hip=rd_off(t)
            if hi and not hip: S.add_post(m0+1,f'v_add_u32 v{ad}, {midg*step}, v{ad}')
            S.add_post(m0+3,f'ds_read_b64_tr_b16 v[{w}:{w+1}], v{ad} offset:{off};tag={tn}')
            S.add_post(m0+4,f'ds_read_b64_tr_b16 v[{w+2}:{w+3}], v{ad} offset:{off+512};tag={tn}')
        elif not last:
            S.add_post(m0+1,f'v_mov_b32 v{ad}, v{V_NB+(t%4)}')
            if tn==ns: S.add_post(m0+2,'@SUB',2)
            S.add_post(m0+3,f'ds_read_b64_tr_b16 v[{w}:{w+1}], v{ad} offset:0;tag={tn}')
            S.add_post(m0+4,f'ds_read_b64_tr_b16 v[{w+2}:{w+3}], v{ad} offset:512;tag={tn}')
    if dma:
        for n in range(18):
            m=(n//3)*16+(n%3)*5+1
            S.add_fill(m,('s_add_u32 m0, m0, 4096',1))
            S.add_fill(m+1,(f'global_load_lds_dwordx4 v[{V_DA}:{V_DA+1}], off',1,'dma'))
            S.add_fill(m+1,(f'v_lshl_add_u64 v[{V_DA}:{V_DA+1}], v[{V_DA}:{V_DA+1}], 0, {S_DI}',1))
    if mid: S.add_post(OPT['MIDKS']*16+1,'@MID',3)
    endm=0
    if epi: endm=S.chains(epi[0],epilo,nm-6,epi[1],pace=pace)
    for lo,hi,L in seqs:
        S.seq(endm+1 if lo=='epi' else lo,hi,L)
    def mf(m):
        t=m//4;i=m%4
        ks,b=(t//4,t%4) if kind=='full' else (t//2,t%2)
        D=acc+(b*4+i)*4; w=V_WF+(t%4)*4
        return f'v_mfma_f32_16x16x32_bf16 {vr(D,4)}, {vr(w,4)}, {xreg(i,ks)}, {"0" if ks==0 else vr(D,4)}'
    def special(n):
        if n=='SUB': a(f's_waitcnt vmcnt({vm.wait_n("dma")})\ns_barrier')
        elif n=='MID':
            a(f's_waitcnt vmcnt({min(63,len(vm.ops))})\ns_barrier')
            a(f'buffer_store_dword v{V_ONE}, off, s[20:23], s24 sc1'); vm.issue('fl')
        elif n=='CHK8': chk8(a,'s26','s39','Zh')
    S.emit(a,vm,mf,[0,0,1,1,2,2,3,3],special)

def grp_w(g):
    return [(f's_add_u32 m0, s66, {g*4096}',1),
       (f'global_load_lds_dwordx4 v[{V_DA}:{V_DA+1}], off',1,f'g{g}'),
       (f's_add_u32 m0, s66, {HALF+g*4096}',1),
       (f'v_lshl_add_u64 v[{V_DA}:{V_DA+1}], v[{V_DA}:{V_DA+1}], 0, {S_DI}',1),
       (f'global_load_lds_dwordx4 v[{V_QA}:{V_QA+1}], off',1,f'g{g}'),
       (f'v_lshl_add_u64 v[{V_QA}:{V_QA+1}], v[{V_QA}:{V_QA+1}], 0, {S_QI}',1)]
def grp_x(g):
    return [(f'buffer_load_dwordx4 {xreg(i,g)}, v{V_XO+i}, s[20:23], s{52+g//4} offen offset:{(g%4)*1024} sc1',1,f'g{g}') for i in range(4)]
def u0_items(g):
    return [(f's_add_u32 m0, s66, {HALF+g*4096}',1),
            (f'global_load_lds_dwordx4 v[{V_UA}:{V_UA+1}], off',1,f'u{g}'),
            (f'v_lshl_add_u64 v[{V_UA}:{V_UA+1}], v[{V_UA}:{V_UA+1}], 0, {S_DI}',1)]

def bodyF(a,vm,WD,extra):
    FD=OPT['FD']; nm=18*32
    S=Sched(nm)
    def regs(sl):
        if sl<4: return V_SG+sl*4, V_NB+sl, V_ACC[1]+sl*16
        return V_WF+(sl-4)*4, V_AD+(sl-4), V_ACC[0]+(sl-4)*16
    for ks in range(18):
        for sl in range(8):
            t=ks*8+sl; m0=t*4; w,ad,_=regs(sl)
            if sl==2: S.add_pre(m0,f'@SKIP{ks}')
            if sl==4: S.pre[m0].append(f'@LAB{ks}')
            if sl%2==0: S.add_pre(m0,f'WAITL{t+1}:4')
            kn=ks+1
            m2=m0+4 if sl not in (1,3) else m0+3
            if kn<18:
                if kn==9: S.add_post(m0+1,f'v_add_u32 v{ad}, 36864, v{ad}')
                off=(kn%9)*4096
                S.add_post(m0+3,f'ds_read_b64_tr_b16 v[{w}:{w+1}], v{ad} offset:{off};tag={t+8}')
                S.add_post(m2,f'ds_read_b64_tr_b16 v[{w+2}:{w+3}], v{ad} offset:{off+512};tag={t+8}')
            elif sl>=4:
                S.add_post(m0+1,f'v_add_u32 v{ad}, {HALF}, v{V_BN+sl-4}')
                if sl==4: S.add_post(m0+2,'@SUB',2)
                S.add_post(m0+3,f'ds_read_b64_tr_b16 v[{w}:{w+1}], v{ad} offset:0;tag={t+8}')
                S.add_post(m2,f'ds_read_b64_tr_b16 v[{w+2}:{w+3}], v{ad} offset:512;tag={t+8}')
        base=ks*32
        if ks<17: S.add_post(base+1,f'@READY{ks+1}',2)
        mand=[base+2,base+4,base+5,base+6]+[base+16+j for j in (0,1,2,4,5,6,8,9,10,12,13,14)]
        items=[]
        if ks+FD<18:
            if ks+FD>=WD: items+=grp_w(ks+FD)
            items+=grp_x(ks+FD)
        if 1<=ks<17: items+=u0_items(ks-1)
        if ks in extra: items+=[extra[ks]]
        if ks<17:
            for j,it in enumerate(items): S.add_fill(mand[j],it)
        else:
            for j,it in enumerate(u0_items(16)+u0_items(17)): S.add_fill(base+16+4+j,it)
    ch,nq=ch_epiQ(V_ACC[1],0,0)
    S.chains(ch,17*32+18,nm,nq)
    def mf(m):
        t=m//4;i=m%4;ks=t//8;sl=t%8
        w,_,ac=regs(sl); D=ac+i*4
        return f'v_mfma_f32_16x16x32_bf16 {vr(D,4)}, {vr(w,4)}, {xreg(i,ks)}, {"0" if ks==0 else vr(D,4)}'
    def special(n):
        if n.startswith('SKIP'): a(f's_cbranch_vccz KF_s{n[4:]}')
        elif n.startswith('LAB'): a(f'KF_s{n[3:]}:')
        elif n.startswith('READY'): a(f's_waitcnt vmcnt({vm.wait_n("g"+n[5:])})\ns_barrier')
        elif n=='SUB': a(f's_waitcnt vmcnt({vm.wait_n("u%d"%OPT["MIDKS"])})\ns_barrier')
    S.emit(a,vm,mf,[t for t in range(8) for _ in range(2)],special)

def lamword(seq,start):
    w=0
    for k in range(6): w|=(seq[start+k] if start+k<len(seq) else 31)<<(5*k)
    return w
def c_roles_scalar(a):
    a(f'''
    s_and_b32 s92, s2, 1
    s_bfe_u32 s69, s2, 0x20001
    s_bfe_u32 s93, s2, 0x20003
    s_bfe_u32 s94, s2, 0x10005
    s_lshr_b32 s95, s2, 6
    s_lshl_b32 s95, s95, 1
    s_add_u32 s95, s95, s94
    s_lshl_b32 s57, s92, 3
    s_add_u32 s57, s57, s95
    s_mov_b32 s68, 0
    s_mov_b32 s83, 0
    s_mov_b32 s7, 147456
    s_mul_i32 s73, s69, {18*64*1152}
    s_mul_i32 s74, s69, {18*2048}
    s_add_u32 s74, s74, {H_OFF}
    s_mov_b32 s86, {4608*1152+2048}
    s_mov_b32 s75, {lamword(LAM_H,5)}
    s_mov_b32 s76, {lamword(LAM_H,11)}
    s_mov_b32 s77, {lamword(LAM_H,17)}
    s_mov_b32 s78, {lamword(LAM_H,0)}
    s_mov_b32 s82, 18
    s_cmp_lt_u32 s93, 3
    s_cbranch_scc1 C_rh
    s_lshl_b32 s57, s92, 2
    s_add_u32 s57, s57, s69
    s_lshl_b32 s83, s57, 3
    s_add_u32 s83, s83, s95
    s_lshl_b32 s57, s57, 1
    s_cmp_ge_u32 s95, 3
    s_cselect_b32 s94, 1, 0
    s_add_u32 s57, s57, s94
    s_mul_i32 s94, s94, 3
    s_sub_u32 s93, s95, s94
    s_cmp_lt_u32 s95, 6
    s_cselect_b32 s68, 1, 2
    s_cselect_b32 s93, s93, 0
    s_mov_b32 s69, 0
    s_mov_b32 s7, 18432
    s_mov_b32 s73, 0
    s_mov_b32 s74, {O_OFF}
    s_mov_b32 s86, {576*1152+2048}
    s_mov_b32 s75, {lamword(LAM_S,5)}
    s_mov_b32 s76, {lamword(LAM_S,11)}
    s_mov_b32 s77, {lamword(LAM_S,17)}
    s_mov_b32 s78, {lamword(LAM_S,0)}
    s_mov_b32 s82, 9
    s_mov_b32 s90, s88
    s_mov_b32 s91, s89
    C_rh:
    s_sub_u32 s84, s90, 2048
    s_subb_u32 s85, s91, 0
    s_mov_b32 s87, 0x20000
    s_mul_i32 s70, s57, 3
    s_add_u32 s70, s70, s93
    s_mul_i32 s71, s93, 384
    s_add_u32 s73, s73, s71
    s_mul_i32 s72, s33, 3072
    ''')
def c_roles_vector():
    A,B,C='v1','v255','v253'
    t=f'''
    v_lshlrev_b32 v{C_LV}, 4, v0
    v_lshrrev_b32 {A}, 3, v0
    s_lshl_b32 s92, s33, 3
    v_add_u32 {A}, s92, {A}
    v_bfe_u32 {B}, {A}, 2, 2
    v_lshlrev_b32 {B}, 3, {B}
    v_lshrrev_b32 {C}, 4, {A}
    v_lshl_add_u32 {B}, {C}, 2, {B}
    v_and_b32 {C}, 3, {A}
    v_add_u32 {B}, {B}, {C}
    s_cmp_eq_u32 s68, 0
    s_cselect_b64 s[92:93], -1, 0
    v_cndmask_b32 {A}, {B}, {A}, s[92:93]
    v_mul_u32_u24 {A}, 1152, {A}
    v_bfe_u32 {B}, v0, 1, 2
    v_lshrrev_b32 {C}, 4, v0
    v_xor_b32 {B}, {B}, {C}
    v_lshl_add_u32 {A}, {B}, 5, {A}
    v_and_b32 {B}, 1, v0
    v_lshl_add_u32 {A}, {B}, 4, {A}
    v_add_u32 v{C_DV}, 2048, {A}
    v_add_u32 v{C_DV+1}, {2048+128-1024}, {A}
    v_add_u32 v{C_DV+2}, {2048+256-2048}, {A}
    s_lshl_b32 s92, s57, 3
    s_lshl_b32 s93, s33, 1
    s_add_u32 s92, s92, s93
    s_mul_i32 s93, s92, s7
    v_add_u32 v{C_HV}, s93, v{C_LV}
    v_add_u32 v{C_HV+1}, s7, v{C_HV}
    v_and_b32 {A}, 7, v0
    v_lshlrev_b32 {A}, 1, {A}
    v_bfe_u32 {B}, v0, 3, 1
    s_lshl_b32 s92, s92, 4
    v_add3_u32 {A}, {A}, {B}, s92
    v_mul_u32_u24 {A}, 1152, {A}
    v_lshrrev_b32 {B}, 4, v0
    v_lshl_add_u32 {A}, {B}, 3, {A}
    s_lshl_b32 s92, s69, 5
    s_add_u32 s92, s92, s71
    v_add_u32 v{C_OA}, s92, {A}
    v_add_u32 v{C_OA+1}, 18432, v{C_OA}
    '''
    return [l.strip() for l in t.split('\n') if l.strip()]
def prefetch(slot,tabreg='s75',parts='WH'):
    W=lambda l: f'buffer_load_dwordx4 v{C_DV+l}, s[84:87], s80 offen offset:{1024*l} lds'
    def H(n):
        ks,i=n//2,n%2; r=slot*16+n*4
        return f'buffer_load_dwordx4 a[{r}:{r+3}], v{C_HV+i}, s[20:23], s81 offen offset:{ks*1024} sc1'
    L=[f's_and_b32 s79, {tabreg}, 31', f's_mul_i32 s80, s79, {64*1152}', 's_lshl_b32 s81, s79, 11', 's_add_u32 s80, s80, s73', 's_add_u32 s81, s81, s74',
       's_cmp_lt_u32 s79, 18', f's_cselect_b32 s80, s80, {OOB}', f's_cselect_b32 s81, s81, {OOB}',
       f's_add_u32 m0, s72, {slot*STG}', H(0), W(0), f's_lshr_b32 {tabreg}, {tabreg}, 5', W(1), W(2),
       f's_add_u32 m0, s72, {slot*STG+4*3072}', H(1), 's_add_u32 s80, s80, 36864', W(0), W(1), W(2), H(2), H(3)]
    if 'W' not in parts: L=[x for x in L if ' lds' not in x and 'm0' not in x and 's80' not in x]
    if 'H' not in parts: L=[x if not x.startswith('buffer_load_dwordx4 a') else 's_nop 0' for x in L if 's81' not in x or x.startswith('buffer')]
    return L
def c_addr_items():
    T=60
    L=[f'v_lshrrev_b32 v{T}, 5, v0', f'v_mul_u32_u24 v{T}, 3072, v{T}', f'v_bfe_u32 v{T+1}, v0, 2, 3', f'v_lshl_add_u32 v{T}, v{T+1}, 7, v{T}',
       f'v_lshrrev_b32 v{T+1}, 1, v{T+1}', f'v_xor_b32 v{T+1}, s69, v{T+1}', f'v_and_b32 v{T+2}, 3, v0', f'v_lshl_add_u32 v{T}, v{T+2}, 3, v{T}']
    for b_ in range(4):
        L+=[f'v_xor_b32 v{T+2}, {b_}, v{T+1}', f'v_lshl_add_u32 v{C_AD+b_}, v{T+2}, 5, v{T}']
        for hs in range(1,3): L.append(f'v_add_u32 v{C_AD+4*hs+b_}, {2*STG*hs}, v{C_AD+b_}')
    return L
def c_rd(slot,t,half):
    ks,b_=t//12,t%12
    w=C_WF[t%6]+2*half; ad=C_AD+4*(slot//2)+(b_&3)
    off=(slot%2)*STG+ks*12288+(b_//4)*1024+half*6144
    return f'ds_read_b64_tr_b16 v[{w}:{w+1}], v{ad} offset:{off}'

def attention(a,waitq,rows_split):
    Q=8; KB=(44,80); L=116; O=148; AW=220; V0,V1=44,80
    a(f'''
    v_lshrrev_b32 v2, 3, v0
    v_and_b32 v3, 7, v0
    v_mul_u32_u24 v3, 144, v3
    s_lshl_b32 s92, s33, 3
    v_add_u32 v2, s92, v2
    s_lshr_b32 s93, s83, 1
    s_lshl_b32 s93, s93, 5
    v_add_u32 v229, s93, v2
    v_add_u32 v4, 7, v2
    s_mov_b32 s94, 3456
    s_mov_b32 s95, 0x05040100
    s_mov_b32 s96, 0x07060302
    s_mov_b32 s97, 0x3eae1a93
    ''')
    n1,b1,b2=rows_split
    a(f'v_mov_b32 v6, {(b2-n1*3456)&0xffffffff}\nv_mov_b32 v7, {b1}')
    for w in range(8):
        a(f'v_min_u32 v5, {w}, v229\nv_sub_u32 v5, v4, v5\nv_cmp_gt_u32 vcc, {n1}, v5\nv_mad_u32_u24 v{AW+w}, v5, s94, v3\ns_nop 0\nv_cndmask_b32 v5, v6, v7, vcc\nv_add_u32 v{AW+w}, v{AW+w}, v5')
    waitq()
    def rd(dst,ad,off):
        for m in range(9): a(f'ds_read_b128 v[{dst+4*m}:{dst+4*m+3}], v{ad} offset:{off+16*m}')
    rd(Q,AW,0); rd(KB[0],AW,1152)
    for w in range(8):
        if w<7: rd(KB[(w+1)%2],AW+w+1,1152); a('s_waitcnt lgkmcnt(9)')
        else: a('s_waitcnt lgkmcnt(0)')
        k=KB[w%2]
        for j in range(9):
            for hh in range(4):
                c='0' if j==0 else f'v{L+hh*8+w}'
                a(f'v_dot2_f32_bf16 v{L+hh*8+w}, v{Q+9*hh+j}, v{k+9*hh+j}, {c}')
    rd(V0,AW,2304); rd(V1,AW+1,2304)
    a('v_mov_b32 v5, 0xff800000')
    for w in range(1,8):
        a(f'v_cmp_le_u32 vcc, {w}, v229\ns_nop 1')
        for hh in range(4): a(f'v_cndmask_b32 v{L+hh*8+w}, v5, v{L+hh*8+w}, vcc')
    M=Q
    for step in range(4):
        for hh in range(4):
            l=L+hh*8
            a([f'v_max3_f32 v{M+hh}, v{l}, v{l+1}, v{l+2}',f'v_max3_f32 v{M+hh}, v{M+hh}, v{l+3}, v{l+4}',f'v_max3_f32 v{M+hh}, v{M+hh}, v{l+5}, v{l+6}',f'v_max_f32 v{M+hh}, v{M+hh}, v{l+7}'][step])
    for hh in range(4): a(f'v_mul_f32 v{M+hh}, s97, v{M+hh}')
    for hh in range(4):
        for w in range(8): a(f'v_fma_f32 v{L+hh*8+w}, v{L+hh*8+w}, s97, -v{M+hh}')
    for r in range(32): a(f'v_exp_f32 v{L+r}, v{L+r}')
    for hh in range(4): a(f'v_add_f32 v{M+hh}, v{L+hh*8}, v{L+hh*8+1}')
    for w in range(2,8):
        for hh in range(4): a(f'v_add_f32 v{M+hh}, v{M+hh}, v{L+hh*8+w}')
    for hh in range(4): a(f'v_rcp_f32 v{M+hh}, v{M+hh}')
    a('s_nop 0')
    for hh in range(4):
        for w in range(8): a(f'v_mul_f32 v{L+hh*8+w}, v{L+hh*8+w}, v{M+hh}')
    for hh in range(4):
        for wp in range(4): a(f'v_cvt_pk_bf16_f32 v{L+hh*8+wp}, v{L+hh*8+2*wp}, v{L+hh*8+2*wp+1}')
    for wp in range(4):
        a('s_waitcnt lgkmcnt(0)')
        for j0 in range(0,36,4):
            for j in range(j0,j0+4):
                a(f'v_perm_b32 v{Q+j}, v{V1+j}, v{V0+j}, s95')
                a(f'v_perm_b32 v{230+(j%4)}, v{V1+j}, v{V0+j}, s96')
            for j in range(j0,j0+4):
                c='0' if wp==0 else f'v{O+2*j+1}'
                a(f'v_dot2_f32_bf16 v{O+2*j+1}, v{230+(j%4)}, v{L+(j//9)*8+wp}, {c}')
        if wp<3: rd(V0,AW+2*wp+2,2304); rd(V1,AW+2*wp+3,2304)
        for j in range(36):
            c='0' if wp==0 else f'v{O+2*j}'
            a(f'v_dot2_f32_bf16 v{O+2*j}, v{Q+j}, v{L+(j//9)*8+wp}, {c}')
    a(f'''
    v_and_b32 v3, 7, v0
    v_mul_u32_u24 v3, 2304, v3
    v_lshrrev_b32 v2, 3, v0
    v_lshl_add_u32 v3, v2, 4, v3
    s_lshr_b32 s92, s83, 1
    s_lshl_b32 s92, s92, 2
    s_add_u32 s92, s92, s33
    s_mul_i32 s92, s92, 18432
    s_and_b32 s93, s83, 1
    s_lshl_b32 s93, s93, 7
    s_add_u32 s92, s92, s93
    s_add_u32 s92, s92, {O_OFF}
    ''')
    for m in range(9):
        for j in range(4*m,4*m+4): a(f'v_cvt_pk_bf16_f32 v{Q+j}, v{O+2*j}, v{O+2*j+1}')
        a(f'buffer_store_dwordx4 v[{Q+4*m}:{Q+4*m+3}], v3, s[20:23], s92 offen offset:{256*m} sc1')

def c_loop(a):
    def hook(pos):
        if pos==1: return [f'buffer_store_dword v{V_ONE}, off, s[20:23], s24 sc1', f's_mov_b32 s24, {OOB}']
        if pos==2: return ['@SLD']
        if pos==3: return ['@CHK', 'buffer_store_dword v255, off, s[20:23], s25 sc1', f's_mov_b32 s25, {OOB}']
        return []
    def em(x):
        if x=='@CHK':
            a('s_cmp_eq_u32 s27, 0\ns_cbranch_scc1 K_C_skip\ns_add_u32 s6, s67, s27')
            chk8(a,'s26','s6','C'); a('s_cmp_eq_u32 s27, 2\ns_cselect_b32 s27, 3, 0\nK_C_skip:')
        elif x=='@SLD':
            a('s_cmp_eq_u32 s27, 0\ns_cbranch_scc1 K_C_nl\ns_load_dwordx8 s[88:95], s[20:21], s26 glc\nK_C_nl:')
        else: a(x)
    a('C_loop:')
    for pos,slot in enumerate(ORDER):
        ps=(slot-1)%NS
        extra=hook(pos)+prefetch(ps)
        free=[(t,i) for t in range(24) for i in range(2) if (i==0 or (t%2==0 and t!=18)) and (t,i)>=(0,1)]
        nv=[k for k,x in enumerate(extra) if x.startswith('buffer_load')]
        first=nv[0]
        tgt={k:int(first+n_*(len(free)-1-first)/(len(nv)-1)) for n_,k in enumerate(nv)}
        idx=[None]*len(extra); nxt=len(free)
        for k in range(len(extra)-1,-1,-1):
            want=min(tgt.get(k,nxt-1),nxt-1); idx[k]=want; nxt=want
        cur=-1
        for k in range(len(extra)):
            idx[k]=max(idx[k],cur+1); cur=idx[k]
        assert cur<len(free)
        place={free[idx[k]]:x for k,x in enumerate(extra)}
        nbefore=sum(1 for k in nv if free[idx[k]]<(18,1))
        pend=None
        for t in range(24):
            ks,b_=t//12,t%12; w=C_WF[t%6]
            for i in range(2):
                D=C_ACC+(b_*2+i)*4; h=slot*16+(ks*2+i)*4
                a(f'v_mfma_f32_16x16x32_bf16 {vr(D,4)}, {vr(w,4)}, {ar(h,4)}, {vr(D,4)}')
                if i==0:
                    if pend: a(pend); pend=None
                    if (t,i) in place: em(place[(t,i)])
                else:
                    tn=t+6
                    if tn==24: a(f's_waitcnt vmcnt({30+nbefore})\ns_barrier')
                    s2=slot if tn<24 else (slot+1)%NS
                    if t%2==1: a('s_waitcnt lgkmcnt(6)')
                    a(c_rd(s2,tn%24,0)); pend=c_rd(s2,tn%24,1)
                    if (t,i) in place: em(place[(t,i)])
        a(pend)
        if pos==2: a('s_sub_u32 s82, s82, 3\ns_cmp_eq_u32 s82, 0\ns_cbranch_scc1 C_done')
        if pos==5: a('s_mov_b32 s75, s76\ns_mov_b32 s76, s77\ns_sub_u32 s82, s82, 3\ns_cmp_eq_u32 s82, 0\ns_cbranch_scc0 C_loop')
    a('C_done:\ns_waitcnt lgkmcnt(0)')

def c_finish(a):
    T=C_T
    st(a,10)
    a(f'''
    s_load_dwordx2 s[88:89], s[0:1], 0
    s_load_dwordx2 s[90:91], s[0:1], 56
    s_mul_i32 s92, s70, {4*4*4*3072}
    s_add_u32 s92, s92, s72
    s_add_u32 s92, s92, {X_OFF}
    v_mov_b32 v{T}, s39
    s_nop 2
    ''')
    def send(j):
        for l in range(3):
            be=l*4+j; D=C_RX+(j*3+l)*4
            for i in range(2):
                A=C_ACC+(be*2+i)*4
                a(f'v_cvt_pk_bf16_f32 v{D+2*i}, v{A}, v{A+1}\nv_cvt_pk_bf16_f32 v{D+2*i+1}, v{A+2}, v{A+3}')
            a(f'buffer_store_dwordx4 v[{D}:{D+3}], v{C_LV}, s[20:23], s93 offen offset:{l*1024} sc1')
    for j in (1,2,3,0):
        if j==0: a('s_cmp_eq_u32 s68, 0\ns_cbranch_scc1 C_sent')
        a(f'''
        s_xor_b32 s93, s69, {j}
        s_lshl_b32 s93, s93, 2
        s_cmp_eq_u32 s68, 0
        s_cselect_b32 s94, {j}, 0
        s_add_u32 s93, s93, s94
        s_mul_i32 s93, s93, {4*3072}
        s_add_u32 s93, s93, s92
        ''')
        send(j)
    a('C_sent:')
    a(f'''
    s_lshl_b32 s93, s70, 2
    s_add_u32 s93, s93, s33
    s_lshl_b32 s93, s93, 5
    s_add_u32 s93, s93, {FLG_OFF}
    s_lshl_b32 s94, s69, 2
    s_cmp_eq_u32 s68, 0
    s_cselect_b32 s94, s94, 16
    s_add_u32 s94, s94, s93
    v_min_u32 v{T+1}, 4, v0
    v_lshlrev_b32 v{T+1}, 2, v{T+1}
    s_mul_i32 s95, s69, {4*4*3072}
    s_add_u32 s95, s95, s92
    s_waitcnt vmcnt(0) lgkmcnt(0)
    buffer_store_dword v{T}, off, s[20:23], s94 sc1
    s_cmp_eq_u32 s68, 0
    s_cbranch_scc0 C_fin
    ''')
    for l in range(3):
        for i in range(2):
            r=C_XV+(l*2+i)*2
            a(f'global_load_dwordx2 v[{r}:{r+1}], v{C_OA+i}, s[88:89] offset:{l*128}')
    st(a,11)
    vpoll(a,'x',T+2,T+1,'s93',sleep=4)
    st(a,12)
    for l in range(3):
        for sl in range(4):
            r=C_RX+(l*4+sl)*4
            if l==0: a(f's_add_u32 s{76+sl}, s95, {sl*4*3072}')
            a(f'buffer_load_dwordx4 v[{r}:{r+3}], v{C_LV}, s[20:23], s{76+sl} offen offset:{l*1024} sc1')
    for l in range(3):
        a(f's_waitcnt vmcnt({8-2*l})')
        for i in range(2):
            A=C_ACC+((l*4)*2+i)*4; t=16
            for sl in (1,2,3):
                r=C_RX+(l*4+sl)*4+2*i
                a(f'v_lshlrev_b32 v{t}, 16, v{r}\nv_and_b32 v{t+1}, s41, v{r}\nv_lshlrev_b32 v{t+2}, 16, v{r+1}\nv_and_b32 v{t+3}, s41, v{r+1}')
                for e in range(4): a(f'v_add_f32 v{A+e}, v{A+e}, v{t+e}')
            for e in range(4): a(f'v_mul_f32 v{t+e}, s40, v{A+e}')
            for e in range(4): a(f'v_exp_f32 v{t+e}, v{t+e}')
            for e in range(4): a(f'v_add_f32 v{t+e}, 1.0, v{t+e}')
            for e in range(4): a(f'v_rcp_f32 v{t+e}, v{t+e}')
            r=C_RX+(l*4)*4+2*i; x=C_XV+(l*2+i)*2; u=t+4; y=t+8
            a(f'v_lshlrev_b32 v{u}, 16, v{r}\nv_and_b32 v{u+1}, s41, v{r}\nv_lshlrev_b32 v{u+2}, 16, v{r+1}\nv_and_b32 v{u+3}, s41, v{r+1}')
            a(f'v_lshlrev_b32 v{y}, 16, v{x}\nv_and_b32 v{y+1}, s41, v{x}\nv_lshlrev_b32 v{y+2}, 16, v{x+1}\nv_and_b32 v{y+3}, s41, v{x+1}')
            for e in range(4): a(f'v_mul_f32 v{t+e}, v{t+e}, v{A+e}')
            for e in range(4): a(f'v_fmac_f32 v{y+e}, v{t+e}, v{u+e}')
            a(f'v_cvt_pk_bf16_f32 v{x}, v{y}, v{y+1}\nv_cvt_pk_bf16_f32 v{x+1}, v{y+2}, v{y+3}')
            a(f'global_store_dwordx2 v{C_OA+i}, v[{x}:{x+1}], s[90:91] offset:{l*128}')
    a('C_fin:')
    st(a,13); st(a,31,rt=True)

def light_after_att(a):
    T=C_T
    a(f'''
    s_lshr_b32 s92, s83, 2
    s_lshl_b32 s92, s92, 7
    s_and_b32 s93, s83, 3
    s_lshl_b32 s93, s93, 2
    s_add_u32 s93, s93, s33
    s_lshl_b32 s93, s93, 2
    s_add_u32 s92, s92, s93
    s_add_u32 s92, s92, {OFL_OFF}
    v_mov_b32 v{T}, s39
    s_barrier
    s_cmp_eq_u32 s68, 2
    s_cbranch_scc1 L_flag
    s_mov_b32 s94, s78
    ''')
    for k in range(5):
        for x in prefetch(ORDER[k],'s94','W'): a(x)
    a(f'''
    s_waitcnt vmcnt(30)
    L_flag:
    s_cmp_eq_u32 s68, 2
    s_cbranch_scc0 L_f2
    s_waitcnt vmcnt(0)
    L_f2:
    buffer_store_dword v{T}, off, s[20:23], s92 sc1
    s_cmp_eq_u32 s68, 2
    s_cbranch_scc1 C_fin
    s_lshl_b32 s93, s57, 7
    s_add_u32 s93, s93, {OFL_OFF}
    v_and_b32 v{T+1}, 15, v0
    v_lshlrev_b32 v{T+1}, 2, v{T+1}
    ''')
    for x in c_addr_items(): a(x)
    for r in range(0,96,2): a(f'v_mov_b64 v[{C_ACC+r}:{C_ACC+r+1}], 0')
    vpoll(a,'o',T+2,T+1,'s93',sleep=1)
    for k in range(5):
        for x in prefetch(ORDER[k],'s78','H'): a(x)
    a('s_waitcnt vmcnt(0)\ns_barrier')

LNS=147456
def ln_loads(a):
    a(f'''
    s_lshl_b32 s35, s30, 2
    s_add_u32 s35, s35, s31
    s_lshr_b32 s36, s35, 1
    s_lshl_b32 s37, s32, 4
    s_add_u32 s36, s36, s37
    s_and_b32 s37, s35, 1
    s_lshl_b32 s38, s36, 4
    s_add_u32 s38, s38, s37
    v_and_b32 v79, 7, v0
    v_lshl_add_u32 v77, v79, 1, s38
    v_mul_u32_u24 v80, 1152, v77
    v_lshrrev_b32 v81, 3, v0
    v_lshl_add_u32 v77, v81, 4, v80
    s_lshl_b32 s38, s33, 7
    s_mov_b32 s94, {2048*1152}
    s_mov_b32 s95, 0x20000
    s_waitcnt lgkmcnt(0)
    buffer_load_dwordx4 v[64:67], v77, s[92:95], s38 offen
    buffer_load_dwordx4 v[68:71], v77, s[92:95], s38 offen offset:512
    buffer_load_dwordx4 v[72:75], v77, s[92:95], 0 offen offset:1024
    buffer_load_ushort v76, v80, s[92:95], 0 offen
    s_mul_i32 s36, s36, 18432
    s_lshl_b32 s37, s37, 7
    s_add_u32 s36, s36, s37
    s_lshl_b32 s37, s33, 11
    s_add_u32 s96, s36, s37
    s_add_u32 s97, s36, 16384
    v_lshlrev_b32 v78, 8, v81
    v_lshl_add_u32 v78, v79, 4, v78
    s_lshl_b32 s6, s32, 5
    s_add_u32 s6, s6, s35
    s_lshl_b32 s6, s6, 2
    s_add_u32 s6, s6, s33
    s_lshl_b32 s6, s6, 2
    s_add_u32 s6, s6, {XFL_OFF}
    ''')
def ln_compute(a,nyoung):
    E=96
    a(f's_waitcnt vmcnt({nyoung})')
    a('v_lshlrev_b32 v76, 16, v76\nv_mov_b32 v82, 0\nv_mov_b32 v83, 0\nv_mov_b32 v84, 0\nv_mov_b32 v85, 0')
    def acc(g):
        for i in range(4):
            r=64+4*g+i; e=E+8*g+2*i
            a(f'v_lshlrev_b32 v{e}, 16, v{r}\nv_and_b32 v{e+1}, s41, v{r}')
        for i in range(0,8,2):
            e=E+8*g+i
            a(f'v_sub_f32 v86, v{e}, v76\nv_sub_f32 v87, v{e+1}, v76\nv_add_f32 v82, v82, v86\nv_add_f32 v84, v84, v87\nv_fmac_f32 v83, v86, v86\nv_fmac_f32 v85, v87, v87')
    acc(0); acc(1)
    a('s_cmp_lg_u32 s33, 0\ns_cbranch_scc1 LN_a')
    acc(2)
    a('LN_a:')
    a('v_add_f32 v82, v82, v84\nv_add_f32 v83, v83, v85\ns_nop 1')
    a('v_add_f32_dpp v82, v82, v82 row_ror:8 row_mask:0xf bank_mask:0xf\nv_add_f32_dpp v83, v83, v83 row_ror:8 row_mask:0xf bank_mask:0xf')
    for sw in ('v_permlane16_swap_b32','v_permlane32_swap_b32'):
        a(f'v_mov_b32 v84, v82\nv_mov_b32 v85, v83\ns_nop 1\n{sw} v82, v84\n{sw} v83, v85\ns_nop 1\nv_add_f32 v82, v82, v84\nv_add_f32 v83, v83, v85')
    a(f'''
    s_lshl_b32 s35, s33, 6
    v_lshl_add_u32 v86, v79, 3, s35
    v_lshlrev_b32 v87, 3, v79
    v_add_u32 v86, {LNS}, v86
    v_add_u32 v87, {LNS}, v87
    ds_write_b64 v86, v[82:83]
    s_waitcnt lgkmcnt(0)
    s_barrier
    ds_read2_b64 v[88:91], v87 offset0:0 offset1:8
    ds_read2_b64 v[92:95], v87 offset0:16 offset1:24
    s_waitcnt lgkmcnt(0)
    v_add_f32 v82, v88, v90
    v_add_f32 v83, v89, v91
    v_add_f32 v84, v92, v94
    v_add_f32 v85, v93, v95
    v_add_f32 v82, v82, v84
    v_add_f32 v83, v83, v85
    v_mul_f32 v82, 0x3ae38e39, v82
    v_mul_f32 v83, 0x3ae38e39, v83
    v_fma_f32 v83, -v82, v82, v83
    v_max_f32 v83, 0, v83
    v_add_f32 v82, v82, v76
    ''')
    def rb(r): a(f'v_cvt_pk_bf16_f32 v{r}, v{r}, v{r}\nv_lshlrev_b32 v{r}, 16, v{r}')
    rb(82); rb(83)
    a('v_add_f32 v83, 0x3727c5ac, v83'); rb(83)
    a('v_sqrt_f32 v83, v83\ns_nop 0'); rb(83)
    a('v_rcp_f32 v83, v83\ns_nop 0')
    def norm(g):
        for i in range(4):
            e=E+8*g+2*i
            a(f'v_sub_f32 v{e}, v{e}, v82\nv_sub_f32 v{e+1}, v{e+1}, v82')
        for i in range(4):
            e=E+8*g+2*i
            a(f'v_cvt_pk_bf16_f32 v{e}, v{e}, v{e+1}')
        for i in range(4):
            e=E+8*g+2*i
            a(f'v_and_b32 v{e+1}, s41, v{e}\nv_lshlrev_b32 v{e}, 16, v{e}')
        for i in range(4):
            e=E+8*g+2*i
            a(f'v_mul_f32 v{e}, v{e}, v83\nv_mul_f32 v{e+1}, v{e+1}, v83')
        for i in range(4):
            e=E+8*g+2*i
            a(f'v_cvt_pk_bf16_f32 v{64+4*g+i}, v{e}, v{e+1}')
    norm(0)
    a('buffer_store_dwordx4 v[64:67], v78, s[20:23], s96 offen sc1\ns_add_u32 s96, s96, 8192')
    norm(1)
    a('buffer_store_dwordx4 v[68:71], v78, s[20:23], s96 offen sc1')
    a('s_cmp_lg_u32 s33, 0\ns_cbranch_scc1 LN_b')
    norm(2)
    a('buffer_store_dwordx4 v[72:75], v78, s[20:23], s97 offen sc1')
    a('LN_b:')

def gen_kf(a):
    a(kernel_header(NAME))
    T=V_T
    a('''
    s_cmp_ge_u32 s2, 256
    s_cbranch_scc1 KF_end
    s_load_dwordx2 s[92:93], s[0:1], 0
    s_load_dwordx2 s[4:5], s[0:1], 8
    s_load_dwordx4 s[8:11], s[0:1], 32
    s_load_dwordx2 s[20:21], s[0:1], 72
    s_load_dwordx2 s[28:29], s[0:1], 64
    s_load_dwordx2 s[88:89], s[0:1], 16
    s_load_dwordx2 s[90:91], s[0:1], 48
    s_memrealtime s[24:25]
    v_lshrrev_b32 v1, 6, v0
    v_and_b32 v0, 63, v0
    s_bfe_u32 s30, s2, 0x20001
    s_lshl_b32 s30, s30, 1
    s_bfe_u32 s31, s2, 0x10005
    s_add_u32 s30, s30, s31
    s_bfe_u32 s31, s2, 0x20003
    s_and_b32 s32, s2, 1
    s_lshl_b32 s32, s32, 2
    s_lshr_b32 s3, s2, 6
    s_add_u32 s32, s32, s3
    v_readfirstlane_b32 s33, v1
    s_mov_b32 s22, 0x10000000
    s_mov_b32 s23, 0x20000
    s_mov_b32 s40, 0xbfb8aa3b
    s_mov_b32 s41, 0xffff0000
    ''')
    vm=VM()
    ln_loads(a)
    a(f'''
    v_mov_b32 v2, 0
    s_or_b32 s3, s2, s33
    s_cmp_lg_u32 s3, 0
    s_cbranch_scc1 KF_noep
    s_and_b32 s24, s24, 0xfffffffc
    s_max_u32 s24, s24, 4
    v_mov_b32 v3, s24
    global_store_dword v2, v3, s[28:29] sc1
    KF_noep:
    s_getpc_b64 s[24:25]
    KF_pc:
    s_sub_u32 s24, s24, KF_pc-{NAME}
    s_subb_u32 s25, s25, 0
    s_lshr_b32 s3, s2, 3
    s_lshl_b32 s3, s3, 4
    v_and_b32 v4, 15, v0
    v_add_u32 v4, s3, v4
    v_lshlrev_b32 v4, 7, v4
    v_min_u32 v4, KF_last-{NAME}, v4
    v_mov_b32 v5, 0
    v_lshl_add_u64 v[4:5], v[4:5], 0, s[24:25]
    global_load_dword v{V_DUM}, v[4:5], off
    ''')
    vm.issue('t')
    st(a,30,True); st(a,0)
    a(f'''
    s_lshl_b32 s66, s33, 10
    s_mul_i32 s62, s30, 3
    s_add_u32 s62, s62, s31
    s_lshl_b32 s62, s62, 7
    s_add_u32 s64, s30, 44
    s_lshl_b32 s64, s64, 6
    s_cmp_lt_u32 s31, 3
    s_cselect_b32 s63, 1, 0
    s_cmp_lt_u32 s30, 6
    s_cbranch_scc1 KF_qok
    s_lshl_b32 s62, s30, 1
    s_add_u32 s62, s62, s31
    s_add_u32 s64, s62, 36
    s_lshl_b32 s64, s64, 6
    s_add_u32 s62, s62, 6
    s_lshl_b32 s62, s62, 7
    s_cmp_lt_u32 s31, 2
    s_cselect_b32 s63, 1, 0
    KF_qok:
    s_cmp_eq_u32 s63, 1
    s_cselect_b32 s62, s62, s64
    s_cselect_b32 s67, 3, 1
    s_mov_b32 s64, s63
    s_mov_b32 s65, 0
    v_lshrrev_b32 v{T}, 3, v0
    s_lshl_b32 s35, s33, 3
    v_add_u32 v{T}, s35, v{T}
    v_bfe_u32 v{T+1}, v0, 1, 2
    v_bfe_u32 v{T+2}, v0, 4, 1
    s_and_b32 s35, s33, 1
    s_lshl_b32 s35, s35, 1
    v_or_b32 v{T+2}, s35, v{T+2}
    v_xor_b32 v{T+1}, v{T+1}, v{T+2}
    v_and_b32 v{T+2}, 1, v0
    v_lshlrev_b32 v{T+2}, 4, v{T+2}
    v_mul_u32_u24 v{T+4}, 9216, v{T}
    v_add_u32 v{T+4}, v{T+4}, v{T+2}
    v_mov_b32 v{T+5}, 0
    v_mul_u32_u24 v{T+6}, 3456, v{T}
    v_add_u32 v{T+6}, v{T+6}, v{T+2}
    v_and_b32 v{T+3}, s67, v{T+1}
    v_lshl_add_u32 v{T+6}, v{T+3}, 5, v{T+6}
    v_mov_b32 v{T+7}, 0
    v_lshl_add_u32 v{T+8}, v{T+1}, 5, v{T+4}
    v_mov_b32 v{T+9}, 0
    s_mul_i32 s36, s30, 1152
    s_lshl_b32 s37, s31, 8
    s_add_u32 s37, s37, s36
    s_lshl_b32 s38, s31, 5
    s_add_u32 s38, s38, s36
    s_add_u32 s38, s38, 1024
    s_mov_b32 s100, 294912
    s_mov_b32 s101, 0
    s_add_u32 s16, s8, s37
    s_addc_u32 s17, s9, 0
    s_add_u32 s18, s10, s37
    s_addc_u32 s19, s11, 0
    s_add_u32 s12, s4, s62
    s_addc_u32 s13, s5, 0
    v_lshl_add_u64 v[{V_DA}:{V_DA+1}], v[{T+8}:{T+9}], 0, s[16:17]
    v_lshl_add_u64 v[{V_QA}:{V_QA+1}], v[{T+6}:{T+7}], 0, s[12:13]
    v_lshl_add_u64 v[{V_UA}:{V_UA+1}], v[{T+8}:{T+9}], 0, s[18:19]
    s_mov_b32 s4, 110592
    s_mov_b32 s5, 0
    s_and_b32 s3, s32, 3
    s_lshl_b32 s3, s3, 2
    s_add_u32 s3, s3, s33
    s_mul_i32 s3, s3, 36
    v_min_u32 v{V_TR}, 35, v0
    v_add_u32 v{V_TR}, s3, v{V_TR}
    v_mul_u32_u24 v2, 3456, v{V_TR}
    v_mul_u32_u24 v{V_TR}, 9216, v{V_TR}
    global_load_dword v{V_DUM}, v{V_TR}, s[16:17]
    global_load_dword v{V_DUM}, v2, s[12:13]
    global_load_dword v{V_DUM}, v{V_TR}, s[18:19]
    ''')
    for _ in range(3): vm.issue('t')
    c_roles_scalar_pending=True
    ln_compute(a,len(vm.ops))
    a('v_mov_b32 v2, 0\nglobal_load_dword v3, v2, s[28:29] sc1')
    WD=OPT.get('WD',8)
    a(f'''
    s_lshl_b32 s34, s32, 4
    s_lshl_b32 s35, s33, 2
    s_add_u32 s34, s34, s35
    s_mul_i32 s35, s34, 18432
    v_lshlrev_b32 v{T}, 4, v0
    v_add_u32 v{V_XO}, s35, v{T}
    v_add_u32 v{V_XO+1}, 18432, v{V_XO}
    v_add_u32 v{V_XO+2}, 36864, v{V_XO}
    v_add_u32 v{V_XO+3}, 55296, v{V_XO}
    s_mul_i32 s35, s34, 147456
    v_add_u32 v{V_HST}, s35, v{T}
    s_sub_u32 s58, s10, s8
    s_subb_u32 s59, s11, s9
    s_sub_u32 s58, s58, 5308416
    s_subb_u32 s59, s59, 0
    s_mov_b32 s60, {(-5308416+128)&0xffffffff}
    s_mov_b32 s61, -1
    s_add_u32 s12, s8, s38
    s_addc_u32 s13, s9, 0
    s_add_u32 s14, s10, s38
    s_addc_u32 s15, s11, 0
    v_lshl_add_u64 v[{V_ZA}:{V_ZA+1}], v[{T+4}:{T+5}], 0, s[12:13]
    v_lshl_add_u64 v[{T+12}:{T+13}], v[{T+4}:{T+5}], 0, s[14:15]
    v_and_b32 v{T+3}, 1, v{T+1}
    v_cmp_eq_u32 vcc, 1, v{T+3}
    s_nop 1
    v_cndmask_b32 v{V_ZA}, v{V_ZA}, v{T+12}, vcc
    v_cndmask_b32 v{V_ZA+1}, v{V_ZA+1}, v{T+13}, vcc
    ''')
    for g in range(5): a(f's_mov_b32 s{52+g}, {XN_OFF+g*4096}')
    c_roles_scalar(a)
    a(f'''
    s_mov_b32 s3, 0
    KF_ep:
    s_waitcnt vmcnt(0)
    v_readfirstlane_b32 s67, v3
    s_add_u32 s3, s3, 1
    s_cmp_gt_u32 s3, {OPT['SPIN']}
    s_cbranch_scc1 KF_epok
    s_cmp_lg_u32 s67, 0
    s_cbranch_scc1 KF_epok
    global_load_dword v3, v2, s[28:29] sc1
    s_branch KF_ep
    KF_epok:
    s_add_u32 s39, s67, 1
    v_mov_b32 v3, s39
    buffer_store_dword v3, off, s[20:23], s6 sc1
    ''')
    st(a,1)
    vm=VM()
    for g in range(WD):
        for j,it in enumerate(grp_w(g)):
            a(it[0])
            if j==0: a('s_nop 0')
            if len(it)>2: vm.issue(it[2])
    a(f'''
    v_lshrrev_b32 v{T}, 4, v0
    v_bfe_u32 v{T+1}, v0, 2, 2
    v_lshl_add_u32 v{T+2}, v{T}, 3, v{T+1}
    v_lshlrev_b32 v{T+2}, 7, v{T+2}
    v_lshrrev_b32 v{T+1}, 1, v{T+1}
    v_and_b32 v{T}, 1, v{T}
    v_lshl_or_b32 v{T+1}, v{T}, 1, v{T+1}
    v_and_b32 v{T+3}, 3, v0
    ''')
    for b in range(4):
        a(f'''
        v_xor_b32 v{T+4}, {b}, v{T+1}
        v_lshl_add_u32 v{T+4}, v{T+4}, 5, v{T+2}
        v_lshl_add_u32 v{V_BN+b}, v{T+3}, 3, v{T+4}
        v_mov_b32 v{V_AD+b}, v{V_BN+b}
        ''')
    for u in range(2):
        a(f'''
        v_lshrrev_b32 v{T+4}, 1, v{T+3}
        v_add_u32 v{T+4}, {2*u}, v{T+4}
        v_xor_b32 v{T+4}, v{T+4}, v{T+1}
        v_lshl_add_u32 v{T+4}, v{T+4}, 5, v{T+2}
        v_and_b32 v{T+5}, 1, v{T+3}
        v_lshl_add_u32 v{T+4}, v{T+5}, 4, v{T+4}
        v_add_u32 v{V_NB+2*u}, {HALF}, v{T+4}
        v_add_u32 v{V_NB+2*u+1}, {HALF+8}, v{T+4}
        ''')
    a(f'''
    v_and_b32 v{T}, 7, v0
    s_lshl_b32 s35, s34, 3
    v_add_u32 v{T}, s35, v{T}
    v_bfe_u32 v{T+1}, v0, 3, 1
    v_lshl_add_u32 v{T}, v{T+1}, 10, v{T}
    v_mul_u32_u24 v{T}, 3456, v{T}
    v_lshrrev_b32 v{T+1}, 4, v0
    v_lshl_add_u32 v{V_QST}, v{T+1}, 4, v{T}
    s_mul_i32 s35, s30, 18
    s_lshl_b32 s42, s31, 2
    s_add_u32 s35, s35, s42
    s_lshl_b32 s35, s35, 10
    s_add_u32 s44, s35, {H_OFF}
    s_add_u32 s45, s44, 147456
    s_add_u32 s46, s44, 294912
    s_add_u32 s47, s44, 442368
    s_add_u32 s48, s62, {QKV_OFF}
    s_add_u32 s49, s48, 27648
    s_add_u32 s50, s48, 55296
    s_add_u32 s51, s48, 82944
    s_lshl_b32 s24, s32, 5
    s_lshl_b32 s3, s30, 2
    s_add_u32 s24, s24, s3
    s_add_u32 s24, s24, s31
    s_lshl_b32 s24, s24, 2
    s_add_u32 s24, s24, {QFL_OFF}
    s_cmp_eq_u32 s33, 0
    s_cselect_b32 s24, s24, {OOB}
    s_lshl_b32 s25, s32, 2
    s_add_u32 s25, s25, s33
    s_lshl_b32 s25, s25, 5
    s_add_u32 s25, s25, s3
    s_add_u32 s25, s25, s31
    s_lshl_b32 s25, s25, 2
    s_add_u32 s25, s25, {HFL_OFF}
    s_and_b32 s26, s57, 1
    s_lshl_b32 s26, s26, 1
    s_lshr_b32 s3, s33, 1
    s_add_u32 s26, s26, s3
    s_lshl_b32 s3, s32, 2
    s_add_u32 s26, s26, s3
    s_lshl_b32 s26, s26, 7
    s_lshl_b32 s3, s69, 5
    s_add_u32 s26, s26, s3
    s_add_u32 s26, s26, {HFL_OFF}
    s_cmp_eq_u32 s68, 0
    s_cselect_b32 s27, 2, 0
    s_and_b32 s28, s57, 7
    s_mul_i32 s28, s28, 3
    s_add_u32 s28, s28, s31
    s_lshl_b32 s28, s28, 2
    s_add_u32 s28, s28, s33
    s_mul_i32 s28, s28, {108*128}
    s_mul_i32 s3, s69, {1152*1152}
    s_add_u32 s28, s28, s3
    s_and_b32 s3, s83, 7
    s_lshl_b32 s3, s3, 2
    s_add_u32 s3, s3, s33
    s_mul_i32 s3, s3, {162*128}
    s_cmp_eq_u32 s68, 0
    s_cselect_b32 s28, s28, s3
    s_add_u32 s28, s28, 2048
    s_add_u32 s29, s28, 16384
    s_cmp_eq_u32 s68, 0
    s_cselect_b32 s29, {OOB}, s29
    s_lshl_b32 s6, s32, 2
    s_add_u32 s6, s6, s33
    s_lshl_b32 s6, s6, 7
    s_add_u32 s6, s6, {XFL_OFF}
    v_and_b32 v{T}, 31, v0
    v_lshlrev_b32 v{T}, 2, v{T}
    ''')
    vpoll(a,'xn',T+1,T,'s6')
    st(a,2)
    for g in range(OPT['FD']):
        for it in grp_x(g): a(it[0]); vm.issue(it[2])
    a('s_mov_b64 vcc, s[64:65]')
    a('s_barrier')
    for sl in range(8):
        w,ad=(V_SG+sl*4,V_NB+sl) if sl<4 else (V_WF+(sl-4)*4,V_AD+sl-4)
        a(f'ds_read_b64_tr_b16 v[{w}:{w+1}], v{ad} offset:0')
        a(f'ds_read_b64_tr_b16 v[{w+2}:{w+3}], v{ad} offset:512')
    a(f's_waitcnt vmcnt({vm.wait_n("g0")})')
    st(a,3)
    fx={OPT['ftouch']:(f'global_load_dword v{V_DUM}, v{V_TR}, s[16:17] offset:128',1,'t')} if OPT['ftouch']>=0 else {}
    bodyF(a,vm,WD,fx)
    a('s_cbranch_vccz KF_noq2\ns_nop 1')
    for s in flat(ch_epiQ(V_ACC[1],2,64)[0]): a(s)
    a('KF_noq2:')
    st(a,4)
    a(f'''
    s_mov_b32 s43, 0
    v_mov_b32 v{V_ONE}, s39
    v_lshlrev_b32 v15, 7, v0
    v_lshl_add_u64 v[{V_DA}:{V_DA+1}], v[{V_DA}:{V_DA+1}], 0, s[60:61]
    v_mov_b32 v{V_NB}, v{V_BN}
    v_mov_b32 v{V_NB+1}, v{V_BN+1}
    v_mov_b32 v{V_NB+2}, v{V_BN+2}
    v_mov_b32 v{V_NB+3}, v{V_BN+3}
    KF_loop:
    s_sub_u32 m0, s66, 4096
    ''')
    ty=[(100,130,[f'global_load_dword v{V_DUM}, v{V_TR}, s[18:19] offset:128',f'buffer_load_dword v{V_DUM}, v15, s[84:87], s28 offen'])]
    body(a,VM(),1,ch_epiG(V_ACC[0]),mid=True,seqs=ty)
    a(f'''
    s_cmp_lg_u32 s43, 0
    s_cbranch_scc1 KF_z
    v_lshl_add_u64 v[{V_DA}:{V_DA+1}], v[{V_DA}:{V_DA+1}], 0, s[58:59]
    v_add_u32 v{V_NB}, {HALF}, v{V_BN}
    v_add_u32 v{V_NB+1}, {HALF}, v{V_BN+1}
    v_add_u32 v{V_NB+2}, {HALF}, v{V_BN+2}
    v_add_u32 v{V_NB+3}, {HALF}, v{V_BN+3}
    ''')
    st(a,5)
    tx=[(98,138,[f'global_load_dword v{V_DUM}, v{V_TR}, s[12:13]',f'global_load_dword v{V_DUM}, v{V_TR}, s[14:15]','s_add_u32 s28, s28, 8192',f'buffer_load_dword v{V_DUM}, v15, s[84:87], s28 offen','s_mov_b32 s28, s29'])]
    body(a,VM(),0,ch_epiU(V_ACC[1]),pace=True,epilo=OPT['XEPI'],seqs=tx+[(140,280,c_roles_vector())])
    st(a,6)
    a(f'''
    s_add_u32 s44, s44, 2048
    s_add_u32 s45, s45, 2048
    s_add_u32 s46, s46, 2048
    s_add_u32 s47, s47, 2048
    s_mov_b32 s43, 1
    s_mov_b32 s24, s25
    v_mov_b32 v{V_DA}, v{V_ZA}
    v_mov_b32 v{V_DA+1}, v{V_ZA+1}
    v_mov_b32 v{V_NB}, v{V_BN}
    v_mov_b32 v{V_NB+1}, v{V_BN+1}
    v_add_u32 v{V_NB+2}, 4096, v{V_BN}
    v_add_u32 v{V_NB+3}, 4096, v{V_BN+1}
    s_cmp_eq_u32 s68, 0
    s_cbranch_scc1 KF_loop
    s_lshr_b32 s26, s83, 3
    s_max_u32 s26, s26, 1
    s_sub_u32 s26, s26, 1
    s_lshl_b32 s26, s26, 7
    s_add_u32 s26, s26, {QFL_OFF}
    v_lshlrev_b32 v253, 2, v0
    s_lshr_b32 s3, s83, 3
    s_cmp_eq_u32 s3, 0
    s_movk_i32 s3, 255
    s_cselect_b32 s3, 127, s3
    v_and_b32 v253, s3, v253
    buffer_load_dword v255, v253, s[20:23], s26 offen sc1
    s_branch KF_loop
    KF_z:
    ''')
    st(a,7)
    a('s_cmp_eq_u32 s68, 0\ns_cbranch_scc0 KF_zl')
    a('s_load_dwordx8 s[88:95], s[20:21], s26 glc\ns_mov_b32 s6, s78')
    pw=[];ph=[]
    for k in range(3):
        pw+=[x for x in prefetch(ORDER[k],'s6','W') if x!='s_nop 0']
        ph+=prefetch(ORDER[k],'s78','H')
    zero=[f'v_mov_b64 v[{r}:{r+1}], 0' for r in range(96,192,2)]
    vmz=VM()
    body(a,vmz,0,ch_epiU(V_ACC[1]),kind='half',dma=False,last=True,pace=False,cap=3,
         seqs=[(1,90,pw),(90,142,['@CHK8']+ph),('epi',143,zero),('epi',143,c_addr_items())])
    assert 'st' not in vmz.ops[-4:], vmz.ops
    st(a,8)
    epiZ_tail(a,V_ACC[0])
    a('s_waitcnt vmcnt(8)\ns_barrier')
    for t in range(6): a(c_rd(ORDER[0],t,0)); a(c_rd(ORDER[0],t,1))
    for k in (3,4):
        for x in prefetch(ORDER[k],'s78'): a(x)
    a(f'v_add_u32 v{V_ONE}, 1, v{V_ONE}\nv_add_u32 v255, 1, v{V_ONE}\ns_mov_b32 s24, s25')
    a('s_waitcnt lgkmcnt(0)\ns_branch C_go')
    a('KF_zl:')
    a(f'''
    s_and_b32 s92, s83, 1
    s_lshl_b32 s92, s92, 10
    s_lshr_b32 s93, s83, 1
    s_lshl_b32 s93, s93, 5
    s_add_u32 s92, s92, s93
    s_mul_i32 s92, s92, 3456
    s_add_u32 s92, s92, {QKV_OFF-7*3456}
    s_add_u32 s92, s92, s66
    s_add_u32 s93, s92, 86400
    ''')
    vpoll(a,'q',255,253,'s26',first_loaded=True)
    ql=[]
    for n in range(22):
        ql+=[f's_add_u32 m0, s66, {HALF+n*4096}', f'buffer_load_dwordx4 v{C_LV}, s[20:23], s92 offen sc1 lds', 's_add_u32 s92, s92, 4096']
    body(a,VM(),0,ch_epiU(V_ACC[1]),kind='half',dma=False,last=True,pace=False,seqs=[(1,140,ql)])
    a('s_barrier')
    for n in range(12):
        a(f's_add_u32 m0, s66, {n*4096}\ns_nop 0\nbuffer_load_dwordx4 v{C_LV}, s[20:23], s93 offen sc1 lds\ns_add_u32 s93, s93, 4096')
    epiZ_tail(a,V_ACC[0])
    a(f'v_add_u32 v255, 2, v{V_ONE}\ns_nop 1')
    st(a,8)
    def wq():
        a('s_waitcnt vmcnt(0)\nbuffer_store_dword v255, off, s[20:23], s25 sc1\ns_barrier'); st(a,14)
    attention(a,wq,(25,HALF,0))
    st(a,15)
    light_after_att(a)
    a(f's_mov_b32 s24, {OOB}\ns_mov_b32 s25, {OOB}')
    for t in range(6): a(c_rd(ORDER[0],t,0)); a(c_rd(ORDER[0],t,1))
    a('s_waitcnt lgkmcnt(8)')
    a('C_go:')
    st(a,9)
    c_loop(a)
    c_finish(a)
    a('KF_end:\nKF_last:\ns_endpgm')
    return kernel_desc(NAME,512,102,256)

def build():
    a=Asm()
    hdr=open('recurrent_scan__sliding_local_dilated__swiglu_ffn__prompt.s.ref').read().split('\n')
    head=[l for l in hdr if l.startswith(';') and '@launch' not in l]
    d=gen_kf(a)
    s='\n'.join(head)+'\n; @launch grid=(256,1,1) block=(256,1,1) lds=163840\n'
    s+='.amdgcn_target "amdgcn-amd-amdhsa--gfx950"\n.text\n'+a.text()
    s+='.section .rodata,"a"\n.p2align 6\n'+d
    return s
if __name__=='__main__':
    for o in sys.argv[2:]:
        if '=' in o:
            k,v=o.split('='); OPT[k]=int(v)
        else: OPT[o]=True
    open(sys.argv[1],'w').write(build())
```

```python
import sys
from asmlib import *

NAME='recurrent_scan__sliding_local_dilated__swiglu_ffn__prompt_kernel'
XN_OFF=0; O_OFF=0x240000; QKV_OFF=0x480000; H_OFF=0xB40000; X_OFF=0x1D40000
FLG_OFF=0x3000000; OFL_OFF=FLG_OFF+0x2000; HFL_OFF=FLG_OFF+0x3000; QFL_OFF=FLG_OFF+0x4000; XFL_OFF=FLG_OFF+0x5000
PROF_OFF=0x8000000
OOB=0x7ffff000
OPT=dict(prof=False, FD=7, MIDKS=11, XEPI=80, SPIN=200000, tu0=0, tg1=5, tu1=10, w3q=40, FD0=3, t0nt=1, w3w=0, xt=1, W3N=6)
STF=' sc1'
HALF=73728
V_AD=2; V_NB=6; V_DA=10; V_DUM=12; V_TR=13; V_HST=14; V_QST=15; V_WF=16; V_SG=32; V_ACC=(64,128); V_X=192; V_T=224
V_BN=240; V_ZA=244; V_QA=246; V_UA=248; V_XO=252; V_ONE=254
S_DI='s[100:101]'; S_QI='s[4:5]'
C_AD=[6,7,8,9,10,11,13,15,240,241,242,243]; C_WF=[16,20,24,28,64,68]; C_ACC=96; C_RX=192; C_XV=72; C_T=2
C_DV=246; C_HV=249; C_LV=251; C_OA=252
STG=24576; NS=6; ORDER=[3,4,5,0,1,2]
LAM_H=[0,2,4,6,9,11,13,15,1,3,5,10,12,14,7,8,16,17]; LAM_S=list(range(9))

def st(a,i,rt=False):
    if not OPT['prof']: return
    a(f'''
    {"s_memrealtime" if rt else "s_memtime"} s[98:99]
    s_waitcnt lgkmcnt(0)
    v_mov_b32 v1, s98
    s_lshl_b32 s98, s2, 7
    s_add_u32 s98, s98, {PROF_OFF+4*i}
    s_cmp_eq_u32 s33, 0
    s_cselect_b32 s98, s98, {OOB}
    buffer_store_dword v1, off, s[20:23], s98
    ''')

class VM:
    def __init__(self): self.ops=[]
    def issue(self,t): self.ops.append(t)
    def wait_n(self,tag):
        idx=max(i for i,t in enumerate(self.ops) if t==tag)
        return min(63,len(self.ops)-1-idx)

class Sched:
    def __init__(self,nm,cap=2):
        self.nm=nm; self.cap=cap
        self.fill=[[] for _ in range(nm)]; self.post=[[] for _ in range(nm)]; self.pre=[[] for _ in range(nm+1)]
        self.load=[0]*nm; self.tail=[]
    def add_post(self,m,ins,cost=1):
        m=min(m,self.nm-1); self.post[m].append(ins); self.load[m]+=cost
    def add_pre(self,m,ins,cost=1):
        self.pre[m].append(ins)
        if m>0: self.load[m-1]+=cost
    def add_fill(self,m,item):
        self.fill[m].append(item); self.load[m]+=item[1]
    def chains(self,chains,lo,hi,nq,pace=False):
        total=sum(x[1] for c in chains for p in c for x in p)
        free=sum(max(0,self.cap-self.load[m]) for m in range(lo,hi))
        over=max(0,total-int(free*0.97))
        stt=[[0,0,-1] for _ in chains]; done=[None]*len(chains)
        placed=0; ov=0.0; m=lo
        while any(d is None for d in done):
            mm=min(m,self.nm-1)
            capl=self.cap-self.load[mm]
            ov+=over/(hi-lo)
            if ov>=1: capl+=1; ov-=1
            if m>=hi: capl=max(capl,3)
            if pace and over==0 and m<hi:
                capl=min(capl,int(total*(m-lo+1)/(hi-lo)-placed+0.999))
            while capl>0:
                cands=[]
                for k,c in enumerate(chains):
                    if done[k] is not None: continue
                    if k>=nq and (done[k-nq] is None or done[k-nq]>m-2): break
                    ph,ix,pg=stt[k]
                    if ix==0 and pg>=m: continue
                    cands.append(k)
                pick=None
                if capl>=2:
                    for k in cands:
                        if chains[k][stt[k][0]][stt[k][1]][1]>=2: pick=k;break
                if pick is None:
                    for k in cands:
                        if chains[k][stt[k][0]][stt[k][1]][1]<=capl: pick=k;break
                if pick is None: break
                ph,ix,pg=stt[pick]; it=chains[pick][ph][ix]
                if m<self.nm: self.fill[mm].append(it); self.load[mm]+=it[1]
                else: self.tail.append(it)
                capl-=it[1]; placed+=it[1]; ix+=1
                if ix==len(chains[pick][ph]):
                    ph+=1; ix=0; pg=m
                    if ph==len(chains[pick]): done[pick]=m
                stt[pick]=[ph,ix,pg]
            m+=1
            assert m<hi+400
        return m
    def seq(self,lo,hi,L):
        n=len(L); m=lo; nm=self.nm
        for k,x in enumerate(L):
            m=max(m,lo+int(k*(hi-lo)/n))
            lim=max(m,lo+int((k+1)*(hi-lo)/n)-1)
            if m>=nm: self.tail.append((x,1,'x') if x.startswith(('buffer','global')) else (x,1)); continue
            best=min(range(m,min(lim,nm-1)+1),key=lambda g:(self.load[g],g))
            if x.startswith('@'): self.add_post(best,x,2)
            elif x.startswith(('buffer','global')): self.add_fill(best,(x,1,'x'))
            else: self.add_fill(best,(x,1))
            m=best+1
    def emit(self,a,vm,mfma,lds_init,special):
        lds=list(lds_init)
        def out(s):
            nonlocal lds
            if s.startswith('WAITL'):
                need=int(s[5:].split(':')[0]); slack=int(s.split(':')[1]) if ':' in s else 0
                c=[i for i,x in enumerate(lds) if x<=need]
                if c:
                    idx=max(c); n=max(0,len(lds)-1-idx-slack)
                    a(f's_waitcnt lgkmcnt({min(n,15)})'); lds=lds[idx+1:]
            elif s.startswith('@'): special(s[1:])
            else:
                if ';tag=' in s:
                    s,t=s.split(';tag='); lds.append(int(t))
                a(s)
        for s in self.pre[0]: out(s)
        for m in range(self.nm):
            a(mfma(m))
            items=[(f[0],f[2] if len(f)>2 else None) for f in self.fill[m]]+[(s,None) for s in self.post[m]]
            late=[s for s in self.pre[m+1] if s.startswith('@')]
            waits=[s for s in self.pre[m+1] if not s.startswith('@')]
            nv=[x for x in items if not x[0].startswith('v_')]; va=[x for x in items if x[0].startswith('v_')]
            if not late:
                for s in waits: out(s)
            for x in nv+va:
                out(x[0])
                if x[1]: vm.issue(x[1])
            if late:
                for s in late+waits: out(s)
        for f in self.tail:
            out(f[0])
            if len(f)>2: vm.issue(f[2])

def xreg(i,ks):
    if ks<16: return ar((ks*4+i)*4,4)
    return vr(V_X+((ks-16)*4+i)*4,4)

def ch_epiG(acc):
    ch=[]; n=0
    for b in range(4):
        for i in range(4):
            A=acc+(b*4+i)*4; T=V_T+(n%4)*4; n+=1; S=V_SG+(b*4+i)*2
            ch.append([[(f'v_mul_f32 v{T+r}, s40, v{A+r}',1) for r in range(4)],
              [(f'v_exp_f32 v{T+r}, v{T+r}',2) for r in range(4)],
              [(f'v_add_f32 v{T+r}, 1.0, v{T+r}',1) for r in range(4)],
              [(f'v_rcp_f32 v{T+r}, v{T+r}',2) for r in range(4)],
              [(f'v_mul_f32 v{T+r}, v{T+r}, v{A+r}',1) for r in range(4)],
              [(f'v_cvt_pk_bf16_f32 v{S}, v{T}, v{T+1}',1),(f'v_cvt_pk_bf16_f32 v{S+1}, v{T+2}, v{T+3}',1)]])
    return ch,4
def ch_epiU(acc):
    ch=[]; n=0
    for p in range(2):
        for i in range(4):
            T=V_T+(n%2)*8; n+=1; p1=[];p2=[]
            for hb in range(2):
                b=2*p+hb; A=acc+(b*4+i)*4; S=V_SG+(b*4+i)*2; t=T+4*hb
                p1+=[(f'v_lshlrev_b32 v{t}, 16, v{S}',1),(f'v_and_b32 v{t+1}, s41, v{S}',1),
                     (f'v_lshlrev_b32 v{t+2}, 16, v{S+1}',1),(f'v_and_b32 v{t+3}, s41, v{S+1}',1)]
                p2+=[(f'v_mul_f32 v{t+r}, v{t+r}, v{A+r}',1) for r in range(4)]
            p3=[(f'v_cvt_pk_bf16_f32 v{T+j}, v{T+2*j}, v{T+2*j+1}',1) for j in range(4)]
            p4=[(f'buffer_store_dwordx4 v[{T}:{T+3}], v{V_HST}, s[20:23], s{44+i} offen offset:{p*1024}{STF}',2,'st')]
            ch.append([p1,p2,p3,p4])
    return ch,2
def ch_epiQ(acc,b0,coff):
    ch=[]
    for i in range(4):
        D=V_T+i*4; p1=[]
        for hb in range(2):
            A=acc+((b0+hb)*4+i)*4
            p1+=[(f'v_cvt_pk_bf16_f32 v{D+2*hb}, v{A}, v{A+1}',1),(f'v_cvt_pk_bf16_f32 v{D+2*hb+1}, v{A+2}, v{A+3}',1)]
        ch.append([p1,[(f'buffer_store_dwordx4 v[{D}:{D+3}], v{V_QST}, s[20:23], s{48+i} offen offset:{coff}{STF}',2,'st')]])
    return ch,4
def flat(ch):
    out=[]
    for p in range(max(len(c) for c in ch)):
        for c in ch:
            if p<len(c): out+=[x[0] for x in c[p]]
    return out
def epiZ_tail(a,acc):
    a(f'''
    s_mul_i32 s35, s30, 18
    s_lshr_b32 s42, s31, 1
    s_add_u32 s35, s35, s42
    s_add_u32 s35, s35, 16
    s_lshl_b32 s35, s35, 10
    s_and_b32 s42, s31, 1
    s_lshl_b32 s42, s42, 3
    s_add_u32 s35, s35, s42
    s_add_u32 s44, s35, {H_OFF}
    s_add_u32 s45, s44, 147456
    s_add_u32 s46, s44, 294912
    s_add_u32 s47, s44, 442368
    ''')
    ch=[]
    for i in range(4):
        Gr=acc+i*4; U=acc+(4+i)*4; T=V_T+i*4; D=V_SG+2*i
        ch.append([[(f'v_mul_f32 v{T+r}, s40, v{Gr+r}',1) for r in range(4)],
          [(f'v_exp_f32 v{T+r}, v{T+r}',2) for r in range(4)],
          [(f'v_add_f32 v{T+r}, 1.0, v{T+r}',1) for r in range(4)],
          [(f'v_rcp_f32 v{T+r}, v{T+r}',2) for r in range(4)],
          [(f'v_mul_f32 v{T+r}, v{T+r}, v{Gr+r}',1) for r in range(4)],
          [(f'v_cvt_pk_bf16_f32 v{T}, v{T}, v{T+1}',1),(f'v_cvt_pk_bf16_f32 v{T+2}, v{T+2}, v{T+3}',1)],
          [(f'v_and_b32 v{T+1}, s41, v{T}',1),(f'v_lshlrev_b32 v{T}, 16, v{T}',1),(f'v_and_b32 v{T+3}, s41, v{T+2}',1),(f'v_lshlrev_b32 v{T+2}, 16, v{T+2}',1)],
          [(f'v_mul_f32 v{T+r}, v{T+r}, v{U+r}',1) for r in range(4)],
          [(f'v_cvt_pk_bf16_f32 v{D}, v{T}, v{T+1}',1),(f'v_cvt_pk_bf16_f32 v{D+1}, v{T+2}, v{T+3}',1)],
          [(f'buffer_store_dwordx2 v[{D}:{D+1}], v{V_HST}, s[20:23], s{44+i} offen{STF}',2,'st')]])
    for s in flat(ch): a(s)

def chk8(a,off,thr,lab):
    a(f's_mov_b32 s3, 0\nK_{lab}_c:\ns_waitcnt lgkmcnt(0)')
    for i in range(8): a(f's_sub_u32 s{88+i}, s{88+i}, {thr}')
    a(f'''
    s_max_u32 s88, s88, s89
    s_max_u32 s90, s90, s91
    s_max_u32 s92, s92, s93
    s_max_u32 s94, s94, s95
    s_max_u32 s88, s88, s90
    s_max_u32 s92, s92, s94
    s_max_u32 s88, s88, s92
    s_cmp_le_u32 s88, 2
    s_cbranch_scc1 K_{lab}_ok
    s_add_u32 s3, s3, 1
    s_cmp_gt_u32 s3, {OPT['SPIN']}
    s_cbranch_scc1 K_{lab}_ok
    s_load_dwordx8 s[88:95], s[20:21], {off} glc
    s_branch K_{lab}_c
    K_{lab}_ok:
    ''')
def vpoll(a,lab,vdst,vaddr,soff,sleep=0,first_loaded=False):
    a('s_mov_b32 s3, 0')
    if first_loaded: a(f's_branch P_{lab}_t')
    a(f'''
    P_{lab}:
    s_add_u32 s3, s3, 1
    s_cmp_gt_u32 s3, {OPT['SPIN']}
    s_cbranch_scc1 P_{lab}_ok
    buffer_load_dword v{vdst}, v{vaddr}, s[20:23], {soff} offen sc1
    s_waitcnt vmcnt(0)
    P_{lab}_t:
    v_cmp_ne_u32 vcc, s39, v{vdst}
    s_nop 1
    s_cmp_eq_u64 vcc, 0
    s_cbranch_scc1 P_{lab}_ok
    ''')
    if sleep: a(f's_sleep {sleep}')
    a(f's_branch P_{lab}\nP_{lab}_ok:')

def body(a,vm,accset,epi,kind='full',dma=True,last=False,mid=False,seqs=(),pace=True,cap=2,epilo=1):
    acc=V_ACC[accset]; ns=72 if kind=='full' else 36; nm=ns*4
    S=Sched(nm,cap)
    step=4096 if kind=='full' else 8192; midg=9 if kind=='full' else 5
    def rd_off(t):
        g=t//4
        return (g*step if g<midg else (g-midg)*step), g>=midg
    for t in range(ns):
        m0=t*4
        if t%2==0: S.add_pre(m0,f'WAITL{min(t+1,ns-1)}')
        tn=t+4; w=V_WF+(t%4)*4; ad=V_AD+(t%4)
        if tn<ns:
            off,hi=rd_off(tn); _,hip=rd_off(t)
            if hi and not hip: S.add_post(m0+1,f'v_add_u32 v{ad}, {midg*step}, v{ad}')
            S.add_post(m0+3,f'ds_read_b64_tr_b16 v[{w}:{w+1}], v{ad} offset:{off};tag={tn}')
            S.add_post(m0+4,f'ds_read_b64_tr_b16 v[{w+2}:{w+3}], v{ad} offset:{off+512};tag={tn}')
        elif not last:
            S.add_post(m0+1,f'v_mov_b32 v{ad}, v{V_NB+(t%4)}')
            if tn==ns: S.add_post(m0+2,'@SUB',2)
            S.add_post(m0+3,f'ds_read_b64_tr_b16 v[{w}:{w+1}], v{ad} offset:0;tag={tn}')
            S.add_post(m0+4,f'ds_read_b64_tr_b16 v[{w+2}:{w+3}], v{ad} offset:512;tag={tn}')
    if dma:
        for n in range(18):
            m=(n//3)*16+(n%3)*5+1
            S.add_fill(m,('s_add_u32 m0, m0, 4096',1))
            S.add_fill(m+1,(f'global_load_lds_dwordx4 v[{V_DA}:{V_DA+1}], off',1,'dma'))
            S.add_fill(m+1,(f'v_lshl_add_u64 v[{V_DA}:{V_DA+1}], v[{V_DA}:{V_DA+1}], 0, {S_DI}',1))
    if mid: S.add_post(OPT['MIDKS']*16+1,'@MID',3)
    endm=0
    if epi: endm=S.chains(epi[0],epilo,nm-6,epi[1],pace=pace)
    for lo,hi,L in seqs:
        S.seq(endm+1 if lo=='epi' else lo,hi,L)
    def mf(m):
        t=m//4;i=m%4
        ks,b=(t//4,t%4) if kind=='full' else (t//2,t%2)
        D=acc+(b*4+i)*4; w=V_WF+(t%4)*4
        return f'v_mfma_f32_16x16x32_bf16 {vr(D,4)}, {vr(w,4)}, {xreg(i,ks)}, {"0" if ks==0 else vr(D,4)}'
    def special(n):
        if n=='SUB': a(f's_waitcnt vmcnt({vm.wait_n("dma")})\ns_barrier')
        elif n=='MID':
            a(f's_waitcnt vmcnt({min(63,len(vm.ops))})\ns_barrier')
            a(f'buffer_store_dword v{V_ONE}, off, s[20:23], s24 sc1'); vm.issue('fl')
        elif n=='CHK8': chk8(a,'s26','s39','Zh')
    S.emit(a,vm,mf,[0,0,1,1,2,2,3,3],special)

def grp_w(g):
    return [(f's_add_u32 m0, s66, {g*4096}',1),
       (f'global_load_lds_dwordx4 v[{V_DA}:{V_DA+1}], off',1,f'g{g}'),
       (f's_add_u32 m0, s66, {HALF+g*4096}',1),
       (f'v_lshl_add_u64 v[{V_DA}:{V_DA+1}], v[{V_DA}:{V_DA+1}], 0, {S_DI}',1),
       (f'global_load_lds_dwordx4 v[{V_QA}:{V_QA+1}], off',1,f'g{g}'),
       (f'v_lshl_add_u64 v[{V_QA}:{V_QA+1}], v[{V_QA}:{V_QA+1}], 0, {S_QI}',1)]
def grp_x(g):
    return [(f'buffer_load_dwordx4 {xreg(i,g)}, v{V_XO+i}, s[20:23], s{52+g//4} offen offset:{(g%4)*1024} sc1',1,f'g{g}') for i in range(4)]
def u0_items(g):
    return [(f's_add_u32 m0, s66, {HALF+g*4096}',1),
            (f'global_load_lds_dwordx4 v[{V_UA}:{V_UA+1}], off',1,f'u{g}'),
            (f'v_lshl_add_u64 v[{V_UA}:{V_UA+1}], v[{V_UA}:{V_UA+1}], 0, {S_DI}',1)]

def bodyF(a,vm):
    FD=OPT['FD']; nm=18*32; nxt=OPT['FD0']
    S=Sched(nm)
    def regs(sl):
        if sl<4: return V_SG+sl*4, V_NB+sl, V_ACC[1]+sl*16
        return V_WF+(sl-4)*4, V_AD+(sl-4), V_ACC[0]+(sl-4)*16
    for ks in range(18):
        for sl in range(8):
            t=ks*8+sl; m0=t*4; w,ad,_=regs(sl)
            if sl==2: S.add_pre(m0,f'@SKIP{ks}')
            if sl==4: S.pre[m0].append(f'@LAB{ks}')
            if sl%2==0: S.add_pre(m0,f'WAITL{t+1}:4')
            kn=ks+1
            m2=m0+4 if sl not in (1,3) else m0+3
            if kn<18:
                if kn==9: S.add_post(m0+1,f'v_add_u32 v{ad}, 36864, v{ad}')
                off=(kn%9)*4096
                S.add_post(m0+3,f'ds_read_b64_tr_b16 v[{w}:{w+1}], v{ad} offset:{off};tag={t+8}')
                S.add_post(m2,f'ds_read_b64_tr_b16 v[{w+2}:{w+3}], v{ad} offset:{off+512};tag={t+8}')
            elif sl>=4:
                S.add_post(m0+1,f'v_add_u32 v{ad}, {HALF}, v{V_BN+sl-4}')
                if sl==4: S.add_post(m0+2,'@SUB',2)
                S.add_post(m0+3,f'ds_read_b64_tr_b16 v[{w}:{w+1}], v{ad} offset:0;tag={t+8}')
                S.add_post(m2,f'ds_read_b64_tr_b16 v[{w+2}:{w+3}], v{ad} offset:512;tag={t+8}')
        base=ks*32
        if ks<17: S.add_post(base+30,f'@READY{ks+1}',1)
        if ks%3==0 and 0<ks<17: S.add_post(base+1,'s_barrier',1)
        mand=[base+2,base+4,base+5,base+6]+[base+16+j for j in (0,1,2,4,5,6,8,9,10,12,13)]
        items=[]
        for _ in range(2):
            if nxt<18 and nxt<=ks+FD: items+=grp_x(nxt); nxt+=1
        if len(items)<=4: mand=[base+2,base+5]+[base+16+j for j in (0,2,4,6,8,10,12)]
        if 3<=ks<17: items=items[:2]+u0_items(ks-3)+items[2:] if len(items)>=2 else u0_items(ks-3)
        if ks==OPT['tu0']: items+=[(f'global_load_dword v{V_DUM}, v{V_TR}, s[18:19]',1,'t')]
        if ks==OPT['tg1']: items+=[(f'global_load_dword v{V_DUM}, v{V_TR}, s[60:61]',1,'t')]
        if ks==OPT['tu1']: items+=[(f'global_load_dword v{V_DUM}, v{V_TR}, s[4:5]',1,'t')]
        if ks<17:
            for j,it in enumerate(items): S.add_fill(mand[j],it)
        else:
            for j,it in enumerate(u0_items(14)): S.add_fill(base+2+j,it)
            for j,it in enumerate(u0_items(15)+u0_items(16)+u0_items(17)): S.add_fill(base+16+4+j,it)
    ch,nq=ch_epiQ(V_ACC[1],0,0)
    S.chains(ch,17*32+18,nm,nq)
    def mf(m):
        t=m//4;i=m%4;ks=t//8;sl=t%8
        w,_,ac=regs(sl); D=ac+i*4
        return f'v_mfma_f32_16x16x32_bf16 {vr(D,4)}, {vr(w,4)}, {xreg(i,ks)}, {"0" if ks==0 else vr(D,4)}'
    def special(n):
        if n.startswith('SKIP'): a(f's_cbranch_vccz KF_s{n[4:]}')
        elif n.startswith('LAB'): a(f'KF_s{n[3:]}:')
        elif n.startswith('READY'): a(f's_waitcnt vmcnt({vm.wait_n("g"+n[5:])})')
        elif n=='SUB': a(f's_waitcnt vmcnt({vm.wait_n("u%d"%OPT["MIDKS"])})\ns_barrier')
    S.emit(a,vm,mf,[t for t in range(8) for _ in range(2)],special)

def lamword(seq,start):
    w=0
    for k in range(6): w|=(seq[start+k] if start+k<len(seq) else 31)<<(5*k)
    return w
def c_roles_scalar(a):
    a(f'''
    s_and_b32 s92, s2, 1
    s_bfe_u32 s69, s2, 0x20001
    s_bfe_u32 s93, s2, 0x20003
    s_bfe_u32 s94, s2, 0x10005
    s_lshr_b32 s95, s2, 6
    s_lshl_b32 s95, s95, 1
    s_add_u32 s95, s95, s94
    s_lshl_b32 s57, s92, 3
    s_add_u32 s57, s57, s95
    s_mov_b32 s68, 0
    s_mov_b32 s83, 0
    s_mov_b32 s7, 147456
    s_mul_i32 s73, s69, {18*64*1152}
    s_mul_i32 s74, s69, {18*2048}
    s_add_u32 s74, s74, {H_OFF}
    s_mov_b32 s86, {4608*1152+2048}
    s_mov_b32 s75, {lamword(LAM_H,5)}
    s_mov_b32 s76, {lamword(LAM_H,11)}
    s_mov_b32 s77, {lamword(LAM_H,17)}
    s_mov_b32 s78, {lamword(LAM_H,0)}
    s_mov_b32 s82, 18
    s_cmp_lt_u32 s93, 3
    s_cbranch_scc1 C_rh
    s_lshl_b32 s57, s92, 2
    s_add_u32 s57, s57, s69
    s_lshl_b32 s83, s57, 3
    s_add_u32 s83, s83, s95
    s_lshl_b32 s57, s57, 1
    s_cmp_ge_u32 s95, 3
    s_cselect_b32 s94, 1, 0
    s_add_u32 s57, s57, s94
    s_mul_i32 s94, s94, 3
    s_sub_u32 s93, s95, s94
    s_cmp_lt_u32 s95, 6
    s_cselect_b32 s68, 1, 2
    s_cselect_b32 s93, s93, 0
    s_mov_b32 s69, 0
    s_mov_b32 s7, 18432
    s_mov_b32 s73, 0
    s_mov_b32 s74, {O_OFF}
    s_mov_b32 s86, {576*1152+2048}
    s_mov_b32 s75, {lamword(LAM_S,5)}
    s_mov_b32 s76, {lamword(LAM_S,11)}
    s_mov_b32 s77, {lamword(LAM_S,17)}
    s_mov_b32 s78, {lamword(LAM_S,0)}
    s_mov_b32 s82, 9
    s_mov_b32 s90, s88
    s_mov_b32 s91, s89
    C_rh:
    s_sub_u32 s84, s90, 2048
    s_subb_u32 s85, s91, 0
    s_mov_b32 s87, 0x20000
    s_mul_i32 s70, s57, 3
    s_add_u32 s70, s70, s93
    s_mul_i32 s71, s93, 384
    s_add_u32 s73, s73, s71
    s_mul_i32 s72, s33, 3072
    ''')
def c_roles_vector():
    A,B,C='v1','v255','v253'
    t=f'''
    v_lshlrev_b32 v{C_LV}, 4, v0
    v_lshrrev_b32 {A}, 3, v0
    s_lshl_b32 s92, s33, 3
    v_add_u32 {A}, s92, {A}
    v_bfe_u32 {B}, {A}, 2, 2
    v_lshlrev_b32 {B}, 3, {B}
    v_lshrrev_b32 {C}, 4, {A}
    v_lshl_add_u32 {B}, {C}, 2, {B}
    v_and_b32 {C}, 3, {A}
    v_add_u32 {B}, {B}, {C}
    s_cmp_eq_u32 s68, 0
    s_cselect_b64 s[92:93], -1, 0
    v_cndmask_b32 {A}, {B}, {A}, s[92:93]
    v_mul_u32_u24 {A}, 1152, {A}
    v_bfe_u32 {B}, v0, 1, 2
    v_lshrrev_b32 {C}, 4, v0
    v_xor_b32 {B}, {B}, {C}
    v_lshl_add_u32 {A}, {B}, 5, {A}
    v_and_b32 {B}, 1, v0
    v_lshl_add_u32 {A}, {B}, 4, {A}
    v_add_u32 v{C_DV}, 2048, {A}
    v_add_u32 v{C_DV+1}, {2048+128-1024}, {A}
    v_add_u32 v{C_DV+2}, {2048+256-2048}, {A}
    s_lshl_b32 s92, s57, 3
    s_lshl_b32 s93, s33, 1
    s_add_u32 s92, s92, s93
    s_mul_i32 s93, s92, s7
    v_add_u32 v{C_HV}, s93, v{C_LV}
    v_add_u32 v{C_HV+1}, s7, v{C_HV}
    v_and_b32 {A}, 7, v0
    v_lshlrev_b32 {A}, 1, {A}
    v_bfe_u32 {B}, v0, 3, 1
    s_lshl_b32 s92, s92, 4
    v_add3_u32 {A}, {A}, {B}, s92
    v_mul_u32_u24 {A}, 1152, {A}
    v_lshrrev_b32 {B}, 4, v0
    v_lshl_add_u32 {A}, {B}, 3, {A}
    s_lshl_b32 s92, s69, 5
    s_add_u32 s92, s92, s71
    v_add_u32 v{C_OA}, s92, {A}
    v_add_u32 v{C_OA+1}, 18432, v{C_OA}
    '''
    return [l.strip() for l in t.split('\n') if l.strip()]
def prefetch(slot,tabreg='s75',parts='WH'):
    W=lambda l: f'buffer_load_dwordx4 v{C_DV+l}, s[84:87], s80 offen offset:{1024*l} lds'
    def H(n):
        ks,i=n//2,n%2; r=ORDER.index(slot)*16+n*4
        return f'buffer_load_dwordx4 a[{r}:{r+3}], v{C_HV+i}, s[20:23], s81 offen offset:{ks*1024} sc1'
    L=[f's_and_b32 s79, {tabreg}, 31', f's_mul_i32 s80, s79, {64*1152}', 's_lshl_b32 s81, s79, 11', 's_add_u32 s80, s80, s73', 's_add_u32 s81, s81, s74',
       's_cmp_lt_u32 s79, 18', f's_cselect_b32 s80, s80, {OOB}', f's_cselect_b32 s81, s81, {OOB}',
       f's_add_u32 m0, s72, {slot*STG}', H(0), W(0), f's_lshr_b32 {tabreg}, {tabreg}, 5', W(1), W(2),
       f's_add_u32 m0, s72, {slot*STG+4*3072}', H(1), 's_add_u32 s80, s80, 36864', W(0), W(1), W(2), H(2), H(3)]
    if 'W' not in parts: L=[x for x in L if ' lds' not in x and 'm0' not in x and 's80' not in x]
    if 'H' not in parts: L=[x if not x.startswith('buffer_load_dwordx4 a') else 's_nop 0' for x in L if 's81' not in x or x.startswith('buffer')]
    return L
def c_addr_items():
    A,B,C='v1','v244','v245'
    L=[f'v_lshrrev_b32 {A}, 5, v0', f'v_mul_u32_u24 {A}, 3072, {A}', f'v_bfe_u32 {B}, v0, 2, 3', f'v_lshl_add_u32 {A}, {B}, 7, {A}',
       f'v_lshrrev_b32 {B}, 1, {B}', f'v_xor_b32 {B}, s69, {B}', f'v_and_b32 {C}, 3, v0', f'v_lshl_add_u32 {A}, {C}, 3, {A}']
    for b_ in range(4):
        L+=[f'v_xor_b32 {C}, {b_}, {B}', f'v_lshl_add_u32 v{C_AD[b_]}, {C}, 5, {A}']
        for hs in range(1,3): L.append(f'v_add_u32 v{C_AD[4*hs+b_]}, {2*STG*hs}, v{C_AD[b_]}')
    return L
def c_rd(slot,t,half):
    ks,b_=t//12,t%12
    w=C_WF[t%6]+2*half; ad=C_AD[4*(slot//2)+(b_&3)]
    off=(slot%2)*STG+ks*12288+(b_//4)*1024+half*6144
    return f'ds_read_b64_tr_b16 v[{w}:{w+1}], v{ad} offset:{off}'

def bodyZ(a,vm,seqs,capa=2):
    ns=72; nm=288
    S=Sched(nm,capa)
    for t in range(ns):
        m0=t*4
        if t%2==0: S.add_pre(m0,f'WAITL{min(t+1,ns-1)}')
        tn=t+4; w=V_WF+(t%4)*4; ad=V_AD+(t%4)
        if tn<ns:
            g=(tn%36)//4; gp=(t%36)//4
            if tn>=36 and t<36:
                S.add_post(m0+1,f'v_add_u32 v{ad}, {4096*((t%4)//2)}, v{V_BN+2+(t%2)}')
            elif g==5 and gp==4: S.add_post(m0+1,f'v_add_u32 v{ad}, 40960, v{ad}')
            off=(g if g<5 else g-5)*8192
            S.add_post(m0+3,f'ds_read_b64_tr_b16 v[{w}:{w+1}], v{ad} offset:{off};tag={tn}')
            S.add_post(m0+4,f'ds_read_b64_tr_b16 v[{w+2}:{w+3}], v{ad} offset:{off+512};tag={tn}')
    ch,nq=ch_epiU(V_ACC[1])
    e1=S.chains(ch,1,138,nq,pace=False)
    assert e1<=143,e1
    ch2=[]
    for n in range(8):
        A=64+n*4; T=V_T+(n%4)*4
        ch2.append([[(f'v_mul_f32 v{T+r}, s40, v{A+r}',1) for r in range(4)],
          [(f'v_exp_f32 v{T+r}, v{T+r}',2) for r in range(4)],
          [(f'v_add_f32 v{T+r}, 1.0, v{T+r}',1) for r in range(4)],
          [(f'v_rcp_f32 v{T+r}, v{T+r}',2) for r in range(4)],
          [(f'v_mul_f32 v{A+r}, v{T+r}, v{A+r}',1) for r in range(4)]])
    for lo,hi,L in seqs: S.seq(lo,hi,L)
    S.chains(ch2,148,nm-2,4,pace=False)
    def mf(m):
        t=m//4;i=m%4; p=t//36; ks=(t%36)//2; b=t%2
        D=(64 if p==0 else 32)+(b*4+i)*4; w=V_WF+(t%4)*4
        return f'v_mfma_f32_16x16x32_bf16 {vr(D,4)}, {vr(w,4)}, {xreg(i,ks)}, {"0" if ks==0 else vr(D,4)}'
    def special(n):
        if n=='CHK8': chk8(a,'s26','s39','Zh')
        elif n=='SLD': a('s_load_dwordx8 s[88:95], s[20:21], s26 glc')
        elif n=='QP': vpoll(a,'q',255,253,'s26')
    S.emit(a,vm,mf,[0,0,1,1,2,2,3,3],special)
def z_tail(a):
    a(f'''
    s_mul_i32 s35, s30, 18
    s_add_u32 s35, s35, s31
    s_add_u32 s35, s35, 14
    s_lshl_b32 s35, s35, 10
    s_add_u32 s44, s35, {H_OFF}
    s_add_u32 s45, s44, 147456
    s_add_u32 s46, s44, 294912
    s_add_u32 s47, s44, 442368
    ''')
    for i in range(4):
        D=V_T+i*4
        for hb in range(2):
            G=64+(hb*4+i)*4; U=32+(hb*4+i)*4
            for r in range(4): a(f'v_mul_f32 v{U+r}, v{U+r}, v{G+r}')
            a(f'v_cvt_pk_bf16_f32 v{D+2*hb}, v{U}, v{U+1}\nv_cvt_pk_bf16_f32 v{D+2*hb+1}, v{U+2}, v{U+3}')
        a(f'buffer_store_dwordx4 v[{D}:{D+3}], v{V_HST}, s[20:23], s{44+i} offen{STF}')

def attention(a,waitq,rows_split):
    Q=8; KB=(44,80); L=116; O=148; AW=220; V0,V1=44,80
    a(f'''
    v_lshrrev_b32 v2, 3, v0
    v_and_b32 v3, 7, v0
    v_mul_u32_u24 v3, 144, v3
    s_lshl_b32 s92, s33, 3
    v_add_u32 v2, s92, v2
    s_lshr_b32 s93, s83, 1
    s_lshl_b32 s93, s93, 5
    v_add_u32 v229, s93, v2
    v_add_u32 v4, 7, v2
    s_mov_b32 s94, 3456
    s_mov_b32 s95, 0x05040100
    s_mov_b32 s96, 0x07060302
    s_mov_b32 s97, 0x3eae1a93
    ''')
    n1,b1,b2=rows_split
    a(f'v_mov_b32 v6, {(b2-n1*3456)&0xffffffff}\nv_mov_b32 v7, {b1}')
    for w in range(8):
        a(f'v_min_u32 v5, {w}, v229\nv_sub_u32 v5, v4, v5\nv_cmp_gt_u32 vcc, {n1}, v5\nv_mad_u32_u24 v{AW+w}, v5, s94, v3\ns_nop 0\nv_cndmask_b32 v5, v6, v7, vcc\nv_add_u32 v{AW+w}, v{AW+w}, v5')
    waitq()
    def rd(dst,ad,off):
        for m in range(9): a(f'ds_read_b128 v[{dst+4*m}:{dst+4*m+3}], v{ad} offset:{off+16*m}')
    def rdl(dst,ad,off): return [f'ds_read_b128 v[{dst+4*m}:{dst+4*m+3}], v{ad} offset:{off+16*m}' for m in range(9)]
    rd(Q,AW,0); rd(KB[0],AW,1152)
    for w in range(8):
        a('s_waitcnt lgkmcnt(0)')
        nx=rdl(KB[(w+1)%2],AW+w+1,1152) if w<7 else rdl(V0,AW,2304)
        k=KB[w%2]
        for j in range(9):
            a(nx[j])
            for hh in range(4):
                c='0' if j==0 else f'v{L+hh*8+w}'
                a(f'v_dot2_f32_bf16 v{L+hh*8+w}, v{Q+9*hh+j}, v{k+9*hh+j}, {c}')
    rd(V1,AW+1,2304)
    a('v_mov_b32 v5, 0xff800000')
    for w in range(1,8):
        a(f'v_cmp_le_u32 vcc, {w}, v229\ns_nop 1')
        for hh in range(4): a(f'v_cndmask_b32 v{L+hh*8+w}, v5, v{L+hh*8+w}, vcc')
    M=Q
    for step in range(4):
        for hh in range(4):
            l=L+hh*8
            a([f'v_max3_f32 v{M+hh}, v{l}, v{l+1}, v{l+2}',f'v_max3_f32 v{M+hh}, v{M+hh}, v{l+3}, v{l+4}',f'v_max3_f32 v{M+hh}, v{M+hh}, v{l+5}, v{l+6}',f'v_max_f32 v{M+hh}, v{M+hh}, v{l+7}'][step])
    for hh in range(4): a(f'v_mul_f32 v{M+hh}, s97, v{M+hh}')
    for hh in range(4):
        for w in range(8): a(f'v_fma_f32 v{L+hh*8+w}, v{L+hh*8+w}, s97, -v{M+hh}')
    for r in range(32): a(f'v_exp_f32 v{L+r}, v{L+r}')
    for hh in range(4): a(f'v_add_f32 v{M+hh}, v{L+hh*8}, v{L+hh*8+1}')
    for w in range(2,8):
        for hh in range(4): a(f'v_add_f32 v{M+hh}, v{M+hh}, v{L+hh*8+w}')
    for hh in range(4): a(f'v_rcp_f32 v{M+hh}, v{M+hh}')
    a('s_nop 0')
    for hh in range(4):
        for w in range(8): a(f'v_mul_f32 v{L+hh*8+w}, v{L+hh*8+w}, v{M+hh}')
    for hh in range(4):
        for wp in range(4): a(f'v_cvt_pk_bf16_f32 v{L+hh*8+wp}, v{L+hh*8+2*wp}, v{L+hh*8+2*wp+1}')
    for wp in range(4):
        a('s_waitcnt lgkmcnt(0)')
        nx=[x for p in zip(rdl(V0,AW+2*wp+2,2304),rdl(V1,AW+2*wp+3,2304)) for x in p] if wp<3 else []
        for m in range(9):
            for j in range(4*m,4*m+4):
                a(f'v_perm_b32 v{230+(j%4)}, v{V1+j}, v{V0+j}, s95')
                a(f'v_perm_b32 v{234+(j%4)}, v{V1+j}, v{V0+j}, s96')
            if nx: a(nx[2*m]); a(nx[2*m+1])
            for j in range(4*m,4*m+4):
                c0='0' if wp==0 else f'v{O+2*j}'; c1='0' if wp==0 else f'v{O+2*j+1}'
                a(f'v_dot2_f32_bf16 v{O+2*j}, v{230+(j%4)}, v{L+(j//9)*8+wp}, {c0}')
                a(f'v_dot2_f32_bf16 v{O+2*j+1}, v{234+(j%4)}, v{L+(j//9)*8+wp}, {c1}')
    a(f'''
    v_and_b32 v3, 7, v0
    v_mul_u32_u24 v3, 2304, v3
    v_lshrrev_b32 v2, 3, v0
    v_lshl_add_u32 v3, v2, 4, v3
    s_lshr_b32 s92, s33, 1
    s_mul_i32 s92, s92, 18432
    s_and_b32 s93, s33, 1
    s_lshl_b32 s93, s93, 7
    s_add_u32 s92, s92, s93
    s_add_u32 s92, s92, {OST}
    v_add_u32 v3, s92, v3
    ''')
    for j in range(36): a(f'v_cvt_pk_bf16_f32 v{Q+j}, v{O+2*j}, v{O+2*j+1}')
    a('s_barrier')

OST=110592; SSTG=36864
def s_gemm(a):
    AD=44
    BF=64
    WFs=80
    AC=128
    def dma(slot):
        L=[]
        for t3 in range(3):
            L.append(f's_add_u32 m0, s72, {slot*SSTG+t3*3072}')
            L.append(f's_add_u32 s81, s80, {t3*384}')
            for l in range(3): L.append(f'buffer_load_dwordx4 v{C_DV+l}, s[84:87], s81 offen offset:{1024*l} lds')
        L.append('s_add_u32 s80, s80, 36864')
        return L
    a('s_mul_i32 s72, s33, 9216\ns_mov_b32 s80, 0')
    for x in dma(0): a(x)
    for m in range(9): a(f'ds_write_b128 v3, v[{8+4*m}:{8+4*m+3}] offset:{256*m}')
    for x in dma(1)+dma(2): a(x)
    a(f'''
    v_lshrrev_b32 v4, 5, v0
    v_mul_u32_u24 v4, 9216, v4
    v_bfe_u32 v5, v0, 2, 3
    v_lshl_add_u32 v4, v5, 7, v4
    v_lshrrev_b32 v5, 1, v5
    v_and_b32 v6, 3, v0
    v_lshl_add_u32 v4, v6, 3, v4
    s_mul_i32 s92, s33, 9
    v_lshlrev_b32 v7, 4, v0
    v_add_u32 v7, {OST}, v7
    ''')
    for bb in range(9):
        a(f'''
        s_add_u32 s93, s92, {bb}
        s_and_b32 s94, s93, 3
        s_lshr_b32 s93, s93, 2
        s_lshl_b32 s93, s93, 10
        v_xor_b32 v6, s94, v5
        v_lshl_add_u32 v6, v6, 5, v4
        v_add_u32 v{AD+bb}, s93, v6
        v_add_u32 v{AD+9+bb}, {2*SSTG}, v{AD+bb}
        ''')
    for r in range(0,72,2): a(f'v_mov_b64 v[{AC+r}:{AC+r+1}], 0')
    WB=(80,200)
    def reads(k):
        slot=k%3; wb=WB[k%2]; bf=BF+8*(k%2)
        R=[f'ds_read_b128 v[{bf}:{bf+3}], v7',f'ds_read_b128 v[{bf+4}:{bf+7}], v7 offset:18432','v_add_u32 v7, 1024, v7']
        for bb in range(9):
            ad=AD+bb+(9 if slot==2 else 0); off=(slot%2)*SSTG
            R.append(f'ds_read_b64_tr_b16 v[{wb+4*bb}:{wb+4*bb+1}], v{ad} offset:{off}')
            R.append(f'ds_read_b64_tr_b16 v[{wb+4*bb+2}:{wb+4*bb+3}], v{ad} offset:{off+18432}')
        return R
    a('s_waitcnt vmcnt(18) lgkmcnt(0)\ns_barrier')
    for x in reads(0): a(x)
    a('s_mov_b32 s82, 3')
    a('S_loop:')
    for k in range(6):
        a('s_waitcnt vmcnt(9) lgkmcnt(0)\ns_barrier')
        D=dma(k%3); R=reads(k+1); wb=WB[k%2]; bf=BF+8*(k%2)
        for n in range(18):
            bb,j=n//2,n%2; r=AC+n*4
            a(f'v_mfma_f32_16x16x32_bf16 {vr(r,4)}, {vr(wb+4*bb,4)}, {vr(bf+4*j,4)}, {vr(r,4)}')
            for _ in range(2 if n<3 else 1):
                if R: a(R.pop(0))
            if D: a(D.pop(0))
        assert not D and not R
    a('s_sub_u32 s82, s82, 1\ns_cmp_lg_u32 s82, 0\ns_cbranch_scc1 S_loop')
    a('s_waitcnt lgkmcnt(0)')
    st(a,10)
    a(f'''
    v_and_b32 v4, 7, v0
    v_lshrrev_b32 v5, 4, v0
    v_lshl_add_u32 v4, v5, 4, v4
    v_lshlrev_b32 v4, 4, v4
    v_bfe_u32 v5, v0, 3, 1
    v_lshl_add_u32 v4, v5, 3, v4
    s_and_b32 s93, s83, 1
    s_lshl_b32 s93, s93, 7
    s_lshr_b32 s94, s83, 2
    s_mul_i32 s94, s94, {3*196608}
    s_add_u32 s93, s93, s94
    s_bfe_u32 s94, s83, 0x10001
    s_mul_i32 s94, s94, 6144
    s_add_u32 s93, s93, s94
    s_add_u32 s93, s93, {X_OFF}
    ''')
    for bb in range(9):
        a(f'''
        s_add_u32 s94, s92, {bb}
        s_mul_i32 s95, s94, 43
        s_lshr_b32 s95, s95, 9
        s_mul_i32 s96, s95, 12
        s_sub_u32 s94, s94, s96
        s_mul_i32 s95, s95, 196608
        s_and_b32 s96, s94, 3
        s_mul_i32 s96, s96, 49152
        s_add_u32 s95, s95, s96
        s_lshr_b32 s94, s94, 2
        s_lshl_b32 s94, s94, 10
        s_add_u32 s95, s95, s94
        s_add_u32 s95, s95, s93
        ''')
        for j in range(2):
            r=AC+(bb*2+j)*4; d=8+(bb*2+j)*2
            a(f'v_cvt_pk_bf16_f32 v{d}, v{r}, v{r+1}\nv_cvt_pk_bf16_f32 v{d+1}, v{r+2}, v{r+3}')
            a(f'buffer_store_dwordx2 v[{d}:{d+1}], v4, s[20:23], s95 offen offset:{3072*j} sc1')
    a(f'''
    v_min_u32 v4, 5, v0
    v_lshrrev_b32 v5, 1, v4
    v_lshlrev_b32 v5, 7, v5
    v_and_b32 v4, 1, v4
    v_lshl_add_u32 v4, v4, 5, v5
    s_lshr_b32 s94, s83, 2
    s_mul_i32 s94, s94, 384
    s_bfe_u32 s95, s83, 0x10001
    s_lshl_b32 s95, s95, 6
    s_add_u32 s94, s94, s95
    s_and_b32 s95, s83, 1
    s_lshl_b32 s95, s95, 2
    s_add_u32 s94, s94, s95
    s_add_u32 s94, s94, {FLG_OFF+16}
    s_cmp_eq_u32 s33, 0
    s_cselect_b32 s94, s94, {OOB}
    v_mov_b32 v5, s39
    s_waitcnt vmcnt(0)
    s_barrier
    buffer_store_dword v5, v4, s[20:23], s94 offen sc1
    s_branch C_fin
    ''')

def c_loop(a):
    def hook(pos):
        if pos==2: return ['@SLD']
        if pos==3: return ['@CHK', 'buffer_store_dword v255, off, s[20:23], s25 sc1', f's_mov_b32 s25, {OOB}']
        return []
    def em(x):
        if x=='@CHK':
            a('s_cmp_eq_u32 s27, 0\ns_cbranch_scc1 K_C_skip\ns_add_u32 s6, s67, s27')
            chk8(a,'s26','s6','C'); a('s_cmp_eq_u32 s27, 2\ns_cselect_b32 s27, 3, 0\nK_C_skip:')
        elif x=='@SLD':
            a('s_cmp_eq_u32 s27, 0\ns_cbranch_scc1 K_C_nl\ns_load_dwordx8 s[88:95], s[20:21], s26 glc\nK_C_nl:')
        else: a(x)
    a('C_loop:')
    for pos,slot in enumerate(ORDER):
        ps=(slot-1)%NS
        extra=hook(pos)+prefetch(ps)
        free=[(t,i) for t in range(24) for i in range(2) if (i==0 or (t%2==0 and t!=18)) and (t,i)>=(0,1)]
        nv=[k for k,x in enumerate(extra) if x.startswith('buffer_load')]
        first=nv[0]
        tgt={k:int(first+n_*(len(free)-1-first)/(len(nv)-1)) for n_,k in enumerate(nv)}
        idx=[None]*len(extra); nxt=len(free)
        for k in range(len(extra)-1,-1,-1):
            want=min(tgt.get(k,nxt-1),nxt-1); idx[k]=want; nxt=want
        cur=-1
        for k in range(len(extra)):
            idx[k]=max(idx[k],cur+1); cur=idx[k]
        assert cur<len(free)
        place={free[idx[k]]:x for k,x in enumerate(extra)}
        nbefore=sum(1 for k in nv if free[idx[k]]<(18,1))
        pend=None
        for t in range(24):
            ks,b_=t//12,t%12; w=C_WF[t%6]
            for i in range(2):
                D=C_ACC+(b_*2+i)*4; h=pos*16+(ks*2+i)*4
                a(f'v_mfma_f32_16x16x32_bf16 {vr(D,4)}, {vr(w,4)}, {ar(h,4)}, {vr(D,4)}')
                if i==0:
                    if pend: a(pend); pend=None
                    if (t,i) in place: em(place[(t,i)])
                else:
                    tn=t+6
                    if tn==24: a(f's_waitcnt vmcnt({26+nbefore})\ns_barrier')
                    s2=slot if tn<24 else (slot+1)%NS
                    if t%2==1: a('s_waitcnt lgkmcnt(6)')
                    a(c_rd(s2,tn%24,0)); pend=c_rd(s2,tn%24,1)
                    if (t,i) in place: em(place[(t,i)])
        a(pend)
        if pos==2: a('s_sub_u32 s82, s82, 3\ns_cmp_eq_u32 s82, 0\ns_cbranch_scc1 C_done')
        if pos==5: a('s_mov_b32 s75, s76\ns_mov_b32 s76, s77\ns_sub_u32 s82, s82, 3\ns_cmp_eq_u32 s82, 0\ns_cbranch_scc0 C_loop')
    a('C_done:\ns_waitcnt lgkmcnt(0)')

def c_finish(a):
    T=C_T
    st(a,10)
    a(f'''
    s_load_dwordx2 s[88:89], s[0:1], 0
    s_load_dwordx2 s[90:91], s[0:1], 56
    s_mul_i32 s92, s70, {4*4*4*3072}
    s_add_u32 s92, s92, s72
    s_add_u32 s92, s92, {X_OFF}
    v_mov_b32 v{T}, s39
    s_nop 2
    ''')
    def send(j):
        for l in range(3):
            be=l*4+j; D=C_RX+(j*3+l)*4
            for i in range(2):
                A=C_ACC+(be*2+i)*4
                a(f'v_cvt_pk_bf16_f32 v{D+2*i}, v{A}, v{A+1}\nv_cvt_pk_bf16_f32 v{D+2*i+1}, v{A+2}, v{A+3}')
            a(f'buffer_store_dwordx4 v[{D}:{D+3}], v{C_LV}, s[20:23], s93 offen offset:{l*1024} sc1')
    for j in (1,2,3,0):
        if j==0: a('s_cmp_eq_u32 s68, 0\ns_cbranch_scc1 C_sent')
        a(f'''
        s_xor_b32 s93, s69, {j}
        s_lshl_b32 s93, s93, 2
        s_cmp_eq_u32 s68, 0
        s_cselect_b32 s94, {j}, 0
        s_add_u32 s93, s93, s94
        s_mul_i32 s93, s93, {4*3072}
        s_add_u32 s93, s93, s92
        ''')
        send(j)
    a('C_sent:')
    a(f'''
    s_lshl_b32 s93, s70, 2
    s_add_u32 s93, s93, s33
    s_lshl_b32 s93, s93, 5
    s_add_u32 s93, s93, {FLG_OFF}
    s_lshl_b32 s94, s69, 2
    s_cmp_eq_u32 s68, 0
    s_cselect_b32 s94, s94, 16
    s_add_u32 s94, s94, s93
    v_min_u32 v{T+1}, 5, v0
    v_lshlrev_b32 v{T+1}, 2, v{T+1}
    s_mul_i32 s95, s69, {4*4*3072}
    s_add_u32 s95, s95, s92
    s_waitcnt vmcnt(0) lgkmcnt(0)
    buffer_store_dword v{T}, off, s[20:23], s94 sc1
    s_cmp_eq_u32 s68, 0
    s_cbranch_scc0 C_fin
    ''')
    for l in range(3):
        for i in range(2):
            r=C_XV+(l*2+i)*2
            a(f'global_load_dwordx2 v[{r}:{r+1}], v{C_OA+i}, s[88:89] offset:{l*128} nt')
    st(a,11)
    vpoll(a,'x',T+2,T+1,'s93',sleep=4)
    st(a,12)
    for l in range(3):
        for sl in range(4):
            r=C_RX+(l*4+sl)*4
            if l==0: a(f's_add_u32 s{76+sl}, s95, {sl*4*3072}')
            a(f'buffer_load_dwordx4 v[{r}:{r+3}], v{C_LV}, s[20:23], s{76+sl} offen offset:{l*1024} sc1')
    for l in range(3):
        a(f's_waitcnt vmcnt({8-2*l})')
        for i in range(2):
            A=C_ACC+((l*4)*2+i)*4; t=16
            for sl in (1,2,3):
                r=C_RX+(l*4+sl)*4+2*i
                a(f'v_lshlrev_b32 v{t}, 16, v{r}\nv_and_b32 v{t+1}, s41, v{r}\nv_lshlrev_b32 v{t+2}, 16, v{r+1}\nv_and_b32 v{t+3}, s41, v{r+1}')
                for e in range(4): a(f'v_add_f32 v{A+e}, v{A+e}, v{t+e}')
            for e in range(4): a(f'v_mul_f32 v{t+e}, s40, v{A+e}')
            for e in range(4): a(f'v_exp_f32 v{t+e}, v{t+e}')
            for e in range(4): a(f'v_add_f32 v{t+e}, 1.0, v{t+e}')
            for e in range(4): a(f'v_rcp_f32 v{t+e}, v{t+e}')
            r=C_RX+(l*4)*4+2*i; x=C_XV+(l*2+i)*2; u=t+4; y=t+8
            a(f'v_lshlrev_b32 v{u}, 16, v{r}\nv_and_b32 v{u+1}, s41, v{r}\nv_lshlrev_b32 v{u+2}, 16, v{r+1}\nv_and_b32 v{u+3}, s41, v{r+1}')
            a(f'v_lshlrev_b32 v{y}, 16, v{x}\nv_and_b32 v{y+1}, s41, v{x}\nv_lshlrev_b32 v{y+2}, 16, v{x+1}\nv_and_b32 v{y+3}, s41, v{x+1}')
            for e in range(4): a(f'v_mul_f32 v{t+e}, v{t+e}, v{A+e}')
            for e in range(4): a(f'v_fmac_f32 v{y+e}, v{t+e}, v{u+e}')
            a(f'v_cvt_pk_bf16_f32 v{x}, v{y}, v{y+1}\nv_cvt_pk_bf16_f32 v{x+1}, v{y+2}, v{y+3}')
            a(f'global_store_dwordx2 v{C_OA+i}, v[{x}:{x+1}], s[90:91] offset:{l*128}')
    a('C_fin:')
    st(a,13); st(a,31,rt=True)

def light_after_att(a):
    T=C_T
    a(f'''
    s_lshr_b32 s92, s83, 2
    s_lshl_b32 s92, s92, 7
    s_and_b32 s93, s83, 3
    s_lshl_b32 s93, s93, 2
    s_add_u32 s93, s93, s33
    s_lshl_b32 s93, s93, 2
    s_add_u32 s92, s92, s93
    s_add_u32 s92, s92, {OFL_OFF}
    v_mov_b32 v{T}, s39
    s_barrier
    s_cmp_eq_u32 s68, 2
    s_cbranch_scc1 L_flag
    s_mov_b32 s94, s78
    ''')
    for k in range(5):
        for x in prefetch(ORDER[k],'s94','W'): a(x)
    a(f'''
    s_waitcnt vmcnt(30)
    L_flag:
    s_cmp_eq_u32 s68, 2
    s_cbranch_scc0 L_f2
    s_waitcnt vmcnt(0)
    L_f2:
    buffer_store_dword v{T}, off, s[20:23], s92 sc1
    s_cmp_eq_u32 s68, 2
    s_cbranch_scc1 C_fin
    s_lshl_b32 s93, s57, 7
    s_add_u32 s93, s93, {OFL_OFF}
    v_and_b32 v{T+1}, 15, v0
    v_lshlrev_b32 v{T+1}, 2, v{T+1}
    ''')
    for x in c_addr_items(): a(x)
    for r in range(0,96,2): a(f'v_mov_b64 v[{C_ACC+r}:{C_ACC+r+1}], 0')
    vpoll(a,'o',T+2,T+1,'s93',sleep=1)
    for k in range(5):
        for x in prefetch(ORDER[k],'s78','H'): a(x)
    a('s_waitcnt vmcnt(0)\ns_barrier')

LNS=147456
def ln_loads(a):
    a(f'''
    s_lshl_b32 s35, s30, 2
    s_add_u32 s35, s35, s31
    s_lshr_b32 s36, s35, 1
    s_lshl_b32 s37, s32, 4
    s_add_u32 s36, s36, s37
    s_and_b32 s37, s35, 1
    s_lshl_b32 s38, s36, 4
    s_add_u32 s38, s38, s37
    v_and_b32 v79, 7, v0
    v_lshl_add_u32 v77, v79, 1, s38
    v_mul_u32_u24 v80, 1152, v77
    v_lshrrev_b32 v81, 3, v0
    v_lshl_add_u32 v77, v81, 4, v80
    s_mul_i32 s38, s33, 384
    s_mov_b32 s94, {2048*1152}
    s_mov_b32 s95, 0x20000
    s_waitcnt lgkmcnt(0)
    s_cmp_eq_u32 s33, 3
    s_cbranch_scc1 LN_nold
    buffer_load_dwordx4 v[64:67], v77, s[92:95], s38 offen nt
    buffer_load_dwordx4 v[68:71], v77, s[92:95], s38 offen offset:128 nt
    buffer_load_dwordx4 v[72:75], v77, s[92:95], s38 offen offset:256 nt
    s_add_u32 s38, s38, 384
    s_cmp_eq_u32 s38, 1152
    s_cselect_b32 s38, 0, s38
    buffer_load_dwordx4 v[120:123], v77, s[92:95], s38 offen nt
    buffer_load_dwordx4 v[124:127], v77, s[92:95], s38 offen offset:128 nt
    buffer_load_dwordx4 v[128:131], v77, s[92:95], s38 offen offset:256 nt
    s_add_u32 s38, s38, 384
    s_cmp_eq_u32 s38, 1152
    s_cselect_b32 s38, 0, s38
    buffer_load_dwordx4 v[132:135], v77, s[92:95], s38 offen nt
    buffer_load_dwordx4 v[136:139], v77, s[92:95], s38 offen offset:128 nt
    buffer_load_dwordx4 v[140:143], v77, s[92:95], s38 offen offset:256 nt
    LN_nold:
    s_mul_i32 s36, s36, 18432
    s_lshl_b32 s37, s37, 7
    s_add_u32 s36, s36, s37
    s_mul_i32 s37, s33, 6144
    s_add_u32 s96, s36, s37
    s_add_u32 s97, s96, 4096
    v_lshlrev_b32 v78, 8, v81
    v_lshl_add_u32 v78, v79, 4, v78
    s_lshl_b32 s6, s32, 5
    s_add_u32 s6, s6, s35
    s_lshl_b32 s6, s6, 2
    s_add_u32 s6, s6, s33
    s_lshl_b32 s6, s6, 2
    s_add_u32 s6, s6, {XFL_OFF}
    ''')
def ln_compute(a,nyoung):
    E=96
    a('v_mov_b32 v76, 0x3f803f80')
    a('s_waitcnt vmcnt(6)')
    regs=list(range(64,76))+list(range(120,144))
    for k,r in enumerate(regs):
        if k==12:
            for g in range(3):
                for i in range(4):
                    rr=64+4*g+i; e=E+8*g+2*i
                    a(f'v_lshlrev_b32 v{e}, 16, v{rr}\nv_and_b32 v{e+1}, s41, v{rr}')
            a('s_waitcnt vmcnt(0)')
        s_,q_=82+(k&1)*2,83+(k&1)*2
        a(f'v_dot2_f32_bf16 v{s_}, v{r}, v76, {"0" if k<2 else "v%d"%s_}')
        a(f'v_dot2_f32_bf16 v{q_}, v{r}, v{r}, {"0" if k<2 else "v%d"%q_}')
    a('s_nop 2\nv_add_f32 v82, v82, v84\nv_add_f32 v83, v83, v85\ns_nop 1')
    a('v_add_f32_dpp v82, v82, v82 row_ror:8 row_mask:0xf bank_mask:0xf\nv_add_f32_dpp v83, v83, v83 row_ror:8 row_mask:0xf bank_mask:0xf')
    for sw in ('v_permlane16_swap_b32','v_permlane32_swap_b32'):
        a(f'v_mov_b32 v84, v82\nv_mov_b32 v85, v83\ns_nop 1\n{sw} v82, v84\n{sw} v83, v85\ns_nop 1\nv_add_f32 v82, v82, v84\nv_add_f32 v83, v83, v85')
    a('''
    v_mul_f32 v82, 0x3ae38e39, v82
    v_mul_f32 v83, 0x3ae38e39, v83
    v_fma_f32 v83, -v82, v82, v83
    v_max_f32 v83, 0, v83
    ''')
    def rb(r): a(f'v_cvt_pk_bf16_f32 v{r}, v{r}, v{r}\nv_lshlrev_b32 v{r}, 16, v{r}')
    rb(82); rb(83)
    a('v_add_f32 v83, 0x3727c5ac, v83'); rb(83)
    a('v_sqrt_f32 v83, v83\ns_nop 0'); rb(83)
    a('v_rcp_f32 v83, v83\ns_nop 0')
    def norm(g):
        for i in range(4):
            e=E+8*g+2*i
            a(f'v_sub_f32 v{e}, v{e}, v82\nv_sub_f32 v{e+1}, v{e+1}, v82')
        for i in range(4):
            e=E+8*g+2*i
            a(f'v_cvt_pk_bf16_f32 v{e}, v{e}, v{e+1}')
        for i in range(4):
            e=E+8*g+2*i
            a(f'v_and_b32 v{e+1}, s41, v{e}\nv_lshlrev_b32 v{e}, 16, v{e}')
        for i in range(4):
            e=E+8*g+2*i
            a(f'v_mul_f32 v{e}, v{e}, v83\nv_mul_f32 v{e+1}, v{e+1}, v83')
        for i in range(4):
            e=E+8*g+2*i
            a(f'v_cvt_pk_bf16_f32 v{64+4*g+i}, v{e}, v{e+1}')
    norm(0)
    a('buffer_store_dwordx4 v[64:67], v78, s[20:23], s96 offen sc1')
    norm(1)
    a('buffer_store_dwordx4 v[68:71], v78, s[20:23], s96 offen offset:2048 sc1')
    norm(2)
    a('buffer_store_dwordx4 v[72:75], v78, s[20:23], s97 offen sc1')

def gen_kf(a):
    a(kernel_header(NAME))
    T=V_T
    T0=' nt' if OPT['t0nt'] else ''
    a('''
    s_cmp_ge_u32 s2, 256
    s_cbranch_scc1 KF_end
    s_load_dwordx2 s[92:93], s[0:1], 0
    s_load_dwordx2 s[4:5], s[0:1], 8
    s_load_dwordx4 s[8:11], s[0:1], 32
    s_load_dwordx2 s[20:21], s[0:1], 72
    s_load_dwordx2 s[28:29], s[0:1], 64
    s_load_dwordx2 s[88:89], s[0:1], 16
    s_load_dwordx2 s[90:91], s[0:1], 48
    s_memrealtime s[24:25]
    v_lshrrev_b32 v1, 6, v0
    v_and_b32 v0, 63, v0
    s_bfe_u32 s30, s2, 0x20001
    s_lshl_b32 s30, s30, 1
    s_bfe_u32 s31, s2, 0x10005
    s_add_u32 s30, s30, s31
    s_bfe_u32 s31, s2, 0x20003
    s_and_b32 s32, s2, 1
    s_lshl_b32 s32, s32, 2
    s_lshr_b32 s3, s2, 6
    s_add_u32 s32, s32, s3
    v_readfirstlane_b32 s33, v1
    s_mov_b32 s22, 0x10000000
    s_mov_b32 s23, 0x20000
    s_mov_b32 s40, 0xbfb8aa3b
    s_mov_b32 s41, 0xffff0000
    ''')
    ln_loads(a)
    a(f"""
    v_mov_b32 v2, 0
    s_or_b32 s3, s2, s33
    s_cmp_lg_u32 s3, 0
    s_cbranch_scc1 KF_noep
    s_and_b32 s24, s24, 0xfffffffc
    s_max_u32 s24, s24, 4
    v_mov_b32 v3, s24
    global_store_dword v2, v3, s[28:29] sc1
    KF_noep:
    """)
    st(a,30,True); st(a,0)
    a(f"""
    s_lshl_b32 s66, s33, 10
    s_mul_i32 s62, s30, 3
    s_add_u32 s62, s62, s31
    s_lshl_b32 s62, s62, 7
    s_add_u32 s64, s30, 44
    s_lshl_b32 s64, s64, 6
    s_cmp_lt_u32 s31, 3
    s_cselect_b32 s63, 1, 0
    s_cmp_lt_u32 s30, 6
    s_cbranch_scc1 KF_qok
    s_lshl_b32 s62, s30, 1
    s_add_u32 s62, s62, s31
    s_add_u32 s64, s62, 36
    s_lshl_b32 s64, s64, 6
    s_add_u32 s62, s62, 6
    s_lshl_b32 s62, s62, 7
    s_cmp_lt_u32 s31, 2
    s_cselect_b32 s63, 1, 0
    KF_qok:
    s_cmp_eq_u32 s63, 1
    s_cselect_b32 s62, s62, s64
    s_cselect_b32 s67, 3, 1
    s_mov_b32 s64, s63
    s_mov_b32 s65, 0
    s_mul_i32 s36, s30, 1152
    s_lshl_b32 s37, s31, 8
    s_add_u32 s37, s37, s36
    s_lshl_b32 s38, s31, 6
    s_add_u32 s38, s38, s36
    s_add_u32 s38, s38, 896
    s_add_u32 s16, s8, s37
    s_addc_u32 s17, s9, 0
    s_add_u32 s18, s10, s37
    s_addc_u32 s19, s11, 0
    v_bfe_u32 v{T+1}, v0, 1, 2
    v_bfe_u32 v{T+2}, v0, 4, 1
    v_xor_b32 v{T+1}, v{T+1}, v{T+2}
    v_and_b32 v{T+2}, 1, v0
    v_lshlrev_b32 v{T+2}, 4, v{T+2}
    v_lshrrev_b32 v{T}, 3, v0
    s_add_u32 s60, s4, s62
    s_addc_u32 s61, s5, 0
    """)
    for jj in range(4):
        a(f"""
        v_add_u32 v152, {8*jj}, v{T}
        v_xor_b32 v153, {2*(jj&1)}, v{T+1}
        v_mul_u32_u24 v{144+jj}, 9216, v152
        v_lshl_add_u32 v{144+jj}, v153, 5, v{144+jj}
        v_add_u32 v{144+jj}, v{144+jj}, v{T+2}
        v_and_b32 v153, s67, v153
        v_mul_u32_u24 v{148+jj}, 3456, v152
        v_lshl_add_u32 v{148+jj}, v153, 5, v{148+jj}
        v_add_u32 v{148+jj}, v{148+jj}, v{T+2}
        """)
    a(f"""
    s_cmp_eq_u32 s33, 3
    s_cbranch_scc0 KF_lnw
    s_mov_b32 s94, s60
    s_mov_b32 s95, s61
    s_mov_b32 s92, s16
    s_mov_b32 s93, s17
    """)
    def wloop(lab,end):
        a(f'{lab}:')
        for jj in range(4):
            a(f's_add_u32 m0, s35, {jj*1024}\ns_nop 0\nglobal_load_lds_dwordx4 v{144+jj}, s[92:93]')
            a(f's_add_u32 m0, s35, {HALF+jj*1024}\ns_nop 0\nglobal_load_lds_dwordx4 v{148+jj}, s[94:95]')
        a(f"""
        s_add_u32 s92, s92, 294912
        s_addc_u32 s93, s93, 0
        s_add_u32 s94, s94, 110592
        s_addc_u32 s95, s95, 0
        s_add_u32 s35, s35, 4096
        s_waitcnt vmcnt({OPT['w3q']})
        s_cmp_lt_u32 s35, {end}
        s_cbranch_scc1 {lab}
        """)
    a(f"""
    s_mov_b32 s35, 0
    s_getpc_b64 s[24:25]
    KF_pc:
    s_sub_u32 s24, s24, KF_pc-{NAME}
    s_subb_u32 s25, s25, 0
    s_lshr_b32 s3, s2, 3
    s_lshl_b32 s3, s3, 4
    v_and_b32 v4, 15, v0
    v_add_u32 v4, s3, v4
    v_lshlrev_b32 v4, 7, v4
    v_min_u32 v4, KF_last-{NAME}, v4
    v_mov_b32 v5, 0
    v_lshl_add_u64 v[4:5], v[4:5], 0, s[24:25]
    s_and_b32 s3, s32, 3
    s_mul_i32 s3, s3, 144
    v_add_u32 v72, s3, v0
    v_min_u32 v74, 15, v0
    v_add_u32 v74, s3, v74
    v_mul_u32_u24 v73, 9216, v72
    v_mul_u32_u24 v72, 3456, v72
    v_mul_u32_u24 v75, 9216, v74
    v_mul_u32_u24 v74, 3456, v74
    global_load_dword v{V_DUM}, v73, s[92:93]{T0}
    global_load_dword v{V_DUM}, v72, s[94:95]{T0}
    v_add_u32 v73, {64*9216}, v73
    v_add_u32 v72, {64*3456}, v72
    v_add_u32 v75, {128*9216}, v75
    v_add_u32 v74, {128*3456}, v74
    global_load_dword v{V_DUM}, v73, s[92:93]{T0}
    global_load_dword v{V_DUM}, v72, s[94:95]{T0}
    global_load_dword v{V_DUM}, v75, s[92:93]{T0}
    global_load_dword v{V_DUM}, v74, s[94:95]{T0}
    global_load_dword v{V_DUM}, v[4:5], off
    s_waitcnt vmcnt({OPT['w3w']})
    """)
    wloop('KF_w3',OPT['W3N']*4096)
    a(f"""
    s_mov_b32 s6, {OOB}
    s_branch KF_join
    KF_lnw:
    """)
    ln_compute(a,0)
    st(a,16)
    a('KF_join:')
    a('v_mov_b32 v2, 0\nglobal_load_dword v3, v2, s[28:29] sc1')
    a(f"""
    s_lshl_b32 s35, s33, 3
    v_add_u32 v{T}, s35, v{T}
    s_and_b32 s35, s33, 1
    s_lshl_b32 s35, s35, 1
    v_xor_b32 v{T+1}, s35, v{T+1}
    v_mul_u32_u24 v{T+4}, 9216, v{T}
    v_add_u32 v{T+4}, v{T+4}, v{T+2}
    v_mov_b32 v{T+5}, 0
    v_lshl_add_u32 v{T+8}, v{T+1}, 5, v{T+4}
    v_mov_b32 v{T+9}, 0
    s_mov_b32 s100, 294912
    s_mov_b32 s101, 0
    s_add_u32 s12, s16, 128
    s_addc_u32 s13, s17, 0
    v_lshl_add_u64 v[{V_DA}:{V_DA+1}], v[{T+8}:{T+9}], 0, s[12:13]
    v_lshl_add_u64 v[{V_UA}:{V_UA+1}], v[{T+8}:{T+9}], 0, s[18:19]
    s_and_b32 s3, s32, 3
    s_lshl_b32 s3, s3, 2
    s_add_u32 s3, s3, s33
    s_mul_i32 s3, s3, 36
    v_min_u32 v{V_TR}, 35, v0
    v_add_u32 v{V_TR}, s3, v{V_TR}
    v_mul_u32_u24 v{V_TR}, 9216, v{V_TR}
    s_lshl_b32 s34, s32, 4
    s_lshl_b32 s35, s33, 2
    s_add_u32 s34, s34, s35
    s_mul_i32 s35, s34, 18432
    v_lshlrev_b32 v{T}, 4, v0
    v_add_u32 v{V_XO}, s35, v{T}
    v_add_u32 v{V_XO+1}, 18432, v{V_XO}
    v_add_u32 v{V_XO+2}, 36864, v{V_XO}
    v_add_u32 v{V_XO+3}, 55296, v{V_XO}
    s_mul_i32 s35, s34, 147456
    v_add_u32 v{V_HST}, s35, v{T}
    s_sub_u32 s58, s10, s8
    s_subb_u32 s59, s11, s9
    s_sub_u32 s58, s58, 5308416
    s_subb_u32 s59, s59, 0
    s_add_u32 s12, s8, s38
    s_addc_u32 s13, s9, 0
    s_add_u32 s14, s10, s38
    s_addc_u32 s15, s11, 0
    v_and_b32 v{T+3}, 1, v{T+1}
    v_lshl_add_u32 v{T+4}, v{T+3}, 5, v{T+4}
    v_lshl_add_u64 v[{V_ZA}:{V_ZA+1}], v[{T+4}:{T+5}], 0, s[12:13]
    v_lshl_add_u64 v[{T+12}:{T+13}], v[{T+4}:{T+5}], 0, s[14:15]
    v_cmp_lt_u32 vcc, 1, v{T+1}
    s_nop 1
    v_cndmask_b32 v{V_ZA}, v{V_ZA}, v{T+12}, vcc
    v_cndmask_b32 v{V_ZA+1}, v{V_ZA+1}, v{T+13}, vcc
    """)
    for g in range(5): a(f's_mov_b32 s{52+g}, {XN_OFF+g*4096}')
    c_roles_scalar(a)
    a(f"""
    s_mov_b32 s3, 0
    KF_ep:
    s_waitcnt vmcnt(0)
    v_readfirstlane_b32 s67, v3
    s_add_u32 s3, s3, 1
    s_cmp_gt_u32 s3, {OPT['SPIN']}
    s_cbranch_scc1 KF_epok
    s_cmp_lg_u32 s67, 0
    s_cbranch_scc1 KF_epok
    global_load_dword v3, v2, s[28:29] sc1
    s_branch KF_ep
    KF_epok:
    s_add_u32 s39, s67, 1
    v_mov_b32 v3, s39
    buffer_store_dword v3, off, s[20:23], s6 sc1
    """)
    st(a,1)
    nper=(18-OPT['W3N'])//3
    if nper:
        a(f"""
        s_cmp_eq_u32 s33, 3
        s_cbranch_scc1 KF_now
        s_mul_i32 s3, s33, {nper}
        s_add_u32 s3, s3, {OPT['W3N']}
        s_lshl_b32 s35, s3, 12
        s_add_u32 s36, s35, {nper*4096}
        s_mul_i32 s37, s3, 294912
        s_add_u32 s92, s16, s37
        s_addc_u32 s93, s17, 0
        s_mul_i32 s37, s3, 110592
        s_add_u32 s94, s60, s37
        s_addc_u32 s95, s61, 0
        """)
        wloop('KF_wl','s36')
        a('KF_now:')
    a(f'''
    v_lshrrev_b32 v{T}, 4, v0
    v_bfe_u32 v{T+1}, v0, 2, 2
    v_lshl_add_u32 v{T+2}, v{T}, 3, v{T+1}
    v_lshlrev_b32 v{T+2}, 7, v{T+2}
    v_lshrrev_b32 v{T+1}, 1, v{T+1}
    v_and_b32 v{T}, 1, v{T}
    v_lshl_or_b32 v{T+1}, v{T}, 1, v{T+1}
    v_and_b32 v{T+3}, 3, v0
    ''')
    for b in range(4):
        a(f'''
        v_xor_b32 v{T+4}, {b}, v{T+1}
        v_lshl_add_u32 v{T+4}, v{T+4}, 5, v{T+2}
        v_lshl_add_u32 v{V_BN+b}, v{T+3}, 3, v{T+4}
        v_mov_b32 v{V_AD+b}, v{V_BN+b}
        ''')
    for u in range(2):
        a(f'''
        v_lshrrev_b32 v{T+4}, 1, v{T+3}
        v_add_u32 v{T+4}, {2*u}, v{T+4}
        v_xor_b32 v{T+4}, v{T+4}, v{T+1}
        v_lshl_add_u32 v{T+4}, v{T+4}, 5, v{T+2}
        v_and_b32 v{T+5}, 1, v{T+3}
        v_lshl_add_u32 v{T+4}, v{T+5}, 4, v{T+4}
        v_add_u32 v{V_NB+2*u}, {HALF}, v{T+4}
        v_add_u32 v{V_NB+2*u+1}, {HALF+8}, v{T+4}
        ''')
    a(f'''
    v_and_b32 v{T}, 7, v0
    s_lshl_b32 s35, s34, 3
    v_add_u32 v{T}, s35, v{T}
    v_bfe_u32 v{T+1}, v0, 3, 1
    v_lshl_add_u32 v{T}, v{T+1}, 10, v{T}
    v_mul_u32_u24 v{T}, 3456, v{T}
    v_lshrrev_b32 v{T+1}, 4, v0
    v_lshl_add_u32 v{V_QST}, v{T+1}, 4, v{T}
    s_mul_i32 s35, s30, 18
    s_lshl_b32 s42, s31, 2
    s_add_u32 s35, s35, s42
    s_lshl_b32 s35, s35, 10
    s_add_u32 s44, s35, {H_OFF}
    s_add_u32 s45, s44, 147456
    s_add_u32 s46, s44, 294912
    s_add_u32 s47, s44, 442368
    s_add_u32 s48, s62, {QKV_OFF}
    s_add_u32 s49, s48, 27648
    s_add_u32 s50, s48, 55296
    s_add_u32 s51, s48, 82944
    s_lshl_b32 s24, s32, 5
    s_lshl_b32 s3, s30, 2
    s_add_u32 s24, s24, s3
    s_add_u32 s24, s24, s31
    s_lshl_b32 s24, s24, 2
    s_add_u32 s24, s24, {QFL_OFF}
    s_cmp_eq_u32 s33, 0
    s_cselect_b32 s24, s24, {OOB}
    s_lshl_b32 s25, s32, 2
    s_add_u32 s25, s25, s33
    s_lshl_b32 s25, s25, 5
    s_add_u32 s25, s25, s3
    s_add_u32 s25, s25, s31
    s_lshl_b32 s25, s25, 2
    s_add_u32 s25, s25, {HFL_OFF}
    s_and_b32 s26, s57, 1
    s_lshl_b32 s26, s26, 1
    s_lshr_b32 s3, s33, 1
    s_add_u32 s26, s26, s3
    s_lshl_b32 s3, s32, 2
    s_add_u32 s26, s26, s3
    s_lshl_b32 s26, s26, 7
    s_lshl_b32 s3, s69, 5
    s_add_u32 s26, s26, s3
    s_add_u32 s26, s26, {HFL_OFF}
    s_cmp_eq_u32 s68, 0
    s_cselect_b32 s27, 2, 0
    s_and_b32 s28, s57, 7
    s_mul_i32 s28, s28, 3
    s_add_u32 s28, s28, s31
    s_lshl_b32 s28, s28, 2
    s_add_u32 s28, s28, s33
    s_mul_i32 s28, s28, {108*128}
    s_mul_i32 s3, s69, {1152*1152}
    s_add_u32 s28, s28, s3
    s_and_b32 s3, s83, 7
    s_lshl_b32 s3, s3, 2
    s_add_u32 s3, s3, s33
    s_mul_i32 s3, s3, {162*128}
    s_cmp_eq_u32 s68, 0
    s_cselect_b32 s28, s28, s3
    s_add_u32 s28, s28, 2048
    s_add_u32 s29, s28, 16384
    s_cmp_eq_u32 s68, 0
    s_cselect_b32 s29, {OOB}, s29
    s_lshl_b32 s6, s32, 2
    s_add_u32 s6, s6, s33
    s_lshl_b32 s6, s6, 7
    s_add_u32 s6, s6, {XFL_OFF}
    v_and_b32 v{T}, 3, v0
    v_min_u32 v{T}, 2, v{T}
    v_and_b32 v{T+1}, 28, v0
    v_add_u32 v{T}, v{T}, v{T+1}
    v_lshlrev_b32 v{T}, 2, v{T}
    ''')
    a(f'''
    v_lshrrev_b32 v{T+2}, 4, v0
    v_mul_u32_u24 v{T+2}, 18432, v{T+2}
    v_and_b32 v{T+3}, 15, v0
    v_lshl_add_u32 v{T+2}, v{T+3}, 7, v{T+2}
    s_bfe_u32 s3, s2, 0x30003
    s_lshl_b32 s3, s3, 11
    s_mul_i32 s35, s34, 18432
    s_add_u32 s3, s3, s35
    s_add_u32 s3, s3, {XN_OFF+2048}
    v_add_u32 v{T+2}, s3, v{T+2}
    ''')
    a('''
    s_add_u32 s60, s16, 128
    s_addc_u32 s61, s17, 0
    s_add_u32 s4, s18, 128
    s_addc_u32 s5, s19, 0
    s_cmp_eq_u32 s68, 0
    s_cselect_b64 s[60:61], s[60:61], s[12:13]
    s_cselect_b64 s[4:5], s[4:5], s[14:15]
    ''')
    vpoll(a,'xn',T+1,T,'s6')
    st(a,2)
    vm=VM()
    for g in range(OPT['FD0']):
        for it in grp_x(g): a(it[0]); vm.issue(it[2])
    if OPT['xt']:
        a(f'buffer_load_dword v{V_DUM}, v{T+2}, s[20:23], 0 offen sc1'); vm.issue('t')
    a('s_mov_b64 vcc, s[64:65]')
    a('s_barrier')
    for sl in range(8):
        w,ad=(V_SG+sl*4,V_NB+sl) if sl<4 else (V_WF+(sl-4)*4,V_AD+sl-4)
        a(f'ds_read_b64_tr_b16 v[{w}:{w+1}], v{ad} offset:0')
        a(f'ds_read_b64_tr_b16 v[{w+2}:{w+3}], v{ad} offset:512')
    a(f's_waitcnt vmcnt({vm.wait_n("g0")})')
    st(a,3)
    bodyF(a,vm)
    a('s_cbranch_vccz KF_noq2\ns_nop 1')
    for s in flat(ch_epiQ(V_ACC[1],2,64)[0]): a(s)
    a('KF_noq2:')
    st(a,4)
    zset=f'''
    s_mov_b32 s43, 1
    v_mov_b32 v{V_DA}, v{V_ZA}
    v_mov_b32 v{V_DA+1}, v{V_ZA+1}
    v_mov_b32 v{V_NB}, v{V_BN}
    v_mov_b32 v{V_NB+1}, v{V_BN+1}
    v_add_u32 v{V_NB+2}, 4096, v{V_BN}
    v_add_u32 v{V_NB+3}, 4096, v{V_BN+1}
    '''
    a(f'''
    s_mov_b32 s43, 0
    v_mov_b32 v{V_ONE}, s39
    v_min_u32 v15, 35, v0
    v_lshlrev_b32 v15, 7, v15
    v_mov_b32 v{V_NB}, v{V_BN}
    v_mov_b32 v{V_NB+1}, v{V_BN+1}
    v_mov_b32 v{V_NB+2}, v{V_BN+2}
    v_mov_b32 v{V_NB+3}, v{V_BN+3}
    s_cmp_eq_u32 s68, 0
    s_cbranch_scc1 KF_loop
    ''')
    a(zset)
    a('KF_loop:\ns_sub_u32 m0, s66, 4096')
    wt=[f'buffer_load_dword v{V_DUM}, v15, s[84:87], s28 offen',f's_add_u32 s28, s28, {36*128}']
    ty=[(100,120,[f'global_load_dword v{V_DUM}, v{V_TR}, s[12:13]',f'global_load_dword v{V_DUM}, v{V_TR}, s[14:15]']),(200,210,wt)]
    body(a,VM(),1,ch_epiG(V_ACC[0]),mid=True,seqs=ty)
    a(f'''
    s_cmp_lg_u32 s43, 0
    s_cbranch_scc1 KF_z
    v_lshl_add_u64 v[{V_DA}:{V_DA+1}], v[{V_DA}:{V_DA+1}], 0, s[58:59]
    v_add_u32 v{V_NB}, {HALF}, v{V_BN}
    v_add_u32 v{V_NB+1}, {HALF}, v{V_BN+1}
    v_add_u32 v{V_NB+2}, {HALF}, v{V_BN+2}
    v_add_u32 v{V_NB+3}, {HALF}, v{V_BN+3}
    ''')
    st(a,5)
    tx=[(100,110,wt)]
    body(a,VM(),0,ch_epiU(V_ACC[1]),pace=True,epilo=OPT['XEPI'],seqs=tx+[(140,280,c_roles_vector())])
    st(a,6)
    a('''
    s_add_u32 s44, s44, 2048
    s_add_u32 s45, s45, 2048
    s_add_u32 s46, s46, 2048
    s_add_u32 s47, s47, 2048
    s_mov_b32 s24, s25
    ''')
    a(zset)
    a('s_branch KF_loop\nKF_z:')
    st(a,7)
    a('s_cmp_eq_u32 s68, 0\ns_cbranch_scc0 KF_zl')
    a('s_mov_b32 s6, s78')
    pw=[];ph=[]
    for k in range(3): pw+=[x for x in prefetch(ORDER[k],'s6','W') if x!='s_nop 0']
    for k in range(5): ph+=prefetch(ORDER[k],'s78','H')
    zero=[f'v_mov_b64 v[{r}:{r+1}], 0' for r in range(96,192,2)]
    vmz=VM()
    bodyZ(a,vmz,[(60,61,['@SLD']),(62,150,pw),(152,270,['@CHK8']+ph),(2,60,zero[:16]),(146,286,zero[16:]+c_addr_items())])
    st(a,8)
    a('s_nop 4')
    z_tail(a)
    a(f'v_add_u32 v{V_ONE}, 1, v{V_ONE}\nv_add_u32 v255, 1, v{V_ONE}')
    a(f's_waitcnt vmcnt(16)\nbuffer_store_dword v{V_ONE}, off, s[20:23], s25 sc1\ns_barrier')
    for t in range(6): a(c_rd(ORDER[0],t,0)); a(c_rd(ORDER[0],t,1))
    for k in (3,4):
        for x in prefetch(ORDER[k],'s6','W'): a(x)
    a('s_waitcnt lgkmcnt(0)\ns_branch C_go')
    a('KF_zl:')
    for x in c_roles_vector(): a(x)
    a(f'''
    s_lshr_b32 s26, s83, 3
    s_max_u32 s26, s26, 1
    s_sub_u32 s26, s26, 1
    s_lshl_b32 s26, s26, 7
    s_add_u32 s26, s26, {QFL_OFF}
    v_lshlrev_b32 v253, 2, v0
    s_lshr_b32 s3, s83, 3
    s_cmp_eq_u32 s3, 0
    s_movk_i32 s3, 255
    s_cselect_b32 s3, 127, s3
    v_and_b32 v253, s3, v253
    s_and_b32 s92, s83, 1
    s_lshl_b32 s92, s92, 10
    s_lshr_b32 s93, s83, 1
    s_lshl_b32 s93, s93, 5
    s_add_u32 s92, s92, s93
    s_mul_i32 s92, s92, 3456
    s_add_u32 s92, s92, {QKV_OFF-7*3456}
    s_add_u32 s92, s92, s66
    s_add_u32 s93, s92, 86400
    ''')
    ql=['@QP']
    for n in range(22):
        ql+=[f's_add_u32 m0, s66, {HALF+n*4096}', f'buffer_load_dwordx4 v{C_LV}, s[20:23], s92 offen sc1 lds', 's_add_u32 s92, s92, 4096']
    bodyZ(a,VM(),[(150,284,ql)])
    a('s_barrier')
    for n in range(12):
        a(f's_add_u32 m0, s66, {n*4096}\ns_nop 0\nbuffer_load_dwordx4 v{C_LV}, s[20:23], s93 offen sc1 lds\ns_add_u32 s93, s93, 4096')
    z_tail(a)
    a(f'v_add_u32 v255, 2, v{V_ONE}\ns_nop 1')
    st(a,8)
    def wq():
        a('s_waitcnt vmcnt(0)\nbuffer_store_dword v255, off, s[20:23], s25 sc1\ns_barrier'); st(a,14)
        a('v_lshlrev_b32 v5, 7, v0\ns_sub_u32 s28, s29, 8192\ns_sub_u32 s27, s29, 16384')
        for r in ('s27','s28','s29'): a(f'buffer_load_dword v240, v5, s[84:87], {r} offen')
    attention(a,wq,(25,HALF,0))
    st(a,15)
    s_gemm(a)
    a('C_go:')
    st(a,9)
    c_loop(a)
    c_finish(a)
    a('KF_end:\nKF_last:\ns_endpgm')
    return kernel_desc(NAME,512,102,256)

def build():
    a=Asm()
    hdr=open('recurrent_scan__sliding_local_dilated__swiglu_ffn__prompt.s.ref').read().split('\n')
    head=[l for l in hdr if l.startswith(';') and '@launch' not in l]
    d=gen_kf(a)
    s='\n'.join(head)+'\n; @launch grid=(256,1,1) block=(256,1,1) lds=163840\n'
    s+='.amdgcn_target "amdgcn-amd-amdhsa--gfx950"\n.text\n'+a.text()
    s+='.section .rodata,"a"\n.p2align 6\n'+d
    return s
if __name__=='__main__':
    for o in sys.argv[2:]:
        if '=' in o:
            k,v=o.split('='); OPT[k]=int(v)
        else: OPT[o]=True
    open(sys.argv[1],'w').write(build())
```

```python
import sys
from asmlib import *

NAME='recurrent_scan__sliding_local_dilated__swiglu_ffn__prompt_kernel'
XN_OFF=0; O_OFF=0x240000; QKV_OFF=0x480000; H_OFF=0xB40000; X_OFF=0x1D40000; XD=5*4*3072; XT=4*XD
FLG_OFF=0x3000000; OFL_OFF=FLG_OFF+0x2000; HFL_OFF=FLG_OFF+0x3000; QFL_OFF=FLG_OFF+0x4000; XFL_OFF=FLG_OFF+0x5000
PROF_OFF=0x8000000
OOB=0x7ffff000
OPT=dict(prof=False, FD=7, MIDKS=11, XEPI=80, SPIN=20000, tu0=0, tg1=5, tu1=10, w3q=40, FD0=3, t0nt=0, w3w=0, xt=1, W3N=6, g2=235, psl=2, ql=60, qp=130)
STF=' sc1'
HALF=73728
V_AD=2; V_NB=6; V_DA=10; V_DUM=12; V_TR=13; V_HST=14; V_QST=15; V_WF=16; V_SG=32; V_ACC=(64,128); V_X=192; V_T=224
V_BN=240; V_ZA=244; V_QA=246; V_UA=248; V_XO=252; V_ONE=254
S_DI='s[100:101]'; S_QI='s[4:5]'
C_AD=[6,7,8,9,10,11,13,15,240,241,242,243]; C_WF=[16,20,24,28,64,68]; C_ACC=96; C_RX=192; C_XV=72; C_T=2
C_DV=246; C_HV=249; C_LV=251; C_OA=252
STG=24576; NS=6; ORDER=[3,4,5,0,1,2]
LAM_H=[0,2,4,6,9,11,13,15,1,3,5,10,12,14,7,8,16,17]; LAM_S=list(range(9))

def st(a,i,rt=False):
    if not OPT['prof'] and not (OPT.get('span') and i>=30): return
    if OPT.get('rtp'): rt=True
    a(f'''
    {"s_memrealtime" if rt else "s_memtime"} s[98:99]
    s_waitcnt lgkmcnt(0)
    v_mov_b32 v1, s98
    s_lshl_b32 s98, s2, 7
    s_add_u32 s98, s98, {PROF_OFF+4*i}
    s_cmp_eq_u32 s33, 0
    s_cselect_b32 s98, s98, {OOB}
    buffer_store_dword v1, off, s[20:23], s98
    ''')

class VM:
    def __init__(self): self.ops=[]
    def issue(self,t): self.ops.append(t)
    def wait_n(self,tag):
        idx=max(i for i,t in enumerate(self.ops) if t==tag)
        return min(63,len(self.ops)-1-idx)

class Sched:
    def __init__(self,nm,cap=2):
        self.nm=nm; self.cap=cap
        self.fill=[[] for _ in range(nm)]; self.post=[[] for _ in range(nm)]; self.pre=[[] for _ in range(nm+1)]
        self.load=[0]*nm; self.tail=[]
    def add_post(self,m,ins,cost=1):
        m=min(m,self.nm-1); self.post[m].append(ins); self.load[m]+=cost
    def add_pre(self,m,ins,cost=1):
        self.pre[m].append(ins)
        if m>0: self.load[m-1]+=cost
    def add_fill(self,m,item):
        self.fill[m].append(item); self.load[m]+=item[1]
    def chains(self,chains,lo,hi,nq,pace=False):
        total=sum(x[1] for c in chains for p in c for x in p)
        free=sum(max(0,self.cap-self.load[m]) for m in range(lo,hi))
        over=max(0,total-int(free*0.97))
        stt=[[0,0,-1] for _ in chains]; done=[None]*len(chains)
        placed=0; ov=0.0; m=lo
        while any(d is None for d in done):
            mm=min(m,self.nm-1)
            capl=self.cap-self.load[mm]
            ov+=over/(hi-lo)
            if ov>=1: capl+=1; ov-=1
            if m>=hi: capl=max(capl,3)
            if pace and over==0 and m<hi:
                capl=min(capl,int(total*(m-lo+1)/(hi-lo)-placed+0.999))
            while capl>0:
                cands=[]
                for k,c in enumerate(chains):
                    if done[k] is not None: continue
                    if k>=nq and (done[k-nq] is None or done[k-nq]>m-2): break
                    ph,ix,pg=stt[k]
                    if ix==0 and pg>=m: continue
                    cands.append(k)
                pick=None
                if capl>=2:
                    for k in cands:
                        if chains[k][stt[k][0]][stt[k][1]][1]>=2: pick=k;break
                if pick is None:
                    for k in cands:
                        if chains[k][stt[k][0]][stt[k][1]][1]<=capl: pick=k;break
                if pick is None: break
                ph,ix,pg=stt[pick]; it=chains[pick][ph][ix]
                if m<self.nm: self.fill[mm].append(it); self.load[mm]+=it[1]
                else: self.tail.append(it)
                capl-=it[1]; placed+=it[1]; ix+=1
                if ix==len(chains[pick][ph]):
                    ph+=1; ix=0; pg=m
                    if ph==len(chains[pick]): done[pick]=m
                stt[pick]=[ph,ix,pg]
            m+=1
            assert m<hi+400
        return m
    def seq(self,lo,hi,L):
        n=len(L); m=lo; nm=self.nm
        for k,x in enumerate(L):
            m=max(m,lo+int(k*(hi-lo)/n))
            lim=max(m,lo+int((k+1)*(hi-lo)/n)-1)
            if m>=nm: self.tail.append((x,1,'x') if x.startswith(('buffer','global')) else (x,1)); continue
            best=min(range(m,min(lim,nm-1)+1),key=lambda g:(self.load[g],g))
            if x.startswith('@'): self.add_post(best,x,2)
            elif x.startswith(('buffer','global')): self.add_fill(best,(x,1,'x'))
            else: self.add_fill(best,(x,1))
            m=best+1
    def emit(self,a,vm,mfma,lds_init,special):
        lds=list(lds_init)
        def out(s):
            nonlocal lds
            if s.startswith('WAITL'):
                need=int(s[5:].split(':')[0]); slack=int(s.split(':')[1]) if ':' in s else 0
                c=[i for i,x in enumerate(lds) if x<=need]
                if c:
                    idx=max(c); n=max(0,len(lds)-1-idx-slack)
                    a(f's_waitcnt lgkmcnt({min(n,15)})'); lds=lds[idx+1:]
            elif s.startswith('@'): special(s[1:])
            else:
                if ';tag=' in s:
                    s,t=s.split(';tag='); lds.append(int(t))
                a(s)
        for s in self.pre[0]: out(s)
        for m in range(self.nm):
            a(mfma(m))
            items=[(f[0],f[2] if len(f)>2 else None) for f in self.fill[m]]+[(s,None) for s in self.post[m]]
            late=[s for s in self.pre[m+1] if s.startswith('@')]
            waits=[s for s in self.pre[m+1] if not s.startswith('@')]
            nv=[x for x in items if not x[0].startswith('v_')]; va=[x for x in items if x[0].startswith('v_')]
            if not late:
                for s in waits: out(s)
            for x in nv+va:
                out(x[0])
                if x[1]: vm.issue(x[1])
            if late:
                for s in late+waits: out(s)
        for f in self.tail:
            out(f[0])
            if len(f)>2: vm.issue(f[2])

def xreg(i,ks):
    if ks<16: return ar((ks*4+i)*4,4)
    return vr(V_X+((ks-16)*4+i)*4,4)

def ch_epiG(acc):
    ch=[]; n=0
    for b in range(4):
        for i in range(4):
            A=acc+(b*4+i)*4; T=V_T+(n%4)*4; n+=1; S=V_SG+(b*4+i)*2
            ch.append([[(f'v_mul_f32 v{T+r}, s40, v{A+r}',1) for r in range(4)],
              [(f'v_exp_f32 v{T+r}, v{T+r}',2) for r in range(4)],
              [(f'v_add_f32 v{T+r}, 1.0, v{T+r}',1) for r in range(4)],
              [(f'v_rcp_f32 v{T+r}, v{T+r}',2) for r in range(4)],
              [(f'v_mul_f32 v{T+r}, v{T+r}, v{A+r}',1) for r in range(4)],
              [(f'v_cvt_pk_bf16_f32 v{S}, v{T}, v{T+1}',1),(f'v_cvt_pk_bf16_f32 v{S+1}, v{T+2}, v{T+3}',1)]])
    return ch,4
def ch_epiU(acc):
    ch=[]; n=0
    for p in range(2):
        for i in range(4):
            T=V_T+(n%2)*8; n+=1; p1=[];p2=[]
            for hb in range(2):
                b=2*p+hb; A=acc+(b*4+i)*4; S=V_SG+(b*4+i)*2; t=T+4*hb
                p1+=[(f'v_lshlrev_b32 v{t}, 16, v{S}',1),(f'v_and_b32 v{t+1}, s41, v{S}',1),
                     (f'v_lshlrev_b32 v{t+2}, 16, v{S+1}',1),(f'v_and_b32 v{t+3}, s41, v{S+1}',1)]
                p2+=[(f'v_mul_f32 v{t+r}, v{t+r}, v{A+r}',1) for r in range(4)]
            p3=[(f'v_cvt_pk_bf16_f32 v{T+j}, v{T+2*j}, v{T+2*j+1}',1) for j in range(4)]
            p4=[(f'buffer_store_dwordx4 v[{T}:{T+3}], v{V_HST}, s[20:23], s{44+i} offen offset:{p*1024}{STF}',2,'st')]
            ch.append([p1,p2,p3,p4])
    return ch,2
def ch_epiQ(acc,b0,coff):
    ch=[]
    for i in range(4):
        D=V_T+i*4; p1=[]
        for hb in range(2):
            A=acc+((b0+hb)*4+i)*4
            p1+=[(f'v_cvt_pk_bf16_f32 v{D+2*hb}, v{A}, v{A+1}',1),(f'v_cvt_pk_bf16_f32 v{D+2*hb+1}, v{A+2}, v{A+3}',1)]
        ch.append([p1,[(f'buffer_store_dwordx4 v[{D}:{D+3}], v{V_QST}, s[20:23], s{48+i} offen offset:{coff}{STF}',2,'st')]])
    return ch,4
def flat(ch):
    out=[]
    for p in range(max(len(c) for c in ch)):
        for c in ch:
            if p<len(c): out+=[x[0] for x in c[p]]
    return out
def epiZ_tail(a,acc):
    a(f'''
    s_mul_i32 s35, s30, 18
    s_lshr_b32 s42, s31, 1
    s_add_u32 s35, s35, s42
    s_add_u32 s35, s35, 16
    s_lshl_b32 s35, s35, 10
    s_and_b32 s42, s31, 1
    s_lshl_b32 s42, s42, 3
    s_add_u32 s35, s35, s42
    s_add_u32 s44, s35, {H_OFF}
    s_add_u32 s45, s44, 147456
    s_add_u32 s46, s44, 294912
    s_add_u32 s47, s44, 442368
    ''')
    ch=[]
    for i in range(4):
        Gr=acc+i*4; U=acc+(4+i)*4; T=V_T+i*4; D=V_SG+2*i
        ch.append([[(f'v_mul_f32 v{T+r}, s40, v{Gr+r}',1) for r in range(4)],
          [(f'v_exp_f32 v{T+r}, v{T+r}',2) for r in range(4)],
          [(f'v_add_f32 v{T+r}, 1.0, v{T+r}',1) for r in range(4)],
          [(f'v_rcp_f32 v{T+r}, v{T+r}',2) for r in range(4)],
          [(f'v_mul_f32 v{T+r}, v{T+r}, v{Gr+r}',1) for r in range(4)],
          [(f'v_cvt_pk_bf16_f32 v{T}, v{T}, v{T+1}',1),(f'v_cvt_pk_bf16_f32 v{T+2}, v{T+2}, v{T+3}',1)],
          [(f'v_and_b32 v{T+1}, s41, v{T}',1),(f'v_lshlrev_b32 v{T}, 16, v{T}',1),(f'v_and_b32 v{T+3}, s41, v{T+2}',1),(f'v_lshlrev_b32 v{T+2}, 16, v{T+2}',1)],
          [(f'v_mul_f32 v{T+r}, v{T+r}, v{U+r}',1) for r in range(4)],
          [(f'v_cvt_pk_bf16_f32 v{D}, v{T}, v{T+1}',1),(f'v_cvt_pk_bf16_f32 v{D+1}, v{T+2}, v{T+3}',1)],
          [(f'buffer_store_dwordx2 v[{D}:{D+1}], v{V_HST}, s[20:23], s{44+i} offen{STF}',2,'st')]])
    for s in flat(ch): a(s)

def chk8(a,off,thr,lab):
    a(f's_mov_b32 s3, 0\nK_{lab}_c:\ns_waitcnt lgkmcnt(0)')
    for i in range(8): a(f's_sub_u32 s{88+i}, s{88+i}, {thr}')
    a(f'''
    s_max_u32 s88, s88, s89
    s_max_u32 s90, s90, s91
    s_max_u32 s92, s92, s93
    s_max_u32 s94, s94, s95
    s_max_u32 s88, s88, s90
    s_max_u32 s92, s92, s94
    s_max_u32 s88, s88, s92
    s_cmp_le_u32 s88, 2
    s_cbranch_scc1 K_{lab}_ok
    s_add_u32 s3, s3, 1
    s_cmp_gt_u32 s3, {OPT['SPIN']}
    s_cbranch_scc1 K_{lab}_ok
    s_load_dwordx8 s[88:95], s[20:21], {off} glc
    s_branch K_{lab}_c
    K_{lab}_ok:
    ''')
V_FL=245; V_FA=244
def vchk(a,off,thr,lab):
    a(f'''
    v_subrev_u32 v{V_FL}, {thr}, v{V_FL}
    v_cmp_lt_u32 vcc, 2, v{V_FL}
    s_mov_b32 s3, 0
    s_cbranch_vccz K_{lab}_ok
    K_{lab}_c:
    buffer_load_dword v{V_FL}, v{V_FA}, s[20:23], {off} offen sc1
    s_add_u32 s3, s3, 1
    s_cmp_gt_u32 s3, {OPT['SPIN']}
    s_cbranch_scc1 K_{lab}_ok
    s_waitcnt vmcnt(0)
    v_subrev_u32 v{V_FL}, {thr}, v{V_FL}
    v_cmp_lt_u32 vcc, 2, v{V_FL}
    s_nop 0
    s_cbranch_vccnz K_{lab}_c
    K_{lab}_ok:
    ''')
def vpoll(a,lab,vdst,vaddr,soff,sleep=0,first_loaded=False):
    a('s_mov_b32 s3, 0')
    if first_loaded: a(f's_branch P_{lab}_t')
    a(f'''
    P_{lab}:
    s_add_u32 s3, s3, 1
    s_cmp_gt_u32 s3, {OPT['SPIN']}
    s_cbranch_scc1 P_{lab}_ok
    buffer_load_dword v{vdst}, v{vaddr}, s[20:23], {soff} offen sc1
    s_waitcnt vmcnt(0)
    P_{lab}_t:
    v_cmp_ne_u32 vcc, s39, v{vdst}
    s_nop 1
    s_cmp_eq_u64 vcc, 0
    s_cbranch_scc1 P_{lab}_ok
    ''')
    if sleep: a(f's_sleep {sleep}')
    a(f's_branch P_{lab}\nP_{lab}_ok:')

def body(a,vm,accset,epi,kind='full',dma=True,last=False,mid=False,seqs=(),pace=True,cap=2,epilo=1):
    acc=V_ACC[accset]; ns=72 if kind=='full' else 36; nm=ns*4
    S=Sched(nm,cap)
    step=4096 if kind=='full' else 8192; midg=9 if kind=='full' else 5
    def rd_off(t):
        g=t//4
        return (g*step if g<midg else (g-midg)*step), g>=midg
    for t in range(ns):
        m0=t*4
        if t%2==0: S.add_pre(m0,f'WAITL{min(t+1,ns-1)}')
        tn=t+4; w=V_WF+(t%4)*4; ad=V_AD+(t%4)
        if tn<ns:
            off,hi=rd_off(tn); _,hip=rd_off(t)
            if hi and not hip: S.add_post(m0+1,f'v_add_u32 v{ad}, {midg*step}, v{ad}')
            S.add_post(m0+3,f'ds_read_b64_tr_b16 v[{w}:{w+1}], v{ad} offset:{off};tag={tn}')
            S.add_post(m0+4,f'ds_read_b64_tr_b16 v[{w+2}:{w+3}], v{ad} offset:{off+512};tag={tn}')
        elif not last:
            S.add_post(m0+1,f'v_mov_b32 v{ad}, v{V_NB+(t%4)}')
            if tn==ns: S.add_post(m0+2,'@SUB',2)
            S.add_post(m0+3,f'ds_read_b64_tr_b16 v[{w}:{w+1}], v{ad} offset:0;tag={tn}')
            S.add_post(m0+4,f'ds_read_b64_tr_b16 v[{w+2}:{w+3}], v{ad} offset:512;tag={tn}')
    if dma:
        for n in range(18):
            m=(n//3)*16+(n%3)*5+1
            S.add_fill(m,('s_add_u32 m0, m0, 4096',1))
            S.add_fill(m+1,(f'global_load_lds_dwordx4 v[{V_DA}:{V_DA+1}], off',1,'dma'))
            S.add_fill(m+1,(f'v_lshl_add_u64 v[{V_DA}:{V_DA+1}], v[{V_DA}:{V_DA+1}], 0, {S_DI}',1))
    if mid: S.add_post(OPT['MIDKS']*16+1,'@MID',3)
    endm=0
    if epi: endm=S.chains(epi[0],epilo,nm-6,epi[1],pace=pace)
    for lo,hi,L in seqs:
        S.seq(endm+1 if lo=='epi' else lo,hi,L)
    def mf(m):
        t=m//4;i=m%4
        ks,b=(t//4,t%4) if kind=='full' else (t//2,t%2)
        D=acc+(b*4+i)*4; w=V_WF+(t%4)*4
        return f'v_mfma_f32_16x16x32_bf16 {vr(D,4)}, {vr(w,4)}, {xreg(i,ks)}, {"0" if ks==0 else vr(D,4)}'
    def special(n):
        if n=='SUB': a(f's_waitcnt vmcnt({vm.wait_n("dma")})\ns_barrier')
        elif n=='MID':
            a(f's_waitcnt vmcnt({min(63,len(vm.ops))})\ns_barrier')
            a(f'buffer_store_dword v{V_ONE}, off, s[20:23], s24 sc1'); vm.issue('fl')
        elif n=='CHK8': chk8(a,'s26','s39','Zh')
    S.emit(a,vm,mf,[0,0,1,1,2,2,3,3],special)

def grp_w(g):
    return [(f's_add_u32 m0, s66, {g*4096}',1),
       (f'global_load_lds_dwordx4 v[{V_DA}:{V_DA+1}], off',1,f'g{g}'),
       (f's_add_u32 m0, s66, {HALF+g*4096}',1),
       (f'v_lshl_add_u64 v[{V_DA}:{V_DA+1}], v[{V_DA}:{V_DA+1}], 0, {S_DI}',1),
       (f'global_load_lds_dwordx4 v[{V_QA}:{V_QA+1}], off',1,f'g{g}'),
       (f'v_lshl_add_u64 v[{V_QA}:{V_QA+1}], v[{V_QA}:{V_QA+1}], 0, {S_QI}',1)]
def grp_x(g):
    return [(f'buffer_load_dwordx4 {xreg(i,g)}, v{V_XO+i}, s[20:23], s{52+g//4} offen offset:{(g%4)*1024} sc1',1,f'g{g}') for i in range(4)]
def u0_items(g):
    return [(f's_add_u32 m0, s66, {HALF+g*4096}',1),
            (f'global_load_lds_dwordx4 v[{V_UA}:{V_UA+1}], off',1,f'u{g}'),
            (f'v_lshl_add_u64 v[{V_UA}:{V_UA+1}], v[{V_UA}:{V_UA+1}], 0, {S_DI}',1)]

def bodyF(a,vm):
    FD=OPT['FD']; nm=18*32; nxt=OPT['FD0']
    S=Sched(nm)
    def regs(sl):
        if sl<4: return V_SG+sl*4, V_NB+sl, V_ACC[1]+sl*16
        return V_WF+(sl-4)*4, V_AD+(sl-4), V_ACC[0]+(sl-4)*16
    for ks in range(18):
        for sl in range(8):
            t=ks*8+sl; m0=t*4; w,ad,_=regs(sl)
            if sl==2: S.add_pre(m0,f'@SKIP{ks}')
            if sl==4: S.pre[m0].append(f'@LAB{ks}')
            if sl%2==0: S.add_pre(m0,f'WAITL{t+1}:4')
            kn=ks+1
            m2=m0+4 if sl not in (1,3) else m0+3
            if kn<18:
                if kn==9: S.add_post(m0+1,f'v_add_u32 v{ad}, 36864, v{ad}')
                off=(kn%9)*4096
                S.add_post(m0+3,f'ds_read_b64_tr_b16 v[{w}:{w+1}], v{ad} offset:{off};tag={t+8}')
                S.add_post(m2,f'ds_read_b64_tr_b16 v[{w+2}:{w+3}], v{ad} offset:{off+512};tag={t+8}')
            elif sl>=4:
                S.add_post(m0+1,f'v_add_u32 v{ad}, {HALF}, v{V_BN+sl-4}')
                if sl==4: S.add_post(m0+2,'@SUB',2)
                S.add_post(m0+3,f'ds_read_b64_tr_b16 v[{w}:{w+1}], v{ad} offset:0;tag={t+8}')
                S.add_post(m2,f'ds_read_b64_tr_b16 v[{w+2}:{w+3}], v{ad} offset:512;tag={t+8}')
        base=ks*32
        if ks<17: S.add_post(base+30,f'@READY{ks+1}',1)
        if ks%3==0 and 0<ks<17: S.add_post(base+1,'s_barrier',1)
        mand=[base+2,base+4,base+5,base+6]+[base+16+j for j in (0,1,2,4,5,6,8,9,10,12,13)]
        items=[]
        for _ in range(2):
            if nxt<18 and nxt<=ks+FD: items+=grp_x(nxt); nxt+=1
        if len(items)<=4: mand=[base+2,base+5]+[base+16+j for j in (0,2,4,6,8,10,12)]
        if 3<=ks<17: items=items[:2]+u0_items(ks-3)+items[2:] if len(items)>=2 else u0_items(ks-3)
        if ks==OPT['tu0']: items+=[(f'global_load_dword v{V_DUM}, v{V_TR}, s[18:19]',1,'t')]
        if ks==OPT['tg1']: items+=[(f'global_load_dword v{V_DUM}, v{V_TR}, s[60:61]',1,'t')]
        if ks==OPT['tu1']: items+=[(f'global_load_dword v{V_DUM}, v{V_TR}, s[4:5]',1,'t')]
        if ks<17:
            for j,it in enumerate(items): S.add_fill(mand[j],it)
        else:
            for j,it in enumerate(u0_items(14)): S.add_fill(base+2+j,it)
            for j,it in enumerate(u0_items(15)+u0_items(16)+u0_items(17)): S.add_fill(base+16+4+j,it)
    ch,nq=ch_epiQ(V_ACC[1],0,0)
    S.chains(ch,17*32+18,nm,nq)
    def mf(m):
        t=m//4;i=m%4;ks=t//8;sl=t%8
        w,_,ac=regs(sl); D=ac+i*4
        return f'v_mfma_f32_16x16x32_bf16 {vr(D,4)}, {vr(w,4)}, {xreg(i,ks)}, {"0" if ks==0 else vr(D,4)}'
    def special(n):
        if n.startswith('SKIP'): a(f's_cbranch_vccz KF_s{n[4:]}')
        elif n.startswith('LAB'): a(f'KF_s{n[3:]}:')
        elif n.startswith('READY'): a(f's_waitcnt vmcnt({vm.wait_n("g"+n[5:])})')
        elif n=='SUB': a(f's_waitcnt vmcnt({vm.wait_n("u%d"%OPT["MIDKS"])})\ns_barrier')
    S.emit(a,vm,mf,[t for t in range(8) for _ in range(2)],special)

def lamword(seq,start):
    w=0
    for k in range(6): w|=(seq[start+k] if start+k<len(seq) else 31)<<(5*k)
    return w
def c_roles_scalar(a):
    a(f'''
    s_and_b32 s92, s2, 1
    s_bfe_u32 s69, s2, 0x20001
    s_bfe_u32 s93, s2, 0x20003
    s_bfe_u32 s94, s2, 0x10005
    s_lshr_b32 s95, s2, 6
    s_lshl_b32 s95, s95, 1
    s_add_u32 s95, s95, s94
    s_lshl_b32 s57, s92, 3
    s_add_u32 s57, s57, s95
    s_mov_b32 s68, 0
    s_mov_b32 s83, 0
    s_mov_b32 s7, 147456
    s_mul_i32 s73, s69, {18*64*1152}
    s_mul_i32 s74, s69, {18*2048}
    s_add_u32 s74, s74, {H_OFF}
    s_mov_b32 s86, {4608*1152+2048}
    s_mov_b32 s75, {lamword(LAM_H,5)}
    s_mov_b32 s76, {lamword(LAM_H,11)}
    s_mov_b32 s77, {lamword(LAM_H,17)}
    s_mov_b32 s78, {lamword(LAM_H,0)}
    s_mov_b32 s82, 18
    s_cmp_lt_u32 s93, 3
    s_cbranch_scc1 C_rh
    s_lshl_b32 s57, s92, 2
    s_add_u32 s57, s57, s69
    s_lshl_b32 s83, s57, 3
    s_add_u32 s83, s83, s95
    s_lshl_b32 s57, s57, 1
    s_cmp_ge_u32 s95, 3
    s_cselect_b32 s94, 1, 0
    s_add_u32 s57, s57, s94
    s_mul_i32 s94, s94, 3
    s_sub_u32 s93, s95, s94
    s_cmp_lt_u32 s95, 6
    s_cselect_b32 s68, 1, 2
    s_cselect_b32 s93, s93, 0
    s_mov_b32 s69, 0
    s_mov_b32 s7, 18432
    s_mov_b32 s73, 0
    s_mov_b32 s74, {O_OFF}
    s_mov_b32 s86, {576*1152+2048}
    s_mov_b32 s75, {lamword(LAM_S,5)}
    s_mov_b32 s76, {lamword(LAM_S,11)}
    s_mov_b32 s77, {lamword(LAM_S,17)}
    s_mov_b32 s78, {lamword(LAM_S,0)}
    s_mov_b32 s82, 9
    s_mov_b32 s90, s88
    s_mov_b32 s91, s89
    C_rh:
    s_sub_u32 s84, s90, 2048
    s_subb_u32 s85, s91, 0
    s_mov_b32 s87, 0x20000
    s_mul_i32 s70, s57, 3
    s_add_u32 s70, s70, s93
    s_mul_i32 s71, s93, 384
    s_add_u32 s73, s73, s71
    s_mul_i32 s72, s33, 3072
    ''')
def c_roles_vector():
    A,B,C='v1','v255','v253'
    t=f'''
    v_lshlrev_b32 v{C_LV}, 4, v0
    v_lshrrev_b32 {A}, 3, v0
    s_lshl_b32 s92, s33, 3
    v_add_u32 {A}, s92, {A}
    v_bfe_u32 {B}, {A}, 2, 2
    v_lshlrev_b32 {B}, 3, {B}
    v_lshrrev_b32 {C}, 4, {A}
    v_lshl_add_u32 {B}, {C}, 2, {B}
    v_and_b32 {C}, 3, {A}
    v_add_u32 {B}, {B}, {C}
    s_cmp_eq_u32 s68, 0
    s_cselect_b64 s[92:93], -1, 0
    v_cndmask_b32 {A}, {B}, {A}, s[92:93]
    v_mul_u32_u24 {A}, 1152, {A}
    v_bfe_u32 {B}, v0, 1, 2
    v_lshrrev_b32 {C}, 4, v0
    v_xor_b32 {B}, {B}, {C}
    v_lshl_add_u32 {A}, {B}, 5, {A}
    v_and_b32 {B}, 1, v0
    v_lshl_add_u32 {A}, {B}, 4, {A}
    v_add_u32 v{C_DV}, 2048, {A}
    v_add_u32 v{C_DV+1}, {2048+128-1024}, {A}
    v_add_u32 v{C_DV+2}, {2048+256-2048}, {A}
    s_lshl_b32 s92, s57, 3
    s_lshl_b32 s93, s33, 1
    s_add_u32 s92, s92, s93
    s_mul_i32 s93, s92, s7
    v_add_u32 v{C_HV}, s93, v{C_LV}
    v_add_u32 v{C_HV+1}, s7, v{C_HV}
    v_and_b32 {A}, 7, v0
    v_lshlrev_b32 {A}, 1, {A}
    v_bfe_u32 {B}, v0, 3, 1
    s_lshl_b32 s92, s92, 4
    v_add3_u32 {A}, {A}, {B}, s92
    v_mul_u32_u24 {A}, 1152, {A}
    v_lshrrev_b32 {B}, 4, v0
    v_lshl_add_u32 {A}, {B}, 3, {A}
    s_lshl_b32 s92, s69, 5
    s_add_u32 s92, s92, s71
    v_add_u32 v{C_OA}, s92, {A}
    v_add_u32 v{C_OA+1}, 18432, v{C_OA}
    '''
    return [l.strip() for l in t.split('\n') if l.strip()]
def prefetch(slot,tabreg='s75',parts='WH'):
    W=lambda l: f'buffer_load_dwordx4 v{C_DV+l}, s[84:87], s80 offen offset:{1024*l} lds'
    def H(n):
        ks,i=n//2,n%2; r=ORDER.index(slot)*16+n*4
        return f'buffer_load_dwordx4 a[{r}:{r+3}], v{C_HV+i}, s[20:23], s81 offen offset:{ks*1024} sc1'
    L=[f's_and_b32 s79, {tabreg}, 31', f's_mul_i32 s80, s79, {64*1152}', 's_lshl_b32 s81, s79, 11', 's_add_u32 s80, s80, s73', 's_add_u32 s81, s81, s74',
       's_cmp_lt_u32 s79, 18', f's_cselect_b32 s80, s80, {OOB}', f's_cselect_b32 s81, s81, {OOB}',
       f's_add_u32 m0, s72, {slot*STG}', H(0), W(0), f's_lshr_b32 {tabreg}, {tabreg}, 5', W(1), W(2),
       f's_add_u32 m0, s72, {slot*STG+4*3072}', H(1), 's_add_u32 s80, s80, 36864', W(0), W(1), W(2), H(2), H(3)]
    if 'W' not in parts: L=[x for x in L if ' lds' not in x and 'm0' not in x and 's80' not in x]
    if 'H' not in parts: L=[x if not x.startswith('buffer_load_dwordx4 a') else 's_nop 0' for x in L if 's81' not in x or x.startswith('buffer')]
    return L
def c_addr_items():
    A,B,C='v1','v96','v97'
    L=[f'v_lshrrev_b32 {A}, 5, v0', f'v_mul_u32_u24 {A}, 3072, {A}', f'v_bfe_u32 {B}, v0, 2, 3', f'v_lshl_add_u32 {A}, {B}, 7, {A}',
       f'v_lshrrev_b32 {B}, 1, {B}', f'v_xor_b32 {B}, s69, {B}', f'v_and_b32 {C}, 3, v0', f'v_lshl_add_u32 {A}, {C}, 3, {A}']
    for b_ in range(4):
        L+=[f'v_xor_b32 {C}, {b_}, {B}', f'v_lshl_add_u32 v{C_AD[b_]}, {C}, 5, {A}']
        for hs in range(1,3): L.append(f'v_add_u32 v{C_AD[4*hs+b_]}, {2*STG*hs}, v{C_AD[b_]}')
    return L
def c_rd(slot,t,half):
    ks,b_=t//12,t%12
    w=C_WF[t%6]+2*half; ad=C_AD[4*(slot//2)+(b_&3)]
    off=(slot%2)*STG+ks*12288+(b_//4)*1024+half*6144
    return f'ds_read_b64_tr_b16 v[{w}:{w+1}], v{ad} offset:{off}'

def bodyZ(a,vm,seqs,capa=2):
    ns=72; nm=288
    S=Sched(nm,capa)
    for t in range(ns):
        m0=t*4
        if t%2==0: S.add_pre(m0,f'WAITL{min(t+1,ns-1)}')
        tn=t+4; w=V_WF+(t%4)*4; ad=V_AD+(t%4)
        if tn<ns:
            g=(tn%36)//4; gp=(t%36)//4
            if tn>=36 and t<36:
                S.add_post(m0+1,f'v_add_u32 v{ad}, {4096*((t%4)//2)}, v{V_BN+2+(t%2)}')
            elif g==5 and gp==4: S.add_post(m0+1,f'v_add_u32 v{ad}, 40960, v{ad}')
            off=(g if g<5 else g-5)*8192
            S.add_post(m0+3,f'ds_read_b64_tr_b16 v[{w}:{w+1}], v{ad} offset:{off};tag={tn}')
            S.add_post(m0+4,f'ds_read_b64_tr_b16 v[{w+2}:{w+3}], v{ad} offset:{off+512};tag={tn}')
    ch,nq=ch_epiU(V_ACC[1])
    e1=S.chains(ch,1,138,nq,pace=False)
    assert e1<=143,e1
    ch2=[]
    for n in range(8):
        A=64+n*4; T=V_T+(n%4)*4
        ch2.append([[(f'v_mul_f32 v{T+r}, s40, v{A+r}',1) for r in range(4)],
          [(f'v_exp_f32 v{T+r}, v{T+r}',2) for r in range(4)],
          [(f'v_add_f32 v{T+r}, 1.0, v{T+r}',1) for r in range(4)],
          [(f'v_rcp_f32 v{T+r}, v{T+r}',2) for r in range(4)],
          [(f'v_mul_f32 v{A+r}, v{T+r}, v{A+r}',1) for r in range(4)]])
    for lo,hi,L in seqs: S.seq(lo,hi,L)
    S.chains(ch2,148,nm-2,4,pace=False)
    def mf(m):
        t=m//4;i=m%4; p=t//36; ks=(t%36)//2; b=t%2
        D=(64 if p==0 else 32)+(b*4+i)*4; w=V_WF+(t%4)*4
        return f'v_mfma_f32_16x16x32_bf16 {vr(D,4)}, {vr(w,4)}, {xreg(i,ks)}, {"0" if ks==0 else vr(D,4)}'
    def special(n):
        if n=='CHK8':
            a(f's_waitcnt vmcnt({vm.wait_n("fld")})'); vchk(a,'s26','s39','Zh')
        elif n=='FLD':
            a(f'buffer_load_dword v{V_FL}, v{V_FA}, s[20:23], s26 offen sc1'); vm.issue('fld')
        elif n=='G2':
            a(f's_waitcnt vmcnt({vm.wait_n("st")})\nbuffer_store_dword v{V_ONE}, off, s[20:23], s25 sc1'); vm.issue('x')
        elif n=='QL':
            a('buffer_load_dword v255, v253, s[20:23], s26 offen sc1'); vm.issue('ql')
        elif n=='QP':
            a(f's_waitcnt vmcnt({vm.wait_n("ql")})'); vpoll(a,'q',255,253,'s26',first_loaded=True)
    S.emit(a,vm,mf,[0,0,1,1,2,2,3,3],special)
def z_tail(a):
    a(f'''
    s_mul_i32 s35, s30, 18
    s_add_u32 s35, s35, s31
    s_add_u32 s35, s35, 14
    s_lshl_b32 s35, s35, 10
    s_add_u32 s44, s35, {H_OFF}
    s_add_u32 s45, s44, 147456
    s_add_u32 s46, s44, 294912
    s_add_u32 s47, s44, 442368
    ''')
    for i in range(4):
        D=V_T+i*4
        for hb in range(2):
            G=64+(hb*4+i)*4; U=32+(hb*4+i)*4
            for r in range(4): a(f'v_mul_f32 v{U+r}, v{U+r}, v{G+r}')
            a(f'v_cvt_pk_bf16_f32 v{D+2*hb}, v{U}, v{U+1}\nv_cvt_pk_bf16_f32 v{D+2*hb+1}, v{U+2}, v{U+3}')
        a(f'buffer_store_dwordx4 v[{D}:{D+3}], v{V_HST}, s[20:23], s{44+i} offen{STF}')

def attention(a,waitq,rows_split):
    Q=8; KB=(44,80); L=116; O=148; AW=220; V0,V1=44,80
    a(f'''
    v_lshrrev_b32 v2, 3, v0
    v_and_b32 v3, 7, v0
    v_mul_u32_u24 v3, 144, v3
    s_lshl_b32 s92, s33, 3
    v_add_u32 v2, s92, v2
    s_lshr_b32 s93, s83, 1
    s_lshl_b32 s93, s93, 5
    v_add_u32 v229, s93, v2
    v_add_u32 v4, 7, v2
    s_mov_b32 s94, 3456
    s_mov_b32 s95, 0x05040100
    s_mov_b32 s96, 0x07060302
    s_mov_b32 s97, 0x3eae1a93
    ''')
    n1,b1,b2=rows_split
    a(f'v_mov_b32 v6, {(b2-n1*3456)&0xffffffff}\nv_mov_b32 v7, {b1}')
    for w in range(8):
        a(f'v_min_u32 v5, {w}, v229\nv_sub_u32 v5, v4, v5\nv_cmp_gt_u32 vcc, {n1}, v5\nv_mad_u32_u24 v{AW+w}, v5, s94, v3\ns_nop 0\nv_cndmask_b32 v5, v6, v7, vcc\nv_add_u32 v{AW+w}, v{AW+w}, v5')
    waitq()
    def rd(dst,ad,off):
        for m in range(9): a(f'ds_read_b128 v[{dst+4*m}:{dst+4*m+3}], v{ad} offset:{off+16*m}')
    def rdl(dst,ad,off): return [f'ds_read_b128 v[{dst+4*m}:{dst+4*m+3}], v{ad} offset:{off+16*m}' for m in range(9)]
    rd(Q,AW,0); rd(KB[0],AW,1152)
    for w in range(8):
        a('s_waitcnt lgkmcnt(0)')
        nx=rdl(KB[(w+1)%2],AW+w+1,1152) if w<7 else rdl(V0,AW,2304)
        k=KB[w%2]
        for j in range(9):
            a(nx[j])
            for hh in range(4):
                c='0' if j==0 else f'v{L+hh*8+w}'
                a(f'v_dot2_f32_bf16 v{L+hh*8+w}, v{Q+9*hh+j}, v{k+9*hh+j}, {c}')
    rd(V1,AW+1,2304)
    a('v_mov_b32 v5, 0xff800000')
    for w in range(1,8):
        a(f'v_cmp_le_u32 vcc, {w}, v229\ns_nop 1')
        for hh in range(4): a(f'v_cndmask_b32 v{L+hh*8+w}, v5, v{L+hh*8+w}, vcc')
    M=Q
    for step in range(4):
        for hh in range(4):
            l=L+hh*8
            a([f'v_max3_f32 v{M+hh}, v{l}, v{l+1}, v{l+2}',f'v_max3_f32 v{M+hh}, v{M+hh}, v{l+3}, v{l+4}',f'v_max3_f32 v{M+hh}, v{M+hh}, v{l+5}, v{l+6}',f'v_max_f32 v{M+hh}, v{M+hh}, v{l+7}'][step])
    for hh in range(4): a(f'v_mul_f32 v{M+hh}, s97, v{M+hh}')
    for hh in range(4):
        for w in range(8): a(f'v_fma_f32 v{L+hh*8+w}, v{L+hh*8+w}, s97, -v{M+hh}')
    for r in range(32): a(f'v_exp_f32 v{L+r}, v{L+r}')
    for hh in range(4): a(f'v_add_f32 v{M+hh}, v{L+hh*8}, v{L+hh*8+1}')
    for w in range(2,8):
        for hh in range(4): a(f'v_add_f32 v{M+hh}, v{M+hh}, v{L+hh*8+w}')
    for hh in range(4): a(f'v_rcp_f32 v{M+hh}, v{M+hh}')
    a('s_nop 0')
    for hh in range(4):
        for w in range(8): a(f'v_mul_f32 v{L+hh*8+w}, v{L+hh*8+w}, v{M+hh}')
    for hh in range(4):
        for wp in range(4): a(f'v_cvt_pk_bf16_f32 v{L+hh*8+wp}, v{L+hh*8+2*wp}, v{L+hh*8+2*wp+1}')
    for wp in range(4):
        a('s_waitcnt lgkmcnt(0)')
        nx=[x for p in zip(rdl(V0,AW+2*wp+2,2304),rdl(V1,AW+2*wp+3,2304)) for x in p] if wp<3 else []
        for m in range(9):
            for j in range(4*m,4*m+4):
                a(f'v_perm_b32 v{230+(j%4)}, v{V1+j}, v{V0+j}, s95')
                a(f'v_perm_b32 v{234+(j%4)}, v{V1+j}, v{V0+j}, s96')
            if nx: a(nx[2*m]); a(nx[2*m+1])
            for j in range(4*m,4*m+4):
                c0='0' if wp==0 else f'v{O+2*j}'; c1='0' if wp==0 else f'v{O+2*j+1}'
                a(f'v_dot2_f32_bf16 v{O+2*j}, v{230+(j%4)}, v{L+(j//9)*8+wp}, {c0}')
                a(f'v_dot2_f32_bf16 v{O+2*j+1}, v{234+(j%4)}, v{L+(j//9)*8+wp}, {c1}')
    a(f'''
    v_and_b32 v3, 7, v0
    v_mul_u32_u24 v3, 2304, v3
    v_lshrrev_b32 v2, 3, v0
    v_lshl_add_u32 v3, v2, 4, v3
    s_lshr_b32 s92, s83, 1
    s_lshl_b32 s92, s92, 2
    s_add_u32 s92, s92, s33
    s_mul_i32 s92, s92, 18432
    s_and_b32 s93, s83, 1
    s_lshl_b32 s93, s93, 7
    s_add_u32 s92, s92, s93
    s_add_u32 s92, s92, {O_OFF}
    ''')
    for m in range(9):
        for j in range(4*m,4*m+4): a(f'v_cvt_pk_bf16_f32 v{Q+j}, v{O+2*j}, v{O+2*j+1}')
        a(f'buffer_store_dwordx4 v[{Q+4*m}:{Q+4*m+3}], v3, s[20:23], s92 offen offset:{256*m} sc1')

OST=110592; SSTG=36864
def s_gemm(a):
    AD=44
    BF=64
    WFs=80
    AC=128
    def dma(slot):
        L=[]
        for t3 in range(3):
            L.append(f's_add_u32 m0, s72, {slot*SSTG+t3*3072}')
            L.append(f's_add_u32 s81, s80, {t3*384}')
            for l in range(3): L.append(f'buffer_load_dwordx4 v{C_DV+l}, s[84:87], s81 offen offset:{1024*l} lds')
        L.append('s_add_u32 s80, s80, 36864')
        return L
    a('s_mul_i32 s72, s33, 9216\ns_mov_b32 s80, 0')
    for x in dma(0): a(x)
    for m in range(9): a(f'ds_write_b128 v3, v[{8+4*m}:{8+4*m+3}] offset:{256*m}')
    for x in dma(1)+dma(2): a(x)
    a(f'''
    v_lshrrev_b32 v4, 5, v0
    v_mul_u32_u24 v4, 9216, v4
    v_bfe_u32 v5, v0, 2, 3
    v_lshl_add_u32 v4, v5, 7, v4
    v_lshrrev_b32 v5, 1, v5
    v_and_b32 v6, 3, v0
    v_lshl_add_u32 v4, v6, 3, v4
    s_mul_i32 s92, s33, 9
    v_lshlrev_b32 v7, 4, v0
    v_add_u32 v7, {OST}, v7
    ''')
    for bb in range(9):
        a(f'''
        s_add_u32 s93, s92, {bb}
        s_and_b32 s94, s93, 3
        s_lshr_b32 s93, s93, 2
        s_lshl_b32 s93, s93, 10
        v_xor_b32 v6, s94, v5
        v_lshl_add_u32 v6, v6, 5, v4
        v_add_u32 v{AD+bb}, s93, v6
        v_add_u32 v{AD+9+bb}, {2*SSTG}, v{AD+bb}
        ''')
    for r in range(0,72,2): a(f'v_mov_b64 v[{AC+r}:{AC+r+1}], 0')
    WB=(80,200)
    def reads(k):
        slot=k%3; wb=WB[k%2]; bf=BF+8*(k%2)
        R=[f'ds_read_b128 v[{bf}:{bf+3}], v7',f'ds_read_b128 v[{bf+4}:{bf+7}], v7 offset:18432','v_add_u32 v7, 1024, v7']
        for bb in range(9):
            ad=AD+bb+(9 if slot==2 else 0); off=(slot%2)*SSTG
            R.append(f'ds_read_b64_tr_b16 v[{wb+4*bb}:{wb+4*bb+1}], v{ad} offset:{off}')
            R.append(f'ds_read_b64_tr_b16 v[{wb+4*bb+2}:{wb+4*bb+3}], v{ad} offset:{off+18432}')
        return R
    a('s_waitcnt vmcnt(18) lgkmcnt(0)\ns_barrier')
    for x in reads(0): a(x)
    a('''
    v_lshrrev_b32 v242, 3, v0
    s_lshl_b32 s93, s33, 3
    v_add_u32 v242, s93, v242
    v_mul_u32_u24 v242, 2304, v242
    v_and_b32 v243, 7, v0
    v_lshl_add_u32 v242, v243, 4, v242
    v_add_u32 v242, 2048, v242
    v_bfe_u32 v243, v0, 3, 1
    v_mul_u32_u24 v243, 9216, v243
    v_and_b32 v6, 7, v0
    v_lshl_add_u32 v243, v6, 7, v243
    v_lshrrev_b32 v6, 4, v0
    v_lshl_add_u32 v243, v6, 3, v243
    ''')
    a('s_mov_b32 s82, 3')
    a('S_loop:')
    for k in range(6):
        a('s_waitcnt vmcnt(9) lgkmcnt(0)\ns_barrier')
        if k==3:
            a(f'''
            s_cmp_lg_u32 s82, 1
            s_cbranch_scc1 S_nox
            s_sub_u32 s84, s88, 2048
            s_subb_u32 s85, s89, 0
            s_mov_b32 s86, {2048*1152+2048}
            s_lshr_b32 s80, s83, 1
            s_lshl_b32 s80, s80, 6
            s_and_b32 s93, s83, 1
            s_add_u32 s80, s80, s93
            s_mul_i32 s80, s80, 1152
            v_mov_b32 v{C_DV}, v242
            v_add_u32 v{C_DV+1}, {128-1024}, v242
            v_add_u32 v{C_DV+2}, {256-2048}, v242
            S_nox:
            ''')
        if k==4:
            a(f's_cmp_eq_u32 s82, 1\ns_cselect_b32 s80, {OOB-0x100000}, s80')
        D=dma(k%3); R=reads(k+1); wb=WB[k%2]; bf=BF+8*(k%2)
        for n in range(18):
            bb,j=n//2,n%2; r=AC+n*4
            a(f'v_mfma_f32_16x16x32_bf16 {vr(r,4)}, {vr(wb+4*bb,4)}, {vr(bf+4*j,4)}, {vr(r,4)}')
            for _ in range(2 if n<3 else 1):
                if R: a(R.pop(0))
            if D: a(D.pop(0))
        assert not D and not R
    a('s_sub_u32 s82, s82, 1\ns_cmp_lg_u32 s82, 0\ns_cbranch_scc1 S_loop')
    a('s_waitcnt vmcnt(0) lgkmcnt(0)\ns_barrier')
    a('s_mul_i32 s92, s33, 9')
    for bb in range(9):
        a(f'''
        s_add_u32 s93, s92, {bb}
        s_and_b32 s94, s93, 3
        s_lshl_b32 s94, s94, 5
        s_lshr_b32 s93, s93, 2
        s_lshl_b32 s93, s93, 10
        s_add_u32 s93, s93, s94
        v_add_u32 v6, s93, v243
        ds_read_b64 v[{8+4*bb}:{9+4*bb}], v6
        ds_read_b64 v[{10+4*bb}:{11+4*bb}], v6 offset:18432
        ''')
    st(a,10)
    s_flag_setup(a)
    a('s_waitcnt lgkmcnt(0)')
    s_send(a,AC)
    a('v_mov_b32 v5, s39\ns_waitcnt vmcnt(0)\ns_barrier\nbuffer_store_dword v5, v241, s[20:23], s24 offen sc1')
    a('s_branch C_fin')

def s_send(a,AC=None):
    a(f'''
    s_mul_i32 s92, s33, 9
    v_and_b32 v4, 7, v0
    v_lshrrev_b32 v5, 4, v0
    v_lshl_add_u32 v4, v5, 4, v4
    v_lshlrev_b32 v4, 4, v4
    v_bfe_u32 v5, v0, 3, 1
    v_mul_u32_u24 v5, {4*4*3072}, v5
    v_add_u32 v4, v4, v5
    s_and_b32 s93, s83, 1
    s_lshl_b32 s93, s93, 7
    s_lshr_b32 s94, s83, 2
    s_mul_i32 s94, s94, {3*XT}
    s_add_u32 s93, s93, s94
    s_bfe_u32 s94, s83, 0x10001
    s_mul_i32 s94, s94, 6144
    s_add_u32 s93, s93, s94
    s_add_u32 s93, s93, {X_OFF}
    ''')
    if AC is None: a('v_mov_b64 v[8:9], -1\nv_mov_b64 v[10:11], -1')
    for bb in range(9):
        a(f'''
        s_add_u32 s94, s92, {bb}
        s_mul_i32 s95, s94, 43
        s_lshr_b32 s95, s95, 9
        s_mul_i32 s96, s95, 12
        s_sub_u32 s94, s94, s96
        s_mul_i32 s95, s95, {XT}
        s_and_b32 s96, s94, 3
        s_mul_i32 s96, s96, {XD}
        s_add_u32 s95, s95, s96
        s_lshr_b32 s94, s94, 2
        s_lshl_b32 s94, s94, 10
        s_add_u32 s95, s95, s94
        s_add_u32 s95, s95, s93
        ''')
        for j in range(2):
            d=8
            if AC is not None:
                n=bb*2+j; r=AC+n*4; d=r
                a(f'v_cvt_pk_bf16_f32 v{d}, v{r}, v{r+1}\nv_cvt_pk_bf16_f32 v{d+1}, v{r+2}, v{r+3}')
                a(f'v_mov_b64 v[{d+2}:{d+3}], v[{8+2*n}:{9+2*n}]')
            a(f'buffer_store_dwordx4 v[{d}:{d+3}], v4, s[20:23], s95 offen offset:{3072*j} sc1')
def s_xload(a):
    a(f'''
    v_and_b32 v4, 15, v0
    v_lshlrev_b32 v4, 1, v4
    s_lshr_b32 s92, s83, 1
    s_lshl_b32 s92, s92, 6
    s_and_b32 s93, s83, 1
    s_add_u32 s92, s92, s93
    v_add_u32 v4, s92, v4
    v_mul_u32_u24 v4, 1152, v4
    v_lshrrev_b32 v5, 4, v0
    v_lshl_add_u32 v4, v5, 3, v4
    s_mul_i32 s92, s33, 288
    v_add_u32 v4, s92, v4
    v_add_u32 v5, {32*1152}, v4
    ''')
    for bb in range(9):
        for j in range(2):
            n=bb*2+j
            a(f'global_load_dwordx2 a[{2*n}:{2*n+1}], v{4+j}, s[88:89] offset:{bb*32}')
def s_flag_setup(a):
    a(f'''
    v_min_u32 v4, 11, v0
    v_lshrrev_b32 v5, 2, v4
    v_lshlrev_b32 v5, 7, v5
    v_bfe_u32 v241, v4, 1, 1
    v_lshl_add_u32 v5, v241, 5, v5
    v_and_b32 v4, 1, v4
    v_lshl_add_u32 v241, v4, 2, v5
    s_lshr_b32 s24, s83, 2
    s_mul_i32 s24, s24, 384
    s_bfe_u32 s95, s83, 0x10001
    s_lshl_b32 s95, s95, 6
    s_add_u32 s24, s24, s95
    s_and_b32 s95, s83, 1
    s_lshl_b32 s95, s95, 3
    s_add_u32 s24, s24, s95
    s_add_u32 s24, s24, {FLG_OFF+16}
    s_cmp_eq_u32 s33, 0
    s_cselect_b32 s24, s24, {OOB}
    ''')

def c_loop(a):
    def hook(pos):
        if pos==5: return [f'buffer_load_dword v{V_FL}, v{V_FA}, s[20:23], s26 offen sc1'.replace('buffer_load','buffer_LOAD')]
        if pos==3: return ['@CHK', 'buffer_store_dword v255, off, s[20:23], s25 sc1', f's_mov_b32 s25, {OOB}']
        return []
    def em(x):
        if x=='@CHK':
            a('s_cmp_eq_u32 s27, 0\ns_cbranch_scc1 K_C_sk\ns_add_u32 s6, s67, s27')
            vchk(a,'s26','s6','C'); a('s_mov_b32 s27, 3\nK_C_sk:')
        else: a(x.replace('buffer_LOAD','buffer_load'))
    a('C_loop:')
    for pos,slot in enumerate(ORDER):
        ps=(slot-1)%NS
        extra=hook(pos)+prefetch(ps)
        free=[(t,i) for t in range(24) for i in range(2) if (i==0 or (t%2==0 and t!=18)) and (t,i)>=(0,1)]
        nv=[k for k,x in enumerate(extra) if x.startswith('buffer_load')]
        first=nv[0]
        tgt={k:int(first+n_*(len(free)-1-first)/(len(nv)-1)) for n_,k in enumerate(nv)}
        idx=[None]*len(extra); nxt=len(free)
        for k in range(len(extra)-1,-1,-1):
            want=min(tgt.get(k,nxt-1),nxt-1); idx[k]=want; nxt=want
        cur=-1
        for k in range(len(extra)):
            idx[k]=max(idx[k],cur+1); cur=idx[k]
        assert cur<len(free)
        place={free[idx[k]]:x for k,x in enumerate(extra)}
        nbefore=sum(1 for k in nv if free[idx[k]]<(18,1))
        pend=None
        for t in range(24):
            ks,b_=t//12,t%12; w=C_WF[t%6]
            for i in range(2):
                D=C_ACC+(b_*2+i)*4; h=pos*16+(ks*2+i)*4
                a(f'v_mfma_f32_16x16x32_bf16 {vr(D,4)}, {vr(w,4)}, {ar(h,4)}, {vr(D,4)}')
                if i==0:
                    if pend: a(pend); pend=None
                    if (t,i) in place: em(place[(t,i)])
                else:
                    tn=t+6
                    if tn==24: a(f's_waitcnt vmcnt({26+nbefore})\ns_barrier')
                    s2=slot if tn<24 else (slot+1)%NS
                    if t%2==1: a('s_waitcnt lgkmcnt(6)')
                    a(c_rd(s2,tn%24,0)); pend=c_rd(s2,tn%24,1)
                    if (t,i) in place: em(place[(t,i)])
        a(pend)
        if pos==2: a('s_cmp_eq_u32 s82, 3\ns_cbranch_scc1 C_done')
        if pos==5: a('s_mov_b32 s75, s76\ns_mov_b32 s76, s77\ns_sub_u32 s82, s82, 6\ns_cmp_eq_u32 s82, 0\ns_cbranch_scc0 C_loop')
    a('C_done:')
    for sl in range(5): a(f's_add_u32 s{76+sl}, s97, {sl*4*3072}')

def c_finish(a):
    T=C_T
    st(a,10)
    a('s_nop 2')
    for j in (1,2,3):
        for l in range(3):
            be=l*4+j; D=C_RX+((j-1)*3+l)*4
            for i in range(2):
                A=C_ACC+(be*2+i)*4
                a(f'v_cvt_pk_bf16_f32 v{D+2*i}, v{A}, v{A+1}\nv_cvt_pk_bf16_f32 v{D+2*i+1}, v{A+2}, v{A+3}')
            a(f'buffer_store_dwordx4 v[{D}:{D+3}], v{C_LV}, s[20:23], s{93+j} offen offset:{l*1024} sc1')
    a('s_cmp_eq_u32 s68, 0\ns_cbranch_scc1 C_sent')
    for l in range(3):
        be=l*4; D=32+l*4
        for i in range(2):
            A=C_ACC+(be*2+i)*4
            a(f'v_cvt_pk_bf16_f32 v{D+2*i}, v{A}, v{A+1}\nv_cvt_pk_bf16_f32 v{D+2*i+1}, v{A+2}, v{A+3}')
        a(f'buffer_store_dwordx4 v[{D}:{D+3}], v{C_LV}, s[20:23], s97 offen offset:{l*1024} sc1')
    a('C_sent:')
    a(f'v_mov_b32 v{T}, s39\nv_min_u32 v{V_FA}, 20, v{V_FA}\ns_waitcnt vmcnt(0)\nbuffer_store_dword v{T}, off, s[20:23], s63 sc1')
    a('s_cmp_eq_u32 s68, 0\ns_cbranch_scc0 C_fin')
    st(a,11)
    def R(l,sl): return (C_RX+(l*3+sl-1)*4) if sl in (1,2,3) else (32+(l*2+(sl//4))*4)
    vpoll(a,'x',T+2,V_FA,'s62',sleep=OPT['psl'])
    for l in range(3):
        for sl in range(5):
            r=R(l,sl)
            a(f'buffer_load_dwordx4 v[{r}:{r+3}], v{C_LV}, s[20:23], s{76+sl} offen offset:{l*1024} sc1')
    st(a,12)
    for l in range(3):
        a(f's_waitcnt vmcnt({10-3*l})')
        for i in range(2):
            A=C_ACC+((l*4)*2+i)*4; t=16+0
            if i==1: t=64
            for sl in (1,2,3):
                r=R(l,sl)+2*i
                a(f'v_lshlrev_b32 v{t}, 16, v{r}\nv_and_b32 v{t+1}, s41, v{r}\nv_lshlrev_b32 v{t+2}, 16, v{r+1}\nv_and_b32 v{t+3}, s41, v{r+1}')
                for e in range(4): a(f'v_add_f32 v{A+e}, v{A+e}, v{t+e}')
            for e in range(4): a(f'v_mul_f32 v{t+e}, s40, v{A+e}')
            for e in range(4): a(f'v_exp_f32 v{t+e}, v{t+e}')
            r=R(l,0)+2*i; x=R(l,4)+2*i; u=t+4; y=t+8
            a(f'v_lshlrev_b32 v{u}, 16, v{r}\nv_and_b32 v{u+1}, s41, v{r}\nv_lshlrev_b32 v{u+2}, 16, v{r+1}\nv_and_b32 v{u+3}, s41, v{r+1}')
            for e in range(4): a(f'v_add_f32 v{t+e}, 1.0, v{t+e}')
            for e in range(4): a(f'v_rcp_f32 v{t+e}, v{t+e}')
            a(f'v_lshlrev_b32 v{y}, 16, v{x}\nv_and_b32 v{y+1}, s41, v{x}\nv_lshlrev_b32 v{y+2}, 16, v{x+1}\nv_and_b32 v{y+3}, s41, v{x+1}')
            for e in range(4): a(f'v_mul_f32 v{t+e}, v{t+e}, v{A+e}')
            for e in range(4): a(f'v_fmac_f32 v{y+e}, v{t+e}, v{u+e}')
            a(f'v_cvt_pk_bf16_f32 v{x}, v{y}, v{y+1}\nv_cvt_pk_bf16_f32 v{x+1}, v{y+2}, v{y+3}')
            a(f'global_store_dwordx2 v{C_OA+i}, v[{x}:{x+1}], s[90:91] offset:{l*128}')
    a('C_fin:')
    st(a,13); st(a,31,rt=True)

def light_after_att(a):
    T=C_T
    a(f'''
    s_lshr_b32 s92, s83, 2
    s_lshl_b32 s92, s92, 7
    s_and_b32 s93, s83, 3
    s_lshl_b32 s93, s93, 2
    s_add_u32 s93, s93, s33
    s_lshl_b32 s93, s93, 2
    s_add_u32 s92, s92, s93
    s_add_u32 s92, s92, {OFL_OFF}
    v_mov_b32 v{T}, s39
    s_barrier
    s_cmp_eq_u32 s68, 2
    s_cbranch_scc1 L_flag
    s_mov_b32 s94, s78
    ''')
    for k in range(5):
        for x in prefetch(ORDER[k],'s94','W'): a(x)
    a(f'''
    s_waitcnt vmcnt(30)
    L_flag:
    s_cmp_eq_u32 s68, 2
    s_cbranch_scc0 L_f2
    s_waitcnt vmcnt(0)
    L_f2:
    buffer_store_dword v{T}, off, s[20:23], s92 sc1
    s_cmp_eq_u32 s68, 2
    s_cbranch_scc1 L_xf
    s_lshl_b32 s93, s57, 7
    s_add_u32 s93, s93, {OFL_OFF}
    v_and_b32 v{T+1}, 15, v0
    v_lshlrev_b32 v{T+1}, 2, v{T+1}
    ''')
    for x in c_addr_items(): a(x)
    for r in range(0,96,2): a(f'v_mov_b64 v[{C_ACC+r}:{C_ACC+r+1}], 0')
    vpoll(a,'o',T+2,T+1,'s93',sleep=1)
    for k in range(5):
        for x in prefetch(ORDER[k],'s78','H'): a(x)
    a('s_waitcnt vmcnt(0)\ns_barrier')
def x_forward(a):
    T=C_T
    a(f'''
    L_xf:
    s_lshr_b32 s57, s83, 3
    s_lshl_b32 s57, s57, 1
    s_and_b32 s93, s83, 1
    s_add_u32 s57, s57, s93
    s_lshl_b32 s92, s57, 2
    s_add_u32 s92, s92, s33
    s_mul_i32 s92, s92, 36864
    s_add_u32 s94, s88, s92
    s_addc_u32 s95, s89, 0
    s_mul_i32 s93, s33, 36864
    s_mov_b32 s82, 36
    L_xl:
    s_mov_b32 m0, s93
    s_add_u32 s93, s93, 1024
    global_load_lds_dwordx4 v{C_LV}, s[94:95] nt
    s_add_u32 s94, s94, 1024
    s_addc_u32 s95, s95, 0
    s_sub_u32 s82, s82, 1
    s_cmp_lg_u32 s82, 0
    s_cbranch_scc1 L_xl
    v_and_b32 v4, 7, v0
    v_lshlrev_b32 v4, 1, v4
    v_bfe_u32 v5, v0, 3, 1
    v_add_u32 v4, v4, v5
    v_mul_u32_u24 v4, 1152, v4
    v_lshrrev_b32 v5, 4, v0
    v_lshl_add_u32 v4, v5, 3, v4
    s_mul_i32 s93, s33, 36864
    v_add_u32 v4, s93, v4
    s_mul_i32 s92, s57, {3*XT}
    s_add_u32 s92, s92, s72
    s_add_u32 s92, s92, {X_OFF+4*4*3072}
    v_min_u32 v5, 2, v0
    v_lshlrev_b32 v5, 7, v5
    s_mul_i32 s24, s57, 384
    s_lshl_b32 s93, s33, 5
    s_add_u32 s24, s24, s93
    s_add_u32 s24, s24, {FLG_OFF+20}
    s_waitcnt vmcnt(0)
    ''')
    for B in range(36):
        d=8+4*B
        a(f'ds_read_b64 v[{d}:{d+1}], v4 offset:{B*32}\nds_read_b64 v[{d+2}:{d+3}], v4 offset:{B*32+18432}')
    a('s_waitcnt lgkmcnt(0)')
    for ct in range(3):
        for r in range(4):
            a(f's_add_u32 s93, s92, {ct*XT+r*XD}')
            for l in range(3):
                d=8+4*(ct*12+l*4+r)
                a(f'buffer_store_dwordx4 v[{d}:{d+3}], v{C_LV}, s[20:23], s93 offen offset:{l*1024} sc1')
    a(f's_waitcnt vmcnt(0)\nbuffer_store_dword v{T}, v5, s[20:23], s24 offen sc1\ns_branch C_fin')

LNS=147456
def ln_loads(a):
    a(f'''
    s_lshl_b32 s35, s30, 2
    s_add_u32 s35, s35, s31
    s_lshr_b32 s36, s35, 1
    s_lshl_b32 s37, s32, 4
    s_add_u32 s36, s36, s37
    s_and_b32 s37, s35, 1
    s_lshl_b32 s38, s36, 4
    s_add_u32 s38, s38, s37
    v_and_b32 v79, 7, v0
    v_lshl_add_u32 v77, v79, 1, s38
    v_mul_u32_u24 v80, 1152, v77
    v_lshrrev_b32 v81, 3, v0
    v_lshl_add_u32 v77, v81, 4, v80
    s_mul_i32 s38, s33, 384
    s_mov_b32 s94, {2048*1152}
    s_mov_b32 s95, 0x20000
    s_waitcnt lgkmcnt(0)
    s_cmp_eq_u32 s33, 3
    s_cbranch_scc1 LN_nold
    buffer_load_dwordx4 v[64:67], v77, s[92:95], s38 offen nt
    buffer_load_dwordx4 v[68:71], v77, s[92:95], s38 offen offset:128 nt
    buffer_load_dwordx4 v[72:75], v77, s[92:95], s38 offen offset:256 nt
    s_add_u32 s38, s38, 384
    s_cmp_eq_u32 s38, 1152
    s_cselect_b32 s38, 0, s38
    buffer_load_dwordx4 v[120:123], v77, s[92:95], s38 offen nt
    buffer_load_dwordx4 v[124:127], v77, s[92:95], s38 offen offset:128 nt
    buffer_load_dwordx4 v[128:131], v77, s[92:95], s38 offen offset:256 nt
    s_add_u32 s38, s38, 384
    s_cmp_eq_u32 s38, 1152
    s_cselect_b32 s38, 0, s38
    buffer_load_dwordx4 v[132:135], v77, s[92:95], s38 offen nt
    buffer_load_dwordx4 v[136:139], v77, s[92:95], s38 offen offset:128 nt
    buffer_load_dwordx4 v[140:143], v77, s[92:95], s38 offen offset:256 nt
    LN_nold:
    s_mul_i32 s36, s36, 18432
    s_lshl_b32 s37, s37, 7
    s_add_u32 s36, s36, s37
    s_mul_i32 s37, s33, 6144
    s_add_u32 s96, s36, s37
    s_add_u32 s97, s96, 4096
    v_lshlrev_b32 v78, 8, v81
    v_lshl_add_u32 v78, v79, 4, v78
    s_lshl_b32 s6, s32, 5
    s_add_u32 s6, s6, s35
    s_lshl_b32 s6, s6, 2
    s_add_u32 s6, s6, s33
    s_lshl_b32 s6, s6, 2
    s_add_u32 s6, s6, {XFL_OFF}
    ''')
def ln_compute(a,nyoung):
    E=96
    a('v_mov_b32 v76, 0x3f803f80')
    a('s_waitcnt vmcnt(6)')
    regs=list(range(64,76))+list(range(120,144))
    for k,r in enumerate(regs):
        if k==12:
            for g in range(3):
                for i in range(4):
                    rr=64+4*g+i; e=E+8*g+2*i
                    a(f'v_lshlrev_b32 v{e}, 16, v{rr}\nv_and_b32 v{e+1}, s41, v{rr}')
            a('s_waitcnt vmcnt(0)')
        s_,q_=82+(k&1)*2,83+(k&1)*2
        a(f'v_dot2_f32_bf16 v{s_}, v{r}, v76, {"0" if k<2 else "v%d"%s_}')
        a(f'v_dot2_f32_bf16 v{q_}, v{r}, v{r}, {"0" if k<2 else "v%d"%q_}')
    a('s_nop 2\nv_add_f32 v82, v82, v84\nv_add_f32 v83, v83, v85\ns_nop 1')
    a('v_add_f32_dpp v82, v82, v82 row_ror:8 row_mask:0xf bank_mask:0xf\nv_add_f32_dpp v83, v83, v83 row_ror:8 row_mask:0xf bank_mask:0xf')
    for sw in ('v_permlane16_swap_b32','v_permlane32_swap_b32'):
        a(f'v_mov_b32 v84, v82\nv_mov_b32 v85, v83\ns_nop 1\n{sw} v82, v84\n{sw} v83, v85\ns_nop 1\nv_add_f32 v82, v82, v84\nv_add_f32 v83, v83, v85')
    a('''
    v_mul_f32 v82, 0x3ae38e39, v82
    v_mul_f32 v83, 0x3ae38e39, v83
    v_fma_f32 v83, -v82, v82, v83
    v_max_f32 v83, 0, v83
    ''')
    def rb(r): a(f'v_cvt_pk_bf16_f32 v{r}, v{r}, v{r}\nv_lshlrev_b32 v{r}, 16, v{r}')
    rb(82); rb(83)
    a('v_add_f32 v83, 0x3727c5ac, v83'); rb(83)
    a('v_sqrt_f32 v83, v83\ns_nop 0'); rb(83)
    a('v_rcp_f32 v83, v83\ns_nop 0')
    def norm(g):
        for i in range(4):
            e=E+8*g+2*i
            a(f'v_sub_f32 v{e}, v{e}, v82\nv_sub_f32 v{e+1}, v{e+1}, v82')
        for i in range(4):
            e=E+8*g+2*i
            a(f'v_cvt_pk_bf16_f32 v{e}, v{e}, v{e+1}')
        for i in range(4):
            e=E+8*g+2*i
            a(f'v_and_b32 v{e+1}, s41, v{e}\nv_lshlrev_b32 v{e}, 16, v{e}')
        for i in range(4):
            e=E+8*g+2*i
            a(f'v_mul_f32 v{e}, v{e}, v83\nv_mul_f32 v{e+1}, v{e+1}, v83')
        for i in range(4):
            e=E+8*g+2*i
            a(f'v_cvt_pk_bf16_f32 v{64+4*g+i}, v{e}, v{e+1}')
    norm(0)
    a('buffer_store_dwordx4 v[64:67], v78, s[20:23], s96 offen sc1')
    norm(1)
    a('buffer_store_dwordx4 v[68:71], v78, s[20:23], s96 offen offset:2048 sc1')
    norm(2)
    a('buffer_store_dwordx4 v[72:75], v78, s[20:23], s97 offen sc1')

def gen_kf(a):
    a(kernel_header(NAME))
    T=V_T
    T0=' nt' if OPT['t0nt'] else ''
    a('''
    s_cmp_ge_u32 s2, 256
    s_cbranch_scc1 KF_end
    s_load_dwordx2 s[92:93], s[0:1], 0
    s_load_dwordx2 s[4:5], s[0:1], 8
    s_load_dwordx4 s[8:11], s[0:1], 32
    s_load_dwordx2 s[20:21], s[0:1], 72
    s_load_dwordx2 s[28:29], s[0:1], 64
    s_load_dwordx2 s[88:89], s[0:1], 16
    s_load_dwordx2 s[90:91], s[0:1], 48
    s_memrealtime s[24:25]
    v_lshrrev_b32 v1, 6, v0
    v_and_b32 v0, 63, v0
    s_bfe_u32 s30, s2, 0x20001
    s_lshl_b32 s30, s30, 1
    s_bfe_u32 s31, s2, 0x10005
    s_add_u32 s30, s30, s31
    s_bfe_u32 s31, s2, 0x20003
    s_and_b32 s32, s2, 1
    s_lshl_b32 s32, s32, 2
    s_lshr_b32 s3, s2, 6
    s_add_u32 s32, s32, s3
    v_readfirstlane_b32 s33, v1
    s_mov_b32 s22, 0x10000000
    s_mov_b32 s23, 0x20000
    s_mov_b32 s40, 0xbfb8aa3b
    s_mov_b32 s41, 0xffff0000
    ''')
    ln_loads(a)
    a(f"""
    v_mov_b32 v2, 0
    s_or_b32 s3, s2, s33
    s_cmp_lg_u32 s3, 0
    s_cbranch_scc1 KF_noep
    s_and_b32 s24, s24, 0xfffffffc
    s_max_u32 s24, s24, 4
    v_mov_b32 v3, s24
    global_store_dword v2, v3, s[28:29] sc1
    KF_noep:
    """)
    st(a,30,True); st(a,0)
    a(f"""
    s_lshl_b32 s66, s33, 10
    s_mul_i32 s62, s30, 3
    s_add_u32 s62, s62, s31
    s_lshl_b32 s62, s62, 7
    s_add_u32 s64, s30, 44
    s_lshl_b32 s64, s64, 6
    s_cmp_lt_u32 s31, 3
    s_cselect_b32 s63, 1, 0
    s_cmp_lt_u32 s30, 6
    s_cbranch_scc1 KF_qok
    s_lshl_b32 s62, s30, 1
    s_add_u32 s62, s62, s31
    s_add_u32 s64, s62, 36
    s_lshl_b32 s64, s64, 6
    s_add_u32 s62, s62, 6
    s_lshl_b32 s62, s62, 7
    s_cmp_lt_u32 s31, 2
    s_cselect_b32 s63, 1, 0
    KF_qok:
    s_cmp_eq_u32 s63, 1
    s_cselect_b32 s62, s62, s64
    s_cselect_b32 s67, 3, 1
    s_mov_b32 s64, s63
    s_mov_b32 s65, 0
    s_mul_i32 s36, s30, 1152
    s_lshl_b32 s37, s31, 8
    s_add_u32 s37, s37, s36
    s_lshl_b32 s38, s31, 6
    s_add_u32 s38, s38, s36
    s_add_u32 s38, s38, 896
    s_add_u32 s16, s8, s37
    s_addc_u32 s17, s9, 0
    s_add_u32 s18, s10, s37
    s_addc_u32 s19, s11, 0
    v_bfe_u32 v{T+1}, v0, 1, 2
    v_bfe_u32 v{T+2}, v0, 4, 1
    v_xor_b32 v{T+1}, v{T+1}, v{T+2}
    v_and_b32 v{T+2}, 1, v0
    v_lshlrev_b32 v{T+2}, 4, v{T+2}
    v_lshrrev_b32 v{T}, 3, v0
    s_add_u32 s60, s4, s62
    s_addc_u32 s61, s5, 0
    """)
    for jj in range(4):
        a(f"""
        v_add_u32 v152, {8*jj}, v{T}
        v_xor_b32 v153, {2*(jj&1)}, v{T+1}
        v_mul_u32_u24 v{144+jj}, 9216, v152
        v_lshl_add_u32 v{144+jj}, v153, 5, v{144+jj}
        v_add_u32 v{144+jj}, v{144+jj}, v{T+2}
        v_and_b32 v153, s67, v153
        v_mul_u32_u24 v{148+jj}, 3456, v152
        v_lshl_add_u32 v{148+jj}, v153, 5, v{148+jj}
        v_add_u32 v{148+jj}, v{148+jj}, v{T+2}
        """)
    a(f"""
    s_cmp_eq_u32 s33, 3
    s_cbranch_scc0 KF_lnw
    s_mov_b32 s94, s60
    s_mov_b32 s95, s61
    s_mov_b32 s92, s16
    s_mov_b32 s93, s17
    """)
    def wloop(lab,end):
        a(f'{lab}:')
        for jj in range(4):
            a(f's_add_u32 m0, s35, {jj*1024}\ns_nop 0\nglobal_load_lds_dwordx4 v{144+jj}, s[92:93]')
            a(f's_add_u32 m0, s35, {HALF+jj*1024}\ns_nop 0\nglobal_load_lds_dwordx4 v{148+jj}, s[94:95]')
        a(f"""
        s_add_u32 s92, s92, 294912
        s_addc_u32 s93, s93, 0
        s_add_u32 s94, s94, 110592
        s_addc_u32 s95, s95, 0
        s_add_u32 s35, s35, 4096
        s_waitcnt vmcnt({OPT['w3q']})
        s_cmp_lt_u32 s35, {end}
        s_cbranch_scc1 {lab}
        """)
    a(f"""
    s_mov_b32 s35, 0
    s_getpc_b64 s[24:25]
    KF_pc:
    s_sub_u32 s24, s24, KF_pc-{NAME}
    s_subb_u32 s25, s25, 0
    s_lshr_b32 s3, s2, 3
    s_lshl_b32 s3, s3, 4
    v_and_b32 v4, 15, v0
    v_add_u32 v4, s3, v4
    v_lshlrev_b32 v4, 7, v4
    v_min_u32 v4, KF_last-{NAME}, v4
    v_mov_b32 v5, 0
    v_lshl_add_u64 v[4:5], v[4:5], 0, s[24:25]
    s_and_b32 s3, s32, 3
    s_mul_i32 s3, s3, 144
    v_add_u32 v72, s3, v0
    v_min_u32 v74, 15, v0
    v_add_u32 v74, s3, v74
    v_mul_u32_u24 v73, 9216, v72
    v_mul_u32_u24 v72, 3456, v72
    v_mul_u32_u24 v75, 9216, v74
    v_mul_u32_u24 v74, 3456, v74
    global_load_dword v{V_DUM}, v73, s[92:93]{T0}
    global_load_dword v{V_DUM}, v72, s[94:95]{T0}
    v_add_u32 v73, {64*9216}, v73
    v_add_u32 v72, {64*3456}, v72
    v_add_u32 v75, {128*9216}, v75
    v_add_u32 v74, {128*3456}, v74
    global_load_dword v{V_DUM}, v73, s[92:93]{T0}
    global_load_dword v{V_DUM}, v72, s[94:95]{T0}
    global_load_dword v{V_DUM}, v75, s[92:93]{T0}
    global_load_dword v{V_DUM}, v74, s[94:95]{T0}
    global_load_dword v{V_DUM}, v[4:5], off
    s_waitcnt vmcnt({OPT['w3w']})
    """)
    wloop('KF_w3',OPT['W3N']*4096)
    a(f"""
    s_mov_b32 s6, {OOB}
    s_branch KF_join
    KF_lnw:
    """)
    ln_compute(a,0)
    st(a,16)
    a('KF_join:')
    a('v_mov_b32 v2, 0\nglobal_load_dword v3, v2, s[28:29] sc1')
    a(f"""
    s_lshl_b32 s35, s33, 3
    v_add_u32 v{T}, s35, v{T}
    s_and_b32 s35, s33, 1
    s_lshl_b32 s35, s35, 1
    v_xor_b32 v{T+1}, s35, v{T+1}
    v_mul_u32_u24 v{T+4}, 9216, v{T}
    v_add_u32 v{T+4}, v{T+4}, v{T+2}
    v_mov_b32 v{T+5}, 0
    v_lshl_add_u32 v{T+8}, v{T+1}, 5, v{T+4}
    v_mov_b32 v{T+9}, 0
    s_mov_b32 s100, 294912
    s_mov_b32 s101, 0
    s_add_u32 s12, s16, 128
    s_addc_u32 s13, s17, 0
    v_lshl_add_u64 v[{V_DA}:{V_DA+1}], v[{T+8}:{T+9}], 0, s[12:13]
    v_lshl_add_u64 v[{V_UA}:{V_UA+1}], v[{T+8}:{T+9}], 0, s[18:19]
    s_and_b32 s3, s32, 3
    s_lshl_b32 s3, s3, 2
    s_add_u32 s3, s3, s33
    s_mul_i32 s3, s3, 36
    v_min_u32 v{V_TR}, 35, v0
    v_add_u32 v{V_TR}, s3, v{V_TR}
    v_mul_u32_u24 v{V_TR}, 9216, v{V_TR}
    s_lshl_b32 s34, s32, 4
    s_lshl_b32 s35, s33, 2
    s_add_u32 s34, s34, s35
    s_mul_i32 s35, s34, 18432
    v_lshlrev_b32 v{T}, 4, v0
    v_add_u32 v{V_XO}, s35, v{T}
    v_add_u32 v{V_XO+1}, 18432, v{V_XO}
    v_add_u32 v{V_XO+2}, 36864, v{V_XO}
    v_add_u32 v{V_XO+3}, 55296, v{V_XO}
    s_mul_i32 s35, s34, 147456
    v_add_u32 v{V_HST}, s35, v{T}
    s_sub_u32 s58, s10, s8
    s_subb_u32 s59, s11, s9
    s_sub_u32 s58, s58, 5308416
    s_subb_u32 s59, s59, 0
    s_add_u32 s12, s8, s38
    s_addc_u32 s13, s9, 0
    s_add_u32 s14, s10, s38
    s_addc_u32 s15, s11, 0
    v_and_b32 v{T+3}, 1, v{T+1}
    v_lshl_add_u32 v{T+4}, v{T+3}, 5, v{T+4}
    v_lshl_add_u64 v[{V_ZA}:{V_ZA+1}], v[{T+4}:{T+5}], 0, s[12:13]
    v_lshl_add_u64 v[{T+12}:{T+13}], v[{T+4}:{T+5}], 0, s[14:15]
    v_cmp_lt_u32 vcc, 1, v{T+1}
    s_nop 1
    v_cndmask_b32 v{V_ZA}, v{V_ZA}, v{T+12}, vcc
    v_cndmask_b32 v{V_ZA+1}, v{V_ZA+1}, v{T+13}, vcc
    """)
    for g in range(5): a(f's_mov_b32 s{52+g}, {XN_OFF+g*4096}')
    c_roles_scalar(a)
    a(f"""
    s_mov_b32 s3, 0
    KF_ep:
    s_waitcnt vmcnt(0)
    v_readfirstlane_b32 s67, v3
    s_add_u32 s3, s3, 1
    s_cmp_gt_u32 s3, {OPT['SPIN']}
    s_cbranch_scc1 KF_epok
    s_cmp_lg_u32 s67, 0
    s_cbranch_scc1 KF_epok
    global_load_dword v3, v2, s[28:29] sc1
    s_branch KF_ep
    KF_epok:
    s_add_u32 s39, s67, 1
    v_mov_b32 v3, s39
    buffer_store_dword v3, off, s[20:23], s6 sc1
    """)
    st(a,1)
    nper=(18-OPT['W3N'])//3
    if nper:
        a(f"""
        s_cmp_eq_u32 s33, 3
        s_cbranch_scc1 KF_now
        s_mul_i32 s3, s33, {nper}
        s_add_u32 s3, s3, {OPT['W3N']}
        s_lshl_b32 s35, s3, 12
        s_add_u32 s36, s35, {nper*4096}
        s_mul_i32 s37, s3, 294912
        s_add_u32 s92, s16, s37
        s_addc_u32 s93, s17, 0
        s_mul_i32 s37, s3, 110592
        s_add_u32 s94, s60, s37
        s_addc_u32 s95, s61, 0
        """)
        wloop('KF_wl','s36')
        a('KF_now:')
    a(f'''
    v_lshrrev_b32 v{T}, 4, v0
    v_bfe_u32 v{T+1}, v0, 2, 2
    v_lshl_add_u32 v{T+2}, v{T}, 3, v{T+1}
    v_lshlrev_b32 v{T+2}, 7, v{T+2}
    v_lshrrev_b32 v{T+1}, 1, v{T+1}
    v_and_b32 v{T}, 1, v{T}
    v_lshl_or_b32 v{T+1}, v{T}, 1, v{T+1}
    v_and_b32 v{T+3}, 3, v0
    ''')
    for b in range(4):
        a(f'''
        v_xor_b32 v{T+4}, {b}, v{T+1}
        v_lshl_add_u32 v{T+4}, v{T+4}, 5, v{T+2}
        v_lshl_add_u32 v{V_BN+b}, v{T+3}, 3, v{T+4}
        v_mov_b32 v{V_AD+b}, v{V_BN+b}
        ''')
    for u in range(2):
        a(f'''
        v_lshrrev_b32 v{T+4}, 1, v{T+3}
        v_add_u32 v{T+4}, {2*u}, v{T+4}
        v_xor_b32 v{T+4}, v{T+4}, v{T+1}
        v_lshl_add_u32 v{T+4}, v{T+4}, 5, v{T+2}
        v_and_b32 v{T+5}, 1, v{T+3}
        v_lshl_add_u32 v{T+4}, v{T+5}, 4, v{T+4}
        v_add_u32 v{V_NB+2*u}, {HALF}, v{T+4}
        v_add_u32 v{V_NB+2*u+1}, {HALF+8}, v{T+4}
        ''')
    a(f'''
    v_and_b32 v{T}, 7, v0
    s_lshl_b32 s35, s34, 3
    v_add_u32 v{T}, s35, v{T}
    v_bfe_u32 v{T+1}, v0, 3, 1
    v_lshl_add_u32 v{T}, v{T+1}, 10, v{T}
    v_mul_u32_u24 v{T}, 3456, v{T}
    v_lshrrev_b32 v{T+1}, 4, v0
    v_lshl_add_u32 v{V_QST}, v{T+1}, 4, v{T}
    s_mul_i32 s35, s30, 18
    s_lshl_b32 s42, s31, 2
    s_add_u32 s35, s35, s42
    s_lshl_b32 s35, s35, 10
    s_add_u32 s44, s35, {H_OFF}
    s_add_u32 s45, s44, 147456
    s_add_u32 s46, s44, 294912
    s_add_u32 s47, s44, 442368
    s_add_u32 s48, s62, {QKV_OFF}
    s_add_u32 s49, s48, 27648
    s_add_u32 s50, s48, 55296
    s_add_u32 s51, s48, 82944
    s_lshl_b32 s24, s32, 5
    s_lshl_b32 s3, s30, 2
    s_add_u32 s24, s24, s3
    s_add_u32 s24, s24, s31
    s_lshl_b32 s24, s24, 2
    s_add_u32 s24, s24, {QFL_OFF}
    s_cmp_eq_u32 s33, 0
    s_cselect_b32 s24, s24, {OOB}
    s_lshl_b32 s25, s32, 2
    s_add_u32 s25, s25, s33
    s_lshl_b32 s25, s25, 5
    s_add_u32 s25, s25, s3
    s_add_u32 s25, s25, s31
    s_lshl_b32 s25, s25, 2
    s_add_u32 s25, s25, {HFL_OFF}
    s_and_b32 s26, s57, 1
    s_lshl_b32 s26, s26, 1
    s_lshr_b32 s3, s33, 1
    s_add_u32 s26, s26, s3
    s_lshl_b32 s3, s32, 2
    s_add_u32 s26, s26, s3
    s_lshl_b32 s26, s26, 7
    s_lshl_b32 s3, s69, 5
    s_add_u32 s26, s26, s3
    s_add_u32 s26, s26, {HFL_OFF}
    s_cmp_eq_u32 s68, 0
    s_cselect_b32 s27, 2, 0
    s_and_b32 s28, s57, 7
    s_mul_i32 s28, s28, 3
    s_add_u32 s28, s28, s31
    s_lshl_b32 s28, s28, 2
    s_add_u32 s28, s28, s33
    s_mul_i32 s28, s28, {108*128}
    s_mul_i32 s3, s69, {1152*1152}
    s_add_u32 s28, s28, s3
    s_and_b32 s3, s83, 7
    s_lshl_b32 s3, s3, 2
    s_add_u32 s3, s3, s33
    s_mul_i32 s3, s3, {162*128}
    s_cmp_eq_u32 s68, 0
    s_cselect_b32 s28, s28, s3
    s_add_u32 s28, s28, 2048
    s_add_u32 s29, s28, 16384
    s_cmp_eq_u32 s68, 0
    s_cselect_b32 s29, {OOB}, s29
    s_lshl_b32 s6, s32, 2
    s_add_u32 s6, s6, s33
    s_lshl_b32 s6, s6, 7
    s_add_u32 s6, s6, {XFL_OFF}
    v_and_b32 v{T}, 3, v0
    v_min_u32 v{T}, 2, v{T}
    v_and_b32 v{T+1}, 28, v0
    v_add_u32 v{T}, v{T}, v{T+1}
    v_lshlrev_b32 v{T}, 2, v{T}
    ''')
    a(f'''
    v_lshrrev_b32 v{T+2}, 4, v0
    v_mul_u32_u24 v{T+2}, 18432, v{T+2}
    v_and_b32 v{T+3}, 15, v0
    v_lshl_add_u32 v{T+2}, v{T+3}, 7, v{T+2}
    s_bfe_u32 s3, s2, 0x30003
    s_lshl_b32 s3, s3, 11
    s_mul_i32 s35, s34, 18432
    s_add_u32 s3, s3, s35
    s_add_u32 s3, s3, {XN_OFF+2048}
    v_add_u32 v{T+2}, s3, v{T+2}
    ''')
    a(f'''
    s_load_dwordx2 s[88:89], s[0:1], 0
    s_load_dwordx2 s[90:91], s[0:1], 56
    s_mul_i32 s92, s70, {XT}
    s_add_u32 s92, s92, s72
    s_add_u32 s92, s92, {X_OFF}
    s_mul_i32 s97, s69, {XD}
    s_add_u32 s97, s97, s92
    s_lshl_b32 s62, s70, 2
    s_add_u32 s62, s62, s33
    s_lshl_b32 s62, s62, 5
    s_add_u32 s62, s62, {FLG_OFF}
    s_lshl_b32 s63, s69, 2
    s_add_u32 s63, s63, s62
    ''')
    for j in (1,2,3):
        a(f's_xor_b32 s{93+j}, s69, {j}\ns_mul_i32 s{93+j}, s{93+j}, {XD}\ns_add_u32 s{93+j}, s{93+j}, {j*4*3072}\ns_add_u32 s{93+j}, s{93+j}, s92')
    a('s_waitcnt lgkmcnt(0)')
    a('''
    s_add_u32 s60, s16, 128
    s_addc_u32 s61, s17, 0
    s_add_u32 s4, s18, 128
    s_addc_u32 s5, s19, 0
    s_cmp_eq_u32 s68, 0
    s_cselect_b64 s[60:61], s[60:61], s[12:13]
    s_cselect_b64 s[4:5], s[4:5], s[14:15]
    ''')
    vpoll(a,'xn',T+1,T,'s6')
    st(a,2)
    vm=VM()
    for g in range(OPT['FD0']):
        for it in grp_x(g): a(it[0]); vm.issue(it[2])
    if OPT['xt']:
        a(f'buffer_load_dword v{V_DUM}, v{T+2}, s[20:23], 0 offen sc1'); vm.issue('t')
    a('s_mov_b64 vcc, s[64:65]')
    a('s_barrier')
    for sl in range(8):
        w,ad=(V_SG+sl*4,V_NB+sl) if sl<4 else (V_WF+(sl-4)*4,V_AD+sl-4)
        a(f'ds_read_b64_tr_b16 v[{w}:{w+1}], v{ad} offset:0')
        a(f'ds_read_b64_tr_b16 v[{w+2}:{w+3}], v{ad} offset:512')
    a(f's_waitcnt vmcnt({vm.wait_n("g0")})')
    st(a,3)
    bodyF(a,vm)
    a('s_cbranch_vccz KF_noq2\ns_nop 1')
    for s in flat(ch_epiQ(V_ACC[1],2,64)[0]): a(s)
    a('KF_noq2:')
    st(a,4)
    zset=f'''
    s_mov_b32 s43, 1
    v_mov_b32 v{V_DA}, v{V_ZA}
    v_mov_b32 v{V_DA+1}, v{V_ZA+1}
    v_mov_b32 v{V_NB}, v{V_BN}
    v_mov_b32 v{V_NB+1}, v{V_BN+1}
    v_add_u32 v{V_NB+2}, 4096, v{V_BN}
    v_add_u32 v{V_NB+3}, 4096, v{V_BN+1}
    '''
    a(f'''
    s_mov_b32 s43, 0
    v_mov_b32 v{V_ONE}, s39
    v_min_u32 v15, 35, v0
    v_lshlrev_b32 v15, 7, v15
    v_mov_b32 v{V_NB}, v{V_BN}
    v_mov_b32 v{V_NB+1}, v{V_BN+1}
    v_mov_b32 v{V_NB+2}, v{V_BN+2}
    v_mov_b32 v{V_NB+3}, v{V_BN+3}
    s_cmp_eq_u32 s68, 0
    s_cbranch_scc1 KF_loop
    ''')
    a(zset)
    a('KF_loop:\ns_sub_u32 m0, s66, 4096')
    wt=[f'buffer_load_dword v{V_DUM}, v15, s[84:87], s28 offen',f's_add_u32 s28, s28, {36*128}']
    ty=[(100,120,[f'global_load_dword v{V_DUM}, v{V_TR}, s[12:13]',f'global_load_dword v{V_DUM}, v{V_TR}, s[14:15]']),(200,210,wt)]
    body(a,VM(),1,ch_epiG(V_ACC[0]),mid=True,seqs=ty)
    a(f'''
    s_cmp_lg_u32 s43, 0
    s_cbranch_scc1 KF_z
    v_lshl_add_u64 v[{V_DA}:{V_DA+1}], v[{V_DA}:{V_DA+1}], 0, s[58:59]
    v_add_u32 v{V_NB}, {HALF}, v{V_BN}
    v_add_u32 v{V_NB+1}, {HALF}, v{V_BN+1}
    v_add_u32 v{V_NB+2}, {HALF}, v{V_BN+2}
    v_add_u32 v{V_NB+3}, {HALF}, v{V_BN+3}
    ''')
    clr=[f'buffer_store_dwordx4 v[96:99], v{C_LV}, s[20:23], s{93+j} offen offset:{l*1024} sc1' for j in (1,2,3) for l in range(3)]
    xt=[f'global_load_dword v{V_DUM}, v{C_OA+i}, s[88:89] offset:{l*128}' for l in range(3) for i in range(2)]
    st(a,5)
    tx=[(100,110,wt)]
    body(a,VM(),0,ch_epiU(V_ACC[1]),pace=True,epilo=OPT['XEPI'],seqs=tx+[(140,280,c_roles_vector())])
    st(a,6)
    a('''
    s_add_u32 s44, s44, 2048
    s_add_u32 s45, s45, 2048
    s_add_u32 s46, s46, 2048
    s_add_u32 s47, s47, 2048
    s_mov_b32 s24, s25
    ''')
    a(zset)
    a('s_branch KF_loop\nKF_z:')
    st(a,7)
    a('s_cmp_eq_u32 s68, 0\ns_cbranch_scc0 KF_zl')
    a(f'''
    s_mov_b32 s6, s78
    s_mov_b32 s24, s62
    v_min_u32 v{V_FA}, 7, v0
    v_lshlrev_b32 v{V_FA}, 2, v{V_FA}
    v_add_u32 v{V_ONE}, 1, v{V_ONE}
    v_add_u32 v255, 1, v{V_ONE}
    ''')
    pw=[];ph=[]
    for k in range(3): pw+=[x for x in prefetch(ORDER[k],'s6','W') if x!='s_nop 0']
    for k in range(5): ph+=prefetch(ORDER[k],'s78','H')
    zero=[f'v_mov_b64 v[{r}:{r+1}], 0' for r in range(96,192,2)]
    vmz=VM()
    bodyZ(a,vmz,[(60,61,['@FLD']),(62,150,pw),(152,270,['@CHK8']+ph),(2,60,zero[2:16]),(146,286,c_addr_items()+zero[:2]+zero[16:]),(OPT['g2'],OPT['g2']+1,['@G2'])])
    st(a,8)
    a('s_nop 4')
    z_tail(a)
    nH=[k for k,t in enumerate(vmz.ops)]
    a(f'buffer_load_dword v{V_FL}, v{V_FA}, s[20:23], s26 offen sc1')
    a('s_waitcnt vmcnt(17) lgkmcnt(0)\ns_barrier')
    for t in range(6): a(c_rd(ORDER[0],t,0)); a(c_rd(ORDER[0],t,1))
    for k in (3,4):
        for x in prefetch(ORDER[k],'s6','W'): a(x)
    a('s_waitcnt lgkmcnt(0)\ns_branch C_go')
    a('KF_zl:')
    for x in c_roles_vector(): a(x)
    a(f'''
    s_lshr_b32 s26, s83, 3
    s_max_u32 s26, s26, 1
    s_sub_u32 s26, s26, 1
    s_lshl_b32 s26, s26, 7
    s_add_u32 s26, s26, {QFL_OFF}
    v_lshlrev_b32 v253, 2, v0
    s_lshr_b32 s3, s83, 3
    s_cmp_eq_u32 s3, 0
    s_movk_i32 s3, 255
    s_cselect_b32 s3, 127, s3
    v_and_b32 v253, s3, v253
    s_and_b32 s92, s83, 1
    s_lshl_b32 s92, s92, 10
    s_lshr_b32 s93, s83, 1
    s_lshl_b32 s93, s93, 5
    s_add_u32 s92, s92, s93
    s_mul_i32 s92, s92, 3456
    s_add_u32 s92, s92, {QKV_OFF-7*3456}
    s_add_u32 s92, s92, s66
    s_add_u32 s93, s92, 86400
    ''')
    ql=['@QP']
    for n in range(22):
        ql+=[f's_add_u32 m0, s66, {HALF+n*4096}', f'buffer_load_dwordx4 v{C_LV}, s[20:23], s92 offen sc1 lds', 's_add_u32 s92, s92, 4096']
    bodyZ(a,VM(),[(OPT['ql'],OPT['ql']+1,['@QL']),(OPT['qp'],280,ql)])
    a('s_barrier')
    for n in range(12):
        a(f's_add_u32 m0, s66, {n*4096}\ns_nop 0\nbuffer_load_dwordx4 v{C_LV}, s[20:23], s93 offen sc1 lds\ns_add_u32 s93, s93, 4096')
    z_tail(a)
    a(f'v_add_u32 v255, 2, v{V_ONE}')
    st(a,8)
    def wq():
        a('s_waitcnt vmcnt(0)\nbuffer_store_dword v255, off, s[20:23], s25 sc1\ns_barrier'); st(a,14)
        a('v_lshlrev_b32 v5, 7, v0\ns_sub_u32 s28, s29, 8192\ns_sub_u32 s27, s29, 16384')
        for r in ('s27','s28','s29'): a(f'buffer_load_dword v240, v5, s[84:87], {r} offen')
    attention(a,wq,(25,HALF,0))
    st(a,15)
    light_after_att(a)
    a(f'''
    s_mov_b32 s25, {OOB}
    s_mov_b32 s27, 0
    v_mov_b32 v{V_FA}, 0
    s_mul_i32 s97, s70, {XT}
    s_add_u32 s97, s97, s72
    s_add_u32 s97, s97, {X_OFF}
    s_add_u32 s94, s97, {XD}
    s_add_u32 s95, s97, {2*XD}
    s_add_u32 s96, s97, {3*XD}
    s_add_u32 s63, s62, 16
    ''')
    for t in range(6): a(c_rd(ORDER[0],t,0)); a(c_rd(ORDER[0],t,1))
    a('s_waitcnt lgkmcnt(8)\ns_branch C_go')
    x_forward(a)
    a('C_go:')
    st(a,9)
    c_loop(a)
    c_finish(a)
    a('KF_end:\nKF_last:\ns_endpgm')
    return kernel_desc(NAME,512,102,256)

def build():
    a=Asm()
    hdr=open('recurrent_scan__sliding_local_dilated__swiglu_ffn__prompt.s.ref').read().split('\n')
    head=[l for l in hdr if l.startswith(';') and '@launch' not in l]
    d=gen_kf(a)
    s='\n'.join(head)+'\n; @launch grid=(256,1,1) block=(256,1,1) lds=163840\n'
    s+='.amdgcn_target "amdgcn-amd-amdhsa--gfx950"\n.text\n'+a.text()
    s+='.section .rodata,"a"\n.p2align 6\n'+d
    return s
if __name__=='__main__':
    for o in sys.argv[2:]:
        if '=' in o:
            k,v=o.split('='); OPT[k]=int(v)
        else: OPT[o]=True
    open(sys.argv[1],'w').write(build())
```

```python
import sys
from asmlib import *

NAME='recurrent_scan__sliding_local_dilated__swiglu_ffn__prompt_kernel'
XN_OFF=0; O_OFF=0x240000; QKV_OFF=0x480000; H_OFF=0xB40000; X_OFF=0x1D40000; XD=5*4*3072; XT=4*XD
FLG_OFF=0x3000000; OFL_OFF=FLG_OFF+0x2000; HFL_OFF=FLG_OFF+0x3000; QFL_OFF=FLG_OFF+0x4000; XFL_OFF=FLG_OFF+0x5000
PROF_OFF=0x8000000
OOB=0x7ffff000
OPT=dict(prof=False, FD=7, MIDKS=11, XEPI=80, SPIN=20000, tu0=0, tg1=5, tu1=10, w3q=40, FD0=3, t0nt=0, w3w=63, xt=1, W3N=6, g2=235, psl=2, tlb=0, ql=60, qp=130)
STF=' sc1'
HALF=73728
V_AD=2; V_NB=6; V_DA=10; V_DUM=12; V_TR=13; V_HST=14; V_QST=15; V_WF=16; V_SG=32; V_ACC=(64,128); V_X=192; V_T=224
V_BN=240; V_ZA=244; V_QA=246; V_UA=248; V_XO=252; V_ONE=254
S_DI='s[100:101]'; S_QI='s[4:5]'
C_AD=[6,7,8,9,10,11,13,15,240,241,242,243]; C_WF=[16,20,24,28,64,68]; C_ACC=96; C_RX=192; C_XV=72; C_T=2
C_DV=246; C_HV=249; C_LV=251; C_OA=252
STG=24576; NS=6; ORDER=[3,4,5,0,1,2]
LAM_H=[0,2,4,6,9,11,13,15,1,3,5,10,12,14,7,8,16,17]; LAM_S=list(range(9))

def st(a,i,rt=False):
    if not OPT['prof'] and not (OPT.get('span') and i>=30): return
    if OPT.get('rtp'): rt=True
    a(f'''
    {"s_memrealtime" if rt else "s_memtime"} s[98:99]
    s_waitcnt lgkmcnt(0)
    v_mov_b32 v1, s98
    s_lshl_b32 s98, s2, 7
    s_add_u32 s98, s98, {PROF_OFF+4*i}
    s_cmp_eq_u32 s33, 0
    s_cselect_b32 s98, s98, {OOB}
    buffer_store_dword v1, off, s[20:23], s98
    ''')

class VM:
    def __init__(self): self.ops=[]
    def issue(self,t): self.ops.append(t)
    def wait_n(self,tag):
        idx=max(i for i,t in enumerate(self.ops) if t==tag)
        return min(63,len(self.ops)-1-idx)

class Sched:
    def __init__(self,nm,cap=2):
        self.nm=nm; self.cap=cap
        self.fill=[[] for _ in range(nm)]; self.post=[[] for _ in range(nm)]; self.pre=[[] for _ in range(nm+1)]
        self.load=[0]*nm; self.tail=[]
    def add_post(self,m,ins,cost=1):
        m=min(m,self.nm-1); self.post[m].append(ins); self.load[m]+=cost
    def add_pre(self,m,ins,cost=1):
        self.pre[m].append(ins)
        if m>0: self.load[m-1]+=cost
    def add_fill(self,m,item):
        self.fill[m].append(item); self.load[m]+=item[1]
    def chains(self,chains,lo,hi,nq,pace=False):
        total=sum(x[1] for c in chains for p in c for x in p)
        free=sum(max(0,self.cap-self.load[m]) for m in range(lo,hi))
        over=max(0,total-int(free*0.97))
        stt=[[0,0,-1] for _ in chains]; done=[None]*len(chains)
        placed=0; ov=0.0; m=lo
        while any(d is None for d in done):
            mm=min(m,self.nm-1)
            capl=self.cap-self.load[mm]
            ov+=over/(hi-lo)
            if ov>=1: capl+=1; ov-=1
            if m>=hi: capl=max(capl,3)
            if pace and over==0 and m<hi:
                capl=min(capl,int(total*(m-lo+1)/(hi-lo)-placed+0.999))
            while capl>0:
                cands=[]
                for k,c in enumerate(chains):
                    if done[k] is not None: continue
                    if k>=nq and (done[k-nq] is None or done[k-nq]>m-2): break
                    ph,ix,pg=stt[k]
                    if ix==0 and pg>=m: continue
                    cands.append(k)
                pick=None
                if capl>=2:
                    for k in cands:
                        if chains[k][stt[k][0]][stt[k][1]][1]>=2: pick=k;break
                if pick is None:
                    for k in cands:
                        if chains[k][stt[k][0]][stt[k][1]][1]<=capl: pick=k;break
                if pick is None: break
                ph,ix,pg=stt[pick]; it=chains[pick][ph][ix]
                if m<self.nm: self.fill[mm].append(it); self.load[mm]+=it[1]
                else: self.tail.append(it)
                capl-=it[1]; placed+=it[1]; ix+=1
                if ix==len(chains[pick][ph]):
                    ph+=1; ix=0; pg=m
                    if ph==len(chains[pick]): done[pick]=m
                stt[pick]=[ph,ix,pg]
            m+=1
            assert m<hi+400
        return m
    def seq(self,lo,hi,L):
        n=len(L); m=lo; nm=self.nm
        for k,x in enumerate(L):
            m=max(m,lo+int(k*(hi-lo)/n))
            lim=max(m,lo+int((k+1)*(hi-lo)/n)-1)
            if m>=nm: self.tail.append((x,1,'x') if x.startswith(('buffer','global')) else (x,1)); continue
            best=min(range(m,min(lim,nm-1)+1),key=lambda g:(self.load[g],g))
            if x.startswith('@'): self.add_post(best,x,2)
            elif x.startswith(('buffer','global')): self.add_fill(best,(x,1,'x'))
            else: self.add_fill(best,(x,1))
            m=best+1
    def emit(self,a,vm,mfma,lds_init,special):
        lds=list(lds_init)
        def out(s):
            nonlocal lds
            if s.startswith('WAITL'):
                need=int(s[5:].split(':')[0]); slack=int(s.split(':')[1]) if ':' in s else 0
                c=[i for i,x in enumerate(lds) if x<=need]
                if c:
                    idx=max(c); n=max(0,len(lds)-1-idx-slack)
                    a(f's_waitcnt lgkmcnt({min(n,15)})'); lds=lds[idx+1:]
            elif s.startswith('@'): special(s[1:])
            else:
                if ';tag=' in s:
                    s,t=s.split(';tag='); lds.append(int(t))
                a(s)
        for s in self.pre[0]: out(s)
        for m in range(self.nm):
            a(mfma(m))
            items=[(f[0],f[2] if len(f)>2 else None) for f in self.fill[m]]+[(s,None) for s in self.post[m]]
            late=[s for s in self.pre[m+1] if s.startswith('@')]
            waits=[s for s in self.pre[m+1] if not s.startswith('@')]
            nv=[x for x in items if not x[0].startswith('v_')]; va=[x for x in items if x[0].startswith('v_')]
            if not late:
                for s in waits: out(s)
            for x in nv+va:
                out(x[0])
                if x[1]: vm.issue(x[1])
            if late:
                for s in late+waits: out(s)
        for f in self.tail:
            out(f[0])
            if len(f)>2: vm.issue(f[2])

def xreg(i,ks):
    if ks<16: return ar((ks*4+i)*4,4)
    return vr(V_X+((ks-16)*4+i)*4,4)

def ch_epiG(acc):
    ch=[]; n=0
    for b in range(4):
        for i in range(4):
            A=acc+(b*4+i)*4; T=V_T+(n%4)*4; n+=1; S=V_SG+(b*4+i)*2
            ch.append([[(f'v_mul_f32 v{T+r}, s40, v{A+r}',1) for r in range(4)],
              [(f'v_exp_f32 v{T+r}, v{T+r}',2) for r in range(4)],
              [(f'v_add_f32 v{T+r}, 1.0, v{T+r}',1) for r in range(4)],
              [(f'v_rcp_f32 v{T+r}, v{T+r}',2) for r in range(4)],
              [(f'v_mul_f32 v{T+r}, v{T+r}, v{A+r}',1) for r in range(4)],
              [(f'v_cvt_pk_bf16_f32 v{S}, v{T}, v{T+1}',1),(f'v_cvt_pk_bf16_f32 v{S+1}, v{T+2}, v{T+3}',1)]])
    return ch,4
def ch_epiU(acc):
    ch=[]; n=0
    for p in range(2):
        for i in range(4):
            T=V_T+(n%2)*8; n+=1; p1=[];p2=[]
            for hb in range(2):
                b=2*p+hb; A=acc+(b*4+i)*4; S=V_SG+(b*4+i)*2; t=T+4*hb
                p1+=[(f'v_lshlrev_b32 v{t}, 16, v{S}',1),(f'v_and_b32 v{t+1}, s41, v{S}',1),
                     (f'v_lshlrev_b32 v{t+2}, 16, v{S+1}',1),(f'v_and_b32 v{t+3}, s41, v{S+1}',1)]
                p2+=[(f'v_mul_f32 v{t+r}, v{t+r}, v{A+r}',1) for r in range(4)]
            p3=[(f'v_cvt_pk_bf16_f32 v{T+j}, v{T+2*j}, v{T+2*j+1}',1) for j in range(4)]
            p4=[(f'buffer_store_dwordx4 v[{T}:{T+3}], v{V_HST}, s[20:23], s{44+i} offen offset:{p*1024}{STF}',2,'st')]
            ch.append([p1,p2,p3,p4])
    return ch,2
def ch_epiQ(acc,b0,coff):
    ch=[]
    for i in range(4):
        D=V_T+i*4; p1=[]
        for hb in range(2):
            A=acc+((b0+hb)*4+i)*4
            p1+=[(f'v_cvt_pk_bf16_f32 v{D+2*hb}, v{A}, v{A+1}',1),(f'v_cvt_pk_bf16_f32 v{D+2*hb+1}, v{A+2}, v{A+3}',1)]
        ch.append([p1,[(f'buffer_store_dwordx4 v[{D}:{D+3}], v{V_QST}, s[20:23], s{48+i} offen offset:{coff}{STF}',2,'st')]])
    return ch,4
def flat(ch):
    out=[]
    for p in range(max(len(c) for c in ch)):
        for c in ch:
            if p<len(c): out+=[x[0] for x in c[p]]
    return out
def epiZ_tail(a,acc):
    a(f'''
    s_mul_i32 s35, s30, 18
    s_lshr_b32 s42, s31, 1
    s_add_u32 s35, s35, s42
    s_add_u32 s35, s35, 16
    s_lshl_b32 s35, s35, 10
    s_and_b32 s42, s31, 1
    s_lshl_b32 s42, s42, 3
    s_add_u32 s35, s35, s42
    s_add_u32 s44, s35, {H_OFF}
    s_add_u32 s45, s44, 147456
    s_add_u32 s46, s44, 294912
    s_add_u32 s47, s44, 442368
    ''')
    ch=[]
    for i in range(4):
        Gr=acc+i*4; U=acc+(4+i)*4; T=V_T+i*4; D=V_SG+2*i
        ch.append([[(f'v_mul_f32 v{T+r}, s40, v{Gr+r}',1) for r in range(4)],
          [(f'v_exp_f32 v{T+r}, v{T+r}',2) for r in range(4)],
          [(f'v_add_f32 v{T+r}, 1.0, v{T+r}',1) for r in range(4)],
          [(f'v_rcp_f32 v{T+r}, v{T+r}',2) for r in range(4)],
          [(f'v_mul_f32 v{T+r}, v{T+r}, v{Gr+r}',1) for r in range(4)],
          [(f'v_cvt_pk_bf16_f32 v{T}, v{T}, v{T+1}',1),(f'v_cvt_pk_bf16_f32 v{T+2}, v{T+2}, v{T+3}',1)],
          [(f'v_and_b32 v{T+1}, s41, v{T}',1),(f'v_lshlrev_b32 v{T}, 16, v{T}',1),(f'v_and_b32 v{T+3}, s41, v{T+2}',1),(f'v_lshlrev_b32 v{T+2}, 16, v{T+2}',1)],
          [(f'v_mul_f32 v{T+r}, v{T+r}, v{U+r}',1) for r in range(4)],
          [(f'v_cvt_pk_bf16_f32 v{D}, v{T}, v{T+1}',1),(f'v_cvt_pk_bf16_f32 v{D+1}, v{T+2}, v{T+3}',1)],
          [(f'buffer_store_dwordx2 v[{D}:{D+1}], v{V_HST}, s[20:23], s{44+i} offen{STF}',2,'st')]])
    for s in flat(ch): a(s)

def chk8(a,off,thr,lab):
    a(f's_mov_b32 s3, 0\nK_{lab}_c:\ns_waitcnt lgkmcnt(0)')
    for i in range(8): a(f's_sub_u32 s{88+i}, s{88+i}, {thr}')
    a(f'''
    s_max_u32 s88, s88, s89
    s_max_u32 s90, s90, s91
    s_max_u32 s92, s92, s93
    s_max_u32 s94, s94, s95
    s_max_u32 s88, s88, s90
    s_max_u32 s92, s92, s94
    s_max_u32 s88, s88, s92
    s_cmp_le_u32 s88, 2
    s_cbranch_scc1 K_{lab}_ok
    s_add_u32 s3, s3, 1
    s_cmp_gt_u32 s3, {OPT['SPIN']}
    s_cbranch_scc1 K_{lab}_ok
    s_load_dwordx8 s[88:95], s[20:21], {off} glc
    s_branch K_{lab}_c
    K_{lab}_ok:
    ''')
V_FL=245; V_FA=244
def vchk(a,off,thr,lab):
    a(f'''
    v_subrev_u32 v{V_FL}, {thr}, v{V_FL}
    v_cmp_lt_u32 vcc, 2, v{V_FL}
    s_mov_b32 s3, 0
    s_cbranch_vccz K_{lab}_ok
    K_{lab}_c:
    buffer_load_dword v{V_FL}, v{V_FA}, s[20:23], {off} offen sc1
    s_add_u32 s3, s3, 1
    s_cmp_gt_u32 s3, {OPT['SPIN']}
    s_cbranch_scc1 K_{lab}_ok
    s_waitcnt vmcnt(0)
    v_subrev_u32 v{V_FL}, {thr}, v{V_FL}
    v_cmp_lt_u32 vcc, 2, v{V_FL}
    s_nop 0
    s_cbranch_vccnz K_{lab}_c
    K_{lab}_ok:
    ''')
def vpoll(a,lab,vdst,vaddr,soff,sleep=0,first_loaded=False):
    a('s_mov_b32 s3, 0')
    if first_loaded: a(f's_branch P_{lab}_t')
    a(f'''
    P_{lab}:
    s_add_u32 s3, s3, 1
    s_cmp_gt_u32 s3, {OPT['SPIN']}
    s_cbranch_scc1 P_{lab}_ok
    buffer_load_dword v{vdst}, v{vaddr}, s[20:23], {soff} offen sc1
    s_waitcnt vmcnt(0)
    P_{lab}_t:
    v_cmp_ne_u32 vcc, s39, v{vdst}
    s_nop 1
    s_cmp_eq_u64 vcc, 0
    s_cbranch_scc1 P_{lab}_ok
    ''')
    if sleep: a(f's_sleep {sleep}')
    a(f's_branch P_{lab}\nP_{lab}_ok:')

def body(a,vm,accset,epi,kind='full',dma=True,last=False,mid=False,seqs=(),pace=True,cap=2,epilo=1):
    acc=V_ACC[accset]; ns=72 if kind=='full' else 36; nm=ns*4
    S=Sched(nm,cap)
    step=4096 if kind=='full' else 8192; midg=9 if kind=='full' else 5
    def rd_off(t):
        g=t//4
        return (g*step if g<midg else (g-midg)*step), g>=midg
    for t in range(ns):
        m0=t*4
        if t%2==0: S.add_pre(m0,f'WAITL{min(t+1,ns-1)}')
        tn=t+4; w=V_WF+(t%4)*4; ad=V_AD+(t%4)
        if tn<ns:
            off,hi=rd_off(tn); _,hip=rd_off(t)
            if hi and not hip: S.add_post(m0+1,f'v_add_u32 v{ad}, {midg*step}, v{ad}')
            S.add_post(m0+3,f'ds_read_b64_tr_b16 v[{w}:{w+1}], v{ad} offset:{off};tag={tn}')
            S.add_post(m0+4,f'ds_read_b64_tr_b16 v[{w+2}:{w+3}], v{ad} offset:{off+512};tag={tn}')
        elif not last:
            S.add_post(m0+1,f'v_mov_b32 v{ad}, v{V_NB+(t%4)}')
            if tn==ns: S.add_post(m0+2,'@SUB',2)
            S.add_post(m0+3,f'ds_read_b64_tr_b16 v[{w}:{w+1}], v{ad} offset:0;tag={tn}')
            S.add_post(m0+4,f'ds_read_b64_tr_b16 v[{w+2}:{w+3}], v{ad} offset:512;tag={tn}')
    if dma:
        for n in range(18):
            m=(n//3)*16+(n%3)*5+1
            S.add_fill(m,('s_add_u32 m0, m0, 4096',1))
            S.add_fill(m+1,(f'global_load_lds_dwordx4 v[{V_DA}:{V_DA+1}], off',1,'dma'))
            S.add_fill(m+1,(f'v_lshl_add_u64 v[{V_DA}:{V_DA+1}], v[{V_DA}:{V_DA+1}], 0, {S_DI}',1))
    if mid: S.add_post(OPT['MIDKS']*16+1,'@MID',3)
    endm=0
    if epi: endm=S.chains(epi[0],epilo,nm-6,epi[1],pace=pace)
    for lo,hi,L in seqs:
        S.seq(endm+1 if lo=='epi' else lo,hi,L)
    def mf(m):
        t=m//4;i=m%4
        ks,b=(t//4,t%4) if kind=='full' else (t//2,t%2)
        D=acc+(b*4+i)*4; w=V_WF+(t%4)*4
        return f'v_mfma_f32_16x16x32_bf16 {vr(D,4)}, {vr(w,4)}, {xreg(i,ks)}, {"0" if ks==0 else vr(D,4)}'
    def special(n):
        if n=='SUB': a(f's_waitcnt vmcnt({vm.wait_n("dma")})\ns_barrier')
        elif n=='MID':
            a(f's_waitcnt vmcnt({min(63,len(vm.ops))})\ns_barrier')
            a(f'buffer_store_dword v{V_ONE}, off, s[20:23], s24 sc1'); vm.issue('fl')
        elif n=='CHK8': chk8(a,'s26','s39','Zh')
    S.emit(a,vm,mf,[0,0,1,1,2,2,3,3],special)

def grp_w(g):
    return [(f's_add_u32 m0, s66, {g*4096}',1),
       (f'global_load_lds_dwordx4 v[{V_DA}:{V_DA+1}], off',1,f'g{g}'),
       (f's_add_u32 m0, s66, {HALF+g*4096}',1),
       (f'v_lshl_add_u64 v[{V_DA}:{V_DA+1}], v[{V_DA}:{V_DA+1}], 0, {S_DI}',1),
       (f'global_load_lds_dwordx4 v[{V_QA}:{V_QA+1}], off',1,f'g{g}'),
       (f'v_lshl_add_u64 v[{V_QA}:{V_QA+1}], v[{V_QA}:{V_QA+1}], 0, {S_QI}',1)]
def grp_x(g):
    return [(f'buffer_load_dwordx4 {xreg(i,g)}, v{V_XO+i}, s[20:23], s{52+g//4} offen offset:{(g%4)*1024} sc1',1,f'g{g}') for i in range(4)]
def u0_items(g):
    return [(f's_add_u32 m0, s66, {HALF+g*4096}',1),
            (f'global_load_lds_dwordx4 v[{V_UA}:{V_UA+1}], off',1,f'u{g}'),
            (f'v_lshl_add_u64 v[{V_UA}:{V_UA+1}], v[{V_UA}:{V_UA+1}], 0, {S_DI}',1)]

def bodyF(a,vm):
    FD=OPT['FD']; nm=18*32; nxt=OPT['FD0']
    S=Sched(nm)
    def regs(sl):
        if sl<4: return V_SG+sl*4, V_NB+sl, V_ACC[1]+sl*16
        return V_WF+(sl-4)*4, V_AD+(sl-4), V_ACC[0]+(sl-4)*16
    for ks in range(18):
        for sl in range(8):
            t=ks*8+sl; m0=t*4; w,ad,_=regs(sl)
            if sl==2: S.add_pre(m0,f'@SKIP{ks}')
            if sl==4: S.pre[m0].append(f'@LAB{ks}')
            if sl%2==0: S.add_pre(m0,f'WAITL{t+1}:4')
            kn=ks+1
            m2=m0+4 if sl not in (1,3) else m0+3
            if kn<18:
                if kn==9: S.add_post(m0+1,f'v_add_u32 v{ad}, 36864, v{ad}')
                off=(kn%9)*4096
                S.add_post(m0+3,f'ds_read_b64_tr_b16 v[{w}:{w+1}], v{ad} offset:{off};tag={t+8}')
                S.add_post(m2,f'ds_read_b64_tr_b16 v[{w+2}:{w+3}], v{ad} offset:{off+512};tag={t+8}')
            elif sl>=4:
                S.add_post(m0+1,f'v_add_u32 v{ad}, {HALF}, v{V_BN+sl-4}')
                if sl==4: S.add_post(m0+2,'@SUB',2)
                S.add_post(m0+3,f'ds_read_b64_tr_b16 v[{w}:{w+1}], v{ad} offset:0;tag={t+8}')
                S.add_post(m2,f'ds_read_b64_tr_b16 v[{w+2}:{w+3}], v{ad} offset:512;tag={t+8}')
        base=ks*32
        if ks<17: S.add_post(base+30,f'@READY{ks+1}',1)
        if ks%3==0 and 0<ks<17: S.add_post(base+1,'s_barrier',1)
        mand=[base+2,base+4,base+5,base+6]+[base+16+j for j in (0,1,2,4,5,6,8,9,10,12,13)]
        items=[]
        for _ in range(2):
            if nxt<18 and nxt<=ks+FD: items+=grp_x(nxt); nxt+=1
        if len(items)<=4: mand=[base+2,base+5]+[base+16+j for j in (0,2,4,6,8,10,12)]
        if 3<=ks<17: items=items[:2]+u0_items(ks-3)+items[2:] if len(items)>=2 else u0_items(ks-3)
        if ks==OPT['tu0']: items+=[(f'global_load_dword v{V_DUM}, v{V_TR}, s[18:19]',1,'t')]
        if ks==OPT['tg1']: items+=[(f'global_load_dword v{V_DUM}, v{V_TR}, s[60:61]',1,'t')]
        if ks==OPT['tu1']: items+=[(f'global_load_dword v{V_DUM}, v{V_TR}, s[4:5]',1,'t')]
        if ks<17:
            for j,it in enumerate(items): S.add_fill(mand[j],it)
        else:
            for j,it in enumerate(u0_items(14)): S.add_fill(base+2+j,it)
            for j,it in enumerate(u0_items(15)+u0_items(16)+u0_items(17)): S.add_fill(base+16+4+j,it)
    ch,nq=ch_epiQ(V_ACC[1],0,0)
    S.chains(ch,17*32+18,nm,nq)
    def mf(m):
        t=m//4;i=m%4;ks=t//8;sl=t%8
        w,_,ac=regs(sl); D=ac+i*4
        return f'v_mfma_f32_16x16x32_bf16 {vr(D,4)}, {vr(w,4)}, {xreg(i,ks)}, {"0" if ks==0 else vr(D,4)}'
    def special(n):
        if n.startswith('SKIP'): a(f's_cbranch_vccz KF_s{n[4:]}')
        elif n.startswith('LAB'): a(f'KF_s{n[3:]}:')
        elif n.startswith('READY'): a(f's_waitcnt vmcnt({vm.wait_n("g"+n[5:])})')
        elif n=='SUB': a(f's_waitcnt vmcnt({vm.wait_n("u%d"%OPT["MIDKS"])})\ns_barrier')
    S.emit(a,vm,mf,[t for t in range(8) for _ in range(2)],special)

def lamword(seq,start):
    w=0
    for k in range(6): w|=(seq[start+k] if start+k<len(seq) else 31)<<(5*k)
    return w
def c_roles_scalar(a):
    a(f'''
    s_and_b32 s92, s2, 1
    s_bfe_u32 s69, s2, 0x20001
    s_bfe_u32 s93, s2, 0x20003
    s_bfe_u32 s94, s2, 0x10005
    s_lshr_b32 s95, s2, 6
    s_lshl_b32 s95, s95, 1
    s_add_u32 s95, s95, s94
    s_lshl_b32 s57, s92, 3
    s_add_u32 s57, s57, s95
    s_mov_b32 s68, 0
    s_mov_b32 s83, 0
    s_mov_b32 s7, 147456
    s_mul_i32 s73, s69, {18*64*1152}
    s_mul_i32 s74, s69, {18*2048}
    s_add_u32 s74, s74, {H_OFF}
    s_mov_b32 s86, {4608*1152+2048}
    s_mov_b32 s75, {lamword(LAM_H,5)}
    s_mov_b32 s76, {lamword(LAM_H,11)}
    s_mov_b32 s77, {lamword(LAM_H,17)}
    s_mov_b32 s78, {lamword(LAM_H,0)}
    s_mov_b32 s82, 18
    s_cmp_lt_u32 s93, 3
    s_cbranch_scc1 C_rh
    s_lshl_b32 s57, s92, 2
    s_add_u32 s57, s57, s69
    s_lshl_b32 s83, s57, 3
    s_add_u32 s83, s83, s95
    s_lshl_b32 s57, s57, 1
    s_cmp_ge_u32 s95, 3
    s_cselect_b32 s94, 1, 0
    s_add_u32 s57, s57, s94
    s_mul_i32 s94, s94, 3
    s_sub_u32 s93, s95, s94
    s_cmp_lt_u32 s95, 6
    s_cselect_b32 s68, 1, 2
    s_cselect_b32 s93, s93, 0
    s_mov_b32 s69, 0
    s_mov_b32 s7, 18432
    s_mov_b32 s73, 0
    s_mov_b32 s74, {O_OFF}
    s_mov_b32 s86, {576*1152+2048}
    s_mov_b32 s75, {lamword(LAM_S,5)}
    s_mov_b32 s76, {lamword(LAM_S,11)}
    s_mov_b32 s77, {lamword(LAM_S,17)}
    s_mov_b32 s78, {lamword(LAM_S,0)}
    s_mov_b32 s82, 9
    s_mov_b32 s90, s88
    s_mov_b32 s91, s89
    C_rh:
    s_sub_u32 s84, s90, 2048
    s_subb_u32 s85, s91, 0
    s_mov_b32 s87, 0x20000
    s_mul_i32 s70, s57, 3
    s_add_u32 s70, s70, s93
    s_mul_i32 s71, s93, 384
    s_add_u32 s73, s73, s71
    s_mul_i32 s72, s33, 3072
    ''')
def c_roles_vector():
    A,B,C='v1','v255','v253'
    t=f'''
    v_lshlrev_b32 v{C_LV}, 4, v0
    v_lshrrev_b32 {A}, 3, v0
    s_lshl_b32 s92, s33, 3
    v_add_u32 {A}, s92, {A}
    v_bfe_u32 {B}, {A}, 2, 2
    v_lshlrev_b32 {B}, 3, {B}
    v_lshrrev_b32 {C}, 4, {A}
    v_lshl_add_u32 {B}, {C}, 2, {B}
    v_and_b32 {C}, 3, {A}
    v_add_u32 {B}, {B}, {C}
    s_cmp_eq_u32 s68, 0
    s_cselect_b64 s[92:93], -1, 0
    v_cndmask_b32 {A}, {B}, {A}, s[92:93]
    v_mul_u32_u24 {A}, 1152, {A}
    v_bfe_u32 {B}, v0, 1, 2
    v_lshrrev_b32 {C}, 4, v0
    v_xor_b32 {B}, {B}, {C}
    v_lshl_add_u32 {A}, {B}, 5, {A}
    v_and_b32 {B}, 1, v0
    v_lshl_add_u32 {A}, {B}, 4, {A}
    v_add_u32 v{C_DV}, 2048, {A}
    v_add_u32 v{C_DV+1}, {2048+128-1024}, {A}
    v_add_u32 v{C_DV+2}, {2048+256-2048}, {A}
    s_lshl_b32 s92, s57, 3
    s_lshl_b32 s93, s33, 1
    s_add_u32 s92, s92, s93
    s_mul_i32 s93, s92, s7
    v_add_u32 v{C_HV}, s93, v{C_LV}
    v_add_u32 v{C_HV+1}, s7, v{C_HV}
    v_and_b32 {A}, 7, v0
    v_lshlrev_b32 {A}, 1, {A}
    v_bfe_u32 {B}, v0, 3, 1
    s_lshl_b32 s92, s92, 4
    v_add3_u32 {A}, {A}, {B}, s92
    v_mul_u32_u24 {A}, 1152, {A}
    v_lshrrev_b32 {B}, 4, v0
    v_lshl_add_u32 {A}, {B}, 3, {A}
    s_lshl_b32 s92, s69, 5
    s_add_u32 s92, s92, s71
    v_add_u32 v{C_OA}, s92, {A}
    v_add_u32 v{C_OA+1}, 18432, v{C_OA}
    '''
    return [l.strip() for l in t.split('\n') if l.strip()]
def prefetch(slot,tabreg='s75',parts='WH'):
    W=lambda l: f'buffer_load_dwordx4 v{C_DV+l}, s[84:87], s80 offen offset:{1024*l} lds'
    def H(n):
        ks,i=n//2,n%2; r=ORDER.index(slot)*16+n*4
        return f'buffer_load_dwordx4 a[{r}:{r+3}], v{C_HV+i}, s[20:23], s81 offen offset:{ks*1024} sc1'
    L=[f's_and_b32 s79, {tabreg}, 31', f's_mul_i32 s80, s79, {64*1152}', 's_lshl_b32 s81, s79, 11', 's_add_u32 s80, s80, s73', 's_add_u32 s81, s81, s74',
       's_cmp_lt_u32 s79, 18', f's_cselect_b32 s80, s80, {OOB}', f's_cselect_b32 s81, s81, {OOB}',
       f's_add_u32 m0, s72, {slot*STG}', H(0), W(0), f's_lshr_b32 {tabreg}, {tabreg}, 5', W(1), W(2),
       f's_add_u32 m0, s72, {slot*STG+4*3072}', H(1), 's_add_u32 s80, s80, 36864', W(0), W(1), W(2), H(2), H(3)]
    if 'W' not in parts: L=[x for x in L if ' lds' not in x and 'm0' not in x and 's80' not in x]
    if 'H' not in parts: L=[x if not x.startswith('buffer_load_dwordx4 a') else 's_nop 0' for x in L if 's81' not in x or x.startswith('buffer')]
    return L
def c_addr_items():
    A,B,C='v1','v96','v97'
    L=[f'v_lshrrev_b32 {A}, 5, v0', f'v_mul_u32_u24 {A}, 3072, {A}', f'v_bfe_u32 {B}, v0, 2, 3', f'v_lshl_add_u32 {A}, {B}, 7, {A}',
       f'v_lshrrev_b32 {B}, 1, {B}', f'v_xor_b32 {B}, s69, {B}', f'v_and_b32 {C}, 3, v0', f'v_lshl_add_u32 {A}, {C}, 3, {A}']
    for b_ in range(4):
        L+=[f'v_xor_b32 {C}, {b_}, {B}', f'v_lshl_add_u32 v{C_AD[b_]}, {C}, 5, {A}']
        for hs in range(1,3): L.append(f'v_add_u32 v{C_AD[4*hs+b_]}, {2*STG*hs}, v{C_AD[b_]}')
    return L
def c_rd(slot,t,half):
    ks,b_=t//12,t%12
    w=C_WF[t%6]+2*half; ad=C_AD[4*(slot//2)+(b_&3)]
    off=(slot%2)*STG+ks*12288+(b_//4)*1024+half*6144
    return f'ds_read_b64_tr_b16 v[{w}:{w+1}], v{ad} offset:{off}'

def bodyZ(a,vm,seqs,capa=2):
    ns=72; nm=288
    S=Sched(nm,capa)
    for t in range(ns):
        m0=t*4
        if t%2==0: S.add_pre(m0,f'WAITL{min(t+1,ns-1)}')
        tn=t+4; w=V_WF+(t%4)*4; ad=V_AD+(t%4)
        if tn<ns:
            g=(tn%36)//4; gp=(t%36)//4
            if tn>=36 and t<36:
                S.add_post(m0+1,f'v_add_u32 v{ad}, {4096*((t%4)//2)}, v{V_BN+2+(t%2)}')
            elif g==5 and gp==4: S.add_post(m0+1,f'v_add_u32 v{ad}, 40960, v{ad}')
            off=(g if g<5 else g-5)*8192
            S.add_post(m0+3,f'ds_read_b64_tr_b16 v[{w}:{w+1}], v{ad} offset:{off};tag={tn}')
            S.add_post(m0+4,f'ds_read_b64_tr_b16 v[{w+2}:{w+3}], v{ad} offset:{off+512};tag={tn}')
    ch,nq=ch_epiU(V_ACC[1])
    e1=S.chains(ch,1,138,nq,pace=False)
    assert e1<=143,e1
    ch2=[]
    for n in range(8):
        A=64+n*4; T=V_T+(n%4)*4
        ch2.append([[(f'v_mul_f32 v{T+r}, s40, v{A+r}',1) for r in range(4)],
          [(f'v_exp_f32 v{T+r}, v{T+r}',2) for r in range(4)],
          [(f'v_add_f32 v{T+r}, 1.0, v{T+r}',1) for r in range(4)],
          [(f'v_rcp_f32 v{T+r}, v{T+r}',2) for r in range(4)],
          [(f'v_mul_f32 v{A+r}, v{T+r}, v{A+r}',1) for r in range(4)]])
    for lo,hi,L in seqs: S.seq(lo,hi,L)
    S.chains(ch2,148,nm-2,4,pace=False)
    def mf(m):
        t=m//4;i=m%4; p=t//36; ks=(t%36)//2; b=t%2
        D=(64 if p==0 else 32)+(b*4+i)*4; w=V_WF+(t%4)*4
        return f'v_mfma_f32_16x16x32_bf16 {vr(D,4)}, {vr(w,4)}, {xreg(i,ks)}, {"0" if ks==0 else vr(D,4)}'
    def special(n):
        if n=='CHK8':
            a(f's_waitcnt vmcnt({vm.wait_n("fld")})'); vchk(a,'s26','s39','Zh')
        elif n=='FLD':
            a(f'buffer_load_dword v{V_FL}, v{V_FA}, s[20:23], s26 offen sc1'); vm.issue('fld')
        elif n=='G2':
            a(f's_waitcnt vmcnt({vm.wait_n("st")})\nbuffer_store_dword v{V_ONE}, off, s[20:23], s25 sc1'); vm.issue('x')
        elif n=='QL':
            a('buffer_load_dword v255, v253, s[20:23], s26 offen sc1'); vm.issue('ql')
        elif n=='QP':
            a(f's_waitcnt vmcnt({vm.wait_n("ql")})'); vpoll(a,'q',255,253,'s26',first_loaded=True)
    S.emit(a,vm,mf,[0,0,1,1,2,2,3,3],special)
def z_tail(a):
    a(f'''
    s_mul_i32 s35, s30, 18
    s_add_u32 s35, s35, s31
    s_add_u32 s35, s35, 14
    s_lshl_b32 s35, s35, 10
    s_add_u32 s44, s35, {H_OFF}
    s_add_u32 s45, s44, 147456
    s_add_u32 s46, s44, 294912
    s_add_u32 s47, s44, 442368
    ''')
    for i in range(4):
        D=V_T+i*4
        for hb in range(2):
            G=64+(hb*4+i)*4; U=32+(hb*4+i)*4
            for r in range(4): a(f'v_mul_f32 v{U+r}, v{U+r}, v{G+r}')
            a(f'v_cvt_pk_bf16_f32 v{D+2*hb}, v{U}, v{U+1}\nv_cvt_pk_bf16_f32 v{D+2*hb+1}, v{U+2}, v{U+3}')
        a(f'buffer_store_dwordx4 v[{D}:{D+3}], v{V_HST}, s[20:23], s{44+i} offen{STF}')

def attention(a,waitq,rows_split):
    Q=8; KB=(44,80); L=116; O=148; AW=220; V0,V1=44,80
    a(f'''
    v_lshrrev_b32 v2, 3, v0
    v_and_b32 v3, 7, v0
    v_mul_u32_u24 v3, 144, v3
    s_lshl_b32 s92, s33, 3
    v_add_u32 v2, s92, v2
    s_lshr_b32 s93, s83, 1
    s_lshl_b32 s93, s93, 5
    v_add_u32 v229, s93, v2
    v_add_u32 v4, 7, v2
    s_mov_b32 s94, 3456
    s_mov_b32 s95, 0x05040100
    s_mov_b32 s96, 0x07060302
    s_mov_b32 s97, 0x3eae1a93
    ''')
    n1,b1,b2=rows_split
    a(f'v_mov_b32 v6, {(b2-n1*3456)&0xffffffff}\nv_mov_b32 v7, {b1}')
    for w in range(8):
        a(f'v_min_u32 v5, {w}, v229\nv_sub_u32 v5, v4, v5\nv_cmp_gt_u32 vcc, {n1}, v5\nv_mad_u32_u24 v{AW+w}, v5, s94, v3\ns_nop 0\nv_cndmask_b32 v5, v6, v7, vcc\nv_add_u32 v{AW+w}, v{AW+w}, v5')
    waitq()
    def rd(dst,ad,off):
        for m in range(9): a(f'ds_read_b128 v[{dst+4*m}:{dst+4*m+3}], v{ad} offset:{off+16*m}')
    def rdl(dst,ad,off): return [f'ds_read_b128 v[{dst+4*m}:{dst+4*m+3}], v{ad} offset:{off+16*m}' for m in range(9)]
    rd(Q,AW,0); rd(KB[0],AW,1152)
    for w in range(8):
        a('s_waitcnt lgkmcnt(0)')
        nx=rdl(KB[(w+1)%2],AW+w+1,1152) if w<7 else rdl(V0,AW,2304)
        k=KB[w%2]
        for j in range(9):
            a(nx[j])
            for hh in range(4):
                c='0' if j==0 else f'v{L+hh*8+w}'
                a(f'v_dot2_f32_bf16 v{L+hh*8+w}, v{Q+9*hh+j}, v{k+9*hh+j}, {c}')
    rd(V1,AW+1,2304)
    a('v_mov_b32 v5, 0xff800000')
    for w in range(1,8):
        a(f'v_cmp_le_u32 vcc, {w}, v229\ns_nop 1')
        for hh in range(4): a(f'v_cndmask_b32 v{L+hh*8+w}, v5, v{L+hh*8+w}, vcc')
    M=Q
    for step in range(4):
        for hh in range(4):
            l=L+hh*8
            a([f'v_max3_f32 v{M+hh}, v{l}, v{l+1}, v{l+2}',f'v_max3_f32 v{M+hh}, v{M+hh}, v{l+3}, v{l+4}',f'v_max3_f32 v{M+hh}, v{M+hh}, v{l+5}, v{l+6}',f'v_max_f32 v{M+hh}, v{M+hh}, v{l+7}'][step])
    for hh in range(4): a(f'v_mul_f32 v{M+hh}, s97, v{M+hh}')
    for hh in range(4):
        for w in range(8): a(f'v_fma_f32 v{L+hh*8+w}, v{L+hh*8+w}, s97, -v{M+hh}')
    for r in range(32): a(f'v_exp_f32 v{L+r}, v{L+r}')
    for hh in range(4): a(f'v_add_f32 v{M+hh}, v{L+hh*8}, v{L+hh*8+1}')
    for w in range(2,8):
        for hh in range(4): a(f'v_add_f32 v{M+hh}, v{M+hh}, v{L+hh*8+w}')
    for hh in range(4): a(f'v_rcp_f32 v{M+hh}, v{M+hh}')
    a('s_nop 0')
    for hh in range(4):
        for w in range(8): a(f'v_mul_f32 v{L+hh*8+w}, v{L+hh*8+w}, v{M+hh}')
    for hh in range(4):
        for wp in range(4): a(f'v_cvt_pk_bf16_f32 v{L+hh*8+wp}, v{L+hh*8+2*wp}, v{L+hh*8+2*wp+1}')
    for wp in range(4):
        a('s_waitcnt lgkmcnt(0)')
        nx=[x for p in zip(rdl(V0,AW+2*wp+2,2304),rdl(V1,AW+2*wp+3,2304)) for x in p] if wp<3 else []
        for m in range(9):
            for j in range(4*m,4*m+4):
                a(f'v_perm_b32 v{230+(j%4)}, v{V1+j}, v{V0+j}, s95')
                a(f'v_perm_b32 v{234+(j%4)}, v{V1+j}, v{V0+j}, s96')
            if nx: a(nx[2*m]); a(nx[2*m+1])
            for j in range(4*m,4*m+4):
                c0='0' if wp==0 else f'v{O+2*j}'; c1='0' if wp==0 else f'v{O+2*j+1}'
                a(f'v_dot2_f32_bf16 v{O+2*j}, v{230+(j%4)}, v{L+(j//9)*8+wp}, {c0}')
                a(f'v_dot2_f32_bf16 v{O+2*j+1}, v{234+(j%4)}, v{L+(j//9)*8+wp}, {c1}')
    a(f'''
    v_and_b32 v3, 7, v0
    v_mul_u32_u24 v3, 2304, v3
    v_lshrrev_b32 v2, 3, v0
    v_lshl_add_u32 v3, v2, 4, v3
    s_lshr_b32 s92, s83, 1
    s_lshl_b32 s92, s92, 2
    s_add_u32 s92, s92, s33
    s_mul_i32 s92, s92, 18432
    s_and_b32 s93, s83, 1
    s_lshl_b32 s93, s93, 7
    s_add_u32 s92, s92, s93
    s_add_u32 s92, s92, {O_OFF}
    ''')
    for m in range(9):
        for j in range(4*m,4*m+4): a(f'v_cvt_pk_bf16_f32 v{Q+j}, v{O+2*j}, v{O+2*j+1}')
        a(f'buffer_store_dwordx4 v[{Q+4*m}:{Q+4*m+3}], v3, s[20:23], s92 offen offset:{256*m} sc1')

OST=110592; SSTG=36864
def s_gemm(a):
    AD=44
    BF=64
    WFs=80
    AC=128
    def dma(slot):
        L=[]
        for t3 in range(3):
            L.append(f's_add_u32 m0, s72, {slot*SSTG+t3*3072}')
            L.append(f's_add_u32 s81, s80, {t3*384}')
            for l in range(3): L.append(f'buffer_load_dwordx4 v{C_DV+l}, s[84:87], s81 offen offset:{1024*l} lds')
        L.append('s_add_u32 s80, s80, 36864')
        return L
    a('s_mul_i32 s72, s33, 9216\ns_mov_b32 s80, 0')
    for x in dma(0): a(x)
    for m in range(9): a(f'ds_write_b128 v3, v[{8+4*m}:{8+4*m+3}] offset:{256*m}')
    for x in dma(1)+dma(2): a(x)
    a(f'''
    v_lshrrev_b32 v4, 5, v0
    v_mul_u32_u24 v4, 9216, v4
    v_bfe_u32 v5, v0, 2, 3
    v_lshl_add_u32 v4, v5, 7, v4
    v_lshrrev_b32 v5, 1, v5
    v_and_b32 v6, 3, v0
    v_lshl_add_u32 v4, v6, 3, v4
    s_mul_i32 s92, s33, 9
    v_lshlrev_b32 v7, 4, v0
    v_add_u32 v7, {OST}, v7
    ''')
    for bb in range(9):
        a(f'''
        s_add_u32 s93, s92, {bb}
        s_and_b32 s94, s93, 3
        s_lshr_b32 s93, s93, 2
        s_lshl_b32 s93, s93, 10
        v_xor_b32 v6, s94, v5
        v_lshl_add_u32 v6, v6, 5, v4
        v_add_u32 v{AD+bb}, s93, v6
        v_add_u32 v{AD+9+bb}, {2*SSTG}, v{AD+bb}
        ''')
    for r in range(0,72,2): a(f'v_mov_b64 v[{AC+r}:{AC+r+1}], 0')
    WB=(80,200)
    def reads(k):
        slot=k%3; wb=WB[k%2]; bf=BF+8*(k%2)
        R=[f'ds_read_b128 v[{bf}:{bf+3}], v7',f'ds_read_b128 v[{bf+4}:{bf+7}], v7 offset:18432','v_add_u32 v7, 1024, v7']
        for bb in range(9):
            ad=AD+bb+(9 if slot==2 else 0); off=(slot%2)*SSTG
            R.append(f'ds_read_b64_tr_b16 v[{wb+4*bb}:{wb+4*bb+1}], v{ad} offset:{off}')
            R.append(f'ds_read_b64_tr_b16 v[{wb+4*bb+2}:{wb+4*bb+3}], v{ad} offset:{off+18432}')
        return R
    a('s_waitcnt vmcnt(18) lgkmcnt(0)\ns_barrier')
    for x in reads(0): a(x)
    a('''
    v_lshrrev_b32 v242, 3, v0
    s_lshl_b32 s93, s33, 3
    v_add_u32 v242, s93, v242
    v_mul_u32_u24 v242, 2304, v242
    v_and_b32 v243, 7, v0
    v_lshl_add_u32 v242, v243, 4, v242
    v_add_u32 v242, 2048, v242
    v_bfe_u32 v243, v0, 3, 1
    v_mul_u32_u24 v243, 9216, v243
    v_and_b32 v6, 7, v0
    v_lshl_add_u32 v243, v6, 7, v243
    v_lshrrev_b32 v6, 4, v0
    v_lshl_add_u32 v243, v6, 3, v243
    ''')
    a('s_mov_b32 s82, 3')
    a('S_loop:')
    for k in range(6):
        a('s_waitcnt vmcnt(9) lgkmcnt(0)\ns_barrier')
        if k==3:
            a(f'''
            s_cmp_lg_u32 s82, 1
            s_cbranch_scc1 S_nox
            s_sub_u32 s84, s88, 2048
            s_subb_u32 s85, s89, 0
            s_mov_b32 s86, {2048*1152+2048}
            s_lshr_b32 s80, s83, 1
            s_lshl_b32 s80, s80, 6
            s_and_b32 s93, s83, 1
            s_add_u32 s80, s80, s93
            s_mul_i32 s80, s80, 1152
            v_mov_b32 v{C_DV}, v242
            v_add_u32 v{C_DV+1}, {128-1024}, v242
            v_add_u32 v{C_DV+2}, {256-2048}, v242
            S_nox:
            ''')
        if k==4:
            a(f's_cmp_eq_u32 s82, 1\ns_cselect_b32 s80, {OOB-0x100000}, s80')
        D=dma(k%3); R=reads(k+1); wb=WB[k%2]; bf=BF+8*(k%2)
        for n in range(18):
            bb,j=n//2,n%2; r=AC+n*4
            a(f'v_mfma_f32_16x16x32_bf16 {vr(r,4)}, {vr(wb+4*bb,4)}, {vr(bf+4*j,4)}, {vr(r,4)}')
            for _ in range(2 if n<3 else 1):
                if R: a(R.pop(0))
            if D: a(D.pop(0))
        assert not D and not R
    a('s_sub_u32 s82, s82, 1\ns_cmp_lg_u32 s82, 0\ns_cbranch_scc1 S_loop')
    a('s_waitcnt vmcnt(0) lgkmcnt(0)\ns_barrier')
    a('s_mul_i32 s92, s33, 9')
    for bb in range(9):
        a(f'''
        s_add_u32 s93, s92, {bb}
        s_and_b32 s94, s93, 3
        s_lshl_b32 s94, s94, 5
        s_lshr_b32 s93, s93, 2
        s_lshl_b32 s93, s93, 10
        s_add_u32 s93, s93, s94
        v_add_u32 v6, s93, v243
        ds_read_b64 v[{8+4*bb}:{9+4*bb}], v6
        ds_read_b64 v[{10+4*bb}:{11+4*bb}], v6 offset:18432
        ''')
    st(a,10)
    s_flag_setup(a)
    a('s_waitcnt lgkmcnt(0)')
    s_send(a,AC)
    a('v_mov_b32 v5, s39\ns_waitcnt vmcnt(0)\ns_barrier\nbuffer_store_dword v5, v241, s[20:23], s24 offen sc1')
    a('s_branch C_fin')

def s_send(a,AC=None):
    a(f'''
    s_mul_i32 s92, s33, 9
    v_and_b32 v4, 7, v0
    v_lshrrev_b32 v5, 4, v0
    v_lshl_add_u32 v4, v5, 4, v4
    v_lshlrev_b32 v4, 4, v4
    v_bfe_u32 v5, v0, 3, 1
    v_mul_u32_u24 v5, {4*4*3072}, v5
    v_add_u32 v4, v4, v5
    s_and_b32 s93, s83, 1
    s_lshl_b32 s93, s93, 7
    s_lshr_b32 s94, s83, 2
    s_mul_i32 s94, s94, {3*XT}
    s_add_u32 s93, s93, s94
    s_bfe_u32 s94, s83, 0x10001
    s_mul_i32 s94, s94, 6144
    s_add_u32 s93, s93, s94
    s_add_u32 s93, s93, {X_OFF}
    ''')
    if AC is None: a('v_mov_b64 v[8:9], -1\nv_mov_b64 v[10:11], -1')
    for bb in range(9):
        a(f'''
        s_add_u32 s94, s92, {bb}
        s_mul_i32 s95, s94, 43
        s_lshr_b32 s95, s95, 9
        s_mul_i32 s96, s95, 12
        s_sub_u32 s94, s94, s96
        s_mul_i32 s95, s95, {XT}
        s_and_b32 s96, s94, 3
        s_mul_i32 s96, s96, {XD}
        s_add_u32 s95, s95, s96
        s_lshr_b32 s94, s94, 2
        s_lshl_b32 s94, s94, 10
        s_add_u32 s95, s95, s94
        s_add_u32 s95, s95, s93
        ''')
        for j in range(2):
            d=8
            if AC is not None:
                n=bb*2+j; r=AC+n*4; d=r
                a(f'v_cvt_pk_bf16_f32 v{d}, v{r}, v{r+1}\nv_cvt_pk_bf16_f32 v{d+1}, v{r+2}, v{r+3}')
                a(f'v_mov_b64 v[{d+2}:{d+3}], v[{8+2*n}:{9+2*n}]')
            a(f'buffer_store_dwordx4 v[{d}:{d+3}], v4, s[20:23], s95 offen offset:{3072*j} sc1')
def s_xload(a):
    a(f'''
    v_and_b32 v4, 15, v0
    v_lshlrev_b32 v4, 1, v4
    s_lshr_b32 s92, s83, 1
    s_lshl_b32 s92, s92, 6
    s_and_b32 s93, s83, 1
    s_add_u32 s92, s92, s93
    v_add_u32 v4, s92, v4
    v_mul_u32_u24 v4, 1152, v4
    v_lshrrev_b32 v5, 4, v0
    v_lshl_add_u32 v4, v5, 3, v4
    s_mul_i32 s92, s33, 288
    v_add_u32 v4, s92, v4
    v_add_u32 v5, {32*1152}, v4
    ''')
    for bb in range(9):
        for j in range(2):
            n=bb*2+j
            a(f'global_load_dwordx2 a[{2*n}:{2*n+1}], v{4+j}, s[88:89] offset:{bb*32}')
def s_flag_setup(a):
    a(f'''
    v_min_u32 v4, 11, v0
    v_lshrrev_b32 v5, 2, v4
    v_lshlrev_b32 v5, 7, v5
    v_bfe_u32 v241, v4, 1, 1
    v_lshl_add_u32 v5, v241, 5, v5
    v_and_b32 v4, 1, v4
    v_lshl_add_u32 v241, v4, 2, v5
    s_lshr_b32 s24, s83, 2
    s_mul_i32 s24, s24, 384
    s_bfe_u32 s95, s83, 0x10001
    s_lshl_b32 s95, s95, 6
    s_add_u32 s24, s24, s95
    s_and_b32 s95, s83, 1
    s_lshl_b32 s95, s95, 3
    s_add_u32 s24, s24, s95
    s_add_u32 s24, s24, {FLG_OFF+16}
    s_cmp_eq_u32 s33, 0
    s_cselect_b32 s24, s24, {OOB}
    ''')

def c_loop(a):
    def hook(pos):
        if pos==5: return [f'buffer_load_dword v{V_FL}, v{V_FA}, s[20:23], s26 offen sc1'.replace('buffer_load','buffer_LOAD')]
        if pos==3: return ['@CHK', 'buffer_store_dword v255, off, s[20:23], s25 sc1', f's_mov_b32 s25, {OOB}']
        return []
    def em(x):
        if x=='@CHK':
            a('s_cmp_eq_u32 s27, 0\ns_cbranch_scc1 K_C_sk\ns_add_u32 s6, s67, s27')
            vchk(a,'s26','s6','C'); a('s_mov_b32 s27, 3\nK_C_sk:')
        else: a(x.replace('buffer_LOAD','buffer_load'))
    a('C_loop:')
    for pos,slot in enumerate(ORDER):
        ps=(slot-1)%NS
        extra=hook(pos)+prefetch(ps)
        free=[(t,i) for t in range(24) for i in range(2) if (i==0 or (t%2==0 and t!=18)) and (t,i)>=(0,1)]
        nv=[k for k,x in enumerate(extra) if x.startswith('buffer_load')]
        first=nv[0]
        tgt={k:int(first+n_*(len(free)-1-first)/(len(nv)-1)) for n_,k in enumerate(nv)}
        idx=[None]*len(extra); nxt=len(free)
        for k in range(len(extra)-1,-1,-1):
            want=min(tgt.get(k,nxt-1),nxt-1); idx[k]=want; nxt=want
        cur=-1
        for k in range(len(extra)):
            idx[k]=max(idx[k],cur+1); cur=idx[k]
        assert cur<len(free)
        place={free[idx[k]]:x for k,x in enumerate(extra)}
        nbefore=sum(1 for k in nv if free[idx[k]]<(18,1))
        pend=None
        for t in range(24):
            ks,b_=t//12,t%12; w=C_WF[t%6]
            for i in range(2):
                D=C_ACC+(b_*2+i)*4; h=pos*16+(ks*2+i)*4
                a(f'v_mfma_f32_16x16x32_bf16 {vr(D,4)}, {vr(w,4)}, {ar(h,4)}, {vr(D,4)}')
                if i==0:
                    if pend: a(pend); pend=None
                    if (t,i) in place: em(place[(t,i)])
                else:
                    tn=t+6
                    if tn==24: a(f's_waitcnt vmcnt({26+nbefore})\ns_barrier')
                    s2=slot if tn<24 else (slot+1)%NS
                    if t%2==1: a('s_waitcnt lgkmcnt(6)')
                    a(c_rd(s2,tn%24,0)); pend=c_rd(s2,tn%24,1)
                    if (t,i) in place: em(place[(t,i)])
        a(pend)
        if pos==2: a('s_cmp_eq_u32 s82, 3\ns_cbranch_scc1 C_done')
        if pos==5: a('s_mov_b32 s75, s76\ns_mov_b32 s76, s77\ns_sub_u32 s82, s82, 6\ns_cmp_eq_u32 s82, 0\ns_cbranch_scc0 C_loop')
    a('C_done:')
    for sl in range(5): a(f's_add_u32 s{76+sl}, s97, {sl*4*3072}')

def c_finish(a):
    T=C_T
    st(a,10)
    a('s_nop 2')
    for j in (1,2,3):
        for l in range(3):
            be=l*4+j; D=C_RX+((j-1)*3+l)*4
            for i in range(2):
                A=C_ACC+(be*2+i)*4
                a(f'v_cvt_pk_bf16_f32 v{D+2*i}, v{A}, v{A+1}\nv_cvt_pk_bf16_f32 v{D+2*i+1}, v{A+2}, v{A+3}')
            a(f'buffer_store_dwordx4 v[{D}:{D+3}], v{C_LV}, s[20:23], s{93+j} offen offset:{l*1024} sc1')
    a('s_cmp_eq_u32 s68, 0\ns_cbranch_scc1 C_sent')
    for l in range(3):
        be=l*4; D=32+l*4
        for i in range(2):
            A=C_ACC+(be*2+i)*4
            a(f'v_cvt_pk_bf16_f32 v{D+2*i}, v{A}, v{A+1}\nv_cvt_pk_bf16_f32 v{D+2*i+1}, v{A+2}, v{A+3}')
        a(f'buffer_store_dwordx4 v[{D}:{D+3}], v{C_LV}, s[20:23], s97 offen offset:{l*1024} sc1')
    a('C_sent:')
    a(f'v_mov_b32 v{T}, s39\nv_min_u32 v{V_FA}, 20, v{V_FA}\ns_waitcnt vmcnt(0)\nbuffer_store_dword v{T}, off, s[20:23], s63 sc1')
    a('s_cmp_eq_u32 s68, 0\ns_cbranch_scc0 C_fin')
    st(a,11)
    def R(l,sl): return (C_RX+(l*3+sl-1)*4) if sl in (1,2,3) else (32+(l*2+(sl//4))*4)
    vpoll(a,'x',T+2,V_FA,'s62',sleep=OPT['psl'])
    for l in range(3):
        for sl in range(5):
            r=R(l,sl)
            a(f'buffer_load_dwordx4 v[{r}:{r+3}], v{C_LV}, s[20:23], s{76+sl} offen offset:{l*1024} sc1')
    st(a,12)
    for l in range(3):
        a(f's_waitcnt vmcnt({10-3*l})')
        for i in range(2):
            A=C_ACC+((l*4)*2+i)*4; t=16+0
            if i==1: t=64
            for sl in (1,2,3):
                r=R(l,sl)+2*i
                a(f'v_lshlrev_b32 v{t}, 16, v{r}\nv_and_b32 v{t+1}, s41, v{r}\nv_lshlrev_b32 v{t+2}, 16, v{r+1}\nv_and_b32 v{t+3}, s41, v{r+1}')
                for e in range(4): a(f'v_add_f32 v{A+e}, v{A+e}, v{t+e}')
            for e in range(4): a(f'v_mul_f32 v{t+e}, s40, v{A+e}')
            for e in range(4): a(f'v_exp_f32 v{t+e}, v{t+e}')
            r=R(l,0)+2*i; x=R(l,4)+2*i; u=t+4; y=t+8
            a(f'v_lshlrev_b32 v{u}, 16, v{r}\nv_and_b32 v{u+1}, s41, v{r}\nv_lshlrev_b32 v{u+2}, 16, v{r+1}\nv_and_b32 v{u+3}, s41, v{r+1}')
            for e in range(4): a(f'v_add_f32 v{t+e}, 1.0, v{t+e}')
            for e in range(4): a(f'v_rcp_f32 v{t+e}, v{t+e}')
            a(f'v_lshlrev_b32 v{y}, 16, v{x}\nv_and_b32 v{y+1}, s41, v{x}\nv_lshlrev_b32 v{y+2}, 16, v{x+1}\nv_and_b32 v{y+3}, s41, v{x+1}')
            for e in range(4): a(f'v_mul_f32 v{t+e}, v{t+e}, v{A+e}')
            for e in range(4): a(f'v_fmac_f32 v{y+e}, v{t+e}, v{u+e}')
            a(f'v_cvt_pk_bf16_f32 v{x}, v{y}, v{y+1}\nv_cvt_pk_bf16_f32 v{x+1}, v{y+2}, v{y+3}')
            a(f'global_store_dwordx2 v{C_OA+i}, v[{x}:{x+1}], s[90:91] offset:{l*128}')
    a('C_fin:')
    st(a,13); st(a,31,rt=True)

def light_after_att(a):
    T=C_T
    a(f'''
    s_lshr_b32 s92, s83, 2
    s_lshl_b32 s92, s92, 7
    s_and_b32 s93, s83, 3
    s_lshl_b32 s93, s93, 2
    s_add_u32 s93, s93, s33
    s_lshl_b32 s93, s93, 2
    s_add_u32 s92, s92, s93
    s_add_u32 s92, s92, {OFL_OFF}
    v_mov_b32 v{T}, s39
    s_barrier
    s_cmp_eq_u32 s68, 2
    s_cbranch_scc1 L_flag
    s_mov_b32 s94, s78
    ''')
    for k in range(5):
        for x in prefetch(ORDER[k],'s94','W'): a(x)
    a(f'''
    s_waitcnt vmcnt(30)
    L_flag:
    s_cmp_eq_u32 s68, 2
    s_cbranch_scc0 L_f2
    s_waitcnt vmcnt(0)
    L_f2:
    buffer_store_dword v{T}, off, s[20:23], s92 sc1
    s_cmp_eq_u32 s68, 2
    s_cbranch_scc1 L_xf
    s_lshl_b32 s93, s57, 7
    s_add_u32 s93, s93, {OFL_OFF}
    v_and_b32 v{T+1}, 15, v0
    v_lshlrev_b32 v{T+1}, 2, v{T+1}
    ''')
    for x in c_addr_items(): a(x)
    for r in range(0,96,2): a(f'v_mov_b64 v[{C_ACC+r}:{C_ACC+r+1}], 0')
    vpoll(a,'o',T+2,T+1,'s93',sleep=1)
    for k in range(5):
        for x in prefetch(ORDER[k],'s78','H'): a(x)
    a('s_waitcnt vmcnt(0)\ns_barrier')
def x_forward(a):
    T=C_T
    a(f'''
    L_xf:
    s_lshr_b32 s57, s83, 3
    s_lshl_b32 s57, s57, 1
    s_and_b32 s93, s83, 1
    s_add_u32 s57, s57, s93
    s_lshl_b32 s92, s57, 2
    s_add_u32 s92, s92, s33
    s_mul_i32 s92, s92, 36864
    s_add_u32 s94, s88, s92
    s_addc_u32 s95, s89, 0
    s_mul_i32 s93, s33, 36864
    s_mov_b32 s82, 36
    L_xl:
    s_mov_b32 m0, s93
    s_add_u32 s93, s93, 1024
    global_load_lds_dwordx4 v{C_LV}, s[94:95]
    s_add_u32 s94, s94, 1024
    s_addc_u32 s95, s95, 0
    s_sub_u32 s82, s82, 1
    s_cmp_lg_u32 s82, 0
    s_cbranch_scc1 L_xl
    v_and_b32 v4, 7, v0
    v_lshlrev_b32 v4, 1, v4
    v_bfe_u32 v5, v0, 3, 1
    v_add_u32 v4, v4, v5
    v_mul_u32_u24 v4, 1152, v4
    v_lshrrev_b32 v5, 4, v0
    v_lshl_add_u32 v4, v5, 3, v4
    s_mul_i32 s93, s33, 36864
    v_add_u32 v4, s93, v4
    s_mul_i32 s92, s57, {3*XT}
    s_add_u32 s92, s92, s72
    s_add_u32 s92, s92, {X_OFF+4*4*3072}
    v_min_u32 v5, 2, v0
    v_lshlrev_b32 v5, 7, v5
    s_mul_i32 s24, s57, 384
    s_lshl_b32 s93, s33, 5
    s_add_u32 s24, s24, s93
    s_add_u32 s24, s24, {FLG_OFF+20}
    s_waitcnt vmcnt(0)
    ''')
    for B in range(36):
        d=8+4*B
        a(f'ds_read_b64 v[{d}:{d+1}], v4 offset:{B*32}\nds_read_b64 v[{d+2}:{d+3}], v4 offset:{B*32+18432}')
    a('s_waitcnt lgkmcnt(0)')
    for ct in range(3):
        for r in range(4):
            a(f's_add_u32 s93, s92, {ct*XT+r*XD}')
            for l in range(3):
                d=8+4*(ct*12+l*4+r)
                a(f'buffer_store_dwordx4 v[{d}:{d+3}], v{C_LV}, s[20:23], s93 offen offset:{l*1024} sc1')
    a(f's_waitcnt vmcnt(0)\nbuffer_store_dword v{T}, v5, s[20:23], s24 offen sc1\ns_branch C_fin')

LNS=147456
def ln_loads(a):
    a(f'''
    s_lshl_b32 s35, s30, 2
    s_add_u32 s35, s35, s31
    s_lshr_b32 s36, s35, 1
    s_lshl_b32 s37, s32, 4
    s_add_u32 s36, s36, s37
    s_and_b32 s37, s35, 1
    s_lshl_b32 s38, s36, 4
    s_add_u32 s38, s38, s37
    v_and_b32 v79, 7, v0
    v_lshl_add_u32 v77, v79, 1, s38
    v_mul_u32_u24 v80, 1152, v77
    v_lshrrev_b32 v81, 3, v0
    v_lshl_add_u32 v77, v81, 4, v80
    s_mul_i32 s38, s33, 384
    s_mov_b32 s94, {2048*1152}
    s_mov_b32 s95, 0x20000
    s_waitcnt lgkmcnt(0)
    s_cmp_eq_u32 s33, 3
    s_cbranch_scc1 LN_nold
    buffer_load_dwordx4 v[64:67], v77, s[92:95], s38 offen
    buffer_load_dwordx4 v[68:71], v77, s[92:95], s38 offen offset:128
    buffer_load_dwordx4 v[72:75], v77, s[92:95], s38 offen offset:256
    s_add_u32 s38, s38, 384
    s_cmp_eq_u32 s38, 1152
    s_cselect_b32 s38, 0, s38
    buffer_load_dwordx4 v[120:123], v77, s[92:95], s38 offen
    buffer_load_dwordx4 v[124:127], v77, s[92:95], s38 offen offset:128
    buffer_load_dwordx4 v[128:131], v77, s[92:95], s38 offen offset:256
    s_add_u32 s38, s38, 384
    s_cmp_eq_u32 s38, 1152
    s_cselect_b32 s38, 0, s38
    buffer_load_dwordx4 v[132:135], v77, s[92:95], s38 offen
    buffer_load_dwordx4 v[136:139], v77, s[92:95], s38 offen offset:128
    buffer_load_dwordx4 v[140:143], v77, s[92:95], s38 offen offset:256
    LN_nold:
    s_mul_i32 s36, s36, 18432
    s_lshl_b32 s37, s37, 7
    s_add_u32 s36, s36, s37
    s_mul_i32 s37, s33, 6144
    s_add_u32 s96, s36, s37
    s_add_u32 s97, s96, 4096
    v_lshlrev_b32 v78, 8, v81
    v_lshl_add_u32 v78, v79, 4, v78
    s_lshl_b32 s6, s32, 5
    s_add_u32 s6, s6, s35
    s_lshl_b32 s6, s6, 2
    s_add_u32 s6, s6, s33
    s_lshl_b32 s6, s6, 2
    s_add_u32 s6, s6, {XFL_OFF}
    ''')
def ln_compute(a,nyoung):
    E=96
    a('v_mov_b32 v76, 0x3f803f80')
    a('s_waitcnt vmcnt(6)')
    regs=list(range(64,76))+list(range(120,144))
    for k,r in enumerate(regs):
        if k==12:
            for g in range(3):
                for i in range(4):
                    rr=64+4*g+i; e=E+8*g+2*i
                    a(f'v_lshlrev_b32 v{e}, 16, v{rr}\nv_and_b32 v{e+1}, s41, v{rr}')
            a('s_waitcnt vmcnt(0)')
        s_,q_=82+(k&1)*2,83+(k&1)*2
        a(f'v_dot2_f32_bf16 v{s_}, v{r}, v76, {"0" if k<2 else "v%d"%s_}')
        a(f'v_dot2_f32_bf16 v{q_}, v{r}, v{r}, {"0" if k<2 else "v%d"%q_}')
    a('s_nop 2\nv_add_f32 v82, v82, v84\nv_add_f32 v83, v83, v85\ns_nop 1')
    a('v_add_f32_dpp v82, v82, v82 row_ror:8 row_mask:0xf bank_mask:0xf\nv_add_f32_dpp v83, v83, v83 row_ror:8 row_mask:0xf bank_mask:0xf')
    for sw in ('v_permlane16_swap_b32','v_permlane32_swap_b32'):
        a(f'v_mov_b32 v84, v82\nv_mov_b32 v85, v83\ns_nop 1\n{sw} v82, v84\n{sw} v83, v85\ns_nop 1\nv_add_f32 v82, v82, v84\nv_add_f32 v83, v83, v85')
    a('''
    v_mul_f32 v82, 0x3ae38e39, v82
    v_mul_f32 v83, 0x3ae38e39, v83
    v_fma_f32 v83, -v82, v82, v83
    v_max_f32 v83, 0, v83
    ''')
    def rb(r): a(f'v_cvt_pk_bf16_f32 v{r}, v{r}, v{r}\nv_lshlrev_b32 v{r}, 16, v{r}')
    rb(82); rb(83)
    a('v_add_f32 v83, 0x3727c5ac, v83'); rb(83)
    a('v_sqrt_f32 v83, v83\ns_nop 0'); rb(83)
    a('v_rcp_f32 v83, v83\ns_nop 0')
    def norm(g):
        for i in range(4):
            e=E+8*g+2*i
            a(f'v_sub_f32 v{e}, v{e}, v82\nv_sub_f32 v{e+1}, v{e+1}, v82')
        for i in range(4):
            e=E+8*g+2*i
            a(f'v_cvt_pk_bf16_f32 v{e}, v{e}, v{e+1}')
        for i in range(4):
            e=E+8*g+2*i
            a(f'v_and_b32 v{e+1}, s41, v{e}\nv_lshlrev_b32 v{e}, 16, v{e}')
        for i in range(4):
            e=E+8*g+2*i
            a(f'v_mul_f32 v{e}, v{e}, v83\nv_mul_f32 v{e+1}, v{e+1}, v83')
        for i in range(4):
            e=E+8*g+2*i
            a(f'v_cvt_pk_bf16_f32 v{64+4*g+i}, v{e}, v{e+1}')
    norm(0)
    a('buffer_store_dwordx4 v[64:67], v78, s[20:23], s96 offen sc1')
    norm(1)
    a('buffer_store_dwordx4 v[68:71], v78, s[20:23], s96 offen offset:2048 sc1')
    norm(2)
    a('buffer_store_dwordx4 v[72:75], v78, s[20:23], s97 offen sc1')

def gen_kf(a):
    a(kernel_header(NAME))
    T=V_T
    T0=' nt' if OPT['t0nt'] else ''
    a('''
    s_cmp_ge_u32 s2, 256
    s_cbranch_scc1 KF_end
    s_load_dwordx2 s[92:93], s[0:1], 0
    s_load_dwordx2 s[4:5], s[0:1], 8
    s_load_dwordx4 s[8:11], s[0:1], 32
    s_load_dwordx2 s[20:21], s[0:1], 72
    s_load_dwordx2 s[28:29], s[0:1], 64
    s_load_dwordx2 s[88:89], s[0:1], 16
    s_load_dwordx2 s[90:91], s[0:1], 48
    s_memrealtime s[24:25]
    v_lshrrev_b32 v1, 6, v0
    v_and_b32 v0, 63, v0
    s_bfe_u32 s30, s2, 0x20001
    s_lshl_b32 s30, s30, 1
    s_bfe_u32 s31, s2, 0x10005
    s_add_u32 s30, s30, s31
    s_bfe_u32 s31, s2, 0x20003
    s_and_b32 s32, s2, 1
    s_lshl_b32 s32, s32, 2
    s_lshr_b32 s3, s2, 6
    s_add_u32 s32, s32, s3
    v_readfirstlane_b32 s33, v1
    s_mov_b32 s22, 0x10000000
    s_mov_b32 s23, 0x20000
    s_mov_b32 s40, 0xbfb8aa3b
    s_mov_b32 s41, 0xffff0000
    ''')
    ln_loads(a)
    a(f"""
    v_mov_b32 v2, 0
    s_or_b32 s3, s2, s33
    s_cmp_lg_u32 s3, 0
    s_cbranch_scc1 KF_noep
    s_and_b32 s24, s24, 0xfffffffc
    s_max_u32 s24, s24, 4
    v_mov_b32 v3, s24
    global_store_dword v2, v3, s[28:29] sc1
    KF_noep:
    """)
    st(a,30,True); st(a,0)
    a(f"""
    s_lshl_b32 s66, s33, 10
    s_mul_i32 s62, s30, 3
    s_add_u32 s62, s62, s31
    s_lshl_b32 s62, s62, 7
    s_add_u32 s64, s30, 44
    s_lshl_b32 s64, s64, 6
    s_cmp_lt_u32 s31, 3
    s_cselect_b32 s63, 1, 0
    s_cmp_lt_u32 s30, 6
    s_cbranch_scc1 KF_qok
    s_lshl_b32 s62, s30, 1
    s_add_u32 s62, s62, s31
    s_add_u32 s64, s62, 36
    s_lshl_b32 s64, s64, 6
    s_add_u32 s62, s62, 6
    s_lshl_b32 s62, s62, 7
    s_cmp_lt_u32 s31, 2
    s_cselect_b32 s63, 1, 0
    KF_qok:
    s_cmp_eq_u32 s63, 1
    s_cselect_b32 s62, s62, s64
    s_cselect_b32 s67, 3, 1
    s_mov_b32 s64, s63
    s_mov_b32 s65, 0
    s_mul_i32 s36, s30, 1152
    s_lshl_b32 s37, s31, 8
    s_add_u32 s37, s37, s36
    s_lshl_b32 s38, s31, 6
    s_add_u32 s38, s38, s36
    s_add_u32 s38, s38, 896
    s_add_u32 s16, s8, s37
    s_addc_u32 s17, s9, 0
    s_add_u32 s18, s10, s37
    s_addc_u32 s19, s11, 0
    v_bfe_u32 v{T+1}, v0, 1, 2
    v_bfe_u32 v{T+2}, v0, 4, 1
    v_xor_b32 v{T+1}, v{T+1}, v{T+2}
    v_and_b32 v{T+2}, 1, v0
    v_lshlrev_b32 v{T+2}, 4, v{T+2}
    v_lshrrev_b32 v{T}, 3, v0
    s_add_u32 s60, s4, s62
    s_addc_u32 s61, s5, 0
    """)
    for jj in range(4):
        a(f"""
        v_add_u32 v152, {8*jj}, v{T}
        v_xor_b32 v153, {2*(jj&1)}, v{T+1}
        v_mul_u32_u24 v{144+jj}, 9216, v152
        v_lshl_add_u32 v{144+jj}, v153, 5, v{144+jj}
        v_add_u32 v{144+jj}, v{144+jj}, v{T+2}
        v_and_b32 v153, s67, v153
        v_mul_u32_u24 v{148+jj}, 3456, v152
        v_lshl_add_u32 v{148+jj}, v153, 5, v{148+jj}
        v_add_u32 v{148+jj}, v{148+jj}, v{T+2}
        """)
    a(f"""
    s_cmp_eq_u32 s33, 3
    s_cbranch_scc0 KF_lnw
    s_mov_b32 s94, s60
    s_mov_b32 s95, s61
    s_mov_b32 s92, s16
    s_mov_b32 s93, s17
    """)
    if OPT['tlb']:
        sh=OPT['tlb']
        a(f"""
        s_load_dwordx2 s[96:97], s[0:1], 56
        v_lshlrev_b32 v64, {sh}, v0
        v_min_u32 v65, {0x3006000}, v64
        buffer_load_dword v{V_DUM}, v65, s[20:23], 0 offen
        v_min_u32 v65, {5308416-4}, v64
        global_load_dword v{V_DUM}, v65, s[90:91]
        global_load_dword v{V_DUM}, v65, s[8:9]
        global_load_dword v{V_DUM}, v65, s[10:11]
        v_min_u32 v66, {663552-4}, v64
        global_load_dword v{V_DUM}, v66, s[88:89]
        v_min_u32 v66, {2359296-4}, v64
        s_waitcnt lgkmcnt(0)
        global_load_dword v{V_DUM}, v66, s[96:97]
        """)
    def wloop(lab,end):
        a(f'{lab}:')
        for jj in range(4):
            a(f's_add_u32 m0, s35, {jj*1024}\ns_nop 0\nglobal_load_lds_dwordx4 v{144+jj}, s[92:93]')
            a(f's_add_u32 m0, s35, {HALF+jj*1024}\ns_nop 0\nglobal_load_lds_dwordx4 v{148+jj}, s[94:95]')
        a(f"""
        s_add_u32 s92, s92, 294912
        s_addc_u32 s93, s93, 0
        s_add_u32 s94, s94, 110592
        s_addc_u32 s95, s95, 0
        s_add_u32 s35, s35, 4096
        s_waitcnt vmcnt({OPT['w3q']})
        s_cmp_lt_u32 s35, {end}
        s_cbranch_scc1 {lab}
        """)
    a(f"""
    s_mov_b32 s35, 0
    s_getpc_b64 s[24:25]
    KF_pc:
    s_sub_u32 s24, s24, KF_pc-{NAME}
    s_subb_u32 s25, s25, 0
    s_lshr_b32 s3, s2, 3
    s_lshl_b32 s3, s3, 4
    v_and_b32 v4, 15, v0
    v_add_u32 v4, s3, v4
    v_lshlrev_b32 v4, 7, v4
    v_min_u32 v4, KF_last-{NAME}, v4
    v_mov_b32 v5, 0
    v_lshl_add_u64 v[4:5], v[4:5], 0, s[24:25]
    s_and_b32 s3, s32, 3
    s_mul_i32 s3, s3, 144
    v_add_u32 v72, s3, v0
    v_min_u32 v74, 15, v0
    v_add_u32 v74, s3, v74
    v_mul_u32_u24 v73, 9216, v72
    v_mul_u32_u24 v72, 3456, v72
    v_mul_u32_u24 v75, 9216, v74
    v_mul_u32_u24 v74, 3456, v74
    global_load_dword v{V_DUM}, v73, s[92:93]{T0}
    global_load_dword v{V_DUM}, v72, s[94:95]{T0}
    v_add_u32 v73, {64*9216}, v73
    v_add_u32 v72, {64*3456}, v72
    v_add_u32 v75, {128*9216}, v75
    v_add_u32 v74, {128*3456}, v74
    global_load_dword v{V_DUM}, v73, s[92:93]{T0}
    global_load_dword v{V_DUM}, v72, s[94:95]{T0}
    global_load_dword v{V_DUM}, v75, s[92:93]{T0}
    global_load_dword v{V_DUM}, v74, s[94:95]{T0}
    global_load_dword v{V_DUM}, v[4:5], off
    s_waitcnt vmcnt({OPT['w3w']})
    """)
    wloop('KF_w3',OPT['W3N']*4096)
    a(f"""
    s_mov_b32 s6, {OOB}
    s_branch KF_join
    KF_lnw:
    """)
    ln_compute(a,0)
    st(a,16)
    a('KF_join:')
    a('v_mov_b32 v2, 0\nglobal_load_dword v3, v2, s[28:29] sc1')
    a(f"""
    s_lshl_b32 s35, s33, 3
    v_add_u32 v{T}, s35, v{T}
    s_and_b32 s35, s33, 1
    s_lshl_b32 s35, s35, 1
    v_xor_b32 v{T+1}, s35, v{T+1}
    v_mul_u32_u24 v{T+4}, 9216, v{T}
    v_add_u32 v{T+4}, v{T+4}, v{T+2}
    v_mov_b32 v{T+5}, 0
    v_lshl_add_u32 v{T+8}, v{T+1}, 5, v{T+4}
    v_mov_b32 v{T+9}, 0
    s_mov_b32 s100, 294912
    s_mov_b32 s101, 0
    s_add_u32 s12, s16, 128
    s_addc_u32 s13, s17, 0
    v_lshl_add_u64 v[{V_DA}:{V_DA+1}], v[{T+8}:{T+9}], 0, s[12:13]
    v_lshl_add_u64 v[{V_UA}:{V_UA+1}], v[{T+8}:{T+9}], 0, s[18:19]
    s_and_b32 s3, s32, 3
    s_lshl_b32 s3, s3, 2
    s_add_u32 s3, s3, s33
    s_mul_i32 s3, s3, 36
    v_min_u32 v{V_TR}, 35, v0
    v_add_u32 v{V_TR}, s3, v{V_TR}
    v_mul_u32_u24 v{V_TR}, 9216, v{V_TR}
    s_lshl_b32 s34, s32, 4
    s_lshl_b32 s35, s33, 2
    s_add_u32 s34, s34, s35
    s_mul_i32 s35, s34, 18432
    v_lshlrev_b32 v{T}, 4, v0
    v_add_u32 v{V_XO}, s35, v{T}
    v_add_u32 v{V_XO+1}, 18432, v{V_XO}
    v_add_u32 v{V_XO+2}, 36864, v{V_XO}
    v_add_u32 v{V_XO+3}, 55296, v{V_XO}
    s_mul_i32 s35, s34, 147456
    v_add_u32 v{V_HST}, s35, v{T}
    s_sub_u32 s58, s10, s8
    s_subb_u32 s59, s11, s9
    s_sub_u32 s58, s58, 5308416
    s_subb_u32 s59, s59, 0
    s_add_u32 s12, s8, s38
    s_addc_u32 s13, s9, 0
    s_add_u32 s14, s10, s38
    s_addc_u32 s15, s11, 0
    v_and_b32 v{T+3}, 1, v{T+1}
    v_lshl_add_u32 v{T+4}, v{T+3}, 5, v{T+4}
    v_lshl_add_u64 v[{V_ZA}:{V_ZA+1}], v[{T+4}:{T+5}], 0, s[12:13]
    v_lshl_add_u64 v[{T+12}:{T+13}], v[{T+4}:{T+5}], 0, s[14:15]
    v_cmp_lt_u32 vcc, 1, v{T+1}
    s_nop 1
    v_cndmask_b32 v{V_ZA}, v{V_ZA}, v{T+12}, vcc
    v_cndmask_b32 v{V_ZA+1}, v{V_ZA+1}, v{T+13}, vcc
    """)
    for g in range(5): a(f's_mov_b32 s{52+g}, {XN_OFF+g*4096}')
    c_roles_scalar(a)
    a(f"""
    s_mov_b32 s3, 0
    KF_ep:
    s_waitcnt vmcnt(0)
    v_readfirstlane_b32 s67, v3
    s_add_u32 s3, s3, 1
    s_cmp_gt_u32 s3, {OPT['SPIN']}
    s_cbranch_scc1 KF_epok
    s_cmp_lg_u32 s67, 0
    s_cbranch_scc1 KF_epok
    global_load_dword v3, v2, s[28:29] sc1
    s_branch KF_ep
    KF_epok:
    s_add_u32 s39, s67, 1
    v_mov_b32 v3, s39
    buffer_store_dword v3, off, s[20:23], s6 sc1
    """)
    st(a,1)
    nper=(18-OPT['W3N'])//3
    if nper:
        a(f"""
        s_cmp_eq_u32 s33, 3
        s_cbranch_scc1 KF_now
        s_mul_i32 s3, s33, {nper}
        s_add_u32 s3, s3, {OPT['W3N']}
        s_lshl_b32 s35, s3, 12
        s_add_u32 s36, s35, {nper*4096}
        s_mul_i32 s37, s3, 294912
        s_add_u32 s92, s16, s37
        s_addc_u32 s93, s17, 0
        s_mul_i32 s37, s3, 110592
        s_add_u32 s94, s60, s37
        s_addc_u32 s95, s61, 0
        """)
        wloop('KF_wl','s36')
        a('KF_now:')
    a(f'''
    v_lshrrev_b32 v{T}, 4, v0
    v_bfe_u32 v{T+1}, v0, 2, 2
    v_lshl_add_u32 v{T+2}, v{T}, 3, v{T+1}
    v_lshlrev_b32 v{T+2}, 7, v{T+2}
    v_lshrrev_b32 v{T+1}, 1, v{T+1}
    v_and_b32 v{T}, 1, v{T}
    v_lshl_or_b32 v{T+1}, v{T}, 1, v{T+1}
    v_and_b32 v{T+3}, 3, v0
    ''')
    for b in range(4):
        a(f'''
        v_xor_b32 v{T+4}, {b}, v{T+1}
        v_lshl_add_u32 v{T+4}, v{T+4}, 5, v{T+2}
        v_lshl_add_u32 v{V_BN+b}, v{T+3}, 3, v{T+4}
        v_mov_b32 v{V_AD+b}, v{V_BN+b}
        ''')
    for u in range(2):
        a(f'''
        v_lshrrev_b32 v{T+4}, 1, v{T+3}
        v_add_u32 v{T+4}, {2*u}, v{T+4}
        v_xor_b32 v{T+4}, v{T+4}, v{T+1}
        v_lshl_add_u32 v{T+4}, v{T+4}, 5, v{T+2}
        v_and_b32 v{T+5}, 1, v{T+3}
        v_lshl_add_u32 v{T+4}, v{T+5}, 4, v{T+4}
        v_add_u32 v{V_NB+2*u}, {HALF}, v{T+4}
        v_add_u32 v{V_NB+2*u+1}, {HALF+8}, v{T+4}
        ''')
    a(f'''
    v_and_b32 v{T}, 7, v0
    s_lshl_b32 s35, s34, 3
    v_add_u32 v{T}, s35, v{T}
    v_bfe_u32 v{T+1}, v0, 3, 1
    v_lshl_add_u32 v{T}, v{T+1}, 10, v{T}
    v_mul_u32_u24 v{T}, 3456, v{T}
    v_lshrrev_b32 v{T+1}, 4, v0
    v_lshl_add_u32 v{V_QST}, v{T+1}, 4, v{T}
    s_mul_i32 s35, s30, 18
    s_lshl_b32 s42, s31, 2
    s_add_u32 s35, s35, s42
    s_lshl_b32 s35, s35, 10
    s_add_u32 s44, s35, {H_OFF}
    s_add_u32 s45, s44, 147456
    s_add_u32 s46, s44, 294912
    s_add_u32 s47, s44, 442368
    s_add_u32 s48, s62, {QKV_OFF}
    s_add_u32 s49, s48, 27648
    s_add_u32 s50, s48, 55296
    s_add_u32 s51, s48, 82944
    s_lshl_b32 s24, s32, 5
    s_lshl_b32 s3, s30, 2
    s_add_u32 s24, s24, s3
    s_add_u32 s24, s24, s31
    s_lshl_b32 s24, s24, 2
    s_add_u32 s24, s24, {QFL_OFF}
    s_cmp_eq_u32 s33, 0
    s_cselect_b32 s24, s24, {OOB}
    s_lshl_b32 s25, s32, 2
    s_add_u32 s25, s25, s33
    s_lshl_b32 s25, s25, 5
    s_add_u32 s25, s25, s3
    s_add_u32 s25, s25, s31
    s_lshl_b32 s25, s25, 2
    s_add_u32 s25, s25, {HFL_OFF}
    s_and_b32 s26, s57, 1
    s_lshl_b32 s26, s26, 1
    s_lshr_b32 s3, s33, 1
    s_add_u32 s26, s26, s3
    s_lshl_b32 s3, s32, 2
    s_add_u32 s26, s26, s3
    s_lshl_b32 s26, s26, 7
    s_lshl_b32 s3, s69, 5
    s_add_u32 s26, s26, s3
    s_add_u32 s26, s26, {HFL_OFF}
    s_cmp_eq_u32 s68, 0
    s_cselect_b32 s27, 2, 0
    s_and_b32 s28, s57, 7
    s_mul_i32 s28, s28, 3
    s_add_u32 s28, s28, s31
    s_lshl_b32 s28, s28, 2
    s_add_u32 s28, s28, s33
    s_mul_i32 s28, s28, {108*128}
    s_mul_i32 s3, s69, {1152*1152}
    s_add_u32 s28, s28, s3
    s_and_b32 s3, s83, 7
    s_lshl_b32 s3, s3, 2
    s_add_u32 s3, s3, s33
    s_mul_i32 s3, s3, {162*128}
    s_cmp_eq_u32 s68, 0
    s_cselect_b32 s28, s28, s3
    s_add_u32 s28, s28, 2048
    s_add_u32 s29, s28, 16384
    s_cmp_eq_u32 s68, 0
    s_cselect_b32 s29, {OOB}, s29
    s_lshl_b32 s6, s32, 2
    s_add_u32 s6, s6, s33
    s_lshl_b32 s6, s6, 7
    s_add_u32 s6, s6, {XFL_OFF}
    v_and_b32 v{T}, 3, v0
    v_min_u32 v{T}, 2, v{T}
    v_and_b32 v{T+1}, 28, v0
    v_add_u32 v{T}, v{T}, v{T+1}
    v_lshlrev_b32 v{T}, 2, v{T}
    ''')
    a(f'''
    v_lshrrev_b32 v{T+2}, 4, v0
    v_mul_u32_u24 v{T+2}, 18432, v{T+2}
    v_and_b32 v{T+3}, 15, v0
    v_lshl_add_u32 v{T+2}, v{T+3}, 7, v{T+2}
    s_bfe_u32 s3, s2, 0x30003
    s_lshl_b32 s3, s3, 11
    s_mul_i32 s35, s34, 18432
    s_add_u32 s3, s3, s35
    s_add_u32 s3, s3, {XN_OFF+2048}
    v_add_u32 v{T+2}, s3, v{T+2}
    ''')
    a(f'''
    s_load_dwordx2 s[88:89], s[0:1], 0
    s_load_dwordx2 s[90:91], s[0:1], 56
    s_mul_i32 s92, s70, {XT}
    s_add_u32 s92, s92, s72
    s_add_u32 s92, s92, {X_OFF}
    s_mul_i32 s97, s69, {XD}
    s_add_u32 s97, s97, s92
    s_lshl_b32 s62, s70, 2
    s_add_u32 s62, s62, s33
    s_lshl_b32 s62, s62, 5
    s_add_u32 s62, s62, {FLG_OFF}
    s_lshl_b32 s63, s69, 2
    s_add_u32 s63, s63, s62
    ''')
    for j in (1,2,3):
        a(f's_xor_b32 s{93+j}, s69, {j}\ns_mul_i32 s{93+j}, s{93+j}, {XD}\ns_add_u32 s{93+j}, s{93+j}, {j*4*3072}\ns_add_u32 s{93+j}, s{93+j}, s92')
    a('s_waitcnt lgkmcnt(0)')
    a('''
    s_add_u32 s60, s16, 128
    s_addc_u32 s61, s17, 0
    s_add_u32 s4, s18, 128
    s_addc_u32 s5, s19, 0
    s_cmp_eq_u32 s68, 0
    s_cselect_b64 s[60:61], s[60:61], s[12:13]
    s_cselect_b64 s[4:5], s[4:5], s[14:15]
    ''')
    vpoll(a,'xn',T+1,T,'s6')
    st(a,2)
    vm=VM()
    for g in range(OPT['FD0']):
        for it in grp_x(g): a(it[0]); vm.issue(it[2])
    if OPT['xt']:
        a(f'buffer_load_dword v{V_DUM}, v{T+2}, s[20:23], 0 offen sc1'); vm.issue('t')
    a('s_mov_b64 vcc, s[64:65]')
    a('s_barrier')
    for sl in range(8):
        w,ad=(V_SG+sl*4,V_NB+sl) if sl<4 else (V_WF+(sl-4)*4,V_AD+sl-4)
        a(f'ds_read_b64_tr_b16 v[{w}:{w+1}], v{ad} offset:0')
        a(f'ds_read_b64_tr_b16 v[{w+2}:{w+3}], v{ad} offset:512')
    a(f's_waitcnt vmcnt({vm.wait_n("g0")})')
    st(a,3)
    bodyF(a,vm)
    a('s_cbranch_vccz KF_noq2\ns_nop 1')
    for s in flat(ch_epiQ(V_ACC[1],2,64)[0]): a(s)
    a('KF_noq2:')
    st(a,4)
    zset=f'''
    s_mov_b32 s43, 1
    v_mov_b32 v{V_DA}, v{V_ZA}
    v_mov_b32 v{V_DA+1}, v{V_ZA+1}
    v_mov_b32 v{V_NB}, v{V_BN}
    v_mov_b32 v{V_NB+1}, v{V_BN+1}
    v_add_u32 v{V_NB+2}, 4096, v{V_BN}
    v_add_u32 v{V_NB+3}, 4096, v{V_BN+1}
    '''
    a(f'''
    s_mov_b32 s43, 0
    v_mov_b32 v{V_ONE}, s39
    v_min_u32 v15, 35, v0
    v_lshlrev_b32 v15, 7, v15
    v_mov_b32 v{V_NB}, v{V_BN}
    v_mov_b32 v{V_NB+1}, v{V_BN+1}
    v_mov_b32 v{V_NB+2}, v{V_BN+2}
    v_mov_b32 v{V_NB+3}, v{V_BN+3}
    s_cmp_eq_u32 s68, 0
    s_cbranch_scc1 KF_loop
    ''')
    a(zset)
    a('KF_loop:\ns_sub_u32 m0, s66, 4096')
    wt=[f'buffer_load_dword v{V_DUM}, v15, s[84:87], s28 offen',f's_add_u32 s28, s28, {36*128}']
    ty=[(100,120,[f'global_load_dword v{V_DUM}, v{V_TR}, s[12:13]',f'global_load_dword v{V_DUM}, v{V_TR}, s[14:15]']),(200,210,wt)]
    body(a,VM(),1,ch_epiG(V_ACC[0]),mid=True,seqs=ty)
    a(f'''
    s_cmp_lg_u32 s43, 0
    s_cbranch_scc1 KF_z
    v_lshl_add_u64 v[{V_DA}:{V_DA+1}], v[{V_DA}:{V_DA+1}], 0, s[58:59]
    v_add_u32 v{V_NB}, {HALF}, v{V_BN}
    v_add_u32 v{V_NB+1}, {HALF}, v{V_BN+1}
    v_add_u32 v{V_NB+2}, {HALF}, v{V_BN+2}
    v_add_u32 v{V_NB+3}, {HALF}, v{V_BN+3}
    ''')
    clr=[f'buffer_store_dwordx4 v[96:99], v{C_LV}, s[20:23], s{93+j} offen offset:{l*1024} sc1' for j in (1,2,3) for l in range(3)]
    xt=[f'global_load_dword v{V_DUM}, v{C_OA+i}, s[88:89] offset:{l*128}' for l in range(3) for i in range(2)]
    st(a,5)
    tx=[(100,110,wt)]
    body(a,VM(),0,ch_epiU(V_ACC[1]),pace=True,epilo=OPT['XEPI'],seqs=tx+[(140,280,c_roles_vector())])
    st(a,6)
    a('''
    s_add_u32 s44, s44, 2048
    s_add_u32 s45, s45, 2048
    s_add_u32 s46, s46, 2048
    s_add_u32 s47, s47, 2048
    s_mov_b32 s24, s25
    ''')
    a(zset)
    a('s_branch KF_loop\nKF_z:')
    st(a,7)
    a('s_cmp_eq_u32 s68, 0\ns_cbranch_scc0 KF_zl')
    a(f'''
    s_mov_b32 s6, s78
    s_mov_b32 s24, s62
    v_min_u32 v{V_FA}, 7, v0
    v_lshlrev_b32 v{V_FA}, 2, v{V_FA}
    v_add_u32 v{V_ONE}, 1, v{V_ONE}
    v_add_u32 v255, 1, v{V_ONE}
    ''')
    pw=[];ph=[]
    for k in range(3): pw+=[x for x in prefetch(ORDER[k],'s6','W') if x!='s_nop 0']
    for k in range(5): ph+=prefetch(ORDER[k],'s78','H')
    zero=[f'v_mov_b64 v[{r}:{r+1}], 0' for r in range(96,192,2)]
    vmz=VM()
    bodyZ(a,vmz,[(60,61,['@FLD']),(62,150,pw),(152,270,['@CHK8']+ph),(2,60,zero[2:16]),(146,286,c_addr_items()+zero[:2]+zero[16:]),(OPT['g2'],OPT['g2']+1,['@G2'])])
    st(a,8)
    a('s_nop 4')
    z_tail(a)
    nH=[k for k,t in enumerate(vmz.ops)]
    a(f'buffer_load_dword v{V_FL}, v{V_FA}, s[20:23], s26 offen sc1')
    a('s_waitcnt vmcnt(17) lgkmcnt(0)\ns_barrier')
    for t in range(6): a(c_rd(ORDER[0],t,0)); a(c_rd(ORDER[0],t,1))
    for k in (3,4):
        for x in prefetch(ORDER[k],'s6','W'): a(x)
    a('s_waitcnt lgkmcnt(0)\ns_branch C_go')
    a('KF_zl:')
    for x in c_roles_vector(): a(x)
    a(f'''
    s_lshr_b32 s26, s83, 3
    s_max_u32 s26, s26, 1
    s_sub_u32 s26, s26, 1
    s_lshl_b32 s26, s26, 7
    s_add_u32 s26, s26, {QFL_OFF}
    v_lshlrev_b32 v253, 2, v0
    s_lshr_b32 s3, s83, 3
    s_cmp_eq_u32 s3, 0
    s_movk_i32 s3, 255
    s_cselect_b32 s3, 127, s3
    v_and_b32 v253, s3, v253
    s_and_b32 s92, s83, 1
    s_lshl_b32 s92, s92, 10
    s_lshr_b32 s93, s83, 1
    s_lshl_b32 s93, s93, 5
    s_add_u32 s92, s92, s93
    s_mul_i32 s92, s92, 3456
    s_add_u32 s92, s92, {QKV_OFF-7*3456}
    s_add_u32 s92, s92, s66
    s_add_u32 s93, s92, 86400
    ''')
    ql=['@QP']
    for n in range(22):
        ql+=[f's_add_u32 m0, s66, {HALF+n*4096}', f'buffer_load_dwordx4 v{C_LV}, s[20:23], s92 offen sc1 lds', 's_add_u32 s92, s92, 4096']
    bodyZ(a,VM(),[(OPT['ql'],OPT['ql']+1,['@QL']),(OPT['qp'],280,ql)])
    a('s_barrier')
    for n in range(12):
        a(f's_add_u32 m0, s66, {n*4096}\ns_nop 0\nbuffer_load_dwordx4 v{C_LV}, s[20:23], s93 offen sc1 lds\ns_add_u32 s93, s93, 4096')
    z_tail(a)
    a(f'v_add_u32 v255, 2, v{V_ONE}')
    st(a,8)
    def wq():
        a('s_waitcnt vmcnt(0)\nbuffer_store_dword v255, off, s[20:23], s25 sc1\ns_barrier'); st(a,14)
        a('v_lshlrev_b32 v5, 7, v0\ns_sub_u32 s28, s29, 8192\ns_sub_u32 s27, s29, 16384')
        for r in ('s27','s28','s29'): a(f'buffer_load_dword v240, v5, s[84:87], {r} offen')
    attention(a,wq,(25,HALF,0))
    st(a,15)
    light_after_att(a)
    a(f'''
    s_mov_b32 s25, {OOB}
    s_mov_b32 s27, 0
    v_mov_b32 v{V_FA}, 0
    s_mul_i32 s97, s70, {XT}
    s_add_u32 s97, s97, s72
    s_add_u32 s97, s97, {X_OFF}
    s_add_u32 s94, s97, {XD}
    s_add_u32 s95, s97, {2*XD}
    s_add_u32 s96, s97, {3*XD}
    s_add_u32 s63, s62, 16
    ''')
    for t in range(6): a(c_rd(ORDER[0],t,0)); a(c_rd(ORDER[0],t,1))
    a('s_waitcnt lgkmcnt(8)\ns_branch C_go')
    x_forward(a)
    a('C_go:')
    st(a,9)
    c_loop(a)
    c_finish(a)
    a('KF_end:\nKF_last:\ns_endpgm')
    return kernel_desc(NAME,512,102,256)

def build():
    a=Asm()
    hdr=open('recurrent_scan__sliding_local_dilated__swiglu_ffn__prompt.s.ref').read().split('\n')
    head=[l for l in hdr if l.startswith(';') and '@launch' not in l]
    d=gen_kf(a)
    s='\n'.join(head)+'\n; @launch grid=(256,1,1) block=(256,1,1) lds=163840\n'
    s+='.amdgcn_target "amdgcn-amd-amdhsa--gfx950"\n.text\n'+a.text()
    s+='.section .rodata,"a"\n.p2align 6\n'+d
    return s
if __name__=='__main__':
    for o in sys.argv[2:]:
        if '=' in o:
            k,v=o.split('='); OPT[k]=int(v)
        else: OPT[o]=True
    open(sys.argv[1],'w').write(build())
```

```python
import sys
from asmlib import *

NAME='recurrent_scan__sliding_local_dilated__swiglu_ffn__prompt_kernel'
XN_OFF=0; O_OFF=0x240000; QKV_OFF=0x480000; H_OFF=0xB40000; X_OFF=0x1D40000; XD=5*4*3072; XT=4*XD
FLG_OFF=0x3000000; OFL_OFF=FLG_OFF+0x2000; HFL_OFF=FLG_OFF+0x3000; QFL_OFF=FLG_OFF+0x4000; XFL_OFF=FLG_OFF+0x5000
PROF_OFF=0x8000000
OOB=0x7ffff000
OPT=dict(prof=False, FD=7, MIDKS=11, XEPI=80, SPIN=20000, tu0=0, tg1=5, tu1=10, w3q=40, FD0=3, t0nt=0, w3w=63, xt=1, W3N=6, g2=235, psl=2, tlb=0, ql=60, qp=130)
STF=' sc1'
HALF=73728
V_AD=2; V_NB=6; V_DA=10; V_DUM=12; V_TR=13; V_HST=14; V_QST=15; V_WF=16; V_SG=32; V_ACC=(64,128); V_X=192; V_T=224
V_BN=240; V_ZA=244; V_QA=246; V_UA=248; V_XO=252; V_ONE=254
S_DI='s[100:101]'; S_QI='s[4:5]'
C_AD=[6,7,8,9,10,11,13,15,240,241,242,243]; C_WF=[16,20,24,28,64,68]; C_ACC=96; C_RX=192; C_XV=72; C_T=2
C_DV=246; C_HV=249; C_LV=251; C_OA=252
STG=24576; NS=6; ORDER=[3,4,5,0,1,2]
LAM_H=[0,2,4,6,9,11,13,15,1,3,5,10,12,14,7,8,16,17]; LAM_S=list(range(9))

def st(a,i,rt=False):
    if OPT.get('dbg') is not None and OPT.get('dbg') is not False:
        m={30:1,16:2,1:3,2:4,3:5,4:6,5:7,6:8,7:9,8:10,9:11,10:12,11:13,12:14,13:15,14:7,15:8}
        if i not in m: return
        lab=a.label('DB')
        a(f'''
        s_cmp_lg_u32 s33, 0
        s_cbranch_scc1 {lab}
        s_cmp_lg_u32 s2, {OPT['dbg']}
        s_cbranch_scc1 {lab}
        s_memrealtime s[98:99]
        s_waitcnt lgkmcnt(0)
        v_mov_b32 v1, s98
        s_load_dwordx2 s[98:99], s[0:1], 64
        s_waitcnt lgkmcnt(0)
        s_mov_b64 exec, 1
        global_store_dword v0, v1, s[98:99] offset:{4*m[i]}
        s_mov_b64 exec, -1
        {lab}:
        ''')
        return
    if not OPT['prof'] and not (OPT.get('span') and i>=30): return
    if OPT.get('rtp'): rt=True
    a(f'''
    {"s_memrealtime" if rt else "s_memtime"} s[98:99]
    s_waitcnt lgkmcnt(0)
    v_mov_b32 v1, s98
    s_lshl_b32 s98, s2, 7
    s_add_u32 s98, s98, {PROF_OFF+4*i}
    s_cmp_eq_u32 s33, 0
    s_cselect_b32 s98, s98, {OOB}
    buffer_store_dword v1, off, s[20:23], s98
    ''')

class VM:
    def __init__(self): self.ops=[]
    def issue(self,t): self.ops.append(t)
    def wait_n(self,tag):
        idx=max(i for i,t in enumerate(self.ops) if t==tag)
        return min(63,len(self.ops)-1-idx)

class Sched:
    def __init__(self,nm,cap=2):
        self.nm=nm; self.cap=cap
        self.fill=[[] for _ in range(nm)]; self.post=[[] for _ in range(nm)]; self.pre=[[] for _ in range(nm+1)]
        self.load=[0]*nm; self.tail=[]
    def add_post(self,m,ins,cost=1):
        m=min(m,self.nm-1); self.post[m].append(ins); self.load[m]+=cost
    def add_pre(self,m,ins,cost=1):
        self.pre[m].append(ins)
        if m>0: self.load[m-1]+=cost
    def add_fill(self,m,item):
        self.fill[m].append(item); self.load[m]+=item[1]
    def chains(self,chains,lo,hi,nq,pace=False):
        total=sum(x[1] for c in chains for p in c for x in p)
        free=sum(max(0,self.cap-self.load[m]) for m in range(lo,hi))
        over=max(0,total-int(free*0.97))
        stt=[[0,0,-1] for _ in chains]; done=[None]*len(chains)
        placed=0; ov=0.0; m=lo
        while any(d is None for d in done):
            mm=min(m,self.nm-1)
            capl=self.cap-self.load[mm]
            ov+=over/(hi-lo)
            if ov>=1: capl+=1; ov-=1
            if m>=hi: capl=max(capl,3)
            if pace and over==0 and m<hi:
                capl=min(capl,int(total*(m-lo+1)/(hi-lo)-placed+0.999))
            while capl>0:
                cands=[]
                for k,c in enumerate(chains):
                    if done[k] is not None: continue
                    if k>=nq and (done[k-nq] is None or done[k-nq]>m-2): break
                    ph,ix,pg=stt[k]
                    if ix==0 and pg>=m: continue
                    cands.append(k)
                pick=None
                if capl>=2:
                    for k in cands:
                        if chains[k][stt[k][0]][stt[k][1]][1]>=2: pick=k;break
                if pick is None:
                    for k in cands:
                        if chains[k][stt[k][0]][stt[k][1]][1]<=capl: pick=k;break
                if pick is None: break
                ph,ix,pg=stt[pick]; it=chains[pick][ph][ix]
                if m<self.nm: self.fill[mm].append(it); self.load[mm]+=it[1]
                else: self.tail.append(it)
                capl-=it[1]; placed+=it[1]; ix+=1
                if ix==len(chains[pick][ph]):
                    ph+=1; ix=0; pg=m
                    if ph==len(chains[pick]): done[pick]=m
                stt[pick]=[ph,ix,pg]
            m+=1
            assert m<hi+400
        return m
    def seq(self,lo,hi,L):
        n=len(L); m=lo; nm=self.nm
        for k,x in enumerate(L):
            m=max(m,lo+int(k*(hi-lo)/n))
            lim=max(m,lo+int((k+1)*(hi-lo)/n)-1)
            if m>=nm: self.tail.append((x,1,'x') if x.startswith(('buffer','global')) else (x,1)); continue
            best=min(range(m,min(lim,nm-1)+1),key=lambda g:(self.load[g],g))
            if x.startswith('@'): self.add_post(best,x,2)
            elif x.startswith(('buffer','global')): self.add_fill(best,(x,1,'x'))
            else: self.add_fill(best,(x,1))
            m=best+1
    def emit(self,a,vm,mfma,lds_init,special):
        lds=list(lds_init)
        def out(s):
            nonlocal lds
            if s.startswith('WAITL'):
                need=int(s[5:].split(':')[0]); slack=int(s.split(':')[1]) if ':' in s else 0
                c=[i for i,x in enumerate(lds) if x<=need]
                if c:
                    idx=max(c); n=max(0,len(lds)-1-idx-slack)
                    a(f's_waitcnt lgkmcnt({min(n,15)})'); lds=lds[idx+1:]
            elif s.startswith('@'): special(s[1:])
            else:
                if ';tag=' in s:
                    s,t=s.split(';tag='); lds.append(int(t))
                a(s)
        for s in self.pre[0]: out(s)
        for m in range(self.nm):
            a(mfma(m))
            items=[(f[0],f[2] if len(f)>2 else None) for f in self.fill[m]]+[(s,None) for s in self.post[m]]
            late=[s for s in self.pre[m+1] if s.startswith('@')]
            waits=[s for s in self.pre[m+1] if not s.startswith('@')]
            nv=[x for x in items if not x[0].startswith('v_')]; va=[x for x in items if x[0].startswith('v_')]
            if not late:
                for s in waits: out(s)
            for x in nv+va:
                out(x[0])
                if x[1]: vm.issue(x[1])
            if late:
                for s in late+waits: out(s)
        for f in self.tail:
            out(f[0])
            if len(f)>2: vm.issue(f[2])

def xreg(i,ks):
    if ks<16: return ar((ks*4+i)*4,4)
    return vr(V_X+((ks-16)*4+i)*4,4)

def ch_epiG(acc):
    ch=[]; n=0
    for b in range(4):
        for i in range(4):
            A=acc+(b*4+i)*4; T=V_T+(n%4)*4; n+=1; S=V_SG+(b*4+i)*2
            ch.append([[(f'v_mul_f32 v{T+r}, s40, v{A+r}',1) for r in range(4)],
              [(f'v_exp_f32 v{T+r}, v{T+r}',2) for r in range(4)],
              [(f'v_add_f32 v{T+r}, 1.0, v{T+r}',1) for r in range(4)],
              [(f'v_rcp_f32 v{T+r}, v{T+r}',2) for r in range(4)],
              [(f'v_mul_f32 v{T+r}, v{T+r}, v{A+r}',1) for r in range(4)],
              [(f'v_cvt_pk_bf16_f32 v{S}, v{T}, v{T+1}',1),(f'v_cvt_pk_bf16_f32 v{S+1}, v{T+2}, v{T+3}',1)]])
    return ch,4
def ch_epiU(acc):
    ch=[]; n=0
    for p in range(2):
        for i in range(4):
            T=V_T+(n%2)*8; n+=1; p1=[];p2=[]
            for hb in range(2):
                b=2*p+hb; A=acc+(b*4+i)*4; S=V_SG+(b*4+i)*2; t=T+4*hb
                p1+=[(f'v_lshlrev_b32 v{t}, 16, v{S}',1),(f'v_and_b32 v{t+1}, s41, v{S}',1),
                     (f'v_lshlrev_b32 v{t+2}, 16, v{S+1}',1),(f'v_and_b32 v{t+3}, s41, v{S+1}',1)]
                p2+=[(f'v_mul_f32 v{t+r}, v{t+r}, v{A+r}',1) for r in range(4)]
            p3=[(f'v_cvt_pk_bf16_f32 v{T+j}, v{T+2*j}, v{T+2*j+1}',1) for j in range(4)]
            p4=[(f'buffer_store_dwordx4 v[{T}:{T+3}], v{V_HST}, s[20:23], s{44+i} offen offset:{p*1024}{STF}',2,'st')]
            ch.append([p1,p2,p3,p4])
    return ch,2
def ch_epiQ(acc,b0,coff):
    ch=[]
    for i in range(4):
        D=V_T+i*4; p1=[]
        for hb in range(2):
            A=acc+((b0+hb)*4+i)*4
            p1+=[(f'v_cvt_pk_bf16_f32 v{D+2*hb}, v{A}, v{A+1}',1),(f'v_cvt_pk_bf16_f32 v{D+2*hb+1}, v{A+2}, v{A+3}',1)]
        ch.append([p1,[(f'buffer_store_dwordx4 v[{D}:{D+3}], v{V_QST}, s[20:23], s{48+i} offen offset:{coff}{STF}',2,'st')]])
    return ch,4
def flat(ch):
    out=[]
    for p in range(max(len(c) for c in ch)):
        for c in ch:
            if p<len(c): out+=[x[0] for x in c[p]]
    return out
def epiZ_tail(a,acc):
    a(f'''
    s_mul_i32 s35, s30, 18
    s_lshr_b32 s42, s31, 1
    s_add_u32 s35, s35, s42
    s_add_u32 s35, s35, 16
    s_lshl_b32 s35, s35, 10
    s_and_b32 s42, s31, 1
    s_lshl_b32 s42, s42, 3
    s_add_u32 s35, s35, s42
    s_add_u32 s44, s35, {H_OFF}
    s_add_u32 s45, s44, 147456
    s_add_u32 s46, s44, 294912
    s_add_u32 s47, s44, 442368
    ''')
    ch=[]
    for i in range(4):
        Gr=acc+i*4; U=acc+(4+i)*4; T=V_T+i*4; D=V_SG+2*i
        ch.append([[(f'v_mul_f32 v{T+r}, s40, v{Gr+r}',1) for r in range(4)],
          [(f'v_exp_f32 v{T+r}, v{T+r}',2) for r in range(4)],
          [(f'v_add_f32 v{T+r}, 1.0, v{T+r}',1) for r in range(4)],
          [(f'v_rcp_f32 v{T+r}, v{T+r}',2) for r in range(4)],
          [(f'v_mul_f32 v{T+r}, v{T+r}, v{Gr+r}',1) for r in range(4)],
          [(f'v_cvt_pk_bf16_f32 v{T}, v{T}, v{T+1}',1),(f'v_cvt_pk_bf16_f32 v{T+2}, v{T+2}, v{T+3}',1)],
          [(f'v_and_b32 v{T+1}, s41, v{T}',1),(f'v_lshlrev_b32 v{T}, 16, v{T}',1),(f'v_and_b32 v{T+3}, s41, v{T+2}',1),(f'v_lshlrev_b32 v{T+2}, 16, v{T+2}',1)],
          [(f'v_mul_f32 v{T+r}, v{T+r}, v{U+r}',1) for r in range(4)],
          [(f'v_cvt_pk_bf16_f32 v{D}, v{T}, v{T+1}',1),(f'v_cvt_pk_bf16_f32 v{D+1}, v{T+2}, v{T+3}',1)],
          [(f'buffer_store_dwordx2 v[{D}:{D+1}], v{V_HST}, s[20:23], s{44+i} offen{STF}',2,'st')]])
    for s in flat(ch): a(s)

def chk8(a,off,thr,lab):
    a(f's_mov_b32 s3, 0\nK_{lab}_c:\ns_waitcnt lgkmcnt(0)')
    for i in range(8): a(f's_sub_u32 s{88+i}, s{88+i}, {thr}')
    a(f'''
    s_max_u32 s88, s88, s89
    s_max_u32 s90, s90, s91
    s_max_u32 s92, s92, s93
    s_max_u32 s94, s94, s95
    s_max_u32 s88, s88, s90
    s_max_u32 s92, s92, s94
    s_max_u32 s88, s88, s92
    s_cmp_le_u32 s88, 2
    s_cbranch_scc1 K_{lab}_ok
    s_add_u32 s3, s3, 1
    s_cmp_gt_u32 s3, {OPT['SPIN']}
    s_cbranch_scc1 K_{lab}_ok
    s_load_dwordx8 s[88:95], s[20:21], {off} glc
    s_branch K_{lab}_c
    K_{lab}_ok:
    ''')
V_FL=245; V_FA=244
def vchk(a,off,thr,lab):
    a(f'''
    v_subrev_u32 v{V_FL}, {thr}, v{V_FL}
    v_cmp_lt_u32 vcc, 2, v{V_FL}
    s_mov_b32 s3, 0
    s_cbranch_vccz K_{lab}_ok
    K_{lab}_c:
    buffer_load_dword v{V_FL}, v{V_FA}, s[20:23], {off} offen sc1
    s_add_u32 s3, s3, 1
    s_cmp_gt_u32 s3, {OPT['SPIN']}
    s_cbranch_scc1 K_{lab}_ok
    s_waitcnt vmcnt(0)
    v_subrev_u32 v{V_FL}, {thr}, v{V_FL}
    v_cmp_lt_u32 vcc, 2, v{V_FL}
    s_nop 0
    s_cbranch_vccnz K_{lab}_c
    K_{lab}_ok:
    ''')
def vpoll(a,lab,vdst,vaddr,soff,sleep=0,first_loaded=False):
    a('s_mov_b32 s3, 0')
    if first_loaded: a(f's_branch P_{lab}_t')
    a(f'''
    P_{lab}:
    s_add_u32 s3, s3, 1
    s_cmp_gt_u32 s3, {OPT['SPIN']}
    s_cbranch_scc1 P_{lab}_ok
    buffer_load_dword v{vdst}, v{vaddr}, s[20:23], {soff} offen sc1
    s_waitcnt vmcnt(0)
    P_{lab}_t:
    v_cmp_ne_u32 vcc, s39, v{vdst}
    s_nop 1
    s_cmp_eq_u64 vcc, 0
    s_cbranch_scc1 P_{lab}_ok
    ''')
    if sleep: a(f's_sleep {sleep}')
    a(f's_branch P_{lab}\nP_{lab}_ok:')

def body(a,vm,accset,epi,kind='full',dma=True,last=False,mid=False,seqs=(),pace=True,cap=2,epilo=1):
    acc=V_ACC[accset]; ns=72 if kind=='full' else 36; nm=ns*4
    S=Sched(nm,cap)
    step=4096 if kind=='full' else 8192; midg=9 if kind=='full' else 5
    def rd_off(t):
        g=t//4
        return (g*step if g<midg else (g-midg)*step), g>=midg
    for t in range(ns):
        m0=t*4
        if t%2==0: S.add_pre(m0,f'WAITL{min(t+1,ns-1)}')
        tn=t+4; w=V_WF+(t%4)*4; ad=V_AD+(t%4)
        if tn<ns:
            off,hi=rd_off(tn); _,hip=rd_off(t)
            if hi and not hip: S.add_post(m0+1,f'v_add_u32 v{ad}, {midg*step}, v{ad}')
            S.add_post(m0+3,f'ds_read_b64_tr_b16 v[{w}:{w+1}], v{ad} offset:{off};tag={tn}')
            S.add_post(m0+4,f'ds_read_b64_tr_b16 v[{w+2}:{w+3}], v{ad} offset:{off+512};tag={tn}')
        elif not last:
            S.add_post(m0+1,f'v_mov_b32 v{ad}, v{V_NB+(t%4)}')
            if tn==ns: S.add_post(m0+2,'@SUB',2)
            S.add_post(m0+3,f'ds_read_b64_tr_b16 v[{w}:{w+1}], v{ad} offset:0;tag={tn}')
            S.add_post(m0+4,f'ds_read_b64_tr_b16 v[{w+2}:{w+3}], v{ad} offset:512;tag={tn}')
    if dma:
        for n in range(18):
            m=(n//3)*16+(n%3)*5+1
            S.add_fill(m,('s_add_u32 m0, m0, 4096',1))
            S.add_fill(m+1,(f'global_load_lds_dwordx4 v[{V_DA}:{V_DA+1}], off',1,'dma'))
            S.add_fill(m+1,(f'v_lshl_add_u64 v[{V_DA}:{V_DA+1}], v[{V_DA}:{V_DA+1}], 0, {S_DI}',1))
    if mid: S.add_post(OPT['MIDKS']*16+1,'@MID',3)
    endm=0
    if epi: endm=S.chains(epi[0],epilo,nm-6,epi[1],pace=pace)
    for lo,hi,L in seqs:
        S.seq(endm+1 if lo=='epi' else lo,hi,L)
    def mf(m):
        t=m//4;i=m%4
        ks,b=(t//4,t%4) if kind=='full' else (t//2,t%2)
        D=acc+(b*4+i)*4; w=V_WF+(t%4)*4
        return f'v_mfma_f32_16x16x32_bf16 {vr(D,4)}, {vr(w,4)}, {xreg(i,ks)}, {"0" if ks==0 else vr(D,4)}'
    def special(n):
        if n=='SUB': a(f's_waitcnt vmcnt({vm.wait_n("dma")})\ns_barrier')
        elif n=='MID':
            a(f's_waitcnt vmcnt({min(63,len(vm.ops))})\ns_barrier')
            a(f'buffer_store_dword v{V_ONE}, off, s[20:23], s24 sc1'); vm.issue('fl')
        elif n=='CHK8': chk8(a,'s26','s39','Zh')
    S.emit(a,vm,mf,[0,0,1,1,2,2,3,3],special)

def grp_w(g):
    return [(f's_add_u32 m0, s66, {g*4096}',1),
       (f'global_load_lds_dwordx4 v[{V_DA}:{V_DA+1}], off',1,f'g{g}'),
       (f's_add_u32 m0, s66, {HALF+g*4096}',1),
       (f'v_lshl_add_u64 v[{V_DA}:{V_DA+1}], v[{V_DA}:{V_DA+1}], 0, {S_DI}',1),
       (f'global_load_lds_dwordx4 v[{V_QA}:{V_QA+1}], off',1,f'g{g}'),
       (f'v_lshl_add_u64 v[{V_QA}:{V_QA+1}], v[{V_QA}:{V_QA+1}], 0, {S_QI}',1)]
def grp_x(g):
    return [(f'buffer_load_dwordx4 {xreg(i,g)}, v{V_XO+i}, s[20:23], s{52+g//4} offen offset:{(g%4)*1024} sc1',1,f'g{g}') for i in range(4)]
def u0_items(g):
    return [(f's_add_u32 m0, s66, {HALF+g*4096}',1),
            (f'global_load_lds_dwordx4 v[{V_UA}:{V_UA+1}], off',1,f'u{g}'),
            (f'v_lshl_add_u64 v[{V_UA}:{V_UA+1}], v[{V_UA}:{V_UA+1}], 0, {S_DI}',1)]

def bodyF(a,vm):
    FD=OPT['FD']; nm=18*32; nxt=OPT['FD0']
    S=Sched(nm)
    def regs(sl):
        if sl<4: return V_SG+sl*4, V_NB+sl, V_ACC[1]+sl*16
        return V_WF+(sl-4)*4, V_AD+(sl-4), V_ACC[0]+(sl-4)*16
    for ks in range(18):
        for sl in range(8):
            t=ks*8+sl; m0=t*4; w,ad,_=regs(sl)
            if sl==2: S.add_pre(m0,f'@SKIP{ks}')
            if sl==4: S.pre[m0].append(f'@LAB{ks}')
            if sl%2==0: S.add_pre(m0,f'WAITL{t+1}:4')
            kn=ks+1
            m2=m0+4 if sl not in (1,3) else m0+3
            if kn<18:
                if kn==9: S.add_post(m0+1,f'v_add_u32 v{ad}, 36864, v{ad}')
                off=(kn%9)*4096
                S.add_post(m0+3,f'ds_read_b64_tr_b16 v[{w}:{w+1}], v{ad} offset:{off};tag={t+8}')
                S.add_post(m2,f'ds_read_b64_tr_b16 v[{w+2}:{w+3}], v{ad} offset:{off+512};tag={t+8}')
            elif sl>=4:
                S.add_post(m0+1,f'v_add_u32 v{ad}, {HALF}, v{V_BN+sl-4}')
                if sl==4: S.add_post(m0+2,'@SUB',2)
                S.add_post(m0+3,f'ds_read_b64_tr_b16 v[{w}:{w+1}], v{ad} offset:0;tag={t+8}')
                S.add_post(m2,f'ds_read_b64_tr_b16 v[{w+2}:{w+3}], v{ad} offset:512;tag={t+8}')
        base=ks*32
        if ks<17: S.add_post(base+30,f'@READY{ks+1}',1)
        if ks%3==0 and 0<ks<17: S.add_post(base+1,'s_barrier',1)
        mand=[base+2,base+4,base+5,base+6]+[base+16+j for j in (0,1,2,4,5,6,8,9,10,12,13)]
        items=[]
        for _ in range(2):
            if nxt<18 and nxt<=ks+FD: items+=grp_x(nxt); nxt+=1
        if len(items)<=4: mand=[base+2,base+5]+[base+16+j for j in (0,2,4,6,8,10,12)]
        if 3<=ks<17: items=items[:2]+u0_items(ks-3)+items[2:] if len(items)>=2 else u0_items(ks-3)
        if ks==OPT['tu0']: items+=[(f'global_load_dword v{V_DUM}, v{V_TR}, s[18:19]',1,'t')]
        if ks==OPT['tg1']: items+=[(f'global_load_dword v{V_DUM}, v{V_TR}, s[60:61]',1,'t')]
        if ks==OPT['tu1']: items+=[(f'global_load_dword v{V_DUM}, v{V_TR}, s[4:5]',1,'t')]
        if ks<17:
            for j,it in enumerate(items): S.add_fill(mand[j],it)
        else:
            for j,it in enumerate(u0_items(14)): S.add_fill(base+2+j,it)
            for j,it in enumerate(u0_items(15)+u0_items(16)+u0_items(17)): S.add_fill(base+16+4+j,it)
    ch,nq=ch_epiQ(V_ACC[1],0,0)
    S.chains(ch,17*32+18,nm,nq)
    def mf(m):
        t=m//4;i=m%4;ks=t//8;sl=t%8
        w,_,ac=regs(sl); D=ac+i*4
        return f'v_mfma_f32_16x16x32_bf16 {vr(D,4)}, {vr(w,4)}, {xreg(i,ks)}, {"0" if ks==0 else vr(D,4)}'
    def special(n):
        if n.startswith('SKIP'): a(f's_cbranch_vccz KF_s{n[4:]}')
        elif n.startswith('LAB'): a(f'KF_s{n[3:]}:')
        elif n.startswith('READY'): a(f's_waitcnt vmcnt({vm.wait_n("g"+n[5:])})')
        elif n=='SUB': a(f's_waitcnt vmcnt({vm.wait_n("u%d"%OPT["MIDKS"])})\ns_barrier')
    S.emit(a,vm,mf,[t for t in range(8) for _ in range(2)],special)

def lamword(seq,start):
    w=0
    for k in range(6): w|=(seq[start+k] if start+k<len(seq) else 31)<<(5*k)
    return w
def c_roles_scalar(a):
    a(f'''
    s_and_b32 s92, s2, 1
    s_bfe_u32 s69, s2, 0x20001
    s_bfe_u32 s93, s2, 0x20003
    s_bfe_u32 s94, s2, 0x10005
    s_lshr_b32 s95, s2, 6
    s_lshl_b32 s95, s95, 1
    s_add_u32 s95, s95, s94
    s_lshl_b32 s57, s92, 3
    s_add_u32 s57, s57, s95
    s_mov_b32 s68, 0
    s_mov_b32 s83, 0
    s_mov_b32 s7, 147456
    s_mul_i32 s73, s69, {18*64*1152}
    s_mul_i32 s74, s69, {18*2048}
    s_add_u32 s74, s74, {H_OFF}
    s_mov_b32 s86, {4608*1152+2048}
    s_mov_b32 s75, {lamword(LAM_H,5)}
    s_mov_b32 s76, {lamword(LAM_H,11)}
    s_mov_b32 s77, {lamword(LAM_H,17)}
    s_mov_b32 s78, {lamword(LAM_H,0)}
    s_mov_b32 s82, 18
    s_cmp_lt_u32 s93, 3
    s_cbranch_scc1 C_rh
    s_lshl_b32 s57, s92, 2
    s_add_u32 s57, s57, s69
    s_lshl_b32 s83, s57, 3
    s_add_u32 s83, s83, s95
    s_lshl_b32 s57, s57, 1
    s_cmp_ge_u32 s95, 3
    s_cselect_b32 s94, 1, 0
    s_add_u32 s57, s57, s94
    s_mul_i32 s94, s94, 3
    s_sub_u32 s93, s95, s94
    s_cmp_lt_u32 s95, 6
    s_cselect_b32 s68, 1, 2
    s_cselect_b32 s93, s93, 0
    s_mov_b32 s69, 0
    s_mov_b32 s7, 18432
    s_mov_b32 s73, 0
    s_mov_b32 s74, {O_OFF}
    s_mov_b32 s86, {576*1152+2048}
    s_mov_b32 s75, {lamword(LAM_S,5)}
    s_mov_b32 s76, {lamword(LAM_S,11)}
    s_mov_b32 s77, {lamword(LAM_S,17)}
    s_mov_b32 s78, {lamword(LAM_S,0)}
    s_mov_b32 s82, 9
    s_mov_b32 s90, s88
    s_mov_b32 s91, s89
    C_rh:
    s_sub_u32 s84, s90, 2048
    s_subb_u32 s85, s91, 0
    s_mov_b32 s87, 0x20000
    s_mul_i32 s70, s57, 3
    s_add_u32 s70, s70, s93
    s_mul_i32 s71, s93, 384
    s_add_u32 s73, s73, s71
    s_mul_i32 s72, s33, 3072
    ''')
def c_roles_vector():
    A,B,C='v1','v255','v253'
    t=f'''
    v_lshlrev_b32 v{C_LV}, 4, v0
    v_lshrrev_b32 {A}, 3, v0
    s_lshl_b32 s92, s33, 3
    v_add_u32 {A}, s92, {A}
    v_bfe_u32 {B}, {A}, 2, 2
    v_lshlrev_b32 {B}, 3, {B}
    v_lshrrev_b32 {C}, 4, {A}
    v_lshl_add_u32 {B}, {C}, 2, {B}
    v_and_b32 {C}, 3, {A}
    v_add_u32 {B}, {B}, {C}
    s_cmp_eq_u32 s68, 0
    s_cselect_b64 s[92:93], -1, 0
    v_cndmask_b32 {A}, {B}, {A}, s[92:93]
    v_mul_u32_u24 {A}, 1152, {A}
    v_bfe_u32 {B}, v0, 1, 2
    v_lshrrev_b32 {C}, 4, v0
    v_xor_b32 {B}, {B}, {C}
    v_lshl_add_u32 {A}, {B}, 5, {A}
    v_and_b32 {B}, 1, v0
    v_lshl_add_u32 {A}, {B}, 4, {A}
    v_add_u32 v{C_DV}, 2048, {A}
    v_add_u32 v{C_DV+1}, {2048+128-1024}, {A}
    v_add_u32 v{C_DV+2}, {2048+256-2048}, {A}
    s_lshl_b32 s92, s57, 3
    s_lshl_b32 s93, s33, 1
    s_add_u32 s92, s92, s93
    s_mul_i32 s93, s92, s7
    v_add_u32 v{C_HV}, s93, v{C_LV}
    v_add_u32 v{C_HV+1}, s7, v{C_HV}
    v_and_b32 {A}, 7, v0
    v_lshlrev_b32 {A}, 1, {A}
    v_bfe_u32 {B}, v0, 3, 1
    s_lshl_b32 s92, s92, 4
    v_add3_u32 {A}, {A}, {B}, s92
    v_mul_u32_u24 {A}, 1152, {A}
    v_lshrrev_b32 {B}, 4, v0
    v_lshl_add_u32 {A}, {B}, 3, {A}
    s_lshl_b32 s92, s69, 5
    s_add_u32 s92, s92, s71
    v_add_u32 v{C_OA}, s92, {A}
    v_add_u32 v{C_OA+1}, 18432, v{C_OA}
    '''
    return [l.strip() for l in t.split('\n') if l.strip()]
def prefetch(slot,tabreg='s75',parts='WH'):
    W=lambda l: f'buffer_load_dwordx4 v{C_DV+l}, s[84:87], s80 offen offset:{1024*l} lds'
    def H(n):
        ks,i=n//2,n%2; r=ORDER.index(slot)*16+n*4
        return f'buffer_load_dwordx4 a[{r}:{r+3}], v{C_HV+i}, s[20:23], s81 offen offset:{ks*1024} sc1'
    L=[f's_and_b32 s79, {tabreg}, 31', f's_mul_i32 s80, s79, {64*1152}', 's_lshl_b32 s81, s79, 11', 's_add_u32 s80, s80, s73', 's_add_u32 s81, s81, s74',
       's_cmp_lt_u32 s79, 18', f's_cselect_b32 s80, s80, {OOB}', f's_cselect_b32 s81, s81, {OOB}',
       f's_add_u32 m0, s72, {slot*STG}', H(0), W(0), f's_lshr_b32 {tabreg}, {tabreg}, 5', W(1), W(2),
       f's_add_u32 m0, s72, {slot*STG+4*3072}', H(1), 's_add_u32 s80, s80, 36864', W(0), W(1), W(2), H(2), H(3)]
    if 'W' not in parts: L=[x for x in L if ' lds' not in x and 'm0' not in x and 's80' not in x]
    if 'H' not in parts: L=[x if not x.startswith('buffer_load_dwordx4 a') else 's_nop 0' for x in L if 's81' not in x or x.startswith('buffer')]
    return L
def c_addr_items():
    A,B,C='v1','v96','v97'
    L=[f'v_lshrrev_b32 {A}, 5, v0', f'v_mul_u32_u24 {A}, 3072, {A}', f'v_bfe_u32 {B}, v0, 2, 3', f'v_lshl_add_u32 {A}, {B}, 7, {A}',
       f'v_lshrrev_b32 {B}, 1, {B}', f'v_xor_b32 {B}, s69, {B}', f'v_and_b32 {C}, 3, v0', f'v_lshl_add_u32 {A}, {C}, 3, {A}']
    for b_ in range(4):
        L+=[f'v_xor_b32 {C}, {b_}, {B}', f'v_lshl_add_u32 v{C_AD[b_]}, {C}, 5, {A}']
        for hs in range(1,3): L.append(f'v_add_u32 v{C_AD[4*hs+b_]}, {2*STG*hs}, v{C_AD[b_]}')
    return L
def c_rd(slot,t,half):
    ks,b_=t//12,t%12
    w=C_WF[t%6]+2*half; ad=C_AD[4*(slot//2)+(b_&3)]
    off=(slot%2)*STG+ks*12288+(b_//4)*1024+half*6144
    return f'ds_read_b64_tr_b16 v[{w}:{w+1}], v{ad} offset:{off}'

def bodyZ(a,vm,seqs,capa=2):
    ns=72; nm=288
    S=Sched(nm,capa)
    for t in range(ns):
        m0=t*4
        if t%2==0: S.add_pre(m0,f'WAITL{min(t+1,ns-1)}')
        tn=t+4; w=V_WF+(t%4)*4; ad=V_AD+(t%4)
        if tn<ns:
            g=(tn%36)//4; gp=(t%36)//4
            if tn>=36 and t<36:
                S.add_post(m0+1,f'v_add_u32 v{ad}, {4096*((t%4)//2)}, v{V_BN+2+(t%2)}')
            elif g==5 and gp==4: S.add_post(m0+1,f'v_add_u32 v{ad}, 40960, v{ad}')
            off=(g if g<5 else g-5)*8192
            S.add_post(m0+3,f'ds_read_b64_tr_b16 v[{w}:{w+1}], v{ad} offset:{off};tag={tn}')
            S.add_post(m0+4,f'ds_read_b64_tr_b16 v[{w+2}:{w+3}], v{ad} offset:{off+512};tag={tn}')
    ch,nq=ch_epiU(V_ACC[1])
    e1=S.chains(ch,1,138,nq,pace=False)
    assert e1<=143,e1
    ch2=[]
    for n in range(8):
        A=64+n*4; T=V_T+(n%4)*4
        ch2.append([[(f'v_mul_f32 v{T+r}, s40, v{A+r}',1) for r in range(4)],
          [(f'v_exp_f32 v{T+r}, v{T+r}',2) for r in range(4)],
          [(f'v_add_f32 v{T+r}, 1.0, v{T+r}',1) for r in range(4)],
          [(f'v_rcp_f32 v{T+r}, v{T+r}',2) for r in range(4)],
          [(f'v_mul_f32 v{A+r}, v{T+r}, v{A+r}',1) for r in range(4)]])
    for lo,hi,L in seqs: S.seq(lo,hi,L)
    S.chains(ch2,148,nm-2,4,pace=False)
    def mf(m):
        t=m//4;i=m%4; p=t//36; ks=(t%36)//2; b=t%2
        D=(64 if p==0 else 32)+(b*4+i)*4; w=V_WF+(t%4)*4
        return f'v_mfma_f32_16x16x32_bf16 {vr(D,4)}, {vr(w,4)}, {xreg(i,ks)}, {"0" if ks==0 else vr(D,4)}'
    def special(n):
        if n=='CHK8':
            a(f's_waitcnt vmcnt({vm.wait_n("fld")})'); vchk(a,'s26','s39','Zh')
        elif n=='FLD':
            a(f'buffer_load_dword v{V_FL}, v{V_FA}, s[20:23], s26 offen sc1'); vm.issue('fld')
        elif n=='G2':
            a(f's_waitcnt vmcnt({vm.wait_n("st")})\nbuffer_store_dword v{V_ONE}, off, s[20:23], s25 sc1'); vm.issue('x')
        elif n=='QL':
            a('buffer_load_dword v255, v253, s[20:23], s26 offen sc1'); vm.issue('ql')
        elif n=='QP':
            a(f's_waitcnt vmcnt({vm.wait_n("ql")})'); vpoll(a,'q',255,253,'s26',first_loaded=True)
    S.emit(a,vm,mf,[0,0,1,1,2,2,3,3],special)
def z_tail(a):
    a(f'''
    s_mul_i32 s35, s30, 18
    s_add_u32 s35, s35, s31
    s_add_u32 s35, s35, 14
    s_lshl_b32 s35, s35, 10
    s_add_u32 s44, s35, {H_OFF}
    s_add_u32 s45, s44, 147456
    s_add_u32 s46, s44, 294912
    s_add_u32 s47, s44, 442368
    ''')
    for i in range(4):
        D=V_T+i*4
        for hb in range(2):
            G=64+(hb*4+i)*4; U=32+(hb*4+i)*4
            for r in range(4): a(f'v_mul_f32 v{U+r}, v{U+r}, v{G+r}')
            a(f'v_cvt_pk_bf16_f32 v{D+2*hb}, v{U}, v{U+1}\nv_cvt_pk_bf16_f32 v{D+2*hb+1}, v{U+2}, v{U+3}')
        a(f'buffer_store_dwordx4 v[{D}:{D+3}], v{V_HST}, s[20:23], s{44+i} offen{STF}')

def attention(a,waitq,rows_split):
    Q=8; KB=(44,80); L=116; O=148; AW=220; V0,V1=44,80
    a(f'''
    v_lshrrev_b32 v2, 3, v0
    v_and_b32 v3, 7, v0
    v_mul_u32_u24 v3, 144, v3
    s_lshl_b32 s92, s33, 3
    v_add_u32 v2, s92, v2
    s_lshr_b32 s93, s83, 1
    s_lshl_b32 s93, s93, 5
    v_add_u32 v229, s93, v2
    v_add_u32 v4, 7, v2
    s_mov_b32 s94, 3456
    s_mov_b32 s95, 0x05040100
    s_mov_b32 s96, 0x07060302
    s_mov_b32 s97, 0x3eae1a93
    ''')
    n1,b1,b2=rows_split
    a(f'v_mov_b32 v6, {(b2-n1*3456)&0xffffffff}\nv_mov_b32 v7, {b1}')
    for w in range(8):
        a(f'v_min_u32 v5, {w}, v229\nv_sub_u32 v5, v4, v5\nv_cmp_gt_u32 vcc, {n1}, v5\nv_mad_u32_u24 v{AW+w}, v5, s94, v3\ns_nop 0\nv_cndmask_b32 v5, v6, v7, vcc\nv_add_u32 v{AW+w}, v{AW+w}, v5')
    waitq()
    def rd(dst,ad,off):
        for m in range(9): a(f'ds_read_b128 v[{dst+4*m}:{dst+4*m+3}], v{ad} offset:{off+16*m}')
    def rdl(dst,ad,off): return [f'ds_read_b128 v[{dst+4*m}:{dst+4*m+3}], v{ad} offset:{off+16*m}' for m in range(9)]
    rd(Q,AW,0); rd(KB[0],AW,1152)
    for w in range(8):
        a('s_waitcnt lgkmcnt(0)')
        nx=rdl(KB[(w+1)%2],AW+w+1,1152) if w<7 else rdl(V0,AW,2304)
        k=KB[w%2]
        for j in range(9):
            a(nx[j])
            for hh in range(4):
                c='0' if j==0 else f'v{L+hh*8+w}'
                a(f'v_dot2_f32_bf16 v{L+hh*8+w}, v{Q+9*hh+j}, v{k+9*hh+j}, {c}')
    rd(V1,AW+1,2304)
    a('v_mov_b32 v5, 0xff800000')
    for w in range(1,8):
        a(f'v_cmp_le_u32 vcc, {w}, v229\ns_nop 1')
        for hh in range(4): a(f'v_cndmask_b32 v{L+hh*8+w}, v5, v{L+hh*8+w}, vcc')
    M=Q
    for step in range(4):
        for hh in range(4):
            l=L+hh*8
            a([f'v_max3_f32 v{M+hh}, v{l}, v{l+1}, v{l+2}',f'v_max3_f32 v{M+hh}, v{M+hh}, v{l+3}, v{l+4}',f'v_max3_f32 v{M+hh}, v{M+hh}, v{l+5}, v{l+6}',f'v_max_f32 v{M+hh}, v{M+hh}, v{l+7}'][step])
    for hh in range(4): a(f'v_mul_f32 v{M+hh}, s97, v{M+hh}')
    for hh in range(4):
        for w in range(8): a(f'v_fma_f32 v{L+hh*8+w}, v{L+hh*8+w}, s97, -v{M+hh}')
    for r in range(32): a(f'v_exp_f32 v{L+r}, v{L+r}')
    for hh in range(4): a(f'v_add_f32 v{M+hh}, v{L+hh*8}, v{L+hh*8+1}')
    for w in range(2,8):
        for hh in range(4): a(f'v_add_f32 v{M+hh}, v{M+hh}, v{L+hh*8+w}')
    for hh in range(4): a(f'v_rcp_f32 v{M+hh}, v{M+hh}')
    a('s_nop 0')
    for hh in range(4):
        for w in range(8): a(f'v_mul_f32 v{L+hh*8+w}, v{L+hh*8+w}, v{M+hh}')
    for hh in range(4):
        for wp in range(4): a(f'v_cvt_pk_bf16_f32 v{L+hh*8+wp}, v{L+hh*8+2*wp}, v{L+hh*8+2*wp+1}')
    for wp in range(4):
        a('s_waitcnt lgkmcnt(0)')
        nx=[x for p in zip(rdl(V0,AW+2*wp+2,2304),rdl(V1,AW+2*wp+3,2304)) for x in p] if wp<3 else []
        for m in range(9):
            for j in range(4*m,4*m+4):
                a(f'v_perm_b32 v{230+(j%4)}, v{V1+j}, v{V0+j}, s95')
                a(f'v_perm_b32 v{234+(j%4)}, v{V1+j}, v{V0+j}, s96')
            if nx: a(nx[2*m]); a(nx[2*m+1])
            for j in range(4*m,4*m+4):
                c0='0' if wp==0 else f'v{O+2*j}'; c1='0' if wp==0 else f'v{O+2*j+1}'
                a(f'v_dot2_f32_bf16 v{O+2*j}, v{230+(j%4)}, v{L+(j//9)*8+wp}, {c0}')
                a(f'v_dot2_f32_bf16 v{O+2*j+1}, v{234+(j%4)}, v{L+(j//9)*8+wp}, {c1}')
    a(f'''
    v_and_b32 v3, 7, v0
    v_mul_u32_u24 v3, 2304, v3
    v_lshrrev_b32 v2, 3, v0
    v_lshl_add_u32 v3, v2, 4, v3
    s_lshr_b32 s92, s83, 1
    s_lshl_b32 s92, s92, 2
    s_add_u32 s92, s92, s33
    s_mul_i32 s92, s92, 18432
    s_and_b32 s93, s83, 1
    s_lshl_b32 s93, s93, 7
    s_add_u32 s92, s92, s93
    s_add_u32 s92, s92, {O_OFF}
    ''')
    for m in range(9):
        for j in range(4*m,4*m+4): a(f'v_cvt_pk_bf16_f32 v{Q+j}, v{O+2*j}, v{O+2*j+1}')
        a(f'buffer_store_dwordx4 v[{Q+4*m}:{Q+4*m+3}], v3, s[20:23], s92 offen offset:{256*m} sc1')

OST=110592; SSTG=36864
def s_gemm(a):
    AD=44
    BF=64
    WFs=80
    AC=128
    def dma(slot):
        L=[]
        for t3 in range(3):
            L.append(f's_add_u32 m0, s72, {slot*SSTG+t3*3072}')
            L.append(f's_add_u32 s81, s80, {t3*384}')
            for l in range(3): L.append(f'buffer_load_dwordx4 v{C_DV+l}, s[84:87], s81 offen offset:{1024*l} lds')
        L.append('s_add_u32 s80, s80, 36864')
        return L
    a('s_mul_i32 s72, s33, 9216\ns_mov_b32 s80, 0')
    for x in dma(0): a(x)
    for m in range(9): a(f'ds_write_b128 v3, v[{8+4*m}:{8+4*m+3}] offset:{256*m}')
    for x in dma(1)+dma(2): a(x)
    a(f'''
    v_lshrrev_b32 v4, 5, v0
    v_mul_u32_u24 v4, 9216, v4
    v_bfe_u32 v5, v0, 2, 3
    v_lshl_add_u32 v4, v5, 7, v4
    v_lshrrev_b32 v5, 1, v5
    v_and_b32 v6, 3, v0
    v_lshl_add_u32 v4, v6, 3, v4
    s_mul_i32 s92, s33, 9
    v_lshlrev_b32 v7, 4, v0
    v_add_u32 v7, {OST}, v7
    ''')
    for bb in range(9):
        a(f'''
        s_add_u32 s93, s92, {bb}
        s_and_b32 s94, s93, 3
        s_lshr_b32 s93, s93, 2
        s_lshl_b32 s93, s93, 10
        v_xor_b32 v6, s94, v5
        v_lshl_add_u32 v6, v6, 5, v4
        v_add_u32 v{AD+bb}, s93, v6
        v_add_u32 v{AD+9+bb}, {2*SSTG}, v{AD+bb}
        ''')
    for r in range(0,72,2): a(f'v_mov_b64 v[{AC+r}:{AC+r+1}], 0')
    WB=(80,200)
    def reads(k):
        slot=k%3; wb=WB[k%2]; bf=BF+8*(k%2)
        R=[f'ds_read_b128 v[{bf}:{bf+3}], v7',f'ds_read_b128 v[{bf+4}:{bf+7}], v7 offset:18432','v_add_u32 v7, 1024, v7']
        for bb in range(9):
            ad=AD+bb+(9 if slot==2 else 0); off=(slot%2)*SSTG
            R.append(f'ds_read_b64_tr_b16 v[{wb+4*bb}:{wb+4*bb+1}], v{ad} offset:{off}')
            R.append(f'ds_read_b64_tr_b16 v[{wb+4*bb+2}:{wb+4*bb+3}], v{ad} offset:{off+18432}')
        return R
    a('s_waitcnt vmcnt(18) lgkmcnt(0)\ns_barrier')
    for x in reads(0): a(x)
    a('''
    v_lshrrev_b32 v242, 3, v0
    s_lshl_b32 s93, s33, 3
    v_add_u32 v242, s93, v242
    v_mul_u32_u24 v242, 2304, v242
    v_and_b32 v243, 7, v0
    v_lshl_add_u32 v242, v243, 4, v242
    v_add_u32 v242, 2048, v242
    v_bfe_u32 v243, v0, 3, 1
    v_mul_u32_u24 v243, 9216, v243
    v_and_b32 v6, 7, v0
    v_lshl_add_u32 v243, v6, 7, v243
    v_lshrrev_b32 v6, 4, v0
    v_lshl_add_u32 v243, v6, 3, v243
    ''')
    a('s_mov_b32 s82, 3')
    a('S_loop:')
    for k in range(6):
        a('s_waitcnt vmcnt(9) lgkmcnt(0)\ns_barrier')
        if k==3:
            a(f'''
            s_cmp_lg_u32 s82, 1
            s_cbranch_scc1 S_nox
            s_sub_u32 s84, s88, 2048
            s_subb_u32 s85, s89, 0
            s_mov_b32 s86, {2048*1152+2048}
            s_lshr_b32 s80, s83, 1
            s_lshl_b32 s80, s80, 6
            s_and_b32 s93, s83, 1
            s_add_u32 s80, s80, s93
            s_mul_i32 s80, s80, 1152
            v_mov_b32 v{C_DV}, v242
            v_add_u32 v{C_DV+1}, {128-1024}, v242
            v_add_u32 v{C_DV+2}, {256-2048}, v242
            S_nox:
            ''')
        if k==4:
            a(f's_cmp_eq_u32 s82, 1\ns_cselect_b32 s80, {OOB-0x100000}, s80')
        D=dma(k%3); R=reads(k+1); wb=WB[k%2]; bf=BF+8*(k%2)
        for n in range(18):
            bb,j=n//2,n%2; r=AC+n*4
            a(f'v_mfma_f32_16x16x32_bf16 {vr(r,4)}, {vr(wb+4*bb,4)}, {vr(bf+4*j,4)}, {vr(r,4)}')
            for _ in range(2 if n<3 else 1):
                if R: a(R.pop(0))
            if D: a(D.pop(0))
        assert not D and not R
    a('s_sub_u32 s82, s82, 1\ns_cmp_lg_u32 s82, 0\ns_cbranch_scc1 S_loop')
    a('s_waitcnt vmcnt(0) lgkmcnt(0)\ns_barrier')
    a('s_mul_i32 s92, s33, 9')
    for bb in range(9):
        a(f'''
        s_add_u32 s93, s92, {bb}
        s_and_b32 s94, s93, 3
        s_lshl_b32 s94, s94, 5
        s_lshr_b32 s93, s93, 2
        s_lshl_b32 s93, s93, 10
        s_add_u32 s93, s93, s94
        v_add_u32 v6, s93, v243
        ds_read_b64 v[{8+4*bb}:{9+4*bb}], v6
        ds_read_b64 v[{10+4*bb}:{11+4*bb}], v6 offset:18432
        ''')
    st(a,10)
    s_flag_setup(a)
    a('s_waitcnt lgkmcnt(0)')
    s_send(a,AC)
    a('v_mov_b32 v5, s39\ns_waitcnt vmcnt(0)\ns_barrier\nbuffer_store_dword v5, v241, s[20:23], s24 offen sc1')
    a('s_branch C_fin')

def s_send(a,AC=None):
    a(f'''
    s_mul_i32 s92, s33, 9
    v_and_b32 v4, 7, v0
    v_lshrrev_b32 v5, 4, v0
    v_lshl_add_u32 v4, v5, 4, v4
    v_lshlrev_b32 v4, 4, v4
    v_bfe_u32 v5, v0, 3, 1
    v_mul_u32_u24 v5, {4*4*3072}, v5
    v_add_u32 v4, v4, v5
    s_and_b32 s93, s83, 1
    s_lshl_b32 s93, s93, 7
    s_lshr_b32 s94, s83, 2
    s_mul_i32 s94, s94, {3*XT}
    s_add_u32 s93, s93, s94
    s_bfe_u32 s94, s83, 0x10001
    s_mul_i32 s94, s94, 6144
    s_add_u32 s93, s93, s94
    s_add_u32 s93, s93, {X_OFF}
    ''')
    if AC is None: a('v_mov_b64 v[8:9], -1\nv_mov_b64 v[10:11], -1')
    for bb in range(9):
        a(f'''
        s_add_u32 s94, s92, {bb}
        s_mul_i32 s95, s94, 43
        s_lshr_b32 s95, s95, 9
        s_mul_i32 s96, s95, 12
        s_sub_u32 s94, s94, s96
        s_mul_i32 s95, s95, {XT}
        s_and_b32 s96, s94, 3
        s_mul_i32 s96, s96, {XD}
        s_add_u32 s95, s95, s96
        s_lshr_b32 s94, s94, 2
        s_lshl_b32 s94, s94, 10
        s_add_u32 s95, s95, s94
        s_add_u32 s95, s95, s93
        ''')
        for j in range(2):
            d=8
            if AC is not None:
                n=bb*2+j; r=AC+n*4; d=r
                a(f'v_cvt_pk_bf16_f32 v{d}, v{r}, v{r+1}\nv_cvt_pk_bf16_f32 v{d+1}, v{r+2}, v{r+3}')
                a(f'v_mov_b64 v[{d+2}:{d+3}], v[{8+2*n}:{9+2*n}]')
            a(f'buffer_store_dwordx4 v[{d}:{d+3}], v4, s[20:23], s95 offen offset:{3072*j} sc1')
def s_xload(a):
    a(f'''
    v_and_b32 v4, 15, v0
    v_lshlrev_b32 v4, 1, v4
    s_lshr_b32 s92, s83, 1
    s_lshl_b32 s92, s92, 6
    s_and_b32 s93, s83, 1
    s_add_u32 s92, s92, s93
    v_add_u32 v4, s92, v4
    v_mul_u32_u24 v4, 1152, v4
    v_lshrrev_b32 v5, 4, v0
    v_lshl_add_u32 v4, v5, 3, v4
    s_mul_i32 s92, s33, 288
    v_add_u32 v4, s92, v4
    v_add_u32 v5, {32*1152}, v4
    ''')
    for bb in range(9):
        for j in range(2):
            n=bb*2+j
            a(f'global_load_dwordx2 a[{2*n}:{2*n+1}], v{4+j}, s[88:89] offset:{bb*32}')
def s_flag_setup(a):
    a(f'''
    v_min_u32 v4, 11, v0
    v_lshrrev_b32 v5, 2, v4
    v_lshlrev_b32 v5, 7, v5
    v_bfe_u32 v241, v4, 1, 1
    v_lshl_add_u32 v5, v241, 5, v5
    v_and_b32 v4, 1, v4
    v_lshl_add_u32 v241, v4, 2, v5
    s_lshr_b32 s24, s83, 2
    s_mul_i32 s24, s24, 384
    s_bfe_u32 s95, s83, 0x10001
    s_lshl_b32 s95, s95, 6
    s_add_u32 s24, s24, s95
    s_and_b32 s95, s83, 1
    s_lshl_b32 s95, s95, 3
    s_add_u32 s24, s24, s95
    s_add_u32 s24, s24, {FLG_OFF+16}
    s_cmp_eq_u32 s33, 0
    s_cselect_b32 s24, s24, {OOB}
    ''')

def c_loop(a):
    def hook(pos):
        if pos==5: return [f'buffer_load_dword v{V_FL}, v{V_FA}, s[20:23], s26 offen sc1'.replace('buffer_load','buffer_LOAD')]
        if pos==3: return ['@CHK', 'buffer_store_dword v255, off, s[20:23], s25 sc1', f's_mov_b32 s25, {OOB}']
        return []
    def em(x):
        if x=='@CHK':
            a('s_cmp_eq_u32 s27, 0\ns_cbranch_scc1 K_C_sk\ns_add_u32 s6, s67, s27')
            vchk(a,'s26','s6','C'); a('s_mov_b32 s27, 3\nK_C_sk:')
        else: a(x.replace('buffer_LOAD','buffer_load'))
    a('C_loop:')
    for pos,slot in enumerate(ORDER):
        ps=(slot-1)%NS
        extra=hook(pos)+prefetch(ps)
        free=[(t,i) for t in range(24) for i in range(2) if (i==0 or (t%2==0 and t!=18)) and (t,i)>=(0,1)]
        nv=[k for k,x in enumerate(extra) if x.startswith('buffer_load')]
        first=nv[0]
        tgt={k:int(first+n_*(len(free)-1-first)/(len(nv)-1)) for n_,k in enumerate(nv)}
        idx=[None]*len(extra); nxt=len(free)
        for k in range(len(extra)-1,-1,-1):
            want=min(tgt.get(k,nxt-1),nxt-1); idx[k]=want; nxt=want
        cur=-1
        for k in range(len(extra)):
            idx[k]=max(idx[k],cur+1); cur=idx[k]
        assert cur<len(free)
        place={free[idx[k]]:x for k,x in enumerate(extra)}
        nbefore=sum(1 for k in nv if free[idx[k]]<(18,1))
        pend=None
        for t in range(24):
            ks,b_=t//12,t%12; w=C_WF[t%6]
            for i in range(2):
                D=C_ACC+(b_*2+i)*4; h=pos*16+(ks*2+i)*4
                a(f'v_mfma_f32_16x16x32_bf16 {vr(D,4)}, {vr(w,4)}, {ar(h,4)}, {vr(D,4)}')
                if i==0:
                    if pend: a(pend); pend=None
                    if (t,i) in place: em(place[(t,i)])
                else:
                    tn=t+6
                    if tn==24: a(f's_waitcnt vmcnt({26+nbefore})\ns_barrier')
                    s2=slot if tn<24 else (slot+1)%NS
                    if t%2==1: a('s_waitcnt lgkmcnt(6)')
                    a(c_rd(s2,tn%24,0)); pend=c_rd(s2,tn%24,1)
                    if (t,i) in place: em(place[(t,i)])
        a(pend)
        if pos==2: a('s_cmp_eq_u32 s82, 3\ns_cbranch_scc1 C_done')
        if pos==5: a('s_mov_b32 s75, s76\ns_mov_b32 s76, s77\ns_sub_u32 s82, s82, 6\ns_cmp_eq_u32 s82, 0\ns_cbranch_scc0 C_loop')
    a('C_done:')
    for sl in range(5): a(f's_add_u32 s{76+sl}, s97, {sl*4*3072}')

def c_finish(a):
    T=C_T
    st(a,10)
    a('s_nop 2')
    for j in (1,2,3):
        for l in range(3):
            be=l*4+j; D=C_RX+((j-1)*3+l)*4
            for i in range(2):
                A=C_ACC+(be*2+i)*4
                a(f'v_cvt_pk_bf16_f32 v{D+2*i}, v{A}, v{A+1}\nv_cvt_pk_bf16_f32 v{D+2*i+1}, v{A+2}, v{A+3}')
            a(f'buffer_store_dwordx4 v[{D}:{D+3}], v{C_LV}, s[20:23], s{93+j} offen offset:{l*1024} sc1')
    a('s_cmp_eq_u32 s68, 0\ns_cbranch_scc1 C_sent')
    for l in range(3):
        be=l*4; D=32+l*4
        for i in range(2):
            A=C_ACC+(be*2+i)*4
            a(f'v_cvt_pk_bf16_f32 v{D+2*i}, v{A}, v{A+1}\nv_cvt_pk_bf16_f32 v{D+2*i+1}, v{A+2}, v{A+3}')
        a(f'buffer_store_dwordx4 v[{D}:{D+3}], v{C_LV}, s[20:23], s97 offen offset:{l*1024} sc1')
    a('C_sent:')
    a(f'v_mov_b32 v{T}, s39\nv_min_u32 v{V_FA}, 20, v{V_FA}\ns_waitcnt vmcnt(0)\nbuffer_store_dword v{T}, off, s[20:23], s63 sc1')
    a('s_cmp_eq_u32 s68, 0\ns_cbranch_scc0 C_fin')
    st(a,11)
    def R(l,sl): return (C_RX+(l*3+sl-1)*4) if sl in (1,2,3) else (32+(l*2+(sl//4))*4)
    vpoll(a,'x',T+2,V_FA,'s62',sleep=OPT['psl'])
    for l in range(3):
        for sl in range(5):
            r=R(l,sl)
            a(f'buffer_load_dwordx4 v[{r}:{r+3}], v{C_LV}, s[20:23], s{76+sl} offen offset:{l*1024} sc1')
    st(a,12)
    for l in range(3):
        a(f's_waitcnt vmcnt({10-3*l})')
        for i in range(2):
            A=C_ACC+((l*4)*2+i)*4; t=16+0
            if i==1: t=64
            for sl in (1,2,3):
                r=R(l,sl)+2*i
                a(f'v_lshlrev_b32 v{t}, 16, v{r}\nv_and_b32 v{t+1}, s41, v{r}\nv_lshlrev_b32 v{t+2}, 16, v{r+1}\nv_and_b32 v{t+3}, s41, v{r+1}')
                for e in range(4): a(f'v_add_f32 v{A+e}, v{A+e}, v{t+e}')
            for e in range(4): a(f'v_mul_f32 v{t+e}, s40, v{A+e}')
            for e in range(4): a(f'v_exp_f32 v{t+e}, v{t+e}')
            r=R(l,0)+2*i; x=R(l,4)+2*i; u=t+4; y=t+8
            a(f'v_lshlrev_b32 v{u}, 16, v{r}\nv_and_b32 v{u+1}, s41, v{r}\nv_lshlrev_b32 v{u+2}, 16, v{r+1}\nv_and_b32 v{u+3}, s41, v{r+1}')
            for e in range(4): a(f'v_add_f32 v{t+e}, 1.0, v{t+e}')
            for e in range(4): a(f'v_rcp_f32 v{t+e}, v{t+e}')
            a(f'v_lshlrev_b32 v{y}, 16, v{x}\nv_and_b32 v{y+1}, s41, v{x}\nv_lshlrev_b32 v{y+2}, 16, v{x+1}\nv_and_b32 v{y+3}, s41, v{x+1}')
            for e in range(4): a(f'v_mul_f32 v{t+e}, v{t+e}, v{A+e}')
            for e in range(4): a(f'v_fmac_f32 v{y+e}, v{t+e}, v{u+e}')
            a(f'v_cvt_pk_bf16_f32 v{x}, v{y}, v{y+1}\nv_cvt_pk_bf16_f32 v{x+1}, v{y+2}, v{y+3}')
            a(f'global_store_dwordx2 v{C_OA+i}, v[{x}:{x+1}], s[90:91] offset:{l*128}')
    a('C_fin:')
    st(a,13); st(a,31,rt=True)

def light_after_att(a):
    T=C_T
    a(f'''
    s_lshr_b32 s92, s83, 2
    s_lshl_b32 s92, s92, 7
    s_and_b32 s93, s83, 3
    s_lshl_b32 s93, s93, 2
    s_add_u32 s93, s93, s33
    s_lshl_b32 s93, s93, 2
    s_add_u32 s92, s92, s93
    s_add_u32 s92, s92, {OFL_OFF}
    v_mov_b32 v{T}, s39
    s_barrier
    s_cmp_eq_u32 s68, 2
    s_cbranch_scc1 L_flag
    s_mov_b32 s94, s78
    ''')
    for k in range(5):
        for x in prefetch(ORDER[k],'s94','W'): a(x)
    a(f'''
    s_waitcnt vmcnt(30)
    L_flag:
    s_cmp_eq_u32 s68, 2
    s_cbranch_scc0 L_f2
    s_waitcnt vmcnt(0)
    L_f2:
    buffer_store_dword v{T}, off, s[20:23], s92 sc1
    s_cmp_eq_u32 s68, 2
    s_cbranch_scc1 L_xf
    s_lshl_b32 s93, s57, 7
    s_add_u32 s93, s93, {OFL_OFF}
    v_and_b32 v{T+1}, 15, v0
    v_lshlrev_b32 v{T+1}, 2, v{T+1}
    ''')
    for x in c_addr_items(): a(x)
    for r in range(0,96,2): a(f'v_mov_b64 v[{C_ACC+r}:{C_ACC+r+1}], 0')
    vpoll(a,'o',T+2,T+1,'s93',sleep=1)
    for k in range(5):
        for x in prefetch(ORDER[k],'s78','H'): a(x)
    a('s_waitcnt vmcnt(0)\ns_barrier')
def x_forward(a):
    T=C_T
    a(f'''
    L_xf:
    s_lshr_b32 s57, s83, 3
    s_lshl_b32 s57, s57, 1
    s_and_b32 s93, s83, 1
    s_add_u32 s57, s57, s93
    s_lshl_b32 s92, s57, 2
    s_add_u32 s92, s92, s33
    s_mul_i32 s92, s92, 36864
    s_add_u32 s94, s88, s92
    s_addc_u32 s95, s89, 0
    s_mul_i32 s93, s33, 36864
    s_mov_b32 s82, 36
    L_xl:
    s_mov_b32 m0, s93
    s_add_u32 s93, s93, 1024
    global_load_lds_dwordx4 v{C_LV}, s[94:95]
    s_add_u32 s94, s94, 1024
    s_addc_u32 s95, s95, 0
    s_sub_u32 s82, s82, 1
    s_cmp_lg_u32 s82, 0
    s_cbranch_scc1 L_xl
    v_and_b32 v4, 7, v0
    v_lshlrev_b32 v4, 1, v4
    v_bfe_u32 v5, v0, 3, 1
    v_add_u32 v4, v4, v5
    v_mul_u32_u24 v4, 1152, v4
    v_lshrrev_b32 v5, 4, v0
    v_lshl_add_u32 v4, v5, 3, v4
    s_mul_i32 s93, s33, 36864
    v_add_u32 v4, s93, v4
    s_mul_i32 s92, s57, {3*XT}
    s_add_u32 s92, s92, s72
    s_add_u32 s92, s92, {X_OFF+4*4*3072}
    v_min_u32 v5, 2, v0
    v_lshlrev_b32 v5, 7, v5
    s_mul_i32 s24, s57, 384
    s_lshl_b32 s93, s33, 5
    s_add_u32 s24, s24, s93
    s_add_u32 s24, s24, {FLG_OFF+20}
    s_waitcnt vmcnt(0)
    ''')
    for B in range(36):
        d=8+4*B
        a(f'ds_read_b64 v[{d}:{d+1}], v4 offset:{B*32}\nds_read_b64 v[{d+2}:{d+3}], v4 offset:{B*32+18432}')
    a('s_waitcnt lgkmcnt(0)')
    for ct in range(3):
        for r in range(4):
            a(f's_add_u32 s93, s92, {ct*XT+r*XD}')
            for l in range(3):
                d=8+4*(ct*12+l*4+r)
                a(f'buffer_store_dwordx4 v[{d}:{d+3}], v{C_LV}, s[20:23], s93 offen offset:{l*1024} sc1')
    a(f's_waitcnt vmcnt(0)\nbuffer_store_dword v{T}, v5, s[20:23], s24 offen sc1\ns_branch C_fin')

LNS=147456
def ln_loads(a):
    a(f'''
    s_lshl_b32 s35, s30, 2
    s_add_u32 s35, s35, s31
    s_lshr_b32 s36, s35, 1
    s_lshl_b32 s37, s32, 4
    s_add_u32 s36, s36, s37
    s_and_b32 s37, s35, 1
    s_lshl_b32 s38, s36, 4
    s_add_u32 s38, s38, s37
    v_and_b32 v79, 7, v0
    v_lshl_add_u32 v77, v79, 1, s38
    v_mul_u32_u24 v80, 1152, v77
    v_lshrrev_b32 v81, 3, v0
    v_lshl_add_u32 v77, v81, 4, v80
    s_mul_i32 s38, s33, 384
    s_mov_b32 s94, {2048*1152}
    s_mov_b32 s95, 0x20000
    s_waitcnt lgkmcnt(0)
    s_cmp_eq_u32 s33, 3
    s_cbranch_scc1 LN_nold
    buffer_load_dwordx4 v[64:67], v77, s[92:95], s38 offen
    buffer_load_dwordx4 v[68:71], v77, s[92:95], s38 offen offset:128
    buffer_load_dwordx4 v[72:75], v77, s[92:95], s38 offen offset:256
    s_add_u32 s38, s38, 384
    s_cmp_eq_u32 s38, 1152
    s_cselect_b32 s38, 0, s38
    buffer_load_dwordx4 v[120:123], v77, s[92:95], s38 offen
    buffer_load_dwordx4 v[124:127], v77, s[92:95], s38 offen offset:128
    buffer_load_dwordx4 v[128:131], v77, s[92:95], s38 offen offset:256
    s_add_u32 s38, s38, 384
    s_cmp_eq_u32 s38, 1152
    s_cselect_b32 s38, 0, s38
    buffer_load_dwordx4 v[132:135], v77, s[92:95], s38 offen
    buffer_load_dwordx4 v[136:139], v77, s[92:95], s38 offen offset:128
    buffer_load_dwordx4 v[140:143], v77, s[92:95], s38 offen offset:256
    LN_nold:
    s_mul_i32 s36, s36, 18432
    s_lshl_b32 s37, s37, 7
    s_add_u32 s36, s36, s37
    s_mul_i32 s37, s33, 6144
    s_add_u32 s96, s36, s37
    s_add_u32 s97, s96, 4096
    v_lshlrev_b32 v78, 8, v81
    v_lshl_add_u32 v78, v79, 4, v78
    s_lshl_b32 s6, s32, 5
    s_add_u32 s6, s6, s35
    s_lshl_b32 s6, s6, 2
    s_add_u32 s6, s6, s33
    s_lshl_b32 s6, s6, 2
    s_add_u32 s6, s6, {XFL_OFF}
    ''')
def ln_compute(a,nyoung):
    E=96
    a('v_mov_b32 v76, 0x3f803f80')
    a('s_waitcnt vmcnt(6)')
    regs=list(range(64,76))+list(range(120,144))
    for k,r in enumerate(regs):
        if k==12:
            for g in range(3):
                for i in range(4):
                    rr=64+4*g+i; e=E+8*g+2*i
                    a(f'v_lshlrev_b32 v{e}, 16, v{rr}\nv_and_b32 v{e+1}, s41, v{rr}')
            a('s_waitcnt vmcnt(0)')
        s_,q_=82+(k&1)*2,83+(k&1)*2
        a(f'v_dot2_f32_bf16 v{s_}, v{r}, v76, {"0" if k<2 else "v%d"%s_}')
        a(f'v_dot2_f32_bf16 v{q_}, v{r}, v{r}, {"0" if k<2 else "v%d"%q_}')
    a('s_nop 2\nv_add_f32 v82, v82, v84\nv_add_f32 v83, v83, v85\ns_nop 1')
    a('v_add_f32_dpp v82, v82, v82 row_ror:8 row_mask:0xf bank_mask:0xf\nv_add_f32_dpp v83, v83, v83 row_ror:8 row_mask:0xf bank_mask:0xf')
    for sw in ('v_permlane16_swap_b32','v_permlane32_swap_b32'):
        a(f'v_mov_b32 v84, v82\nv_mov_b32 v85, v83\ns_nop 1\n{sw} v82, v84\n{sw} v83, v85\ns_nop 1\nv_add_f32 v82, v82, v84\nv_add_f32 v83, v83, v85')
    a('''
    v_mul_f32 v82, 0x3ae38e39, v82
    v_mul_f32 v83, 0x3ae38e39, v83
    v_fma_f32 v83, -v82, v82, v83
    v_max_f32 v83, 0, v83
    ''')
    def rb(r): a(f'v_cvt_pk_bf16_f32 v{r}, v{r}, v{r}\nv_lshlrev_b32 v{r}, 16, v{r}')
    rb(82); rb(83)
    a('v_add_f32 v83, 0x3727c5ac, v83'); rb(83)
    a('v_sqrt_f32 v83, v83\ns_nop 0'); rb(83)
    a('v_rcp_f32 v83, v83\ns_nop 0')
    def norm(g):
        for i in range(4):
            e=E+8*g+2*i
            a(f'v_sub_f32 v{e}, v{e}, v82\nv_sub_f32 v{e+1}, v{e+1}, v82')
        for i in range(4):
            e=E+8*g+2*i
            a(f'v_cvt_pk_bf16_f32 v{e}, v{e}, v{e+1}')
        for i in range(4):
            e=E+8*g+2*i
            a(f'v_and_b32 v{e+1}, s41, v{e}\nv_lshlrev_b32 v{e}, 16, v{e}')
        for i in range(4):
            e=E+8*g+2*i
            a(f'v_mul_f32 v{e}, v{e}, v83\nv_mul_f32 v{e+1}, v{e+1}, v83')
        for i in range(4):
            e=E+8*g+2*i
            a(f'v_cvt_pk_bf16_f32 v{64+4*g+i}, v{e}, v{e+1}')
    norm(0)
    a('buffer_store_dwordx4 v[64:67], v78, s[20:23], s96 offen sc1')
    norm(1)
    a('buffer_store_dwordx4 v[68:71], v78, s[20:23], s96 offen offset:2048 sc1')
    norm(2)
    a('buffer_store_dwordx4 v[72:75], v78, s[20:23], s97 offen sc1')

def gen_kf(a):
    a(kernel_header(NAME))
    T=V_T
    T0=' nt' if OPT['t0nt'] else ''
    a('''
    s_cmp_ge_u32 s2, 256
    s_cbranch_scc1 KF_end
    s_load_dwordx2 s[92:93], s[0:1], 0
    s_load_dwordx2 s[4:5], s[0:1], 8
    s_load_dwordx4 s[8:11], s[0:1], 32
    s_load_dwordx2 s[20:21], s[0:1], 72
    s_load_dwordx2 s[28:29], s[0:1], 64
    s_load_dwordx2 s[88:89], s[0:1], 16
    s_load_dwordx2 s[90:91], s[0:1], 48
    s_memrealtime s[24:25]
    v_lshrrev_b32 v1, 6, v0
    v_and_b32 v0, 63, v0
    s_bfe_u32 s30, s2, 0x20001
    s_lshl_b32 s30, s30, 1
    s_bfe_u32 s31, s2, 0x10005
    s_add_u32 s30, s30, s31
    s_bfe_u32 s31, s2, 0x20003
    s_and_b32 s32, s2, 1
    s_lshl_b32 s32, s32, 2
    s_lshr_b32 s3, s2, 6
    s_add_u32 s32, s32, s3
    v_readfirstlane_b32 s33, v1
    s_mov_b32 s22, 0x10000000
    s_mov_b32 s23, 0x20000
    s_mov_b32 s40, 0xbfb8aa3b
    s_mov_b32 s41, 0xffff0000
    ''')
    ln_loads(a)
    a(f"""
    v_mov_b32 v2, 0
    s_or_b32 s3, s2, s33
    s_cmp_lg_u32 s3, 0
    s_cbranch_scc1 KF_noep
    s_and_b32 s24, s24, 0xfffffffc
    s_max_u32 s24, s24, 4
    v_mov_b32 v3, s24
    global_store_dword v2, v3, s[28:29] sc1
    KF_noep:
    """)
    st(a,30,True); st(a,0)
    a(f"""
    s_lshl_b32 s66, s33, 10
    s_mul_i32 s62, s30, 3
    s_add_u32 s62, s62, s31
    s_lshl_b32 s62, s62, 7
    s_add_u32 s64, s30, 44
    s_lshl_b32 s64, s64, 6
    s_cmp_lt_u32 s31, 3
    s_cselect_b32 s63, 1, 0
    s_cmp_lt_u32 s30, 6
    s_cbranch_scc1 KF_qok
    s_lshl_b32 s62, s30, 1
    s_add_u32 s62, s62, s31
    s_add_u32 s64, s62, 36
    s_lshl_b32 s64, s64, 6
    s_add_u32 s62, s62, 6
    s_lshl_b32 s62, s62, 7
    s_cmp_lt_u32 s31, 2
    s_cselect_b32 s63, 1, 0
    KF_qok:
    s_cmp_eq_u32 s63, 1
    s_cselect_b32 s62, s62, s64
    s_cselect_b32 s67, 3, 1
    s_mov_b32 s64, s63
    s_mov_b32 s65, 0
    s_mul_i32 s36, s30, 1152
    s_lshl_b32 s37, s31, 8
    s_add_u32 s37, s37, s36
    s_lshl_b32 s38, s31, 6
    s_add_u32 s38, s38, s36
    s_add_u32 s38, s38, 896
    s_add_u32 s16, s8, s37
    s_addc_u32 s17, s9, 0
    s_add_u32 s18, s10, s37
    s_addc_u32 s19, s11, 0
    v_bfe_u32 v{T+1}, v0, 1, 2
    v_bfe_u32 v{T+2}, v0, 4, 1
    v_xor_b32 v{T+1}, v{T+1}, v{T+2}
    v_and_b32 v{T+2}, 1, v0
    v_lshlrev_b32 v{T+2}, 4, v{T+2}
    v_lshrrev_b32 v{T}, 3, v0
    s_add_u32 s60, s4, s62
    s_addc_u32 s61, s5, 0
    """)
    for jj in range(4):
        a(f"""
        v_add_u32 v152, {8*jj}, v{T}
        v_xor_b32 v153, {2*(jj&1)}, v{T+1}
        v_mul_u32_u24 v{144+jj}, 9216, v152
        v_lshl_add_u32 v{144+jj}, v153, 5, v{144+jj}
        v_add_u32 v{144+jj}, v{144+jj}, v{T+2}
        v_and_b32 v153, s67, v153
        v_mul_u32_u24 v{148+jj}, 3456, v152
        v_lshl_add_u32 v{148+jj}, v153, 5, v{148+jj}
        v_add_u32 v{148+jj}, v{148+jj}, v{T+2}
        """)
    a(f"""
    s_cmp_eq_u32 s33, 3
    s_cbranch_scc0 KF_lnw
    s_mov_b32 s94, s60
    s_mov_b32 s95, s61
    s_mov_b32 s92, s16
    s_mov_b32 s93, s17
    """)
    if OPT['tlb']:
        sh=OPT['tlb']
        a(f"""
        s_load_dwordx2 s[96:97], s[0:1], 56
        v_lshlrev_b32 v64, {sh}, v0
        v_min_u32 v65, {0x3006000}, v64
        buffer_load_dword v{V_DUM}, v65, s[20:23], 0 offen
        v_min_u32 v65, {5308416-4}, v64
        global_load_dword v{V_DUM}, v65, s[90:91]
        global_load_dword v{V_DUM}, v65, s[8:9]
        global_load_dword v{V_DUM}, v65, s[10:11]
        v_min_u32 v66, {663552-4}, v64
        global_load_dword v{V_DUM}, v66, s[88:89]
        v_min_u32 v66, {2359296-4}, v64
        s_waitcnt lgkmcnt(0)
        global_load_dword v{V_DUM}, v66, s[96:97]
        """)
    def wloop(lab,end):
        a(f'{lab}:')
        for jj in range(4):
            a(f's_add_u32 m0, s35, {jj*1024}\ns_nop 0\nglobal_load_lds_dwordx4 v{144+jj}, s[92:93]')
            a(f's_add_u32 m0, s35, {HALF+jj*1024}\ns_nop 0\nglobal_load_lds_dwordx4 v{148+jj}, s[94:95]')
        a(f"""
        s_add_u32 s92, s92, 294912
        s_addc_u32 s93, s93, 0
        s_add_u32 s94, s94, 110592
        s_addc_u32 s95, s95, 0
        s_add_u32 s35, s35, 4096
        s_waitcnt vmcnt({OPT['w3q']})
        s_cmp_lt_u32 s35, {end}
        s_cbranch_scc1 {lab}
        """)
    a(f"""
    s_mov_b32 s35, 0
    s_getpc_b64 s[24:25]
    KF_pc:
    s_sub_u32 s24, s24, KF_pc-{NAME}
    s_subb_u32 s25, s25, 0
    s_lshr_b32 s3, s2, 3
    s_lshl_b32 s3, s3, 4
    v_and_b32 v4, 15, v0
    v_add_u32 v4, s3, v4
    v_lshlrev_b32 v4, 7, v4
    v_min_u32 v4, KF_last-{NAME}, v4
    v_mov_b32 v5, 0
    v_lshl_add_u64 v[4:5], v[4:5], 0, s[24:25]
    s_and_b32 s3, s32, 3
    s_mul_i32 s3, s3, 144
    v_add_u32 v72, s3, v0
    v_min_u32 v74, 15, v0
    v_add_u32 v74, s3, v74
    v_mul_u32_u24 v73, 9216, v72
    v_mul_u32_u24 v72, 3456, v72
    v_mul_u32_u24 v75, 9216, v74
    v_mul_u32_u24 v74, 3456, v74
    global_load_dword v{V_DUM}, v73, s[92:93]{T0}
    global_load_dword v{V_DUM}, v72, s[94:95]{T0}
    v_add_u32 v73, {64*9216}, v73
    v_add_u32 v72, {64*3456}, v72
    v_add_u32 v75, {128*9216}, v75
    v_add_u32 v74, {128*3456}, v74
    global_load_dword v{V_DUM}, v73, s[92:93]{T0}
    global_load_dword v{V_DUM}, v72, s[94:95]{T0}
    global_load_dword v{V_DUM}, v75, s[92:93]{T0}
    global_load_dword v{V_DUM}, v74, s[94:95]{T0}
    global_load_dword v{V_DUM}, v[4:5], off
    s_waitcnt vmcnt({OPT['w3w']})
    """)
    wloop('KF_w3',OPT['W3N']*4096)
    a(f"""
    s_mov_b32 s6, {OOB}
    s_branch KF_join
    KF_lnw:
    """)
    ln_compute(a,0)
    st(a,16)
    a('KF_join:')
    a('v_mov_b32 v2, 0\nglobal_load_dword v3, v2, s[28:29] sc1')
    a(f"""
    s_lshl_b32 s35, s33, 3
    v_add_u32 v{T}, s35, v{T}
    s_and_b32 s35, s33, 1
    s_lshl_b32 s35, s35, 1
    v_xor_b32 v{T+1}, s35, v{T+1}
    v_mul_u32_u24 v{T+4}, 9216, v{T}
    v_add_u32 v{T+4}, v{T+4}, v{T+2}
    v_mov_b32 v{T+5}, 0
    v_lshl_add_u32 v{T+8}, v{T+1}, 5, v{T+4}
    v_mov_b32 v{T+9}, 0
    s_mov_b32 s100, 294912
    s_mov_b32 s101, 0
    s_add_u32 s12, s16, 128
    s_addc_u32 s13, s17, 0
    v_lshl_add_u64 v[{V_DA}:{V_DA+1}], v[{T+8}:{T+9}], 0, s[12:13]
    v_lshl_add_u64 v[{V_UA}:{V_UA+1}], v[{T+8}:{T+9}], 0, s[18:19]
    s_and_b32 s3, s32, 3
    s_lshl_b32 s3, s3, 2
    s_add_u32 s3, s3, s33
    s_mul_i32 s3, s3, 36
    v_min_u32 v{V_TR}, 35, v0
    v_add_u32 v{V_TR}, s3, v{V_TR}
    v_mul_u32_u24 v{V_TR}, 9216, v{V_TR}
    s_lshl_b32 s34, s32, 4
    s_lshl_b32 s35, s33, 2
    s_add_u32 s34, s34, s35
    s_mul_i32 s35, s34, 18432
    v_lshlrev_b32 v{T}, 4, v0
    v_add_u32 v{V_XO}, s35, v{T}
    v_add_u32 v{V_XO+1}, 18432, v{V_XO}
    v_add_u32 v{V_XO+2}, 36864, v{V_XO}
    v_add_u32 v{V_XO+3}, 55296, v{V_XO}
    s_mul_i32 s35, s34, 147456
    v_add_u32 v{V_HST}, s35, v{T}
    s_sub_u32 s58, s10, s8
    s_subb_u32 s59, s11, s9
    s_sub_u32 s58, s58, 5308416
    s_subb_u32 s59, s59, 0
    s_add_u32 s12, s8, s38
    s_addc_u32 s13, s9, 0
    s_add_u32 s14, s10, s38
    s_addc_u32 s15, s11, 0
    v_and_b32 v{T+3}, 1, v{T+1}
    v_lshl_add_u32 v{T+4}, v{T+3}, 5, v{T+4}
    v_lshl_add_u64 v[{V_ZA}:{V_ZA+1}], v[{T+4}:{T+5}], 0, s[12:13]
    v_lshl_add_u64 v[{T+12}:{T+13}], v[{T+4}:{T+5}], 0, s[14:15]
    v_cmp_lt_u32 vcc, 1, v{T+1}
    s_nop 1
    v_cndmask_b32 v{V_ZA}, v{V_ZA}, v{T+12}, vcc
    v_cndmask_b32 v{V_ZA+1}, v{V_ZA+1}, v{T+13}, vcc
    """)
    for g in range(5): a(f's_mov_b32 s{52+g}, {XN_OFF+g*4096}')
    c_roles_scalar(a)
    a(f"""
    s_mov_b32 s3, 0
    KF_ep:
    s_waitcnt vmcnt(0)
    v_readfirstlane_b32 s67, v3
    s_add_u32 s3, s3, 1
    s_cmp_gt_u32 s3, {OPT['SPIN']}
    s_cbranch_scc1 KF_epok
    s_cmp_lg_u32 s67, 0
    s_cbranch_scc1 KF_epok
    global_load_dword v3, v2, s[28:29] sc1
    s_branch KF_ep
    KF_epok:
    s_add_u32 s39, s67, 1
    v_mov_b32 v3, s39
    buffer_store_dword v3, off, s[20:23], s6 sc1
    """)
    st(a,1)
    nper=(18-OPT['W3N'])//3
    if nper:
        a(f"""
        s_cmp_eq_u32 s33, 3
        s_cbranch_scc1 KF_now
        s_mul_i32 s3, s33, {nper}
        s_add_u32 s3, s3, {OPT['W3N']}
        s_lshl_b32 s35, s3, 12
        s_add_u32 s36, s35, {nper*4096}
        s_mul_i32 s37, s3, 294912
        s_add_u32 s92, s16, s37
        s_addc_u32 s93, s17, 0
        s_mul_i32 s37, s3, 110592
        s_add_u32 s94, s60, s37
        s_addc_u32 s95, s61, 0
        """)
        wloop('KF_wl','s36')
        a('KF_now:')
    a(f'''
    v_lshrrev_b32 v{T}, 4, v0
    v_bfe_u32 v{T+1}, v0, 2, 2
    v_lshl_add_u32 v{T+2}, v{T}, 3, v{T+1}
    v_lshlrev_b32 v{T+2}, 7, v{T+2}
    v_lshrrev_b32 v{T+1}, 1, v{T+1}
    v_and_b32 v{T}, 1, v{T}
    v_lshl_or_b32 v{T+1}, v{T}, 1, v{T+1}
    v_and_b32 v{T+3}, 3, v0
    ''')
    for b in range(4):
        a(f'''
        v_xor_b32 v{T+4}, {b}, v{T+1}
        v_lshl_add_u32 v{T+4}, v{T+4}, 5, v{T+2}
        v_lshl_add_u32 v{V_BN+b}, v{T+3}, 3, v{T+4}
        v_mov_b32 v{V_AD+b}, v{V_BN+b}
        ''')
    for u in range(2):
        a(f'''
        v_lshrrev_b32 v{T+4}, 1, v{T+3}
        v_add_u32 v{T+4}, {2*u}, v{T+4}
        v_xor_b32 v{T+4}, v{T+4}, v{T+1}
        v_lshl_add_u32 v{T+4}, v{T+4}, 5, v{T+2}
        v_and_b32 v{T+5}, 1, v{T+3}
        v_lshl_add_u32 v{T+4}, v{T+5}, 4, v{T+4}
        v_add_u32 v{V_NB+2*u}, {HALF}, v{T+4}
        v_add_u32 v{V_NB+2*u+1}, {HALF+8}, v{T+4}
        ''')
    a(f'''
    v_and_b32 v{T}, 7, v0
    s_lshl_b32 s35, s34, 3
    v_add_u32 v{T}, s35, v{T}
    v_bfe_u32 v{T+1}, v0, 3, 1
    v_lshl_add_u32 v{T}, v{T+1}, 10, v{T}
    v_mul_u32_u24 v{T}, 3456, v{T}
    v_lshrrev_b32 v{T+1}, 4, v0
    v_lshl_add_u32 v{V_QST}, v{T+1}, 4, v{T}
    s_mul_i32 s35, s30, 18
    s_lshl_b32 s42, s31, 2
    s_add_u32 s35, s35, s42
    s_lshl_b32 s35, s35, 10
    s_add_u32 s44, s35, {H_OFF}
    s_add_u32 s45, s44, 147456
    s_add_u32 s46, s44, 294912
    s_add_u32 s47, s44, 442368
    s_add_u32 s48, s62, {QKV_OFF}
    s_add_u32 s49, s48, 27648
    s_add_u32 s50, s48, 55296
    s_add_u32 s51, s48, 82944
    s_lshl_b32 s24, s32, 5
    s_lshl_b32 s3, s30, 2
    s_add_u32 s24, s24, s3
    s_add_u32 s24, s24, s31
    s_lshl_b32 s24, s24, 2
    s_add_u32 s24, s24, {QFL_OFF}
    s_cmp_eq_u32 s33, 0
    s_cselect_b32 s24, s24, {OOB}
    s_lshl_b32 s25, s32, 2
    s_add_u32 s25, s25, s33
    s_lshl_b32 s25, s25, 5
    s_add_u32 s25, s25, s3
    s_add_u32 s25, s25, s31
    s_lshl_b32 s25, s25, 2
    s_add_u32 s25, s25, {HFL_OFF}
    s_and_b32 s26, s57, 1
    s_lshl_b32 s26, s26, 1
    s_lshr_b32 s3, s33, 1
    s_add_u32 s26, s26, s3
    s_lshl_b32 s3, s32, 2
    s_add_u32 s26, s26, s3
    s_lshl_b32 s26, s26, 7
    s_lshl_b32 s3, s69, 5
    s_add_u32 s26, s26, s3
    s_add_u32 s26, s26, {HFL_OFF}
    s_cmp_eq_u32 s68, 0
    s_cselect_b32 s27, 2, 0
    s_and_b32 s28, s57, 7
    s_mul_i32 s28, s28, 3
    s_add_u32 s28, s28, s31
    s_lshl_b32 s28, s28, 2
    s_add_u32 s28, s28, s33
    s_mul_i32 s28, s28, {108*128}
    s_mul_i32 s3, s69, {1152*1152}
    s_add_u32 s28, s28, s3
    s_and_b32 s3, s83, 7
    s_lshl_b32 s3, s3, 2
    s_add_u32 s3, s3, s33
    s_mul_i32 s3, s3, {162*128}
    s_cmp_eq_u32 s68, 0
    s_cselect_b32 s28, s28, s3
    s_add_u32 s28, s28, 2048
    s_add_u32 s29, s28, 16384
    s_cmp_eq_u32 s68, 0
    s_cselect_b32 s29, {OOB}, s29
    s_lshl_b32 s6, s32, 2
    s_add_u32 s6, s6, s33
    s_lshl_b32 s6, s6, 7
    s_add_u32 s6, s6, {XFL_OFF}
    v_and_b32 v{T}, 3, v0
    v_min_u32 v{T}, 2, v{T}
    v_and_b32 v{T+1}, 28, v0
    v_add_u32 v{T}, v{T}, v{T+1}
    v_lshlrev_b32 v{T}, 2, v{T}
    ''')
    a(f'''
    v_lshrrev_b32 v{T+2}, 4, v0
    v_mul_u32_u24 v{T+2}, 18432, v{T+2}
    v_and_b32 v{T+3}, 15, v0
    v_lshl_add_u32 v{T+2}, v{T+3}, 7, v{T+2}
    s_bfe_u32 s3, s2, 0x30003
    s_lshl_b32 s3, s3, 11
    s_mul_i32 s35, s34, 18432
    s_add_u32 s3, s3, s35
    s_add_u32 s3, s3, {XN_OFF+2048}
    v_add_u32 v{T+2}, s3, v{T+2}
    ''')
    a(f'''
    s_load_dwordx2 s[88:89], s[0:1], 0
    s_load_dwordx2 s[90:91], s[0:1], 56
    s_mul_i32 s92, s70, {XT}
    s_add_u32 s92, s92, s72
    s_add_u32 s92, s92, {X_OFF}
    s_mul_i32 s97, s69, {XD}
    s_add_u32 s97, s97, s92
    s_lshl_b32 s62, s70, 2
    s_add_u32 s62, s62, s33
    s_lshl_b32 s62, s62, 5
    s_add_u32 s62, s62, {FLG_OFF}
    s_lshl_b32 s63, s69, 2
    s_add_u32 s63, s63, s62
    ''')
    for j in (1,2,3):
        a(f's_xor_b32 s{93+j}, s69, {j}\ns_mul_i32 s{93+j}, s{93+j}, {XD}\ns_add_u32 s{93+j}, s{93+j}, {j*4*3072}\ns_add_u32 s{93+j}, s{93+j}, s92')
    a('s_waitcnt lgkmcnt(0)')
    a('''
    s_add_u32 s60, s16, 128
    s_addc_u32 s61, s17, 0
    s_add_u32 s4, s18, 128
    s_addc_u32 s5, s19, 0
    s_cmp_eq_u32 s68, 0
    s_cselect_b64 s[60:61], s[60:61], s[12:13]
    s_cselect_b64 s[4:5], s[4:5], s[14:15]
    ''')
    vpoll(a,'xn',T+1,T,'s6')
    st(a,2)
    vm=VM()
    for g in range(OPT['FD0']):
        for it in grp_x(g): a(it[0]); vm.issue(it[2])
    if OPT['xt']:
        a(f'buffer_load_dword v{V_DUM}, v{T+2}, s[20:23], 0 offen sc1'); vm.issue('t')
    a('s_mov_b64 vcc, s[64:65]')
    a('s_barrier')
    for sl in range(8):
        w,ad=(V_SG+sl*4,V_NB+sl) if sl<4 else (V_WF+(sl-4)*4,V_AD+sl-4)
        a(f'ds_read_b64_tr_b16 v[{w}:{w+1}], v{ad} offset:0')
        a(f'ds_read_b64_tr_b16 v[{w+2}:{w+3}], v{ad} offset:512')
    a(f's_waitcnt vmcnt({vm.wait_n("g0")})')
    st(a,3)
    bodyF(a,vm)
    a('s_cbranch_vccz KF_noq2\ns_nop 1')
    for s in flat(ch_epiQ(V_ACC[1],2,64)[0]): a(s)
    a('KF_noq2:')
    st(a,4)
    zset=f'''
    s_mov_b32 s43, 1
    v_mov_b32 v{V_DA}, v{V_ZA}
    v_mov_b32 v{V_DA+1}, v{V_ZA+1}
    v_mov_b32 v{V_NB}, v{V_BN}
    v_mov_b32 v{V_NB+1}, v{V_BN+1}
    v_add_u32 v{V_NB+2}, 4096, v{V_BN}
    v_add_u32 v{V_NB+3}, 4096, v{V_BN+1}
    '''
    a(f'''
    s_mov_b32 s43, 0
    v_mov_b32 v{V_ONE}, s39
    v_min_u32 v15, 35, v0
    v_lshlrev_b32 v15, 7, v15
    v_mov_b32 v{V_NB}, v{V_BN}
    v_mov_b32 v{V_NB+1}, v{V_BN+1}
    v_mov_b32 v{V_NB+2}, v{V_BN+2}
    v_mov_b32 v{V_NB+3}, v{V_BN+3}
    s_cmp_eq_u32 s68, 0
    s_cbranch_scc1 KF_loop
    ''')
    a(zset)
    a('KF_loop:\ns_sub_u32 m0, s66, 4096')
    wt=[f'buffer_load_dword v{V_DUM}, v15, s[84:87], s28 offen',f's_add_u32 s28, s28, {36*128}']
    ty=[(100,120,[f'global_load_dword v{V_DUM}, v{V_TR}, s[12:13]',f'global_load_dword v{V_DUM}, v{V_TR}, s[14:15]']),(200,210,wt)]
    body(a,VM(),1,ch_epiG(V_ACC[0]),mid=True,seqs=ty)
    a(f'''
    s_cmp_lg_u32 s43, 0
    s_cbranch_scc1 KF_z
    v_lshl_add_u64 v[{V_DA}:{V_DA+1}], v[{V_DA}:{V_DA+1}], 0, s[58:59]
    v_add_u32 v{V_NB}, {HALF}, v{V_BN}
    v_add_u32 v{V_NB+1}, {HALF}, v{V_BN+1}
    v_add_u32 v{V_NB+2}, {HALF}, v{V_BN+2}
    v_add_u32 v{V_NB+3}, {HALF}, v{V_BN+3}
    ''')
    clr=[f'buffer_store_dwordx4 v[96:99], v{C_LV}, s[20:23], s{93+j} offen offset:{l*1024} sc1' for j in (1,2,3) for l in range(3)]
    xt=[f'global_load_dword v{V_DUM}, v{C_OA+i}, s[88:89] offset:{l*128}' for l in range(3) for i in range(2)]
    st(a,5)
    tx=[(100,110,wt)]
    body(a,VM(),0,ch_epiU(V_ACC[1]),pace=True,epilo=OPT['XEPI'],seqs=tx+[(140,280,c_roles_vector())])
    st(a,6)
    a('''
    s_add_u32 s44, s44, 2048
    s_add_u32 s45, s45, 2048
    s_add_u32 s46, s46, 2048
    s_add_u32 s47, s47, 2048
    s_mov_b32 s24, s25
    ''')
    a(zset)
    a('s_branch KF_loop\nKF_z:')
    st(a,7)
    a('s_cmp_eq_u32 s68, 0\ns_cbranch_scc0 KF_zl')
    a(f'''
    s_mov_b32 s6, s78
    s_mov_b32 s24, s62
    v_min_u32 v{V_FA}, 7, v0
    v_lshlrev_b32 v{V_FA}, 2, v{V_FA}
    v_add_u32 v{V_ONE}, 1, v{V_ONE}
    v_add_u32 v255, 1, v{V_ONE}
    ''')
    pw=[];ph=[]
    for k in range(3): pw+=[x for x in prefetch(ORDER[k],'s6','W') if x!='s_nop 0']
    for k in range(5): ph+=prefetch(ORDER[k],'s78','H')
    zero=[f'v_mov_b64 v[{r}:{r+1}], 0' for r in range(96,192,2)]
    vmz=VM()
    bodyZ(a,vmz,[(60,61,['@FLD']),(62,150,pw),(152,270,['@CHK8']+ph),(2,60,zero[2:16]),(146,286,c_addr_items()+zero[:2]+zero[16:]),(OPT['g2'],OPT['g2']+1,['@G2'])])
    st(a,8)
    a('s_nop 4')
    z_tail(a)
    nH=[k for k,t in enumerate(vmz.ops)]
    a(f'buffer_load_dword v{V_FL}, v{V_FA}, s[20:23], s26 offen sc1')
    a('s_waitcnt vmcnt(17) lgkmcnt(0)\ns_barrier')
    for t in range(6): a(c_rd(ORDER[0],t,0)); a(c_rd(ORDER[0],t,1))
    for k in (3,4):
        for x in prefetch(ORDER[k],'s6','W'): a(x)
    a('s_waitcnt lgkmcnt(0)\ns_branch C_go')
    a('KF_zl:')
    for x in c_roles_vector(): a(x)
    a(f'''
    s_lshr_b32 s26, s83, 3
    s_max_u32 s26, s26, 1
    s_sub_u32 s26, s26, 1
    s_lshl_b32 s26, s26, 7
    s_add_u32 s26, s26, {QFL_OFF}
    v_lshlrev_b32 v253, 2, v0
    s_lshr_b32 s3, s83, 3
    s_cmp_eq_u32 s3, 0
    s_movk_i32 s3, 255
    s_cselect_b32 s3, 127, s3
    v_and_b32 v253, s3, v253
    s_and_b32 s92, s83, 1
    s_lshl_b32 s92, s92, 10
    s_lshr_b32 s93, s83, 1
    s_lshl_b32 s93, s93, 5
    s_add_u32 s92, s92, s93
    s_mul_i32 s92, s92, 3456
    s_add_u32 s92, s92, {QKV_OFF-7*3456}
    s_add_u32 s92, s92, s66
    s_add_u32 s93, s92, 86400
    ''')
    ql=['@QP']
    for n in range(22):
        ql+=[f's_add_u32 m0, s66, {HALF+n*4096}', f'buffer_load_dwordx4 v{C_LV}, s[20:23], s92 offen sc1 lds', 's_add_u32 s92, s92, 4096']
    bodyZ(a,VM(),[(OPT['ql'],OPT['ql']+1,['@QL']),(OPT['qp'],280,ql)])
    a('s_barrier')
    for n in range(12):
        a(f's_add_u32 m0, s66, {n*4096}\ns_nop 0\nbuffer_load_dwordx4 v{C_LV}, s[20:23], s93 offen sc1 lds\ns_add_u32 s93, s93, 4096')
    z_tail(a)
    a(f'v_add_u32 v255, 2, v{V_ONE}')
    st(a,8)
    def wq():
        a('s_waitcnt vmcnt(0)\nbuffer_store_dword v255, off, s[20:23], s25 sc1\ns_barrier'); st(a,14)
        a('v_lshlrev_b32 v5, 7, v0\ns_sub_u32 s28, s29, 8192\ns_sub_u32 s27, s29, 16384')
        for r in ('s27','s28','s29'): a(f'buffer_load_dword v240, v5, s[84:87], {r} offen')
    attention(a,wq,(25,HALF,0))
    st(a,15)
    light_after_att(a)
    a(f'''
    s_mov_b32 s25, {OOB}
    s_mov_b32 s27, 0
    v_mov_b32 v{V_FA}, 0
    s_mul_i32 s97, s70, {XT}
    s_add_u32 s97, s97, s72
    s_add_u32 s97, s97, {X_OFF}
    s_add_u32 s94, s97, {XD}
    s_add_u32 s95, s97, {2*XD}
    s_add_u32 s96, s97, {3*XD}
    s_add_u32 s63, s62, 16
    ''')
    for t in range(6): a(c_rd(ORDER[0],t,0)); a(c_rd(ORDER[0],t,1))
    a('s_waitcnt lgkmcnt(8)\ns_branch C_go')
    x_forward(a)
    a('C_go:')
    st(a,9)
    c_loop(a)
    c_finish(a)
    a('KF_end:\nKF_last:\ns_endpgm')
    return kernel_desc(NAME,512,102,256)

def build():
    a=Asm()
    hdr=open('recurrent_scan__sliding_local_dilated__swiglu_ffn__prompt.s.ref').read().split('\n')
    head=[l for l in hdr if l.startswith(';') and '@launch' not in l]
    d=gen_kf(a)
    s='\n'.join(head)+'\n; @launch grid=(256,1,1) block=(256,1,1) lds=163840\n'
    s+='.amdgcn_target "amdgcn-amd-amdhsa--gfx950"\n.text\n'+a.text()
    s+='.section .rodata,"a"\n.p2align 6\n'+d
    return s
if __name__=='__main__':
    for o in sys.argv[2:]:
        if '=' in o:
            k,v=o.split('='); OPT[k]=int(v)
        else: OPT[o]=True
    open(sys.argv[1],'w').write(build())
```

```python
import sys
from asmlib import *

NAME='recurrent_scan__sliding_local_dilated__swiglu_ffn__prompt_kernel'
XN_OFF=0; O_OFF=0x240000; QKV_OFF=0x480000; H_OFF=0xB40000; X_OFF=0x1D40000; XD=5*4*3072; XT=4*XD
FLG_OFF=0x3000000; OFL_OFF=FLG_OFF+0x2000; HFL_OFF=FLG_OFF+0x3000; QFL_OFF=FLG_OFF+0x4000; XFL_OFF=FLG_OFF+0x5000
PROF_OFF=0x8000000
OOB=0x7ffff000
OPT=dict(prof=False, FD=7, MIDKS=11, XEPI=80, SPIN=20000, tu0=0, tg1=5, tu1=10, w3q=40, FD0=3, t0nt=0, w3w=63, xt=1, W3N=6, g2=235, psl=2, tlb=0, ql=60, qp=130)
STF=' sc1'
HALF=73728
V_AD=2; V_NB=6; V_DA=10; V_DUM=12; V_TR=13; V_HST=14; V_QST=15; V_WF=16; V_SG=32; V_ACC=(64,128); V_X=192; V_T=224
V_BN=240; V_ZA=244; V_QA=246; V_UA=248; V_XO=252; V_ONE=254
S_DI='s[100:101]'; S_QI='s[4:5]'
C_AD=[6,7,8,9,10,11,13,15,240,241,242,243]; C_WF=[16,20,24,28,64,68]; C_ACC=96; C_RX=192; C_XV=72; C_T=2
C_DV=246; C_HV=249; C_LV=251; C_OA=252
STG=24576; NS=6; ORDER=[3,4,5,0,1,2]
LAM_H=[0,2,4,6,9,11,13,15,1,3,5,10,12,14,7,8,16,17]; LAM_S=list(range(9))

def st(a,i,rt=False):
    if OPT.get('dbg') is not None and OPT.get('dbg') is not False:
        m={30:1,16:2,1:3,2:4,3:5,4:6,5:7,6:8,7:9,8:10,9:11,10:12,11:13,12:14,13:15,14:7,15:8}
        if i not in m: return
        lab=a.label('DB')
        a(f'''
        s_cmp_lg_u32 s33, 0
        s_cbranch_scc1 {lab}
        s_cmp_lg_u32 s2, {OPT['dbg']}
        s_cbranch_scc1 {lab}
        s_memrealtime s[98:99]
        s_waitcnt lgkmcnt(0)
        v_mov_b32 v1, s98
        s_load_dwordx2 s[98:99], s[0:1], 64
        s_waitcnt lgkmcnt(0)
        s_mov_b64 exec, 1
        global_store_dword v0, v1, s[98:99] offset:{4*m[i]}
        s_mov_b64 exec, -1
        {lab}:
        ''')
        return
    if not OPT['prof'] and not (OPT.get('span') and i>=30): return
    if OPT.get('rtp'): rt=True
    a(f'''
    {"s_memrealtime" if rt else "s_memtime"} s[98:99]
    s_waitcnt lgkmcnt(0)
    v_mov_b32 v1, s98
    s_lshl_b32 s98, s2, 7
    s_add_u32 s98, s98, {PROF_OFF+4*i}
    s_cmp_eq_u32 s33, 0
    s_cselect_b32 s98, s98, {OOB}
    buffer_store_dword v1, off, s[20:23], s98
    ''')

class VM:
    def __init__(self): self.ops=[]
    def issue(self,t): self.ops.append(t)
    def wait_n(self,tag):
        idx=max(i for i,t in enumerate(self.ops) if t==tag)
        return min(63,len(self.ops)-1-idx)

class Sched:
    def __init__(self,nm,cap=2):
        self.nm=nm; self.cap=cap
        self.fill=[[] for _ in range(nm)]; self.post=[[] for _ in range(nm)]; self.pre=[[] for _ in range(nm+1)]
        self.load=[0]*nm; self.tail=[]
    def add_post(self,m,ins,cost=1):
        m=min(m,self.nm-1); self.post[m].append(ins); self.load[m]+=cost
    def add_pre(self,m,ins,cost=1):
        self.pre[m].append(ins)
        if m>0: self.load[m-1]+=cost
    def add_fill(self,m,item):
        self.fill[m].append(item); self.load[m]+=item[1]
    def chains(self,chains,lo,hi,nq,pace=False):
        total=sum(x[1] for c in chains for p in c for x in p)
        free=sum(max(0,self.cap-self.load[m]) for m in range(lo,hi))
        over=max(0,total-int(free*0.97))
        stt=[[0,0,-1] for _ in chains]; done=[None]*len(chains)
        placed=0; ov=0.0; m=lo
        while any(d is None for d in done):
            mm=min(m,self.nm-1)
            capl=self.cap-self.load[mm]
            ov+=over/(hi-lo)
            if ov>=1: capl+=1; ov-=1
            if m>=hi: capl=max(capl,3)
            if pace and over==0 and m<hi:
                capl=min(capl,int(total*(m-lo+1)/(hi-lo)-placed+0.999))
            while capl>0:
                cands=[]
                for k,c in enumerate(chains):
                    if done[k] is not None: continue
                    if k>=nq and (done[k-nq] is None or done[k-nq]>m-2): break
                    ph,ix,pg=stt[k]
                    if ix==0 and pg>=m: continue
                    cands.append(k)
                pick=None
                if capl>=2:
                    for k in cands:
                        if chains[k][stt[k][0]][stt[k][1]][1]>=2: pick=k;break
                if pick is None:
                    for k in cands:
                        if chains[k][stt[k][0]][stt[k][1]][1]<=capl: pick=k;break
                if pick is None: break
                ph,ix,pg=stt[pick]; it=chains[pick][ph][ix]
                if m<self.nm: self.fill[mm].append(it); self.load[mm]+=it[1]
                else: self.tail.append(it)
                capl-=it[1]; placed+=it[1]; ix+=1
                if ix==len(chains[pick][ph]):
                    ph+=1; ix=0; pg=m
                    if ph==len(chains[pick]): done[pick]=m
                stt[pick]=[ph,ix,pg]
            m+=1
            assert m<hi+400
        return m
    def seq(self,lo,hi,L):
        n=len(L); m=lo; nm=self.nm
        for k,x in enumerate(L):
            m=max(m,lo+int(k*(hi-lo)/n))
            lim=max(m,lo+int((k+1)*(hi-lo)/n)-1)
            if m>=nm: self.tail.append((x,1,'x') if x.startswith(('buffer','global')) else (x,1)); continue
            best=min(range(m,min(lim,nm-1)+1),key=lambda g:(self.load[g],g))
            if x.startswith('@'): self.add_post(best,x,2)
            elif x.startswith(('buffer','global')): self.add_fill(best,(x,1,'x'))
            else: self.add_fill(best,(x,1))
            m=best+1
    def emit(self,a,vm,mfma,lds_init,special):
        lds=list(lds_init)
        def out(s):
            nonlocal lds
            if s.startswith('WAITL'):
                need=int(s[5:].split(':')[0]); slack=int(s.split(':')[1]) if ':' in s else 0
                c=[i for i,x in enumerate(lds) if x<=need]
                if c:
                    idx=max(c); n=max(0,len(lds)-1-idx-slack)
                    a(f's_waitcnt lgkmcnt({min(n,15)})'); lds=lds[idx+1:]
            elif s.startswith('@'): special(s[1:])
            else:
                if ';tag=' in s:
                    s,t=s.split(';tag='); lds.append(int(t))
                a(s)
        for s in self.pre[0]: out(s)
        for m in range(self.nm):
            a(mfma(m))
            items=[(f[0],f[2] if len(f)>2 else None) for f in self.fill[m]]+[(s,None) for s in self.post[m]]
            late=[s for s in self.pre[m+1] if s.startswith('@')]
            waits=[s for s in self.pre[m+1] if not s.startswith('@')]
            nv=[x for x in items if not x[0].startswith('v_')]; va=[x for x in items if x[0].startswith('v_')]
            if not late:
                for s in waits: out(s)
            for x in nv+va:
                out(x[0])
                if x[1]: vm.issue(x[1])
            if late:
                for s in late+waits: out(s)
        for f in self.tail:
            out(f[0])
            if len(f)>2: vm.issue(f[2])

def xreg(i,ks):
    if ks<16: return ar((ks*4+i)*4,4)
    return vr(V_X+((ks-16)*4+i)*4,4)

def ch_epiG(acc):
    ch=[]; n=0
    for b in range(4):
        for i in range(4):
            A=acc+(b*4+i)*4; T=V_T+(n%4)*4; n+=1; S=V_SG+(b*4+i)*2
            ch.append([[(f'v_mul_f32 v{T+r}, s40, v{A+r}',1) for r in range(4)],
              [(f'v_exp_f32 v{T+r}, v{T+r}',2) for r in range(4)],
              [(f'v_add_f32 v{T+r}, 1.0, v{T+r}',1) for r in range(4)],
              [(f'v_rcp_f32 v{T+r}, v{T+r}',2) for r in range(4)],
              [(f'v_mul_f32 v{T+r}, v{T+r}, v{A+r}',1) for r in range(4)],
              [(f'v_cvt_pk_bf16_f32 v{S}, v{T}, v{T+1}',1),(f'v_cvt_pk_bf16_f32 v{S+1}, v{T+2}, v{T+3}',1)]])
    return ch,4
def ch_epiU(acc):
    ch=[]; n=0
    for p in range(2):
        for i in range(4):
            T=V_T+(n%2)*8; n+=1; p1=[];p2=[]
            for hb in range(2):
                b=2*p+hb; A=acc+(b*4+i)*4; S=V_SG+(b*4+i)*2; t=T+4*hb
                p1+=[(f'v_lshlrev_b32 v{t}, 16, v{S}',1),(f'v_and_b32 v{t+1}, s41, v{S}',1),
                     (f'v_lshlrev_b32 v{t+2}, 16, v{S+1}',1),(f'v_and_b32 v{t+3}, s41, v{S+1}',1)]
                p2+=[(f'v_mul_f32 v{t+r}, v{t+r}, v{A+r}',1) for r in range(4)]
            p3=[(f'v_cvt_pk_bf16_f32 v{T+j}, v{T+2*j}, v{T+2*j+1}',1) for j in range(4)]
            p4=[(f'buffer_store_dwordx4 v[{T}:{T+3}], v{V_HST}, s[20:23], s{44+i} offen offset:{p*1024}{STF}',2,'st')]
            ch.append([p1,p2,p3,p4])
    return ch,2
def ch_epiQ(acc,b0,coff):
    ch=[]
    for i in range(4):
        D=V_T+i*4; p1=[]
        for hb in range(2):
            A=acc+((b0+hb)*4+i)*4
            p1+=[(f'v_cvt_pk_bf16_f32 v{D+2*hb}, v{A}, v{A+1}',1),(f'v_cvt_pk_bf16_f32 v{D+2*hb+1}, v{A+2}, v{A+3}',1)]
        ch.append([p1,[(f'buffer_store_dwordx4 v[{D}:{D+3}], v{V_QST}, s[20:23], s{48+i} offen offset:{coff}{STF}',2,'st')]])
    return ch,4
def flat(ch):
    out=[]
    for p in range(max(len(c) for c in ch)):
        for c in ch:
            if p<len(c): out+=[x[0] for x in c[p]]
    return out
def epiZ_tail(a,acc):
    a(f'''
    s_mul_i32 s35, s30, 18
    s_lshr_b32 s42, s31, 1
    s_add_u32 s35, s35, s42
    s_add_u32 s35, s35, 16
    s_lshl_b32 s35, s35, 10
    s_and_b32 s42, s31, 1
    s_lshl_b32 s42, s42, 3
    s_add_u32 s35, s35, s42
    s_add_u32 s44, s35, {H_OFF}
    s_add_u32 s45, s44, 147456
    s_add_u32 s46, s44, 294912
    s_add_u32 s47, s44, 442368
    ''')
    ch=[]
    for i in range(4):
        Gr=acc+i*4; U=acc+(4+i)*4; T=V_T+i*4; D=V_SG+2*i
        ch.append([[(f'v_mul_f32 v{T+r}, s40, v{Gr+r}',1) for r in range(4)],
          [(f'v_exp_f32 v{T+r}, v{T+r}',2) for r in range(4)],
          [(f'v_add_f32 v{T+r}, 1.0, v{T+r}',1) for r in range(4)],
          [(f'v_rcp_f32 v{T+r}, v{T+r}',2) for r in range(4)],
          [(f'v_mul_f32 v{T+r}, v{T+r}, v{Gr+r}',1) for r in range(4)],
          [(f'v_cvt_pk_bf16_f32 v{T}, v{T}, v{T+1}',1),(f'v_cvt_pk_bf16_f32 v{T+2}, v{T+2}, v{T+3}',1)],
          [(f'v_and_b32 v{T+1}, s41, v{T}',1),(f'v_lshlrev_b32 v{T}, 16, v{T}',1),(f'v_and_b32 v{T+3}, s41, v{T+2}',1),(f'v_lshlrev_b32 v{T+2}, 16, v{T+2}',1)],
          [(f'v_mul_f32 v{T+r}, v{T+r}, v{U+r}',1) for r in range(4)],
          [(f'v_cvt_pk_bf16_f32 v{D}, v{T}, v{T+1}',1),(f'v_cvt_pk_bf16_f32 v{D+1}, v{T+2}, v{T+3}',1)],
          [(f'buffer_store_dwordx2 v[{D}:{D+1}], v{V_HST}, s[20:23], s{44+i} offen{STF}',2,'st')]])
    for s in flat(ch): a(s)

def chk8(a,off,thr,lab):
    a(f's_mov_b32 s3, 0\nK_{lab}_c:\ns_waitcnt lgkmcnt(0)')
    for i in range(8): a(f's_sub_u32 s{88+i}, s{88+i}, {thr}')
    a(f'''
    s_max_u32 s88, s88, s89
    s_max_u32 s90, s90, s91
    s_max_u32 s92, s92, s93
    s_max_u32 s94, s94, s95
    s_max_u32 s88, s88, s90
    s_max_u32 s92, s92, s94
    s_max_u32 s88, s88, s92
    s_cmp_le_u32 s88, 2
    s_cbranch_scc1 K_{lab}_ok
    s_add_u32 s3, s3, 1
    s_cmp_gt_u32 s3, {OPT['SPIN']}
    s_cbranch_scc1 K_{lab}_ok
    s_load_dwordx8 s[88:95], s[20:21], {off} glc
    s_branch K_{lab}_c
    K_{lab}_ok:
    ''')
V_FL=245; V_FA=244
def vchk(a,off,thr,lab):
    a(f'''
    v_subrev_u32 v{V_FL}, {thr}, v{V_FL}
    v_cmp_lt_u32 vcc, 2, v{V_FL}
    s_mov_b32 s3, 0
    s_cbranch_vccz K_{lab}_ok
    K_{lab}_c:
    buffer_load_dword v{V_FL}, v{V_FA}, s[20:23], {off} offen sc1
    s_add_u32 s3, s3, 1
    s_cmp_gt_u32 s3, {OPT['SPIN']}
    s_cbranch_scc1 K_{lab}_ok
    s_waitcnt vmcnt(0)
    v_subrev_u32 v{V_FL}, {thr}, v{V_FL}
    v_cmp_lt_u32 vcc, 2, v{V_FL}
    s_nop 0
    s_cbranch_vccnz K_{lab}_c
    K_{lab}_ok:
    ''')
def vpoll(a,lab,vdst,vaddr,soff,sleep=0,first_loaded=False):
    a('s_mov_b32 s3, 0')
    if first_loaded: a(f's_branch P_{lab}_t')
    a(f'''
    P_{lab}:
    s_add_u32 s3, s3, 1
    s_cmp_gt_u32 s3, {OPT['SPIN']}
    s_cbranch_scc1 P_{lab}_ok
    buffer_load_dword v{vdst}, v{vaddr}, s[20:23], {soff} offen sc1
    s_waitcnt vmcnt(0)
    P_{lab}_t:
    v_cmp_ne_u32 vcc, s39, v{vdst}
    s_nop 1
    s_cmp_eq_u64 vcc, 0
    s_cbranch_scc1 P_{lab}_ok
    ''')
    if sleep: a(f's_sleep {sleep}')
    a(f's_branch P_{lab}\nP_{lab}_ok:')

def body(a,vm,accset,epi,kind='full',dma=True,last=False,mid=False,seqs=(),pace=True,cap=2,epilo=1):
    acc=V_ACC[accset]; ns=72 if kind=='full' else 36; nm=ns*4
    S=Sched(nm,cap)
    step=4096 if kind=='full' else 8192; midg=9 if kind=='full' else 5
    def rd_off(t):
        g=t//4
        return (g*step if g<midg else (g-midg)*step), g>=midg
    for t in range(ns):
        m0=t*4
        if t%2==0: S.add_pre(m0,f'WAITL{min(t+1,ns-1)}')
        tn=t+4; w=V_WF+(t%4)*4; ad=V_AD+(t%4)
        if tn<ns:
            off,hi=rd_off(tn); _,hip=rd_off(t)
            if hi and not hip: S.add_post(m0+1,f'v_add_u32 v{ad}, {midg*step}, v{ad}')
            S.add_post(m0+3,f'ds_read_b64_tr_b16 v[{w}:{w+1}], v{ad} offset:{off};tag={tn}')
            S.add_post(m0+4,f'ds_read_b64_tr_b16 v[{w+2}:{w+3}], v{ad} offset:{off+512};tag={tn}')
        elif not last:
            S.add_post(m0+1,f'v_mov_b32 v{ad}, v{V_NB+(t%4)}')
            if tn==ns: S.add_post(m0+2,'@SUB',2)
            S.add_post(m0+3,f'ds_read_b64_tr_b16 v[{w}:{w+1}], v{ad} offset:0;tag={tn}')
            S.add_post(m0+4,f'ds_read_b64_tr_b16 v[{w+2}:{w+3}], v{ad} offset:512;tag={tn}')
    if dma:
        for n in range(18):
            m=(n//3)*16+(n%3)*5+1
            S.add_fill(m,('s_add_u32 m0, m0, 4096',1))
            S.add_fill(m+1,(f'global_load_lds_dwordx4 v[{V_DA}:{V_DA+1}], off',1,'dma'))
            S.add_fill(m+1,(f'v_lshl_add_u64 v[{V_DA}:{V_DA+1}], v[{V_DA}:{V_DA+1}], 0, {S_DI}',1))
    if mid: S.add_post(OPT['MIDKS']*16+1,'@MID',3)
    endm=0
    if epi: endm=S.chains(epi[0],epilo,nm-6,epi[1],pace=pace)
    for lo,hi,L in seqs:
        S.seq(endm+1 if lo=='epi' else lo,hi,L)
    def mf(m):
        t=m//4;i=m%4
        ks,b=(t//4,t%4) if kind=='full' else (t//2,t%2)
        D=acc+(b*4+i)*4; w=V_WF+(t%4)*4
        return f'v_mfma_f32_16x16x32_bf16 {vr(D,4)}, {vr(w,4)}, {xreg(i,ks)}, {"0" if ks==0 else vr(D,4)}'
    def special(n):
        if n=='SUB': a(f's_waitcnt vmcnt({vm.wait_n("dma")})\ns_barrier')
        elif n=='MID':
            a(f's_waitcnt vmcnt({min(63,len(vm.ops))})\ns_barrier')
            a(f'buffer_store_dword v{V_ONE}, off, s[20:23], s24 sc1'); vm.issue('fl')
        elif n=='CHK8': chk8(a,'s26','s39','Zh')
    S.emit(a,vm,mf,[0,0,1,1,2,2,3,3],special)

def grp_w(g):
    return [(f's_add_u32 m0, s66, {g*4096}',1),
       (f'global_load_lds_dwordx4 v[{V_DA}:{V_DA+1}], off',1,f'g{g}'),
       (f's_add_u32 m0, s66, {HALF+g*4096}',1),
       (f'v_lshl_add_u64 v[{V_DA}:{V_DA+1}], v[{V_DA}:{V_DA+1}], 0, {S_DI}',1),
       (f'global_load_lds_dwordx4 v[{V_QA}:{V_QA+1}], off',1,f'g{g}'),
       (f'v_lshl_add_u64 v[{V_QA}:{V_QA+1}], v[{V_QA}:{V_QA+1}], 0, {S_QI}',1)]
def grp_x(g):
    return [(f'buffer_load_dwordx4 {xreg(i,g)}, v{V_XO+i}, s[20:23], s{52+g//4} offen offset:{(g%4)*1024} sc1',1,f'g{g}') for i in range(4)]
def u0_items(g):
    return [(f's_add_u32 m0, s66, {HALF+g*4096}',1),
            (f'global_load_lds_dwordx4 v[{V_UA}:{V_UA+1}], off',1,f'u{g}'),
            (f'v_lshl_add_u64 v[{V_UA}:{V_UA+1}], v[{V_UA}:{V_UA+1}], 0, {S_DI}',1)]

def bodyF(a,vm):
    FD=OPT['FD']; nm=18*32; nxt=OPT['FD0']
    S=Sched(nm)
    def regs(sl):
        if sl<4: return V_SG+sl*4, V_NB+sl, V_ACC[1]+sl*16
        return V_WF+(sl-4)*4, V_AD+(sl-4), V_ACC[0]+(sl-4)*16
    for ks in range(18):
        for sl in range(8):
            t=ks*8+sl; m0=t*4; w,ad,_=regs(sl)
            if sl==2: S.add_pre(m0,f'@SKIP{ks}')
            if sl==4: S.pre[m0].append(f'@LAB{ks}')
            if sl%2==0: S.add_pre(m0,f'WAITL{t+1}:4')
            kn=ks+1
            m2=m0+4 if sl not in (1,3) else m0+3
            if kn<18:
                if kn==9: S.add_post(m0+1,f'v_add_u32 v{ad}, 36864, v{ad}')
                off=(kn%9)*4096
                S.add_post(m0+3,f'ds_read_b64_tr_b16 v[{w}:{w+1}], v{ad} offset:{off};tag={t+8}')
                S.add_post(m2,f'ds_read_b64_tr_b16 v[{w+2}:{w+3}], v{ad} offset:{off+512};tag={t+8}')
            elif sl>=4:
                S.add_post(m0+1,f'v_add_u32 v{ad}, {HALF}, v{V_BN+sl-4}')
                if sl==4: S.add_post(m0+2,'@SUB',2)
                S.add_post(m0+3,f'ds_read_b64_tr_b16 v[{w}:{w+1}], v{ad} offset:0;tag={t+8}')
                S.add_post(m2,f'ds_read_b64_tr_b16 v[{w+2}:{w+3}], v{ad} offset:512;tag={t+8}')
        base=ks*32
        if ks<17: S.add_post(base+30,f'@READY{ks+1}',1)
        if ks%3==0 and 0<ks<17: S.add_post(base+1,'s_barrier',1)
        mand=[base+2,base+4,base+5,base+6]+[base+16+j for j in (0,1,2,4,5,6,8,9,10,12,13)]
        items=[]
        for _ in range(2):
            if nxt<18 and nxt<=ks+FD: items+=grp_x(nxt); nxt+=1
        if len(items)<=4: mand=[base+2,base+5]+[base+16+j for j in (0,2,4,6,8,10,12)]
        if 3<=ks<17: items=items[:2]+u0_items(ks-3)+items[2:] if len(items)>=2 else u0_items(ks-3)
        if ks==OPT['tu0']: items+=[(f'global_load_dword v{V_DUM}, v{V_TR}, s[18:19]',1,'t')]
        if ks==OPT['tg1']: items+=[(f'global_load_dword v{V_DUM}, v{V_TR}, s[60:61]',1,'t')]
        if ks==OPT['tu1']: items+=[(f'global_load_dword v{V_DUM}, v{V_TR}, s[4:5]',1,'t')]
        if ks<17:
            for j,it in enumerate(items): S.add_fill(mand[j],it)
        else:
            for j,it in enumerate(u0_items(14)): S.add_fill(base+2+j,it)
            for j,it in enumerate(u0_items(15)+u0_items(16)+u0_items(17)): S.add_fill(base+16+4+j,it)
    ch,nq=ch_epiQ(V_ACC[1],0,0)
    S.chains(ch,17*32+18,nm,nq)
    def mf(m):
        t=m//4;i=m%4;ks=t//8;sl=t%8
        w,_,ac=regs(sl); D=ac+i*4
        return f'v_mfma_f32_16x16x32_bf16 {vr(D,4)}, {vr(w,4)}, {xreg(i,ks)}, {"0" if ks==0 else vr(D,4)}'
    def special(n):
        if n.startswith('SKIP'): a(f's_cbranch_vccz KF_s{n[4:]}')
        elif n.startswith('LAB'): a(f'KF_s{n[3:]}:')
        elif n.startswith('READY'): a(f's_waitcnt vmcnt({vm.wait_n("g"+n[5:])})')
        elif n=='SUB': a(f's_waitcnt vmcnt({vm.wait_n("u%d"%OPT["MIDKS"])})\ns_barrier')
    S.emit(a,vm,mf,[t for t in range(8) for _ in range(2)],special)

def lamword(seq,start):
    w=0
    for k in range(6): w|=(seq[start+k] if start+k<len(seq) else 31)<<(5*k)
    return w
def c_roles_scalar(a):
    a(f'''
    s_and_b32 s92, s2, 1
    s_bfe_u32 s69, s2, 0x20001
    s_bfe_u32 s93, s2, 0x20003
    s_bfe_u32 s94, s2, 0x10005
    s_lshr_b32 s95, s2, 6
    s_lshl_b32 s95, s95, 1
    s_add_u32 s95, s95, s94
    s_lshl_b32 s57, s92, 3
    s_add_u32 s57, s57, s95
    s_mov_b32 s68, 0
    s_mov_b32 s83, 0
    s_mov_b32 s7, 147456
    s_mul_i32 s73, s69, {18*64*1152}
    s_mul_i32 s74, s69, {18*2048}
    s_add_u32 s74, s74, {H_OFF}
    s_mov_b32 s86, {4608*1152+2048}
    s_mov_b32 s75, {lamword(LAM_H,5)}
    s_mov_b32 s76, {lamword(LAM_H,11)}
    s_mov_b32 s77, {lamword(LAM_H,17)}
    s_mov_b32 s78, {lamword(LAM_H,0)}
    s_mov_b32 s82, 18
    s_cmp_lt_u32 s93, 3
    s_cbranch_scc1 C_rh
    s_lshl_b32 s57, s92, 2
    s_add_u32 s57, s57, s69
    s_lshl_b32 s83, s57, 3
    s_add_u32 s83, s83, s95
    s_lshl_b32 s57, s57, 1
    s_cmp_ge_u32 s95, 3
    s_cselect_b32 s94, 1, 0
    s_add_u32 s57, s57, s94
    s_mul_i32 s94, s94, 3
    s_sub_u32 s93, s95, s94
    s_cmp_lt_u32 s95, 6
    s_cselect_b32 s68, 1, 2
    s_cselect_b32 s93, s93, 0
    s_mov_b32 s69, 0
    s_mov_b32 s7, 18432
    s_mov_b32 s73, 0
    s_mov_b32 s74, {O_OFF}
    s_mov_b32 s86, {576*1152+2048}
    s_mov_b32 s75, {lamword(LAM_S,5)}
    s_mov_b32 s76, {lamword(LAM_S,11)}
    s_mov_b32 s77, {lamword(LAM_S,17)}
    s_mov_b32 s78, {lamword(LAM_S,0)}
    s_mov_b32 s82, 9
    s_mov_b32 s90, s88
    s_mov_b32 s91, s89
    C_rh:
    s_sub_u32 s84, s90, 2048
    s_subb_u32 s85, s91, 0
    s_mov_b32 s87, 0x20000
    s_mul_i32 s70, s57, 3
    s_add_u32 s70, s70, s93
    s_mul_i32 s71, s93, 384
    s_add_u32 s73, s73, s71
    s_mul_i32 s72, s33, 3072
    ''')
def c_roles_vector():
    A,B,C='v1','v255','v253'
    t=f'''
    v_lshlrev_b32 v{C_LV}, 4, v0
    v_lshrrev_b32 {A}, 3, v0
    s_lshl_b32 s92, s33, 3
    v_add_u32 {A}, s92, {A}
    v_bfe_u32 {B}, {A}, 2, 2
    v_lshlrev_b32 {B}, 3, {B}
    v_lshrrev_b32 {C}, 4, {A}
    v_lshl_add_u32 {B}, {C}, 2, {B}
    v_and_b32 {C}, 3, {A}
    v_add_u32 {B}, {B}, {C}
    s_cmp_eq_u32 s68, 0
    s_cselect_b64 s[92:93], -1, 0
    v_cndmask_b32 {A}, {B}, {A}, s[92:93]
    v_mul_u32_u24 {A}, 1152, {A}
    v_bfe_u32 {B}, v0, 1, 2
    v_lshrrev_b32 {C}, 4, v0
    v_xor_b32 {B}, {B}, {C}
    v_lshl_add_u32 {A}, {B}, 5, {A}
    v_and_b32 {B}, 1, v0
    v_lshl_add_u32 {A}, {B}, 4, {A}
    v_add_u32 v{C_DV}, 2048, {A}
    v_add_u32 v{C_DV+1}, {2048+128-1024}, {A}
    v_add_u32 v{C_DV+2}, {2048+256-2048}, {A}
    s_lshl_b32 s92, s57, 3
    s_lshl_b32 s93, s33, 1
    s_add_u32 s92, s92, s93
    s_mul_i32 s93, s92, s7
    v_add_u32 v{C_HV}, s93, v{C_LV}
    v_add_u32 v{C_HV+1}, s7, v{C_HV}
    v_and_b32 {A}, 7, v0
    v_lshlrev_b32 {A}, 1, {A}
    v_bfe_u32 {B}, v0, 3, 1
    s_lshl_b32 s92, s92, 4
    v_add3_u32 {A}, {A}, {B}, s92
    v_mul_u32_u24 {A}, 1152, {A}
    v_lshrrev_b32 {B}, 4, v0
    v_lshl_add_u32 {A}, {B}, 3, {A}
    s_lshl_b32 s92, s69, 5
    s_add_u32 s92, s92, s71
    v_add_u32 v{C_OA}, s92, {A}
    v_add_u32 v{C_OA+1}, 18432, v{C_OA}
    '''
    return [l.strip() for l in t.split('\n') if l.strip()]
def prefetch(slot,tabreg='s75',parts='WH'):
    W=lambda l: f'buffer_load_dwordx4 v{C_DV+l}, s[84:87], s80 offen offset:{1024*l} lds'
    def H(n):
        ks,i=n//2,n%2; r=ORDER.index(slot)*16+n*4
        return f'buffer_load_dwordx4 a[{r}:{r+3}], v{C_HV+i}, s[20:23], s81 offen offset:{ks*1024} sc1'
    L=[f's_and_b32 s79, {tabreg}, 31', f's_mul_i32 s80, s79, {64*1152}', 's_lshl_b32 s81, s79, 11', 's_add_u32 s80, s80, s73', 's_add_u32 s81, s81, s74',
       's_cmp_lt_u32 s79, 18', f's_cselect_b32 s80, s80, {OOB}', f's_cselect_b32 s81, s81, {OOB}',
       f's_add_u32 m0, s72, {slot*STG}', H(0), W(0), f's_lshr_b32 {tabreg}, {tabreg}, 5', W(1), W(2),
       f's_add_u32 m0, s72, {slot*STG+4*3072}', H(1), 's_add_u32 s80, s80, 36864', W(0), W(1), W(2), H(2), H(3)]
    if 'W' not in parts: L=[x for x in L if ' lds' not in x and 'm0' not in x and 's80' not in x]
    if 'H' not in parts: L=[x if not x.startswith('buffer_load_dwordx4 a') else 's_nop 0' for x in L if 's81' not in x or x.startswith('buffer')]
    return L
def c_addr_items():
    A,B,C='v1','v96','v97'
    L=[f'v_lshrrev_b32 {A}, 5, v0', f'v_mul_u32_u24 {A}, 3072, {A}', f'v_bfe_u32 {B}, v0, 2, 3', f'v_lshl_add_u32 {A}, {B}, 7, {A}',
       f'v_lshrrev_b32 {B}, 1, {B}', f'v_xor_b32 {B}, s69, {B}', f'v_and_b32 {C}, 3, v0', f'v_lshl_add_u32 {A}, {C}, 3, {A}']
    for b_ in range(4):
        L+=[f'v_xor_b32 {C}, {b_}, {B}', f'v_lshl_add_u32 v{C_AD[b_]}, {C}, 5, {A}']
        for hs in range(1,3): L.append(f'v_add_u32 v{C_AD[4*hs+b_]}, {2*STG*hs}, v{C_AD[b_]}')
    return L
def c_rd(slot,t,half):
    ks,b_=t//12,t%12
    w=C_WF[t%6]+2*half; ad=C_AD[4*(slot//2)+(b_&3)]
    off=(slot%2)*STG+ks*12288+(b_//4)*1024+half*6144
    return f'ds_read_b64_tr_b16 v[{w}:{w+1}], v{ad} offset:{off}'

def bodyZ(a,vm,seqs,capa=2):
    ns=72; nm=288
    S=Sched(nm,capa)
    for t in range(ns):
        m0=t*4
        if t%2==0: S.add_pre(m0,f'WAITL{min(t+1,ns-1)}')
        tn=t+4; w=V_WF+(t%4)*4; ad=V_AD+(t%4)
        if tn<ns:
            g=(tn%36)//4; gp=(t%36)//4
            if tn>=36 and t<36:
                S.add_post(m0+1,f'v_add_u32 v{ad}, {4096*((t%4)//2)}, v{V_BN+2+(t%2)}')
            elif g==5 and gp==4: S.add_post(m0+1,f'v_add_u32 v{ad}, 40960, v{ad}')
            off=(g if g<5 else g-5)*8192
            S.add_post(m0+3,f'ds_read_b64_tr_b16 v[{w}:{w+1}], v{ad} offset:{off};tag={tn}')
            S.add_post(m0+4,f'ds_read_b64_tr_b16 v[{w+2}:{w+3}], v{ad} offset:{off+512};tag={tn}')
    ch,nq=ch_epiU(V_ACC[1])
    e1=S.chains(ch,1,138,nq,pace=False)
    assert e1<=143,e1
    ch2=[]
    for n in range(8):
        A=64+n*4; T=V_T+(n%4)*4
        ch2.append([[(f'v_mul_f32 v{T+r}, s40, v{A+r}',1) for r in range(4)],
          [(f'v_exp_f32 v{T+r}, v{T+r}',2) for r in range(4)],
          [(f'v_add_f32 v{T+r}, 1.0, v{T+r}',1) for r in range(4)],
          [(f'v_rcp_f32 v{T+r}, v{T+r}',2) for r in range(4)],
          [(f'v_mul_f32 v{A+r}, v{T+r}, v{A+r}',1) for r in range(4)]])
    for lo,hi,L in seqs: S.seq(lo,hi,L)
    S.chains(ch2,148,nm-2,4,pace=False)
    def mf(m):
        t=m//4;i=m%4; p=t//36; ks=(t%36)//2; b=t%2
        D=(64 if p==0 else 32)+(b*4+i)*4; w=V_WF+(t%4)*4
        return f'v_mfma_f32_16x16x32_bf16 {vr(D,4)}, {vr(w,4)}, {xreg(i,ks)}, {"0" if ks==0 else vr(D,4)}'
    def special(n):
        if n=='CHK8':
            a(f's_waitcnt vmcnt({vm.wait_n("fld")})'); vchk(a,'s26','s39','Zh')
        elif n=='FLD':
            a(f'buffer_load_dword v{V_FL}, v{V_FA}, s[20:23], s26 offen sc1'); vm.issue('fld')
        elif n=='G2':
            a(f's_waitcnt vmcnt({vm.wait_n("st")})\nbuffer_store_dword v{V_ONE}, off, s[20:23], s25 sc1'); vm.issue('x')
        elif n=='QL':
            a('buffer_load_dword v255, v253, s[20:23], s26 offen sc1'); vm.issue('ql')
        elif n=='QP':
            a(f's_waitcnt vmcnt({vm.wait_n("ql")})'); vpoll(a,'q',255,253,'s26',first_loaded=True)
    S.emit(a,vm,mf,[0,0,1,1,2,2,3,3],special)
def z_tail(a):
    a(f'''
    s_mul_i32 s35, s30, 18
    s_add_u32 s35, s35, s31
    s_add_u32 s35, s35, 14
    s_lshl_b32 s35, s35, 10
    s_add_u32 s44, s35, {H_OFF}
    s_add_u32 s45, s44, 147456
    s_add_u32 s46, s44, 294912
    s_add_u32 s47, s44, 442368
    ''')
    for i in range(4):
        D=V_T+i*4
        for hb in range(2):
            G=64+(hb*4+i)*4; U=32+(hb*4+i)*4
            for r in range(4): a(f'v_mul_f32 v{U+r}, v{U+r}, v{G+r}')
            a(f'v_cvt_pk_bf16_f32 v{D+2*hb}, v{U}, v{U+1}\nv_cvt_pk_bf16_f32 v{D+2*hb+1}, v{U+2}, v{U+3}')
        a(f'buffer_store_dwordx4 v[{D}:{D+3}], v{V_HST}, s[20:23], s{44+i} offen{STF}')

def attention(a,waitq,rows_split):
    Q=8; KB=(44,80); L=116; O=148; AW=220; V0,V1=44,80
    a(f'''
    v_lshrrev_b32 v2, 3, v0
    v_and_b32 v3, 7, v0
    v_mul_u32_u24 v3, 144, v3
    s_lshl_b32 s92, s33, 3
    v_add_u32 v2, s92, v2
    s_lshr_b32 s93, s83, 1
    s_lshl_b32 s93, s93, 5
    v_add_u32 v229, s93, v2
    v_add_u32 v4, 7, v2
    s_mov_b32 s94, 3456
    s_mov_b32 s95, 0x05040100
    s_mov_b32 s96, 0x07060302
    s_mov_b32 s97, 0x3eae1a93
    ''')
    n1,b1,b2=rows_split
    a(f'v_mov_b32 v6, {(b2-n1*3456)&0xffffffff}\nv_mov_b32 v7, {b1}')
    for w in range(8):
        a(f'v_min_u32 v5, {w}, v229\nv_sub_u32 v5, v4, v5\nv_cmp_gt_u32 vcc, {n1}, v5\nv_mad_u32_u24 v{AW+w}, v5, s94, v3\ns_nop 0\nv_cndmask_b32 v5, v6, v7, vcc\nv_add_u32 v{AW+w}, v{AW+w}, v5')
    waitq()
    def rd(dst,ad,off):
        for m in range(9): a(f'ds_read_b128 v[{dst+4*m}:{dst+4*m+3}], v{ad} offset:{off+16*m}')
    def rdl(dst,ad,off): return [f'ds_read_b128 v[{dst+4*m}:{dst+4*m+3}], v{ad} offset:{off+16*m}' for m in range(9)]
    rd(Q,AW,0); rd(KB[0],AW,1152)
    for w in range(8):
        a('s_waitcnt lgkmcnt(0)')
        nx=rdl(KB[(w+1)%2],AW+w+1,1152) if w<7 else rdl(V0,AW,2304)
        k=KB[w%2]
        for j in range(9):
            a(nx[j])
            for hh in range(4):
                c='0' if j==0 else f'v{L+hh*8+w}'
                a(f'v_dot2_f32_bf16 v{L+hh*8+w}, v{Q+9*hh+j}, v{k+9*hh+j}, {c}')
    rd(V1,AW+1,2304)
    a('v_mov_b32 v5, 0xff800000')
    for w in range(1,8):
        a(f'v_cmp_le_u32 vcc, {w}, v229\ns_nop 1')
        for hh in range(4): a(f'v_cndmask_b32 v{L+hh*8+w}, v5, v{L+hh*8+w}, vcc')
    M=Q
    for step in range(4):
        for hh in range(4):
            l=L+hh*8
            a([f'v_max3_f32 v{M+hh}, v{l}, v{l+1}, v{l+2}',f'v_max3_f32 v{M+hh}, v{M+hh}, v{l+3}, v{l+4}',f'v_max3_f32 v{M+hh}, v{M+hh}, v{l+5}, v{l+6}',f'v_max_f32 v{M+hh}, v{M+hh}, v{l+7}'][step])
    for hh in range(4): a(f'v_mul_f32 v{M+hh}, s97, v{M+hh}')
    for hh in range(4):
        for w in range(8): a(f'v_fma_f32 v{L+hh*8+w}, v{L+hh*8+w}, s97, -v{M+hh}')
    for r in range(32): a(f'v_exp_f32 v{L+r}, v{L+r}')
    for hh in range(4): a(f'v_add_f32 v{M+hh}, v{L+hh*8}, v{L+hh*8+1}')
    for w in range(2,8):
        for hh in range(4): a(f'v_add_f32 v{M+hh}, v{M+hh}, v{L+hh*8+w}')
    for hh in range(4): a(f'v_rcp_f32 v{M+hh}, v{M+hh}')
    a('s_nop 0')
    for hh in range(4):
        for w in range(8): a(f'v_mul_f32 v{L+hh*8+w}, v{L+hh*8+w}, v{M+hh}')
    for hh in range(4):
        for wp in range(4): a(f'v_cvt_pk_bf16_f32 v{L+hh*8+wp}, v{L+hh*8+2*wp}, v{L+hh*8+2*wp+1}')
    for wp in range(4):
        a('s_waitcnt lgkmcnt(0)')
        nx=[x for p in zip(rdl(V0,AW+2*wp+2,2304),rdl(V1,AW+2*wp+3,2304)) for x in p] if wp<3 else []
        for m in range(9):
            for j in range(4*m,4*m+4):
                a(f'v_perm_b32 v{230+(j%4)}, v{V1+j}, v{V0+j}, s95')
                a(f'v_perm_b32 v{234+(j%4)}, v{V1+j}, v{V0+j}, s96')
            if nx: a(nx[2*m]); a(nx[2*m+1])
            for j in range(4*m,4*m+4):
                c0='0' if wp==0 else f'v{O+2*j}'; c1='0' if wp==0 else f'v{O+2*j+1}'
                a(f'v_dot2_f32_bf16 v{O+2*j}, v{230+(j%4)}, v{L+(j//9)*8+wp}, {c0}')
                a(f'v_dot2_f32_bf16 v{O+2*j+1}, v{234+(j%4)}, v{L+(j//9)*8+wp}, {c1}')
    a(f'''
    v_and_b32 v3, 7, v0
    v_mul_u32_u24 v3, 2304, v3
    v_lshrrev_b32 v2, 3, v0
    v_lshl_add_u32 v3, v2, 4, v3
    s_lshr_b32 s92, s83, 1
    s_lshl_b32 s92, s92, 2
    s_add_u32 s92, s92, s33
    s_mul_i32 s92, s92, 18432
    s_and_b32 s93, s83, 1
    s_lshl_b32 s93, s93, 7
    s_add_u32 s92, s92, s93
    s_add_u32 s92, s92, {O_OFF}
    ''')
    for m in range(9):
        for j in range(4*m,4*m+4): a(f'v_cvt_pk_bf16_f32 v{Q+j}, v{O+2*j}, v{O+2*j+1}')
        a(f'buffer_store_dwordx4 v[{Q+4*m}:{Q+4*m+3}], v3, s[20:23], s92 offen offset:{256*m} sc1')

OST=110592; SSTG=36864
def s_gemm(a):
    AD=44
    BF=64
    WFs=80
    AC=128
    def dma(slot):
        L=[]
        for t3 in range(3):
            L.append(f's_add_u32 m0, s72, {slot*SSTG+t3*3072}')
            L.append(f's_add_u32 s81, s80, {t3*384}')
            for l in range(3): L.append(f'buffer_load_dwordx4 v{C_DV+l}, s[84:87], s81 offen offset:{1024*l} lds')
        L.append('s_add_u32 s80, s80, 36864')
        return L
    a('s_mul_i32 s72, s33, 9216\ns_mov_b32 s80, 0')
    for x in dma(0): a(x)
    for m in range(9): a(f'ds_write_b128 v3, v[{8+4*m}:{8+4*m+3}] offset:{256*m}')
    for x in dma(1)+dma(2): a(x)
    a(f'''
    v_lshrrev_b32 v4, 5, v0
    v_mul_u32_u24 v4, 9216, v4
    v_bfe_u32 v5, v0, 2, 3
    v_lshl_add_u32 v4, v5, 7, v4
    v_lshrrev_b32 v5, 1, v5
    v_and_b32 v6, 3, v0
    v_lshl_add_u32 v4, v6, 3, v4
    s_mul_i32 s92, s33, 9
    v_lshlrev_b32 v7, 4, v0
    v_add_u32 v7, {OST}, v7
    ''')
    for bb in range(9):
        a(f'''
        s_add_u32 s93, s92, {bb}
        s_and_b32 s94, s93, 3
        s_lshr_b32 s93, s93, 2
        s_lshl_b32 s93, s93, 10
        v_xor_b32 v6, s94, v5
        v_lshl_add_u32 v6, v6, 5, v4
        v_add_u32 v{AD+bb}, s93, v6
        v_add_u32 v{AD+9+bb}, {2*SSTG}, v{AD+bb}
        ''')
    for r in range(0,72,2): a(f'v_mov_b64 v[{AC+r}:{AC+r+1}], 0')
    WB=(80,200)
    def reads(k):
        slot=k%3; wb=WB[k%2]; bf=BF+8*(k%2)
        R=[f'ds_read_b128 v[{bf}:{bf+3}], v7',f'ds_read_b128 v[{bf+4}:{bf+7}], v7 offset:18432','v_add_u32 v7, 1024, v7']
        for bb in range(9):
            ad=AD+bb+(9 if slot==2 else 0); off=(slot%2)*SSTG
            R.append(f'ds_read_b64_tr_b16 v[{wb+4*bb}:{wb+4*bb+1}], v{ad} offset:{off}')
            R.append(f'ds_read_b64_tr_b16 v[{wb+4*bb+2}:{wb+4*bb+3}], v{ad} offset:{off+18432}')
        return R
    a('s_waitcnt vmcnt(18) lgkmcnt(0)\ns_barrier')
    for x in reads(0): a(x)
    a('''
    v_lshrrev_b32 v242, 3, v0
    s_lshl_b32 s93, s33, 3
    v_add_u32 v242, s93, v242
    v_mul_u32_u24 v242, 2304, v242
    v_and_b32 v243, 7, v0
    v_lshl_add_u32 v242, v243, 4, v242
    v_add_u32 v242, 2048, v242
    v_bfe_u32 v243, v0, 3, 1
    v_mul_u32_u24 v243, 9216, v243
    v_and_b32 v6, 7, v0
    v_lshl_add_u32 v243, v6, 7, v243
    v_lshrrev_b32 v6, 4, v0
    v_lshl_add_u32 v243, v6, 3, v243
    ''')
    a('s_mov_b32 s82, 3')
    a('S_loop:')
    for k in range(6):
        a('s_waitcnt vmcnt(9) lgkmcnt(0)\ns_barrier')
        if k==3:
            a(f'''
            s_cmp_lg_u32 s82, 1
            s_cbranch_scc1 S_nox
            s_sub_u32 s84, s88, 2048
            s_subb_u32 s85, s89, 0
            s_mov_b32 s86, {2048*1152+2048}
            s_lshr_b32 s80, s83, 1
            s_lshl_b32 s80, s80, 6
            s_and_b32 s93, s83, 1
            s_add_u32 s80, s80, s93
            s_mul_i32 s80, s80, 1152
            v_mov_b32 v{C_DV}, v242
            v_add_u32 v{C_DV+1}, {128-1024}, v242
            v_add_u32 v{C_DV+2}, {256-2048}, v242
            S_nox:
            ''')
        if k==4:
            a(f's_cmp_eq_u32 s82, 1\ns_cselect_b32 s80, {OOB-0x100000}, s80')
        D=dma(k%3); R=reads(k+1); wb=WB[k%2]; bf=BF+8*(k%2)
        for n in range(18):
            bb,j=n//2,n%2; r=AC+n*4
            a(f'v_mfma_f32_16x16x32_bf16 {vr(r,4)}, {vr(wb+4*bb,4)}, {vr(bf+4*j,4)}, {vr(r,4)}')
            for _ in range(2 if n<3 else 1):
                if R: a(R.pop(0))
            if D: a(D.pop(0))
        assert not D and not R
    a('s_sub_u32 s82, s82, 1\ns_cmp_lg_u32 s82, 0\ns_cbranch_scc1 S_loop')
    a('s_waitcnt vmcnt(0) lgkmcnt(0)\ns_barrier')
    a('s_mul_i32 s92, s33, 9')
    for bb in range(9):
        a(f'''
        s_add_u32 s93, s92, {bb}
        s_and_b32 s94, s93, 3
        s_lshl_b32 s94, s94, 5
        s_lshr_b32 s93, s93, 2
        s_lshl_b32 s93, s93, 10
        s_add_u32 s93, s93, s94
        v_add_u32 v6, s93, v243
        ds_read_b64 v[{8+4*bb}:{9+4*bb}], v6
        ds_read_b64 v[{10+4*bb}:{11+4*bb}], v6 offset:18432
        ''')
    st(a,10)
    s_flag_setup(a)
    a('s_waitcnt lgkmcnt(0)')
    s_send(a,AC)
    a('v_mov_b32 v5, s39\ns_waitcnt vmcnt(0)\ns_barrier\nbuffer_store_dword v5, v241, s[20:23], s24 offen sc1')
    a('s_branch C_fin')

def s_send(a,AC=None):
    a(f'''
    s_mul_i32 s92, s33, 9
    v_and_b32 v4, 7, v0
    v_lshrrev_b32 v5, 4, v0
    v_lshl_add_u32 v4, v5, 4, v4
    v_lshlrev_b32 v4, 4, v4
    v_bfe_u32 v5, v0, 3, 1
    v_mul_u32_u24 v5, {4*4*3072}, v5
    v_add_u32 v4, v4, v5
    s_and_b32 s93, s83, 1
    s_lshl_b32 s93, s93, 7
    s_lshr_b32 s94, s83, 2
    s_mul_i32 s94, s94, {3*XT}
    s_add_u32 s93, s93, s94
    s_bfe_u32 s94, s83, 0x10001
    s_mul_i32 s94, s94, 6144
    s_add_u32 s93, s93, s94
    s_add_u32 s93, s93, {X_OFF}
    ''')
    if AC is None: a('v_mov_b64 v[8:9], -1\nv_mov_b64 v[10:11], -1')
    for bb in range(9):
        a(f'''
        s_add_u32 s94, s92, {bb}
        s_mul_i32 s95, s94, 43
        s_lshr_b32 s95, s95, 9
        s_mul_i32 s96, s95, 12
        s_sub_u32 s94, s94, s96
        s_mul_i32 s95, s95, {XT}
        s_and_b32 s96, s94, 3
        s_mul_i32 s96, s96, {XD}
        s_add_u32 s95, s95, s96
        s_lshr_b32 s94, s94, 2
        s_lshl_b32 s94, s94, 10
        s_add_u32 s95, s95, s94
        s_add_u32 s95, s95, s93
        ''')
        for j in range(2):
            d=8
            if AC is not None:
                n=bb*2+j; r=AC+n*4; d=r
                a(f'v_cvt_pk_bf16_f32 v{d}, v{r}, v{r+1}\nv_cvt_pk_bf16_f32 v{d+1}, v{r+2}, v{r+3}')
                a(f'v_mov_b64 v[{d+2}:{d+3}], v[{8+2*n}:{9+2*n}]')
            a(f'buffer_store_dwordx4 v[{d}:{d+3}], v4, s[20:23], s95 offen offset:{3072*j} sc1')
def s_xload(a):
    a(f'''
    v_and_b32 v4, 15, v0
    v_lshlrev_b32 v4, 1, v4
    s_lshr_b32 s92, s83, 1
    s_lshl_b32 s92, s92, 6
    s_and_b32 s93, s83, 1
    s_add_u32 s92, s92, s93
    v_add_u32 v4, s92, v4
    v_mul_u32_u24 v4, 1152, v4
    v_lshrrev_b32 v5, 4, v0
    v_lshl_add_u32 v4, v5, 3, v4
    s_mul_i32 s92, s33, 288
    v_add_u32 v4, s92, v4
    v_add_u32 v5, {32*1152}, v4
    ''')
    for bb in range(9):
        for j in range(2):
            n=bb*2+j
            a(f'global_load_dwordx2 a[{2*n}:{2*n+1}], v{4+j}, s[88:89] offset:{bb*32}')
def s_flag_setup(a):
    a(f'''
    v_min_u32 v4, 11, v0
    v_lshrrev_b32 v5, 2, v4
    v_lshlrev_b32 v5, 7, v5
    v_bfe_u32 v241, v4, 1, 1
    v_lshl_add_u32 v5, v241, 5, v5
    v_and_b32 v4, 1, v4
    v_lshl_add_u32 v241, v4, 2, v5
    s_lshr_b32 s24, s83, 2
    s_mul_i32 s24, s24, 384
    s_bfe_u32 s95, s83, 0x10001
    s_lshl_b32 s95, s95, 6
    s_add_u32 s24, s24, s95
    s_and_b32 s95, s83, 1
    s_lshl_b32 s95, s95, 3
    s_add_u32 s24, s24, s95
    s_add_u32 s24, s24, {FLG_OFF+16}
    s_cmp_eq_u32 s33, 0
    s_cselect_b32 s24, s24, {OOB}
    ''')

def c_loop(a):
    def hook(pos):
        if pos==5: return [f'buffer_load_dword v{V_FL}, v{V_FA}, s[20:23], s26 offen sc1'.replace('buffer_load','buffer_LOAD')]
        if pos==3: return ['@CHK', 'buffer_store_dword v255, off, s[20:23], s25 sc1', f's_mov_b32 s25, {OOB}']
        return []
    def em(x):
        if x=='@CHK':
            a('s_cmp_eq_u32 s27, 0\ns_cbranch_scc1 K_C_sk\ns_add_u32 s6, s67, s27')
            vchk(a,'s26','s6','C'); a('s_mov_b32 s27, 3\nK_C_sk:')
        else: a(x.replace('buffer_LOAD','buffer_load'))
    a('C_loop:')
    for pos,slot in enumerate(ORDER):
        ps=(slot-1)%NS
        extra=hook(pos)+prefetch(ps)
        free=[(t,i) for t in range(24) for i in range(2) if (i==0 or (t%2==0 and t!=18)) and (t,i)>=(0,1)]
        nv=[k for k,x in enumerate(extra) if x.startswith('buffer_load')]
        first=nv[0]
        tgt={k:int(first+n_*(len(free)-1-first)/(len(nv)-1)) for n_,k in enumerate(nv)}
        idx=[None]*len(extra); nxt=len(free)
        for k in range(len(extra)-1,-1,-1):
            want=min(tgt.get(k,nxt-1),nxt-1); idx[k]=want; nxt=want
        cur=-1
        for k in range(len(extra)):
            idx[k]=max(idx[k],cur+1); cur=idx[k]
        assert cur<len(free)
        place={free[idx[k]]:x for k,x in enumerate(extra)}
        nbefore=sum(1 for k in nv if free[idx[k]]<(18,1))
        pend=None
        for t in range(24):
            ks,b_=t//12,t%12; w=C_WF[t%6]
            for i in range(2):
                D=C_ACC+(b_*2+i)*4; h=pos*16+(ks*2+i)*4
                a(f'v_mfma_f32_16x16x32_bf16 {vr(D,4)}, {vr(w,4)}, {ar(h,4)}, {vr(D,4)}')
                if i==0:
                    if pend: a(pend); pend=None
                    if (t,i) in place: em(place[(t,i)])
                else:
                    tn=t+6
                    if tn==24: a(f's_waitcnt vmcnt({26+nbefore})\ns_barrier')
                    s2=slot if tn<24 else (slot+1)%NS
                    if t%2==1: a('s_waitcnt lgkmcnt(6)')
                    a(c_rd(s2,tn%24,0)); pend=c_rd(s2,tn%24,1)
                    if (t,i) in place: em(place[(t,i)])
        a(pend)
        if pos==2: a('s_cmp_eq_u32 s82, 3\ns_cbranch_scc1 C_done')
        if pos==5: a('s_mov_b32 s75, s76\ns_mov_b32 s76, s77\ns_sub_u32 s82, s82, 6\ns_cmp_eq_u32 s82, 0\ns_cbranch_scc0 C_loop')
    a('C_done:')
    for sl in range(5): a(f's_add_u32 s{76+sl}, s97, {sl*4*3072}')

def c_finish(a):
    T=C_T
    st(a,10)
    a(f'''
    v_min_u32 v{T+1}, 4, v0
    v_add_u32 v{T+1}, 1, v{T+1}
    v_xor_b32 v{T+2}, s69, v{T+1}
    v_cmp_gt_u32 vcc, 4, v{T+1}
    s_nop 1
    v_cndmask_b32 v{T+1}, v{T+1}, v{T+2}, vcc
    v_lshlrev_b32 v{V_FA}, 2, v{T+1}
    ''')
    for j in (1,2,3):
        for l in range(3):
            be=l*4+j; D=C_RX+((j-1)*3+l)*4
            for i in range(2):
                A=C_ACC+(be*2+i)*4
                a(f'v_cvt_pk_bf16_f32 v{D+2*i}, v{A}, v{A+1}\nv_cvt_pk_bf16_f32 v{D+2*i+1}, v{A+2}, v{A+3}')
            a(f'buffer_store_dwordx4 v[{D}:{D+3}], v{C_LV}, s[20:23], s{93+j} offen offset:{l*1024} sc1')
    a('s_cmp_eq_u32 s68, 0\ns_cbranch_scc1 C_sent')
    for l in range(3):
        be=l*4; D=32+l*4
        for i in range(2):
            A=C_ACC+(be*2+i)*4
            a(f'v_cvt_pk_bf16_f32 v{D+2*i}, v{A}, v{A+1}\nv_cvt_pk_bf16_f32 v{D+2*i+1}, v{A+2}, v{A+3}')
        a(f'buffer_store_dwordx4 v[{D}:{D+3}], v{C_LV}, s[20:23], s97 offen offset:{l*1024} sc1')
    a(f'v_mov_b32 v{T}, s39\ns_waitcnt vmcnt(0)\nbuffer_store_dword v{T}, off, s[20:23], s63 sc1\ns_branch C_fin')
    a('C_sent:')
    def R(l,sl): return (C_RX+(l*3+sl-1)*4) if sl in (1,2,3) else (32+(l*2+(sl//4))*4)
    a(f'''
    buffer_load_dword v{T+2}, v{V_FA}, s[20:23], s62 offen sc1
    v_mov_b32 v{T}, s39
    s_waitcnt vmcnt(1)
    buffer_store_dword v{T}, off, s[20:23], s63 sc1
    s_waitcnt vmcnt(1)
    ''')
    st(a,11)
    vpoll(a,'x',T+2,V_FA,'s62',sleep=OPT['psl'],first_loaded=True)
    for l in range(3):
        for sl in range(5):
            r=R(l,sl)
            a(f'buffer_load_dwordx4 v[{r}:{r+3}], v{C_LV}, s[20:23], s{76+sl} offen offset:{l*1024} sc1')
    st(a,12)
    a('v_mov_b32 v4, s40\nv_mov_b32 v5, s40')
    for l in range(3):
        a(f's_waitcnt vmcnt({10-3*l})')
        A0=C_ACC+(l*4)*2*4
        t=16; u=64; y=72
        def unp(dst,r):
            for k in range(4): a(f'v_lshlrev_b32 v{dst+2*k}, 16, v{r+k}\nv_and_b32 v{dst+2*k+1}, s41, v{r+k}')
        for sl in (1,2,3):
            d=t if sl!=2 else 24
            unp(d,R(l,sl))
            for k in range(4): a(f'v_pk_add_f32 v[{A0+2*k}:{A0+2*k+1}], v[{A0+2*k}:{A0+2*k+1}], v[{d+2*k}:{d+2*k+1}]')
        for k in range(4): a(f'v_pk_mul_f32 v[{t+2*k}:{t+2*k+1}], v[{A0+2*k}:{A0+2*k+1}], v[4:5]')
        for e in range(8): a(f'v_exp_f32 v{t+e}, v{t+e}')
        unp(u,R(l,0))
        for k in range(4): a(f'v_pk_add_f32 v[{t+2*k}:{t+2*k+1}], v[{t+2*k}:{t+2*k+1}], 1.0 op_sel_hi:[1,0]')
        for e in range(8): a(f'v_rcp_f32 v{t+e}, v{t+e}')
        unp(y,R(l,4))
        for k in range(4): a(f'v_pk_mul_f32 v[{u+2*k}:{u+2*k+1}], v[{u+2*k}:{u+2*k+1}], v[{A0+2*k}:{A0+2*k+1}]')
        for k in range(4): a(f'v_pk_fma_f32 v[{y+2*k}:{y+2*k+1}], v[{t+2*k}:{t+2*k+1}], v[{u+2*k}:{u+2*k+1}], v[{y+2*k}:{y+2*k+1}]')
        x=R(l,4)
        for k in range(4): a(f'v_cvt_pk_bf16_f32 v{x+k}, v{y+2*k}, v{y+2*k+1}')
        for i in range(2): a(f'global_store_dwordx2 v{C_OA+i}, v[{x+2*i}:{x+2*i+1}], s[90:91] offset:{l*128}')
    a('C_fin:')
    st(a,13); st(a,31,rt=True)

def light_after_att(a):
    T=C_T
    a(f'''
    s_lshr_b32 s92, s83, 2
    s_lshl_b32 s92, s92, 7
    s_and_b32 s93, s83, 3
    s_lshl_b32 s93, s93, 2
    s_add_u32 s93, s93, s33
    s_lshl_b32 s93, s93, 2
    s_add_u32 s92, s92, s93
    s_add_u32 s92, s92, {OFL_OFF}
    v_mov_b32 v{T}, s39
    s_barrier
    s_cmp_eq_u32 s68, 2
    s_cbranch_scc1 L_flag
    s_mov_b32 s94, s78
    ''')
    for k in range(2):
        for x in prefetch(ORDER[k],'s94','W'): a(x)
    a(f'''
    s_waitcnt vmcnt(12)
    L_flag:
    s_cmp_eq_u32 s68, 2
    s_cbranch_scc0 L_f2
    s_waitcnt vmcnt(0)
    L_f2:
    buffer_store_dword v{T}, off, s[20:23], s92 sc1
    s_cmp_eq_u32 s68, 2
    s_cbranch_scc1 L_xf
    ''')
    for k in range(2,5):
        for x in prefetch(ORDER[k],'s94','W'): a(x)
    a(f'''
    s_lshl_b32 s93, s57, 7
    s_lshr_b32 s94, s33, 1
    s_lshl_b32 s94, s94, 5
    s_add_u32 s93, s93, s94
    s_and_b32 s94, s33, 1
    s_lshl_b32 s94, s94, 3
    s_add_u32 s93, s93, s94
    s_add_u32 s93, s93, {OFL_OFF}
    v_and_b32 v{T+1}, 1, v0
    v_bfe_u32 v{T+2}, v0, 1, 1
    v_lshlrev_b32 v{T+1}, 2, v{T+1}
    v_lshl_add_u32 v{T+1}, v{T+2}, 4, v{T+1}
    ''')
    for x in c_addr_items(): a(x)
    for r in range(0,96,2): a(f'v_mov_b64 v[{C_ACC+r}:{C_ACC+r+1}], 0')
    vpoll(a,'o',T+2,T+1,'s93',sleep=1)
    for k in range(5):
        for x in prefetch(ORDER[k],'s78','H'): a(x)
    a('s_waitcnt vmcnt(0)\ns_barrier')
def x_forward(a):
    T=C_T
    a(f'''
    L_xf:
    s_lshr_b32 s57, s83, 3
    s_lshl_b32 s57, s57, 1
    s_and_b32 s93, s83, 1
    s_add_u32 s57, s57, s93
    s_lshl_b32 s92, s57, 2
    s_add_u32 s92, s92, s33
    s_mul_i32 s92, s92, 36864
    s_add_u32 s94, s88, s92
    s_addc_u32 s95, s89, 0
    s_mul_i32 s93, s33, 36864
    s_mov_b32 s82, 36
    L_xl:
    s_mov_b32 m0, s93
    s_add_u32 s93, s93, 1024
    global_load_lds_dwordx4 v{C_LV}, s[94:95]
    s_add_u32 s94, s94, 1024
    s_addc_u32 s95, s95, 0
    s_sub_u32 s82, s82, 1
    s_cmp_lg_u32 s82, 0
    s_cbranch_scc1 L_xl
    v_and_b32 v4, 7, v0
    v_lshlrev_b32 v4, 1, v4
    v_bfe_u32 v5, v0, 3, 1
    v_add_u32 v4, v4, v5
    v_mul_u32_u24 v4, 1152, v4
    v_lshrrev_b32 v5, 4, v0
    v_lshl_add_u32 v4, v5, 3, v4
    s_mul_i32 s93, s33, 36864
    v_add_u32 v4, s93, v4
    s_mul_i32 s92, s57, {3*XT}
    s_add_u32 s92, s92, s72
    s_add_u32 s92, s92, {X_OFF+4*4*3072}
    v_min_u32 v5, 2, v0
    v_lshlrev_b32 v5, 7, v5
    s_mul_i32 s24, s57, 384
    s_lshl_b32 s93, s33, 5
    s_add_u32 s24, s24, s93
    s_add_u32 s24, s24, {FLG_OFF+20}
    s_waitcnt vmcnt(0)
    ''')
    for B in range(36):
        d=8+4*B
        a(f'ds_read_b64 v[{d}:{d+1}], v4 offset:{B*32}\nds_read_b64 v[{d+2}:{d+3}], v4 offset:{B*32+18432}')
    a('s_waitcnt lgkmcnt(0)')
    for ct in range(3):
        for r in range(4):
            a(f's_add_u32 s93, s92, {ct*XT+r*XD}')
            for l in range(3):
                d=8+4*(ct*12+l*4+r)
                a(f'buffer_store_dwordx4 v[{d}:{d+3}], v{C_LV}, s[20:23], s93 offen offset:{l*1024} sc1')
    a(f's_waitcnt vmcnt(0)\nbuffer_store_dword v{T}, v5, s[20:23], s24 offen sc1\ns_branch C_fin')

LNS=147456
def ln_loads(a):
    a(f'''
    s_lshl_b32 s35, s30, 2
    s_add_u32 s35, s35, s31
    s_lshr_b32 s36, s35, 1
    s_lshl_b32 s37, s32, 4
    s_add_u32 s36, s36, s37
    s_and_b32 s37, s35, 1
    s_lshl_b32 s38, s36, 4
    s_add_u32 s38, s38, s37
    v_and_b32 v79, 7, v0
    v_lshl_add_u32 v77, v79, 1, s38
    v_mul_u32_u24 v80, 1152, v77
    v_lshrrev_b32 v81, 3, v0
    v_lshl_add_u32 v77, v81, 4, v80
    s_mul_i32 s38, s33, 384
    s_mov_b32 s94, {2048*1152}
    s_mov_b32 s95, 0x20000
    s_waitcnt lgkmcnt(0)
    s_cmp_eq_u32 s33, 3
    s_cbranch_scc1 LN_nold
    buffer_load_dwordx4 v[64:67], v77, s[92:95], s38 offen
    buffer_load_dwordx4 v[68:71], v77, s[92:95], s38 offen offset:128
    buffer_load_dwordx4 v[72:75], v77, s[92:95], s38 offen offset:256
    s_add_u32 s38, s38, 384
    s_cmp_eq_u32 s38, 1152
    s_cselect_b32 s38, 0, s38
    buffer_load_dwordx4 v[120:123], v77, s[92:95], s38 offen
    buffer_load_dwordx4 v[124:127], v77, s[92:95], s38 offen offset:128
    buffer_load_dwordx4 v[128:131], v77, s[92:95], s38 offen offset:256
    s_add_u32 s38, s38, 384
    s_cmp_eq_u32 s38, 1152
    s_cselect_b32 s38, 0, s38
    buffer_load_dwordx4 v[132:135], v77, s[92:95], s38 offen
    buffer_load_dwordx4 v[136:139], v77, s[92:95], s38 offen offset:128
    buffer_load_dwordx4 v[140:143], v77, s[92:95], s38 offen offset:256
    LN_nold:
    s_mul_i32 s36, s36, 18432
    s_lshl_b32 s37, s37, 7
    s_add_u32 s36, s36, s37
    s_mul_i32 s37, s33, 6144
    s_add_u32 s96, s36, s37
    s_add_u32 s97, s96, 4096
    v_lshlrev_b32 v78, 8, v81
    v_lshl_add_u32 v78, v79, 4, v78
    s_lshl_b32 s6, s32, 5
    s_add_u32 s6, s6, s35
    s_lshl_b32 s6, s6, 2
    s_add_u32 s6, s6, s33
    s_lshl_b32 s6, s6, 2
    s_add_u32 s6, s6, {XFL_OFF}
    ''')
def ln_compute(a,nyoung):
    E=96
    a('v_mov_b32 v76, 0x3f803f80')
    a('s_waitcnt vmcnt(6)')
    regs=list(range(64,76))+list(range(120,144))
    for k,r in enumerate(regs):
        if k==12:
            for g in range(3):
                for i in range(4):
                    rr=64+4*g+i; e=E+8*g+2*i
                    a(f'v_lshlrev_b32 v{e}, 16, v{rr}\nv_and_b32 v{e+1}, s41, v{rr}')
            a('s_waitcnt vmcnt(0)')
        s_,q_=82+(k&1)*2,83+(k&1)*2
        a(f'v_dot2_f32_bf16 v{s_}, v{r}, v76, {"0" if k<2 else "v%d"%s_}')
        a(f'v_dot2_f32_bf16 v{q_}, v{r}, v{r}, {"0" if k<2 else "v%d"%q_}')
    a('s_nop 2\nv_add_f32 v82, v82, v84\nv_add_f32 v83, v83, v85\ns_nop 1')
    a('v_add_f32_dpp v82, v82, v82 row_ror:8 row_mask:0xf bank_mask:0xf\nv_add_f32_dpp v83, v83, v83 row_ror:8 row_mask:0xf bank_mask:0xf')
    for sw in ('v_permlane16_swap_b32','v_permlane32_swap_b32'):
        a(f'v_mov_b32 v84, v82\nv_mov_b32 v85, v83\ns_nop 1\n{sw} v82, v84\n{sw} v83, v85\ns_nop 1\nv_add_f32 v82, v82, v84\nv_add_f32 v83, v83, v85')
    a('''
    v_mul_f32 v82, 0x3ae38e39, v82
    v_mul_f32 v83, 0x3ae38e39, v83
    v_fma_f32 v83, -v82, v82, v83
    v_max_f32 v83, 0, v83
    ''')
    def rb(r): a(f'v_cvt_pk_bf16_f32 v{r}, v{r}, v{r}\nv_lshlrev_b32 v{r}, 16, v{r}')
    rb(82); rb(83)
    a('v_add_f32 v83, 0x3727c5ac, v83'); rb(83)
    a('v_sqrt_f32 v83, v83\ns_nop 0'); rb(83)
    a('v_rcp_f32 v83, v83\ns_nop 0')
    def norm(g):
        for i in range(4):
            e=E+8*g+2*i
            a(f'v_sub_f32 v{e}, v{e}, v82\nv_sub_f32 v{e+1}, v{e+1}, v82')
        for i in range(4):
            e=E+8*g+2*i
            a(f'v_cvt_pk_bf16_f32 v{e}, v{e}, v{e+1}')
        for i in range(4):
            e=E+8*g+2*i
            a(f'v_and_b32 v{e+1}, s41, v{e}\nv_lshlrev_b32 v{e}, 16, v{e}')
        for i in range(4):
            e=E+8*g+2*i
            a(f'v_mul_f32 v{e}, v{e}, v83\nv_mul_f32 v{e+1}, v{e+1}, v83')
        for i in range(4):
            e=E+8*g+2*i
            a(f'v_cvt_pk_bf16_f32 v{64+4*g+i}, v{e}, v{e+1}')
    norm(0)
    a('buffer_store_dwordx4 v[64:67], v78, s[20:23], s96 offen sc1')
    norm(1)
    a('buffer_store_dwordx4 v[68:71], v78, s[20:23], s96 offen offset:2048 sc1')
    norm(2)
    a('buffer_store_dwordx4 v[72:75], v78, s[20:23], s97 offen sc1')

def gen_kf(a):
    a(kernel_header(NAME))
    T=V_T
    T0=' nt' if OPT['t0nt'] else ''
    a('''
    s_cmp_ge_u32 s2, 256
    s_cbranch_scc1 KF_end
    s_load_dwordx2 s[92:93], s[0:1], 0
    s_load_dwordx2 s[4:5], s[0:1], 8
    s_load_dwordx4 s[8:11], s[0:1], 32
    s_load_dwordx2 s[20:21], s[0:1], 72
    s_load_dwordx2 s[28:29], s[0:1], 64
    s_load_dwordx2 s[88:89], s[0:1], 16
    s_load_dwordx2 s[90:91], s[0:1], 48
    s_memrealtime s[24:25]
    v_lshrrev_b32 v1, 6, v0
    v_and_b32 v0, 63, v0
    s_bfe_u32 s30, s2, 0x20001
    s_lshl_b32 s30, s30, 1
    s_bfe_u32 s31, s2, 0x10005
    s_add_u32 s30, s30, s31
    s_bfe_u32 s31, s2, 0x20003
    s_and_b32 s32, s2, 1
    s_lshl_b32 s32, s32, 2
    s_lshr_b32 s3, s2, 6
    s_add_u32 s32, s32, s3
    v_readfirstlane_b32 s33, v1
    s_mov_b32 s22, 0x10000000
    s_mov_b32 s23, 0x20000
    s_mov_b32 s40, 0xbfb8aa3b
    s_mov_b32 s41, 0xffff0000
    ''')
    ln_loads(a)
    a(f"""
    v_mov_b32 v2, 0
    s_or_b32 s3, s2, s33
    s_cmp_lg_u32 s3, 0
    s_cbranch_scc1 KF_noep
    s_and_b32 s24, s24, 0xfffffffc
    s_max_u32 s24, s24, 4
    v_mov_b32 v3, s24
    global_store_dword v2, v3, s[28:29] sc1
    KF_noep:
    """)
    st(a,30,True); st(a,0)
    a(f"""
    s_lshl_b32 s66, s33, 10
    s_mul_i32 s62, s30, 3
    s_add_u32 s62, s62, s31
    s_lshl_b32 s62, s62, 7
    s_add_u32 s64, s30, 44
    s_lshl_b32 s64, s64, 6
    s_cmp_lt_u32 s31, 3
    s_cselect_b32 s63, 1, 0
    s_cmp_lt_u32 s30, 6
    s_cbranch_scc1 KF_qok
    s_lshl_b32 s62, s30, 1
    s_add_u32 s62, s62, s31
    s_add_u32 s64, s62, 36
    s_lshl_b32 s64, s64, 6
    s_add_u32 s62, s62, 6
    s_lshl_b32 s62, s62, 7
    s_cmp_lt_u32 s31, 2
    s_cselect_b32 s63, 1, 0
    KF_qok:
    s_cmp_eq_u32 s63, 1
    s_cselect_b32 s62, s62, s64
    s_cselect_b32 s67, 3, 1
    s_mov_b32 s64, s63
    s_mov_b32 s65, 0
    s_mul_i32 s36, s30, 1152
    s_lshl_b32 s37, s31, 8
    s_add_u32 s37, s37, s36
    s_lshl_b32 s38, s31, 6
    s_add_u32 s38, s38, s36
    s_add_u32 s38, s38, 896
    s_add_u32 s16, s8, s37
    s_addc_u32 s17, s9, 0
    s_add_u32 s18, s10, s37
    s_addc_u32 s19, s11, 0
    v_bfe_u32 v{T+1}, v0, 1, 2
    v_bfe_u32 v{T+2}, v0, 4, 1
    v_xor_b32 v{T+1}, v{T+1}, v{T+2}
    v_and_b32 v{T+2}, 1, v0
    v_lshlrev_b32 v{T+2}, 4, v{T+2}
    v_lshrrev_b32 v{T}, 3, v0
    s_add_u32 s60, s4, s62
    s_addc_u32 s61, s5, 0
    """)
    for jj in range(4):
        a(f"""
        v_add_u32 v152, {8*jj}, v{T}
        v_xor_b32 v153, {2*(jj&1)}, v{T+1}
        v_mul_u32_u24 v{144+jj}, 9216, v152
        v_lshl_add_u32 v{144+jj}, v153, 5, v{144+jj}
        v_add_u32 v{144+jj}, v{144+jj}, v{T+2}
        v_and_b32 v153, s67, v153
        v_mul_u32_u24 v{148+jj}, 3456, v152
        v_lshl_add_u32 v{148+jj}, v153, 5, v{148+jj}
        v_add_u32 v{148+jj}, v{148+jj}, v{T+2}
        """)
    a(f"""
    s_cmp_eq_u32 s33, 3
    s_cbranch_scc0 KF_lnw
    s_mov_b32 s94, s60
    s_mov_b32 s95, s61
    s_mov_b32 s92, s16
    s_mov_b32 s93, s17
    """)
    if OPT['tlb']:
        sh=OPT['tlb']
        a(f"""
        s_load_dwordx2 s[96:97], s[0:1], 56
        v_lshlrev_b32 v64, {sh}, v0
        v_min_u32 v65, {0x3006000}, v64
        buffer_load_dword v{V_DUM}, v65, s[20:23], 0 offen
        v_min_u32 v65, {5308416-4}, v64
        global_load_dword v{V_DUM}, v65, s[90:91]
        global_load_dword v{V_DUM}, v65, s[8:9]
        global_load_dword v{V_DUM}, v65, s[10:11]
        v_min_u32 v66, {663552-4}, v64
        global_load_dword v{V_DUM}, v66, s[88:89]
        v_min_u32 v66, {2359296-4}, v64
        s_waitcnt lgkmcnt(0)
        global_load_dword v{V_DUM}, v66, s[96:97]
        """)
    def wloop(lab,end):
        a(f'{lab}:')
        for jj in range(4):
            a(f's_add_u32 m0, s35, {jj*1024}\ns_nop 0\nglobal_load_lds_dwordx4 v{144+jj}, s[92:93]')
            a(f's_add_u32 m0, s35, {HALF+jj*1024}\ns_nop 0\nglobal_load_lds_dwordx4 v{148+jj}, s[94:95]')
        a(f"""
        s_add_u32 s92, s92, 294912
        s_addc_u32 s93, s93, 0
        s_add_u32 s94, s94, 110592
        s_addc_u32 s95, s95, 0
        s_add_u32 s35, s35, 4096
        s_waitcnt vmcnt({OPT['w3q']})
        s_cmp_lt_u32 s35, {end}
        s_cbranch_scc1 {lab}
        """)
    a(f"""
    s_mov_b32 s35, 0
    s_getpc_b64 s[24:25]
    KF_pc:
    s_sub_u32 s24, s24, KF_pc-{NAME}
    s_subb_u32 s25, s25, 0
    s_lshr_b32 s3, s2, 3
    s_lshl_b32 s3, s3, 4
    v_and_b32 v4, 15, v0
    v_add_u32 v4, s3, v4
    v_lshlrev_b32 v4, 7, v4
    v_min_u32 v4, KF_last-{NAME}, v4
    v_mov_b32 v5, 0
    v_lshl_add_u64 v[4:5], v[4:5], 0, s[24:25]
    s_and_b32 s3, s32, 3
    s_mul_i32 s3, s3, 144
    v_add_u32 v72, s3, v0
    v_min_u32 v74, 15, v0
    v_add_u32 v74, s3, v74
    v_mul_u32_u24 v73, 9216, v72
    v_mul_u32_u24 v72, 3456, v72
    v_mul_u32_u24 v75, 9216, v74
    v_mul_u32_u24 v74, 3456, v74
    global_load_dword v{V_DUM}, v73, s[92:93]{T0}
    global_load_dword v{V_DUM}, v72, s[94:95]{T0}
    v_add_u32 v73, {64*9216}, v73
    v_add_u32 v72, {64*3456}, v72
    v_add_u32 v75, {128*9216}, v75
    v_add_u32 v74, {128*3456}, v74
    global_load_dword v{V_DUM}, v73, s[92:93]{T0}
    global_load_dword v{V_DUM}, v72, s[94:95]{T0}
    global_load_dword v{V_DUM}, v75, s[92:93]{T0}
    global_load_dword v{V_DUM}, v74, s[94:95]{T0}
    global_load_dword v{V_DUM}, v[4:5], off
    s_waitcnt vmcnt({OPT['w3w']})
    """)
    wloop('KF_w3',OPT['W3N']*4096)
    a(f"""
    s_mov_b32 s6, {OOB}
    s_branch KF_join
    KF_lnw:
    """)
    ln_compute(a,0)
    st(a,16)
    a('KF_join:')
    a('v_mov_b32 v2, 0\nglobal_load_dword v3, v2, s[28:29] sc1')
    a(f"""
    s_lshl_b32 s35, s33, 3
    v_add_u32 v{T}, s35, v{T}
    s_and_b32 s35, s33, 1
    s_lshl_b32 s35, s35, 1
    v_xor_b32 v{T+1}, s35, v{T+1}
    v_mul_u32_u24 v{T+4}, 9216, v{T}
    v_add_u32 v{T+4}, v{T+4}, v{T+2}
    v_mov_b32 v{T+5}, 0
    v_lshl_add_u32 v{T+8}, v{T+1}, 5, v{T+4}
    v_mov_b32 v{T+9}, 0
    s_mov_b32 s100, 294912
    s_mov_b32 s101, 0
    s_add_u32 s12, s16, 128
    s_addc_u32 s13, s17, 0
    v_lshl_add_u64 v[{V_DA}:{V_DA+1}], v[{T+8}:{T+9}], 0, s[12:13]
    v_lshl_add_u64 v[{V_UA}:{V_UA+1}], v[{T+8}:{T+9}], 0, s[18:19]
    s_and_b32 s3, s32, 3
    s_lshl_b32 s3, s3, 2
    s_add_u32 s3, s3, s33
    s_mul_i32 s3, s3, 36
    v_min_u32 v{V_TR}, 35, v0
    v_add_u32 v{V_TR}, s3, v{V_TR}
    v_mul_u32_u24 v{V_TR}, 9216, v{V_TR}
    s_lshl_b32 s34, s32, 4
    s_lshl_b32 s35, s33, 2
    s_add_u32 s34, s34, s35
    s_mul_i32 s35, s34, 18432
    v_lshlrev_b32 v{T}, 4, v0
    v_add_u32 v{V_XO}, s35, v{T}
    v_add_u32 v{V_XO+1}, 18432, v{V_XO}
    v_add_u32 v{V_XO+2}, 36864, v{V_XO}
    v_add_u32 v{V_XO+3}, 55296, v{V_XO}
    s_mul_i32 s35, s34, 147456
    v_add_u32 v{V_HST}, s35, v{T}
    s_sub_u32 s58, s10, s8
    s_subb_u32 s59, s11, s9
    s_sub_u32 s58, s58, 5308416
    s_subb_u32 s59, s59, 0
    s_add_u32 s12, s8, s38
    s_addc_u32 s13, s9, 0
    s_add_u32 s14, s10, s38
    s_addc_u32 s15, s11, 0
    v_and_b32 v{T+3}, 1, v{T+1}
    v_lshl_add_u32 v{T+4}, v{T+3}, 5, v{T+4}
    v_lshl_add_u64 v[{V_ZA}:{V_ZA+1}], v[{T+4}:{T+5}], 0, s[12:13]
    v_lshl_add_u64 v[{T+12}:{T+13}], v[{T+4}:{T+5}], 0, s[14:15]
    v_cmp_lt_u32 vcc, 1, v{T+1}
    s_nop 1
    v_cndmask_b32 v{V_ZA}, v{V_ZA}, v{T+12}, vcc
    v_cndmask_b32 v{V_ZA+1}, v{V_ZA+1}, v{T+13}, vcc
    """)
    for g in range(5): a(f's_mov_b32 s{52+g}, {XN_OFF+g*4096}')
    c_roles_scalar(a)
    a(f"""
    s_mov_b32 s3, 0
    KF_ep:
    s_waitcnt vmcnt(0)
    v_readfirstlane_b32 s67, v3
    s_add_u32 s3, s3, 1
    s_cmp_gt_u32 s3, {OPT['SPIN']}
    s_cbranch_scc1 KF_epok
    s_cmp_lg_u32 s67, 0
    s_cbranch_scc1 KF_epok
    global_load_dword v3, v2, s[28:29] sc1
    s_branch KF_ep
    KF_epok:
    s_add_u32 s39, s67, 1
    v_mov_b32 v3, s39
    buffer_store_dword v3, off, s[20:23], s6 sc1
    """)
    st(a,1)
    nper=(18-OPT['W3N'])//3
    if nper:
        a(f"""
        s_cmp_eq_u32 s33, 3
        s_cbranch_scc1 KF_now
        s_mul_i32 s3, s33, {nper}
        s_add_u32 s3, s3, {OPT['W3N']}
        s_lshl_b32 s35, s3, 12
        s_add_u32 s36, s35, {nper*4096}
        s_mul_i32 s37, s3, 294912
        s_add_u32 s92, s16, s37
        s_addc_u32 s93, s17, 0
        s_mul_i32 s37, s3, 110592
        s_add_u32 s94, s60, s37
        s_addc_u32 s95, s61, 0
        """)
        wloop('KF_wl','s36')
        a('KF_now:')
    a(f'''
    v_lshrrev_b32 v{T}, 4, v0
    v_bfe_u32 v{T+1}, v0, 2, 2
    v_lshl_add_u32 v{T+2}, v{T}, 3, v{T+1}
    v_lshlrev_b32 v{T+2}, 7, v{T+2}
    v_lshrrev_b32 v{T+1}, 1, v{T+1}
    v_and_b32 v{T}, 1, v{T}
    v_lshl_or_b32 v{T+1}, v{T}, 1, v{T+1}
    v_and_b32 v{T+3}, 3, v0
    ''')
    for b in range(4):
        a(f'''
        v_xor_b32 v{T+4}, {b}, v{T+1}
        v_lshl_add_u32 v{T+4}, v{T+4}, 5, v{T+2}
        v_lshl_add_u32 v{V_BN+b}, v{T+3}, 3, v{T+4}
        v_mov_b32 v{V_AD+b}, v{V_BN+b}
        ''')
    for u in range(2):
        a(f'''
        v_lshrrev_b32 v{T+4}, 1, v{T+3}
        v_add_u32 v{T+4}, {2*u}, v{T+4}
        v_xor_b32 v{T+4}, v{T+4}, v{T+1}
        v_lshl_add_u32 v{T+4}, v{T+4}, 5, v{T+2}
        v_and_b32 v{T+5}, 1, v{T+3}
        v_lshl_add_u32 v{T+4}, v{T+5}, 4, v{T+4}
        v_add_u32 v{V_NB+2*u}, {HALF}, v{T+4}
        v_add_u32 v{V_NB+2*u+1}, {HALF+8}, v{T+4}
        ''')
    a(f'''
    v_and_b32 v{T}, 7, v0
    s_lshl_b32 s35, s34, 3
    v_add_u32 v{T}, s35, v{T}
    v_bfe_u32 v{T+1}, v0, 3, 1
    v_lshl_add_u32 v{T}, v{T+1}, 10, v{T}
    v_mul_u32_u24 v{T}, 3456, v{T}
    v_lshrrev_b32 v{T+1}, 4, v0
    v_lshl_add_u32 v{V_QST}, v{T+1}, 4, v{T}
    s_mul_i32 s35, s30, 18
    s_lshl_b32 s42, s31, 2
    s_add_u32 s35, s35, s42
    s_lshl_b32 s35, s35, 10
    s_add_u32 s44, s35, {H_OFF}
    s_add_u32 s45, s44, 147456
    s_add_u32 s46, s44, 294912
    s_add_u32 s47, s44, 442368
    s_add_u32 s48, s62, {QKV_OFF}
    s_add_u32 s49, s48, 27648
    s_add_u32 s50, s48, 55296
    s_add_u32 s51, s48, 82944
    s_lshl_b32 s24, s32, 5
    s_lshl_b32 s3, s30, 2
    s_add_u32 s24, s24, s3
    s_add_u32 s24, s24, s31
    s_lshl_b32 s24, s24, 2
    s_add_u32 s24, s24, {QFL_OFF}
    s_cmp_eq_u32 s33, 0
    s_cselect_b32 s24, s24, {OOB}
    s_lshl_b32 s25, s32, 2
    s_add_u32 s25, s25, s33
    s_lshl_b32 s25, s25, 5
    s_add_u32 s25, s25, s3
    s_add_u32 s25, s25, s31
    s_lshl_b32 s25, s25, 2
    s_add_u32 s25, s25, {HFL_OFF}
    s_and_b32 s26, s57, 1
    s_lshl_b32 s26, s26, 1
    s_lshr_b32 s3, s33, 1
    s_add_u32 s26, s26, s3
    s_lshl_b32 s3, s32, 2
    s_add_u32 s26, s26, s3
    s_lshl_b32 s26, s26, 7
    s_lshl_b32 s3, s69, 5
    s_add_u32 s26, s26, s3
    s_add_u32 s26, s26, {HFL_OFF}
    s_cmp_eq_u32 s68, 0
    s_cselect_b32 s27, 2, 0
    s_and_b32 s28, s57, 7
    s_mul_i32 s28, s28, 3
    s_add_u32 s28, s28, s31
    s_lshl_b32 s28, s28, 2
    s_add_u32 s28, s28, s33
    s_mul_i32 s28, s28, {108*128}
    s_mul_i32 s3, s69, {1152*1152}
    s_add_u32 s28, s28, s3
    s_and_b32 s3, s83, 7
    s_lshl_b32 s3, s3, 2
    s_add_u32 s3, s3, s33
    s_mul_i32 s3, s3, {162*128}
    s_cmp_eq_u32 s68, 0
    s_cselect_b32 s28, s28, s3
    s_add_u32 s28, s28, 2048
    s_add_u32 s29, s28, 16384
    s_cmp_eq_u32 s68, 0
    s_cselect_b32 s29, {OOB}, s29
    s_lshl_b32 s6, s32, 2
    s_add_u32 s6, s6, s33
    s_lshl_b32 s6, s6, 7
    s_add_u32 s6, s6, {XFL_OFF}
    v_and_b32 v{T}, 3, v0
    v_min_u32 v{T}, 2, v{T}
    v_and_b32 v{T+1}, 28, v0
    v_add_u32 v{T}, v{T}, v{T+1}
    v_lshlrev_b32 v{T}, 2, v{T}
    ''')
    a(f'''
    v_lshrrev_b32 v{T+2}, 4, v0
    v_mul_u32_u24 v{T+2}, 18432, v{T+2}
    v_and_b32 v{T+3}, 15, v0
    v_lshl_add_u32 v{T+2}, v{T+3}, 7, v{T+2}
    s_bfe_u32 s3, s2, 0x30003
    s_lshl_b32 s3, s3, 11
    s_mul_i32 s35, s34, 18432
    s_add_u32 s3, s3, s35
    s_add_u32 s3, s3, {XN_OFF+2048}
    v_add_u32 v{T+2}, s3, v{T+2}
    ''')
    a(f'''
    s_load_dwordx2 s[88:89], s[0:1], 0
    s_load_dwordx2 s[90:91], s[0:1], 56
    s_mul_i32 s92, s70, {XT}
    s_add_u32 s92, s92, s72
    s_add_u32 s92, s92, {X_OFF}
    s_mul_i32 s97, s69, {XD}
    s_add_u32 s97, s97, s92
    s_lshl_b32 s62, s70, 2
    s_add_u32 s62, s62, s33
    s_lshl_b32 s62, s62, 5
    s_add_u32 s62, s62, {FLG_OFF}
    s_lshl_b32 s63, s69, 2
    s_add_u32 s63, s63, s62
    ''')
    for j in (1,2,3):
        a(f's_xor_b32 s{93+j}, s69, {j}\ns_mul_i32 s{93+j}, s{93+j}, {XD}\ns_add_u32 s{93+j}, s{93+j}, {j*4*3072}\ns_add_u32 s{93+j}, s{93+j}, s92')
    a('s_waitcnt lgkmcnt(0)')
    a('''
    s_add_u32 s60, s16, 128
    s_addc_u32 s61, s17, 0
    s_add_u32 s4, s18, 128
    s_addc_u32 s5, s19, 0
    s_cmp_eq_u32 s68, 0
    s_cselect_b64 s[60:61], s[60:61], s[12:13]
    s_cselect_b64 s[4:5], s[4:5], s[14:15]
    ''')
    vpoll(a,'xn',T+1,T,'s6')
    st(a,2)
    vm=VM()
    for g in range(OPT['FD0']):
        for it in grp_x(g): a(it[0]); vm.issue(it[2])
    if OPT['xt']:
        a(f'buffer_load_dword v{V_DUM}, v{T+2}, s[20:23], 0 offen sc1'); vm.issue('t')
    a('s_mov_b64 vcc, s[64:65]')
    a('s_barrier')
    for sl in range(8):
        w,ad=(V_SG+sl*4,V_NB+sl) if sl<4 else (V_WF+(sl-4)*4,V_AD+sl-4)
        a(f'ds_read_b64_tr_b16 v[{w}:{w+1}], v{ad} offset:0')
        a(f'ds_read_b64_tr_b16 v[{w+2}:{w+3}], v{ad} offset:512')
    a(f's_waitcnt vmcnt({vm.wait_n("g0")})')
    st(a,3)
    bodyF(a,vm)
    a('s_cbranch_vccz KF_noq2\ns_nop 1')
    for s in flat(ch_epiQ(V_ACC[1],2,64)[0]): a(s)
    a('KF_noq2:')
    st(a,4)
    zset=f'''
    s_mov_b32 s43, 1
    v_mov_b32 v{V_DA}, v{V_ZA}
    v_mov_b32 v{V_DA+1}, v{V_ZA+1}
    v_mov_b32 v{V_NB}, v{V_BN}
    v_mov_b32 v{V_NB+1}, v{V_BN+1}
    v_add_u32 v{V_NB+2}, 4096, v{V_BN}
    v_add_u32 v{V_NB+3}, 4096, v{V_BN+1}
    '''
    a(f'''
    s_mov_b32 s43, 0
    v_mov_b32 v{V_ONE}, s39
    v_min_u32 v15, 35, v0
    v_lshlrev_b32 v15, 7, v15
    v_mov_b32 v{V_NB}, v{V_BN}
    v_mov_b32 v{V_NB+1}, v{V_BN+1}
    v_mov_b32 v{V_NB+2}, v{V_BN+2}
    v_mov_b32 v{V_NB+3}, v{V_BN+3}
    s_cmp_eq_u32 s68, 0
    s_cbranch_scc1 KF_loop
    ''')
    a(zset)
    a('KF_loop:\ns_sub_u32 m0, s66, 4096')
    wt=[f'buffer_load_dword v{V_DUM}, v15, s[84:87], s28 offen',f's_add_u32 s28, s28, {36*128}']
    ty=[(100,120,[f'global_load_dword v{V_DUM}, v{V_TR}, s[12:13]',f'global_load_dword v{V_DUM}, v{V_TR}, s[14:15]']),(200,210,wt)]
    body(a,VM(),1,ch_epiG(V_ACC[0]),mid=True,seqs=ty)
    a(f'''
    s_cmp_lg_u32 s43, 0
    s_cbranch_scc1 KF_z
    v_lshl_add_u64 v[{V_DA}:{V_DA+1}], v[{V_DA}:{V_DA+1}], 0, s[58:59]
    v_add_u32 v{V_NB}, {HALF}, v{V_BN}
    v_add_u32 v{V_NB+1}, {HALF}, v{V_BN+1}
    v_add_u32 v{V_NB+2}, {HALF}, v{V_BN+2}
    v_add_u32 v{V_NB+3}, {HALF}, v{V_BN+3}
    ''')
    clr=[f'buffer_store_dwordx4 v[96:99], v{C_LV}, s[20:23], s{93+j} offen offset:{l*1024} sc1' for j in (1,2,3) for l in range(3)]
    xt=[f'global_load_dword v{V_DUM}, v{C_OA+i}, s[88:89] offset:{l*128}' for l in range(3) for i in range(2)]
    st(a,5)
    tx=[(100,110,wt)]
    body(a,VM(),0,ch_epiU(V_ACC[1]),pace=True,epilo=OPT['XEPI'],seqs=tx+[(140,280,c_roles_vector())])
    st(a,6)
    a('''
    s_add_u32 s44, s44, 2048
    s_add_u32 s45, s45, 2048
    s_add_u32 s46, s46, 2048
    s_add_u32 s47, s47, 2048
    s_mov_b32 s24, s25
    ''')
    a(zset)
    a('s_branch KF_loop\nKF_z:')
    st(a,7)
    a('s_cmp_eq_u32 s68, 0\ns_cbranch_scc0 KF_zl')
    a(f'''
    s_mov_b32 s6, s78
    s_mov_b32 s24, s62
    v_min_u32 v{V_FA}, 7, v0
    v_lshlrev_b32 v{V_FA}, 2, v{V_FA}
    v_add_u32 v{V_ONE}, 1, v{V_ONE}
    v_add_u32 v255, 1, v{V_ONE}
    ''')
    pw=[];ph=[]
    for k in range(3): pw+=[x for x in prefetch(ORDER[k],'s6','W') if x!='s_nop 0']
    for k in range(5): ph+=prefetch(ORDER[k],'s78','H')
    zero=[f'v_mov_b64 v[{r}:{r+1}], 0' for r in range(96,192,2)]
    vmz=VM()
    bodyZ(a,vmz,[(60,61,['@FLD']),(62,150,pw),(152,270,['@CHK8']+ph),(2,60,zero[2:16]),(146,286,c_addr_items()+zero[:2]+zero[16:]),(OPT['g2'],OPT['g2']+1,['@G2'])])
    st(a,8)
    a('s_nop 4')
    z_tail(a)
    nH=[k for k,t in enumerate(vmz.ops)]
    a(f'buffer_load_dword v{V_FL}, v{V_FA}, s[20:23], s26 offen sc1')
    a('s_waitcnt vmcnt(17) lgkmcnt(0)\ns_barrier')
    for t in range(6): a(c_rd(ORDER[0],t,0)); a(c_rd(ORDER[0],t,1))
    for k in (3,4):
        for x in prefetch(ORDER[k],'s6','W'): a(x)
    a('s_waitcnt lgkmcnt(0)\ns_branch C_go')
    a('KF_zl:')
    for x in c_roles_vector(): a(x)
    a(f'''
    s_lshr_b32 s26, s83, 3
    s_max_u32 s26, s26, 1
    s_sub_u32 s26, s26, 1
    s_lshl_b32 s26, s26, 7
    s_add_u32 s26, s26, {QFL_OFF}
    v_lshlrev_b32 v253, 2, v0
    s_lshr_b32 s3, s83, 3
    s_cmp_eq_u32 s3, 0
    s_movk_i32 s3, 255
    s_cselect_b32 s3, 127, s3
    v_and_b32 v253, s3, v253
    s_and_b32 s92, s83, 1
    s_lshl_b32 s92, s92, 10
    s_lshr_b32 s93, s83, 1
    s_lshl_b32 s93, s93, 5
    s_add_u32 s92, s92, s93
    s_mul_i32 s92, s92, 3456
    s_add_u32 s92, s92, {QKV_OFF-7*3456}
    s_add_u32 s92, s92, s66
    s_add_u32 s93, s92, 86400
    ''')
    ql=['@QP']
    for n in range(22):
        ql+=[f's_add_u32 m0, s66, {HALF+n*4096}', f'buffer_load_dwordx4 v{C_LV}, s[20:23], s92 offen sc1 lds', 's_add_u32 s92, s92, 4096']
    bodyZ(a,VM(),[(OPT['ql'],OPT['ql']+1,['@QL']),(OPT['qp'],280,ql)])
    a('s_barrier')
    for n in range(12):
        a(f's_add_u32 m0, s66, {n*4096}\ns_nop 0\nbuffer_load_dwordx4 v{C_LV}, s[20:23], s93 offen sc1 lds\ns_add_u32 s93, s93, 4096')
    z_tail(a)
    a(f'v_add_u32 v255, 2, v{V_ONE}')
    st(a,8)
    def wq():
        a('s_waitcnt vmcnt(0)\nbuffer_store_dword v255, off, s[20:23], s25 sc1\ns_barrier'); st(a,14)
        a('v_lshlrev_b32 v5, 7, v0\ns_sub_u32 s28, s29, 8192\ns_sub_u32 s27, s29, 16384')
        for r in ('s27','s28','s29'): a(f'buffer_load_dword v240, v5, s[84:87], {r} offen')
    attention(a,wq,(25,HALF,0))
    st(a,15)
    light_after_att(a)
    a(f'''
    s_mov_b32 s25, {OOB}
    s_mov_b32 s27, 0
    v_mov_b32 v{V_FA}, 0
    s_mul_i32 s97, s70, {XT}
    s_add_u32 s97, s97, s72
    s_add_u32 s97, s97, {X_OFF}
    s_add_u32 s94, s97, {XD}
    s_add_u32 s95, s97, {2*XD}
    s_add_u32 s96, s97, {3*XD}
    s_add_u32 s63, s62, 16
    ''')
    for t in range(6): a(c_rd(ORDER[0],t,0)); a(c_rd(ORDER[0],t,1))
    a('s_waitcnt lgkmcnt(8)\ns_branch C_go')
    x_forward(a)
    a('C_go:')
    st(a,9)
    c_loop(a)
    c_finish(a)
    a('KF_end:\nKF_last:\ns_endpgm')
    return kernel_desc(NAME,512,102,256)

def build():
    a=Asm()
    hdr=open('recurrent_scan__sliding_local_dilated__swiglu_ffn__prompt.s.ref').read().split('\n')
    head=[l for l in hdr if l.startswith(';') and '@launch' not in l]
    d=gen_kf(a)
    s='\n'.join(head)+'\n; @launch grid=(256,1,1) block=(256,1,1) lds=163840\n'
    s+='.amdgcn_target "amdgcn-amd-amdhsa--gfx950"\n.text\n'+a.text()
    s+='.section .rodata,"a"\n.p2align 6\n'+d
    return s
if __name__=='__main__':
    for o in sys.argv[2:]:
        if '=' in o:
            k,v=o.split('='); OPT[k]=int(v)
        else: OPT[o]=True
    open(sys.argv[1],'w').write(build())
```

```python
import sys
from asmlib import *

NAME='recurrent_scan__sliding_local_dilated__swiglu_ffn__prompt_kernel'
XN_OFF=0; O_OFF=0x240000; QKV_OFF=0x480000; H_OFF=0xB40000; X_OFF=0x1D40000; XD=5*4*3072; XT=4*XD
FLG_OFF=0x3000000; OFL_OFF=FLG_OFF+0x2000; HFL_OFF=FLG_OFF+0x3000; QFL_OFF=FLG_OFF+0x4000; XFL_OFF=FLG_OFF+0x5000
PROF_OFF=0x8000000
OOB=0x7ffff000
OPT=dict(prof=False, FD=7, MIDKS=11, XEPI=80, SPIN=20000, tu0=0, tg1=5, tu1=10, w3q=40, FD0=3, t0nt=0, w3w=63, xt=1, W3N=6, g2=235, psl=2, tlb=0, ql=60, qp=130)
STF=' sc1'
HALF=73728
V_AD=2; V_NB=6; V_DA=10; V_DUM=12; V_TR=13; V_HST=14; V_QST=15; V_WF=16; V_SG=32; V_ACC=(64,128); V_X=192; V_T=224
V_BN=240; V_ZA=244; V_QA=246; V_UA=248; V_XO=252; V_ONE=254
S_DI='s[100:101]'; S_QI='s[4:5]'
C_AD=[6,7,8,9,10,11,13,15,240,241,242,243]; C_WF=[16,20,24,28,64,68]; C_ACC=96; C_RX=192; C_XV=72; C_T=2
C_DV=246; C_HV=249; C_LV=251; C_OA=252
STG=24576; NS=6; ORDER=[3,4,5,0,1,2]
LAM_H=[0,2,4,6,9,11,13,15,1,3,5,10,12,14,7,8,16,17]; LAM_S=list(range(9))

def st(a,i,rt=False):
    if OPT.get('dbg') is not None and OPT.get('dbg') is not False:
        m={30:1,16:2,1:3,2:4,3:5,4:6,5:7,6:8,7:9,8:10,9:11,10:12,11:13,12:14,13:15,14:7,15:8}
        if i not in m: return
        lab=a.label('DB')
        a(f'''
        s_cmp_lg_u32 s33, 0
        s_cbranch_scc1 {lab}
        s_cmp_lg_u32 s2, {OPT['dbg']}
        s_cbranch_scc1 {lab}
        s_memrealtime s[98:99]
        s_waitcnt lgkmcnt(0)
        v_mov_b32 v1, s98
        s_load_dwordx2 s[98:99], s[0:1], 64
        s_waitcnt lgkmcnt(0)
        s_mov_b64 exec, 1
        global_store_dword v0, v1, s[98:99] offset:{4*m[i]}
        s_mov_b64 exec, -1
        {lab}:
        ''')
        return
    if not OPT['prof'] and not (OPT.get('span') and i>=30): return
    if OPT.get('rtp'): rt=True
    a(f'''
    {"s_memrealtime" if rt else "s_memtime"} s[98:99]
    s_waitcnt lgkmcnt(0)
    v_mov_b32 v1, s98
    s_lshl_b32 s98, s2, 7
    s_add_u32 s98, s98, {PROF_OFF+4*i}
    s_cmp_eq_u32 s33, 0
    s_cselect_b32 s98, s98, {OOB}
    buffer_store_dword v1, off, s[20:23], s98
    ''')

class VM:
    def __init__(self): self.ops=[]
    def issue(self,t): self.ops.append(t)
    def wait_n(self,tag):
        idx=max(i for i,t in enumerate(self.ops) if t==tag)
        return min(63,len(self.ops)-1-idx)

class Sched:
    def __init__(self,nm,cap=2):
        self.nm=nm; self.cap=cap
        self.fill=[[] for _ in range(nm)]; self.post=[[] for _ in range(nm)]; self.pre=[[] for _ in range(nm+1)]
        self.load=[0]*nm; self.tail=[]
    def add_post(self,m,ins,cost=1):
        m=min(m,self.nm-1); self.post[m].append(ins); self.load[m]+=cost
    def add_pre(self,m,ins,cost=1):
        self.pre[m].append(ins)
        if m>0: self.load[m-1]+=cost
    def add_fill(self,m,item):
        self.fill[m].append(item); self.load[m]+=item[1]
    def chains(self,chains,lo,hi,nq,pace=False):
        total=sum(x[1] for c in chains for p in c for x in p)
        free=sum(max(0,self.cap-self.load[m]) for m in range(lo,hi))
        over=max(0,total-int(free*0.97))
        stt=[[0,0,-1] for _ in chains]; done=[None]*len(chains)
        placed=0; ov=0.0; m=lo
        while any(d is None for d in done):
            mm=min(m,self.nm-1)
            capl=self.cap-self.load[mm]
            ov+=over/(hi-lo)
            if ov>=1: capl+=1; ov-=1
            if m>=hi: capl=max(capl,3)
            if pace and over==0 and m<hi:
                capl=min(capl,int(total*(m-lo+1)/(hi-lo)-placed+0.999))
            while capl>0:
                cands=[]
                for k,c in enumerate(chains):
                    if done[k] is not None: continue
                    if k>=nq and (done[k-nq] is None or done[k-nq]>m-2): break
                    ph,ix,pg=stt[k]
                    if ix==0 and pg>=m: continue
                    cands.append(k)
                pick=None
                if capl>=2:
                    for k in cands:
                        if chains[k][stt[k][0]][stt[k][1]][1]>=2: pick=k;break
                if pick is None:
                    for k in cands:
                        if chains[k][stt[k][0]][stt[k][1]][1]<=capl: pick=k;break
                if pick is None: break
                ph,ix,pg=stt[pick]; it=chains[pick][ph][ix]
                if m<self.nm: self.fill[mm].append(it); self.load[mm]+=it[1]
                else: self.tail.append(it)
                capl-=it[1]; placed+=it[1]; ix+=1
                if ix==len(chains[pick][ph]):
                    ph+=1; ix=0; pg=m
                    if ph==len(chains[pick]): done[pick]=m
                stt[pick]=[ph,ix,pg]
            m+=1
            assert m<hi+400
        return m
    def seq(self,lo,hi,L):
        n=len(L); m=lo; nm=self.nm
        for k,x in enumerate(L):
            m=max(m,lo+int(k*(hi-lo)/n))
            lim=max(m,lo+int((k+1)*(hi-lo)/n)-1)
            if m>=nm: self.tail.append((x,1,'x') if x.startswith(('buffer','global')) else (x,1)); continue
            best=min(range(m,min(lim,nm-1)+1),key=lambda g:(self.load[g],g))
            if x.startswith('@'): self.add_post(best,x,2)
            elif x.startswith(('buffer','global')): self.add_fill(best,(x,1,'x'))
            else: self.add_fill(best,(x,1))
            m=best+1
    def emit(self,a,vm,mfma,lds_init,special):
        lds=list(lds_init)
        def out(s):
            nonlocal lds
            if s.startswith('WAITL'):
                need=int(s[5:].split(':')[0]); slack=int(s.split(':')[1]) if ':' in s else 0
                c=[i for i,x in enumerate(lds) if x<=need]
                if c:
                    idx=max(c); n=max(0,len(lds)-1-idx-slack)
                    a(f's_waitcnt lgkmcnt({min(n,15)})'); lds=lds[idx+1:]
            elif s.startswith('@'): special(s[1:])
            else:
                if ';tag=' in s:
                    s,t=s.split(';tag='); lds.append(int(t))
                a(s)
        for s in self.pre[0]: out(s)
        for m in range(self.nm):
            a(mfma(m))
            items=[(f[0],f[2] if len(f)>2 else None) for f in self.fill[m]]+[(s,None) for s in self.post[m]]
            late=[s for s in self.pre[m+1] if s.startswith('@')]
            waits=[s for s in self.pre[m+1] if not s.startswith('@')]
            nv=[x for x in items if not x[0].startswith('v_')]; va=[x for x in items if x[0].startswith('v_')]
            if not late:
                for s in waits: out(s)
            for x in nv+va:
                out(x[0])
                if x[1]: vm.issue(x[1])
            if late:
                for s in late+waits: out(s)
        for f in self.tail:
            out(f[0])
            if len(f)>2: vm.issue(f[2])

def xreg(i,ks):
    if ks<16: return ar((ks*4+i)*4,4)
    return vr(V_X+((ks-16)*4+i)*4,4)

def ch_epiG(acc):
    ch=[]; n=0
    for b in range(4):
        for i in range(4):
            A=acc+(b*4+i)*4; T=V_T+(n%4)*4; n+=1; S=V_SG+(b*4+i)*2
            ch.append([[(f'v_mul_f32 v{T+r}, s40, v{A+r}',1) for r in range(4)],
              [(f'v_exp_f32 v{T+r}, v{T+r}',2) for r in range(4)],
              [(f'v_add_f32 v{T+r}, 1.0, v{T+r}',1) for r in range(4)],
              [(f'v_rcp_f32 v{T+r}, v{T+r}',2) for r in range(4)],
              [(f'v_mul_f32 v{T+r}, v{T+r}, v{A+r}',1) for r in range(4)],
              [(f'v_cvt_pk_bf16_f32 v{S}, v{T}, v{T+1}',1),(f'v_cvt_pk_bf16_f32 v{S+1}, v{T+2}, v{T+3}',1)]])
    return ch,4
def ch_epiU(acc):
    ch=[]; n=0
    for p in range(2):
        for i in range(4):
            T=V_T+(n%2)*8; n+=1; p1=[];p2=[]
            for hb in range(2):
                b=2*p+hb; A=acc+(b*4+i)*4; S=V_SG+(b*4+i)*2; t=T+4*hb
                p1+=[(f'v_lshlrev_b32 v{t}, 16, v{S}',1),(f'v_and_b32 v{t+1}, s41, v{S}',1),
                     (f'v_lshlrev_b32 v{t+2}, 16, v{S+1}',1),(f'v_and_b32 v{t+3}, s41, v{S+1}',1)]
                p2+=[(f'v_mul_f32 v{t+r}, v{t+r}, v{A+r}',1) for r in range(4)]
            p3=[(f'v_cvt_pk_bf16_f32 v{T+j}, v{T+2*j}, v{T+2*j+1}',1) for j in range(4)]
            p4=[(f'buffer_store_dwordx4 v[{T}:{T+3}], v{V_HST}, s[20:23], s{44+i} offen offset:{p*1024}{STF}',2,'st')]
            ch.append([p1,p2,p3,p4])
    return ch,2
def ch_epiQ(acc,b0,coff):
    ch=[]
    for i in range(4):
        D=V_T+i*4; p1=[]
        for hb in range(2):
            A=acc+((b0+hb)*4+i)*4
            p1+=[(f'v_cvt_pk_bf16_f32 v{D+2*hb}, v{A}, v{A+1}',1),(f'v_cvt_pk_bf16_f32 v{D+2*hb+1}, v{A+2}, v{A+3}',1)]
        ch.append([p1,[(f'buffer_store_dwordx4 v[{D}:{D+3}], v{V_QST}, s[20:23], s{48+i} offen offset:{coff}{STF}',2,'st')]])
    return ch,4
def flat(ch):
    out=[]
    for p in range(max(len(c) for c in ch)):
        for c in ch:
            if p<len(c): out+=[x[0] for x in c[p]]
    return out
def epiZ_tail(a,acc):
    a(f'''
    s_mul_i32 s35, s30, 18
    s_lshr_b32 s42, s31, 1
    s_add_u32 s35, s35, s42
    s_add_u32 s35, s35, 16
    s_lshl_b32 s35, s35, 10
    s_and_b32 s42, s31, 1
    s_lshl_b32 s42, s42, 3
    s_add_u32 s35, s35, s42
    s_add_u32 s44, s35, {H_OFF}
    s_add_u32 s45, s44, 147456
    s_add_u32 s46, s44, 294912
    s_add_u32 s47, s44, 442368
    ''')
    ch=[]
    for i in range(4):
        Gr=acc+i*4; U=acc+(4+i)*4; T=V_T+i*4; D=V_SG+2*i
        ch.append([[(f'v_mul_f32 v{T+r}, s40, v{Gr+r}',1) for r in range(4)],
          [(f'v_exp_f32 v{T+r}, v{T+r}',2) for r in range(4)],
          [(f'v_add_f32 v{T+r}, 1.0, v{T+r}',1) for r in range(4)],
          [(f'v_rcp_f32 v{T+r}, v{T+r}',2) for r in range(4)],
          [(f'v_mul_f32 v{T+r}, v{T+r}, v{Gr+r}',1) for r in range(4)],
          [(f'v_cvt_pk_bf16_f32 v{T}, v{T}, v{T+1}',1),(f'v_cvt_pk_bf16_f32 v{T+2}, v{T+2}, v{T+3}',1)],
          [(f'v_and_b32 v{T+1}, s41, v{T}',1),(f'v_lshlrev_b32 v{T}, 16, v{T}',1),(f'v_and_b32 v{T+3}, s41, v{T+2}',1),(f'v_lshlrev_b32 v{T+2}, 16, v{T+2}',1)],
          [(f'v_mul_f32 v{T+r}, v{T+r}, v{U+r}',1) for r in range(4)],
          [(f'v_cvt_pk_bf16_f32 v{D}, v{T}, v{T+1}',1),(f'v_cvt_pk_bf16_f32 v{D+1}, v{T+2}, v{T+3}',1)],
          [(f'buffer_store_dwordx2 v[{D}:{D+1}], v{V_HST}, s[20:23], s{44+i} offen{STF}',2,'st')]])
    for s in flat(ch): a(s)

def chk8(a,off,thr,lab):
    a(f's_mov_b32 s3, 0\nK_{lab}_c:\ns_waitcnt lgkmcnt(0)')
    for i in range(8): a(f's_sub_u32 s{88+i}, s{88+i}, {thr}')
    a(f'''
    s_max_u32 s88, s88, s89
    s_max_u32 s90, s90, s91
    s_max_u32 s92, s92, s93
    s_max_u32 s94, s94, s95
    s_max_u32 s88, s88, s90
    s_max_u32 s92, s92, s94
    s_max_u32 s88, s88, s92
    s_cmp_le_u32 s88, 2
    s_cbranch_scc1 K_{lab}_ok
    s_add_u32 s3, s3, 1
    s_cmp_gt_u32 s3, {OPT['SPIN']}
    s_cbranch_scc1 K_{lab}_ok
    s_load_dwordx8 s[88:95], s[20:21], {off} glc
    s_branch K_{lab}_c
    K_{lab}_ok:
    ''')
V_FL=245; V_FA=244
def vchk(a,off,thr,lab):
    a(f'''
    v_subrev_u32 v{V_FL}, {thr}, v{V_FL}
    v_cmp_lt_u32 vcc, 2, v{V_FL}
    s_mov_b32 s3, 0
    s_cbranch_vccz K_{lab}_ok
    K_{lab}_c:
    buffer_load_dword v{V_FL}, v{V_FA}, s[20:23], {off} offen sc1
    s_add_u32 s3, s3, 1
    s_cmp_gt_u32 s3, {OPT['SPIN']}
    s_cbranch_scc1 K_{lab}_ok
    s_waitcnt vmcnt(0)
    v_subrev_u32 v{V_FL}, {thr}, v{V_FL}
    v_cmp_lt_u32 vcc, 2, v{V_FL}
    s_nop 0
    s_cbranch_vccnz K_{lab}_c
    K_{lab}_ok:
    ''')
def vpoll(a,lab,vdst,vaddr,soff,sleep=0,first_loaded=False):
    a('s_mov_b32 s3, 0')
    if first_loaded: a(f's_branch P_{lab}_t')
    a(f'''
    P_{lab}:
    s_add_u32 s3, s3, 1
    s_cmp_gt_u32 s3, {OPT['SPIN']}
    s_cbranch_scc1 P_{lab}_ok
    buffer_load_dword v{vdst}, v{vaddr}, s[20:23], {soff} offen sc1
    s_waitcnt vmcnt(0)
    P_{lab}_t:
    v_cmp_ne_u32 vcc, s39, v{vdst}
    s_nop 1
    s_cmp_eq_u64 vcc, 0
    s_cbranch_scc1 P_{lab}_ok
    ''')
    if sleep: a(f's_sleep {sleep}')
    a(f's_branch P_{lab}\nP_{lab}_ok:')

def body(a,vm,accset,epi,kind='full',dma=True,last=False,mid=False,seqs=(),pace=True,cap=2,epilo=1):
    acc=V_ACC[accset]; ns=72 if kind=='full' else 36; nm=ns*4
    S=Sched(nm,cap)
    step=4096 if kind=='full' else 8192; midg=9 if kind=='full' else 5
    def rd_off(t):
        g=t//4
        return (g*step if g<midg else (g-midg)*step), g>=midg
    for t in range(ns):
        m0=t*4
        if t%2==0: S.add_pre(m0,f'WAITL{min(t+1,ns-1)}')
        tn=t+4; w=V_WF+(t%4)*4; ad=V_AD+(t%4)
        if tn<ns:
            off,hi=rd_off(tn); _,hip=rd_off(t)
            if hi and not hip: S.add_post(m0+1,f'v_add_u32 v{ad}, {midg*step}, v{ad}')
            S.add_post(m0+3,f'ds_read_b64_tr_b16 v[{w}:{w+1}], v{ad} offset:{off};tag={tn}')
            S.add_post(m0+4,f'ds_read_b64_tr_b16 v[{w+2}:{w+3}], v{ad} offset:{off+512};tag={tn}')
        elif not last:
            S.add_post(m0+1,f'v_mov_b32 v{ad}, v{V_NB+(t%4)}')
            if tn==ns: S.add_post(m0+2,'@SUB',2)
            S.add_post(m0+3,f'ds_read_b64_tr_b16 v[{w}:{w+1}], v{ad} offset:0;tag={tn}')
            S.add_post(m0+4,f'ds_read_b64_tr_b16 v[{w+2}:{w+3}], v{ad} offset:512;tag={tn}')
    if dma:
        for n in range(18):
            m=(n//3)*16+(n%3)*5+1
            S.add_fill(m,('s_add_u32 m0, m0, 4096',1))
            S.add_fill(m+1,(f'global_load_lds_dwordx4 v[{V_DA}:{V_DA+1}], off',1,'dma'))
            S.add_fill(m+1,(f'v_lshl_add_u64 v[{V_DA}:{V_DA+1}], v[{V_DA}:{V_DA+1}], 0, {S_DI}',1))
    if mid: S.add_post(OPT['MIDKS']*16+1,'@MID',3)
    endm=0
    if epi: endm=S.chains(epi[0],epilo,nm-6,epi[1],pace=pace)
    for lo,hi,L in seqs:
        S.seq(endm+1 if lo=='epi' else lo,hi,L)
    def mf(m):
        t=m//4;i=m%4
        ks,b=(t//4,t%4) if kind=='full' else (t//2,t%2)
        D=acc+(b*4+i)*4; w=V_WF+(t%4)*4
        return f'v_mfma_f32_16x16x32_bf16 {vr(D,4)}, {vr(w,4)}, {xreg(i,ks)}, {"0" if ks==0 else vr(D,4)}'
    def special(n):
        if n=='SUB': a(f's_waitcnt vmcnt({vm.wait_n("dma")})\ns_barrier')
        elif n=='MID':
            a(f's_waitcnt vmcnt({min(63,len(vm.ops))})\ns_barrier')
            a(f'buffer_store_dword v{V_ONE}, off, s[20:23], s24 sc1'); vm.issue('fl')
        elif n=='CHK8': chk8(a,'s26','s39','Zh')
    S.emit(a,vm,mf,[0,0,1,1,2,2,3,3],special)

def grp_w(g):
    return [(f's_add_u32 m0, s66, {g*4096}',1),
       (f'global_load_lds_dwordx4 v[{V_DA}:{V_DA+1}], off',1,f'g{g}'),
       (f's_add_u32 m0, s66, {HALF+g*4096}',1),
       (f'v_lshl_add_u64 v[{V_DA}:{V_DA+1}], v[{V_DA}:{V_DA+1}], 0, {S_DI}',1),
       (f'global_load_lds_dwordx4 v[{V_QA}:{V_QA+1}], off',1,f'g{g}'),
       (f'v_lshl_add_u64 v[{V_QA}:{V_QA+1}], v[{V_QA}:{V_QA+1}], 0, {S_QI}',1)]
def grp_x(g):
    return [(f'buffer_load_dwordx4 {xreg(i,g)}, v{V_XO+i}, s[20:23], s{52+g//4} offen offset:{(g%4)*1024} sc1',1,f'g{g}') for i in range(4)]
def u0_items(g):
    return [(f's_add_u32 m0, s66, {HALF+g*4096}',1),
            (f'global_load_lds_dwordx4 v[{V_UA}:{V_UA+1}], off',1,f'u{g}'),
            (f'v_lshl_add_u64 v[{V_UA}:{V_UA+1}], v[{V_UA}:{V_UA+1}], 0, {S_DI}',1)]

def bodyF(a,vm):
    FD=OPT['FD']; nm=18*32; nxt=OPT['FD0']
    S=Sched(nm)
    def regs(sl):
        if sl<4: return V_SG+sl*4, V_NB+sl, V_ACC[1]+sl*16
        return V_WF+(sl-4)*4, V_AD+(sl-4), V_ACC[0]+(sl-4)*16
    for ks in range(18):
        for sl in range(8):
            t=ks*8+sl; m0=t*4; w,ad,_=regs(sl)
            if sl==2: S.add_pre(m0,f'@SKIP{ks}')
            if sl==4: S.pre[m0].append(f'@LAB{ks}')
            if sl%2==0: S.add_pre(m0,f'WAITL{t+1}:4')
            kn=ks+1
            m2=m0+4 if sl not in (1,3) else m0+3
            if kn<18:
                if kn==9: S.add_post(m0+1,f'v_add_u32 v{ad}, 36864, v{ad}')
                off=(kn%9)*4096
                S.add_post(m0+3,f'ds_read_b64_tr_b16 v[{w}:{w+1}], v{ad} offset:{off};tag={t+8}')
                S.add_post(m2,f'ds_read_b64_tr_b16 v[{w+2}:{w+3}], v{ad} offset:{off+512};tag={t+8}')
            elif sl>=4:
                S.add_post(m0+1,f'v_add_u32 v{ad}, {HALF}, v{V_BN+sl-4}')
                if sl==4: S.add_post(m0+2,'@SUB',2)
                S.add_post(m0+3,f'ds_read_b64_tr_b16 v[{w}:{w+1}], v{ad} offset:0;tag={t+8}')
                S.add_post(m2,f'ds_read_b64_tr_b16 v[{w+2}:{w+3}], v{ad} offset:512;tag={t+8}')
        base=ks*32
        if ks<17: S.add_post(base+30,f'@READY{ks+1}',1)
        if ks%3==0 and 0<ks<17: S.add_post(base+1,'s_barrier',1)
        mand=[base+2,base+4,base+5,base+6]+[base+16+j for j in (0,1,2,4,5,6,8,9,10,12,13)]
        items=[]
        for _ in range(2):
            if nxt<18 and nxt<=ks+FD: items+=grp_x(nxt); nxt+=1
        if len(items)<=4: mand=[base+2,base+5]+[base+16+j for j in (0,2,4,6,8,10,12)]
        if 3<=ks<17: items=items[:2]+u0_items(ks-3)+items[2:] if len(items)>=2 else u0_items(ks-3)
        if ks==OPT['tu0']: items+=[(f'global_load_dword v{V_DUM}, v{V_TR}, s[18:19]',1,'t')]
        if ks==OPT['tg1']: items+=[(f'global_load_dword v{V_DUM}, v{V_TR}, s[60:61]',1,'t')]
        if ks==OPT['tu1']: items+=[(f'global_load_dword v{V_DUM}, v{V_TR}, s[4:5]',1,'t')]
        if ks<17:
            for j,it in enumerate(items): S.add_fill(mand[j],it)
        else:
            for j,it in enumerate(u0_items(14)): S.add_fill(base+2+j,it)
            for j,it in enumerate(u0_items(15)+u0_items(16)+u0_items(17)): S.add_fill(base+16+4+j,it)
    ch,nq=ch_epiQ(V_ACC[1],0,0)
    S.chains(ch,17*32+18,nm,nq)
    def mf(m):
        t=m//4;i=m%4;ks=t//8;sl=t%8
        w,_,ac=regs(sl); D=ac+i*4
        return f'v_mfma_f32_16x16x32_bf16 {vr(D,4)}, {vr(w,4)}, {xreg(i,ks)}, {"0" if ks==0 else vr(D,4)}'
    def special(n):
        if n.startswith('SKIP'): a(f's_cbranch_vccz KF_s{n[4:]}')
        elif n.startswith('LAB'): a(f'KF_s{n[3:]}:')
        elif n.startswith('READY'): a(f's_waitcnt vmcnt({vm.wait_n("g"+n[5:])})')
        elif n=='SUB': a(f's_waitcnt vmcnt({vm.wait_n("u%d"%OPT["MIDKS"])})\ns_barrier')
    S.emit(a,vm,mf,[t for t in range(8) for _ in range(2)],special)

def lamword(seq,start):
    w=0
    for k in range(6): w|=(seq[start+k] if start+k<len(seq) else 31)<<(5*k)
    return w
def c_roles_scalar(a):
    a(f'''
    s_and_b32 s92, s2, 1
    s_bfe_u32 s69, s2, 0x20001
    s_bfe_u32 s93, s2, 0x20003
    s_bfe_u32 s94, s2, 0x10005
    s_lshr_b32 s95, s2, 6
    s_lshl_b32 s95, s95, 1
    s_add_u32 s95, s95, s94
    s_lshl_b32 s57, s92, 3
    s_add_u32 s57, s57, s95
    s_mov_b32 s68, 0
    s_mov_b32 s83, 0
    s_mov_b32 s7, 147456
    s_mul_i32 s73, s69, {18*64*1152}
    s_mul_i32 s74, s69, {18*2048}
    s_add_u32 s74, s74, {H_OFF}
    s_mov_b32 s86, {4608*1152+2048}
    s_mov_b32 s75, {lamword(LAM_H,5)}
    s_mov_b32 s76, {lamword(LAM_H,11)}
    s_mov_b32 s77, {lamword(LAM_H,17)}
    s_mov_b32 s78, {lamword(LAM_H,0)}
    s_mov_b32 s82, 18
    s_cmp_lt_u32 s93, 3
    s_cbranch_scc1 C_rh
    s_lshl_b32 s57, s92, 2
    s_add_u32 s57, s57, s69
    s_lshl_b32 s83, s57, 3
    s_add_u32 s83, s83, s95
    s_lshl_b32 s57, s57, 1
    s_cmp_ge_u32 s95, 3
    s_cselect_b32 s94, 1, 0
    s_add_u32 s57, s57, s94
    s_mul_i32 s94, s94, 3
    s_sub_u32 s93, s95, s94
    s_cmp_lt_u32 s95, 6
    s_cselect_b32 s68, 1, 2
    s_cselect_b32 s93, s93, 0
    s_mov_b32 s69, 0
    s_mov_b32 s7, 18432
    s_mov_b32 s73, 0
    s_mov_b32 s74, {O_OFF}
    s_mov_b32 s86, {576*1152+2048}
    s_mov_b32 s75, {lamword(LAM_S,5)}
    s_mov_b32 s76, {lamword(LAM_S,11)}
    s_mov_b32 s77, {lamword(LAM_S,17)}
    s_mov_b32 s78, {lamword(LAM_S,0)}
    s_mov_b32 s82, 9
    s_mov_b32 s90, s88
    s_mov_b32 s91, s89
    C_rh:
    s_sub_u32 s84, s90, 2048
    s_subb_u32 s85, s91, 0
    s_mov_b32 s87, 0x20000
    s_mul_i32 s70, s57, 3
    s_add_u32 s70, s70, s93
    s_mul_i32 s71, s93, 384
    s_add_u32 s73, s73, s71
    s_mul_i32 s72, s33, 3072
    ''')
def c_roles_vector():
    A,B,C='v1','v255','v253'
    t=f'''
    v_lshlrev_b32 v{C_LV}, 4, v0
    v_lshrrev_b32 {A}, 3, v0
    s_lshl_b32 s92, s33, 3
    v_add_u32 {A}, s92, {A}
    v_bfe_u32 {B}, {A}, 2, 2
    v_lshlrev_b32 {B}, 3, {B}
    v_lshrrev_b32 {C}, 4, {A}
    v_lshl_add_u32 {B}, {C}, 2, {B}
    v_and_b32 {C}, 3, {A}
    v_add_u32 {B}, {B}, {C}
    s_cmp_eq_u32 s68, 0
    s_cselect_b64 s[92:93], -1, 0
    v_cndmask_b32 {A}, {B}, {A}, s[92:93]
    v_mul_u32_u24 {A}, 1152, {A}
    v_bfe_u32 {B}, v0, 1, 2
    v_lshrrev_b32 {C}, 4, v0
    v_xor_b32 {B}, {B}, {C}
    v_lshl_add_u32 {A}, {B}, 5, {A}
    v_and_b32 {B}, 1, v0
    v_lshl_add_u32 {A}, {B}, 4, {A}
    v_add_u32 v{C_DV}, 2048, {A}
    v_add_u32 v{C_DV+1}, {2048+128-1024}, {A}
    v_add_u32 v{C_DV+2}, {2048+256-2048}, {A}
    s_lshl_b32 s92, s57, 3
    s_lshl_b32 s93, s33, 1
    s_add_u32 s92, s92, s93
    s_mul_i32 s93, s92, s7
    v_add_u32 v{C_HV}, s93, v{C_LV}
    v_add_u32 v{C_HV+1}, s7, v{C_HV}
    v_and_b32 {A}, 7, v0
    v_lshlrev_b32 {A}, 1, {A}
    v_bfe_u32 {B}, v0, 3, 1
    s_lshl_b32 s92, s92, 4
    v_add3_u32 {A}, {A}, {B}, s92
    v_mul_u32_u24 {A}, 1152, {A}
    v_lshrrev_b32 {B}, 4, v0
    v_lshl_add_u32 {A}, {B}, 3, {A}
    s_lshl_b32 s92, s69, 5
    s_add_u32 s92, s92, s71
    v_add_u32 v{C_OA}, s92, {A}
    v_add_u32 v{C_OA+1}, 18432, v{C_OA}
    '''
    return [l.strip() for l in t.split('\n') if l.strip()]
def prefetch(slot,tabreg='s75',parts='WH'):
    W=lambda l: f'buffer_load_dwordx4 v{C_DV+l}, s[84:87], s80 offen offset:{1024*l} lds'
    def H(n):
        ks,i=n//2,n%2; r=ORDER.index(slot)*16+n*4
        return f'buffer_load_dwordx4 a[{r}:{r+3}], v{C_HV+i}, s[20:23], s81 offen offset:{ks*1024} sc1'
    L=[f's_and_b32 s79, {tabreg}, 31', f's_mul_i32 s80, s79, {64*1152}', 's_lshl_b32 s81, s79, 11', 's_add_u32 s80, s80, s73', 's_add_u32 s81, s81, s74',
       's_cmp_lt_u32 s79, 18', f's_cselect_b32 s80, s80, {OOB}', f's_cselect_b32 s81, s81, {OOB}',
       f's_add_u32 m0, s72, {slot*STG}', H(0), W(0), f's_lshr_b32 {tabreg}, {tabreg}, 5', W(1), W(2),
       f's_add_u32 m0, s72, {slot*STG+4*3072}', H(1), 's_add_u32 s80, s80, 36864', W(0), W(1), W(2), H(2), H(3)]
    if 'W' not in parts: L=[x for x in L if ' lds' not in x and 'm0' not in x and 's80' not in x]
    if 'H' not in parts: L=[x if not x.startswith('buffer_load_dwordx4 a') else 's_nop 0' for x in L if 's81' not in x or x.startswith('buffer')]
    return L
def c_addr_items():
    A,B,C='v1','v96','v97'
    L=[f'v_lshrrev_b32 {A}, 5, v0', f'v_mul_u32_u24 {A}, 3072, {A}', f'v_bfe_u32 {B}, v0, 2, 3', f'v_lshl_add_u32 {A}, {B}, 7, {A}',
       f'v_lshrrev_b32 {B}, 1, {B}', f'v_xor_b32 {B}, s69, {B}', f'v_and_b32 {C}, 3, v0', f'v_lshl_add_u32 {A}, {C}, 3, {A}']
    for b_ in range(4):
        L+=[f'v_xor_b32 {C}, {b_}, {B}', f'v_lshl_add_u32 v{C_AD[b_]}, {C}, 5, {A}']
        for hs in range(1,3): L.append(f'v_add_u32 v{C_AD[4*hs+b_]}, {2*STG*hs}, v{C_AD[b_]}')
    return L
def c_rd(slot,t,half):
    ks,b_=t//12,t%12
    w=C_WF[t%6]+2*half; ad=C_AD[4*(slot//2)+(b_&3)]
    off=(slot%2)*STG+ks*12288+(b_//4)*1024+half*6144
    return f'ds_read_b64_tr_b16 v[{w}:{w+1}], v{ad} offset:{off}'

def bodyZ(a,vm,seqs,capa=2):
    ns=72; nm=288
    S=Sched(nm,capa)
    for t in range(ns):
        m0=t*4
        if t%2==0: S.add_pre(m0,f'WAITL{min(t+1,ns-1)}')
        tn=t+4; w=V_WF+(t%4)*4; ad=V_AD+(t%4)
        if tn<ns:
            g=(tn%36)//4; gp=(t%36)//4
            if tn>=36 and t<36:
                S.add_post(m0+1,f'v_add_u32 v{ad}, {4096*((t%4)//2)}, v{V_BN+2+(t%2)}')
            elif g==5 and gp==4: S.add_post(m0+1,f'v_add_u32 v{ad}, 40960, v{ad}')
            off=(g if g<5 else g-5)*8192
            S.add_post(m0+3,f'ds_read_b64_tr_b16 v[{w}:{w+1}], v{ad} offset:{off};tag={tn}')
            S.add_post(m0+4,f'ds_read_b64_tr_b16 v[{w+2}:{w+3}], v{ad} offset:{off+512};tag={tn}')
    ch,nq=ch_epiU(V_ACC[1])
    e1=S.chains(ch,1,138,nq,pace=False)
    assert e1<=143,e1
    ch2=[]
    for n in range(8):
        A=64+n*4; T=V_T+(n%4)*4
        ch2.append([[(f'v_mul_f32 v{T+r}, s40, v{A+r}',1) for r in range(4)],
          [(f'v_exp_f32 v{T+r}, v{T+r}',2) for r in range(4)],
          [(f'v_add_f32 v{T+r}, 1.0, v{T+r}',1) for r in range(4)],
          [(f'v_rcp_f32 v{T+r}, v{T+r}',2) for r in range(4)],
          [(f'v_mul_f32 v{A+r}, v{T+r}, v{A+r}',1) for r in range(4)]])
    for lo,hi,L in seqs: S.seq(lo,hi,L)
    S.chains(ch2,148,nm-2,4,pace=False)
    def mf(m):
        t=m//4;i=m%4; p=t//36; ks=(t%36)//2; b=t%2
        D=(64 if p==0 else 32)+(b*4+i)*4; w=V_WF+(t%4)*4
        return f'v_mfma_f32_16x16x32_bf16 {vr(D,4)}, {vr(w,4)}, {xreg(i,ks)}, {"0" if ks==0 else vr(D,4)}'
    def special(n):
        if n=='CHK8':
            a(f's_waitcnt vmcnt({vm.wait_n("fld")})'); vchk(a,'s26','s39','Zh')
        elif n=='FLD':
            a(f'buffer_load_dword v{V_FL}, v{V_FA}, s[20:23], s26 offen sc1'); vm.issue('fld')
        elif n=='G2':
            a(f's_waitcnt vmcnt({vm.wait_n("st")})\nbuffer_store_dword v{V_ONE}, off, s[20:23], s25 sc1'); vm.issue('x')
        elif n=='QL':
            a('buffer_load_dword v255, v253, s[20:23], s26 offen sc1'); vm.issue('ql')
        elif n=='QP':
            a(f's_waitcnt vmcnt({vm.wait_n("ql")})'); vpoll(a,'q',255,253,'s26',first_loaded=True)
    S.emit(a,vm,mf,[0,0,1,1,2,2,3,3],special)
def z_tail(a):
    a(f'''
    s_mul_i32 s35, s30, 18
    s_add_u32 s35, s35, s31
    s_add_u32 s35, s35, 14
    s_lshl_b32 s35, s35, 10
    s_add_u32 s44, s35, {H_OFF}
    s_add_u32 s45, s44, 147456
    s_add_u32 s46, s44, 294912
    s_add_u32 s47, s44, 442368
    ''')
    for i in range(4):
        D=V_T+i*4
        for hb in range(2):
            G=64+(hb*4+i)*4; U=32+(hb*4+i)*4
            for r in range(4): a(f'v_mul_f32 v{U+r}, v{U+r}, v{G+r}')
            a(f'v_cvt_pk_bf16_f32 v{D+2*hb}, v{U}, v{U+1}\nv_cvt_pk_bf16_f32 v{D+2*hb+1}, v{U+2}, v{U+3}')
        a(f'buffer_store_dwordx4 v[{D}:{D+3}], v{V_HST}, s[20:23], s{44+i} offen{STF}')

def attention(a,waitq,rows_split):
    Q=8; KB=(44,80); L=116; O=148; AW=220; V0,V1=44,80
    a(f'''
    v_lshrrev_b32 v2, 3, v0
    v_and_b32 v3, 7, v0
    v_mul_u32_u24 v3, 144, v3
    s_lshl_b32 s92, s33, 3
    v_add_u32 v2, s92, v2
    s_lshr_b32 s93, s83, 1
    s_lshl_b32 s93, s93, 5
    v_add_u32 v229, s93, v2
    v_add_u32 v4, 7, v2
    s_mov_b32 s94, 3456
    s_mov_b32 s95, 0x05040100
    s_mov_b32 s96, 0x07060302
    s_mov_b32 s97, 0x3eae1a93
    ''')
    n1,b1,b2=rows_split
    a(f'v_mov_b32 v6, {(b2-n1*3456)&0xffffffff}\nv_mov_b32 v7, {b1}')
    for w in range(8):
        a(f'v_min_u32 v5, {w}, v229\nv_sub_u32 v5, v4, v5\nv_cmp_gt_u32 vcc, {n1}, v5\nv_mad_u32_u24 v{AW+w}, v5, s94, v3\ns_nop 0\nv_cndmask_b32 v5, v6, v7, vcc\nv_add_u32 v{AW+w}, v{AW+w}, v5')
    waitq()
    def rd(dst,ad,off):
        for m in range(9): a(f'ds_read_b128 v[{dst+4*m}:{dst+4*m+3}], v{ad} offset:{off+16*m}')
    def rdl(dst,ad,off): return [f'ds_read_b128 v[{dst+4*m}:{dst+4*m+3}], v{ad} offset:{off+16*m}' for m in range(9)]
    rd(Q,AW,0); rd(KB[0],AW,1152)
    for w in range(8):
        a('s_waitcnt lgkmcnt(0)')
        nx=rdl(KB[(w+1)%2],AW+w+1,1152) if w<7 else rdl(V0,AW,2304)
        k=KB[w%2]
        for j in range(9):
            a(nx[j])
            for hh in range(4):
                c='0' if j==0 else f'v{L+hh*8+w}'
                a(f'v_dot2_f32_bf16 v{L+hh*8+w}, v{Q+9*hh+j}, v{k+9*hh+j}, {c}')
    rd(V1,AW+1,2304)
    a('v_mov_b32 v5, 0xff800000')
    for w in range(1,8):
        a(f'v_cmp_le_u32 vcc, {w}, v229\ns_nop 1')
        for hh in range(4): a(f'v_cndmask_b32 v{L+hh*8+w}, v5, v{L+hh*8+w}, vcc')
    M=Q
    for step in range(4):
        for hh in range(4):
            l=L+hh*8
            a([f'v_max3_f32 v{M+hh}, v{l}, v{l+1}, v{l+2}',f'v_max3_f32 v{M+hh}, v{M+hh}, v{l+3}, v{l+4}',f'v_max3_f32 v{M+hh}, v{M+hh}, v{l+5}, v{l+6}',f'v_max_f32 v{M+hh}, v{M+hh}, v{l+7}'][step])
    for hh in range(4): a(f'v_mul_f32 v{M+hh}, s97, v{M+hh}')
    for hh in range(4):
        for w in range(8): a(f'v_fma_f32 v{L+hh*8+w}, v{L+hh*8+w}, s97, -v{M+hh}')
    for r in range(32): a(f'v_exp_f32 v{L+r}, v{L+r}')
    for hh in range(4): a(f'v_add_f32 v{M+hh}, v{L+hh*8}, v{L+hh*8+1}')
    for w in range(2,8):
        for hh in range(4): a(f'v_add_f32 v{M+hh}, v{M+hh}, v{L+hh*8+w}')
    for hh in range(4): a(f'v_rcp_f32 v{M+hh}, v{M+hh}')
    a('s_nop 0')
    for hh in range(4):
        for w in range(8): a(f'v_mul_f32 v{L+hh*8+w}, v{L+hh*8+w}, v{M+hh}')
    for hh in range(4):
        for wp in range(4): a(f'v_cvt_pk_bf16_f32 v{L+hh*8+wp}, v{L+hh*8+2*wp}, v{L+hh*8+2*wp+1}')
    for wp in range(4):
        a('s_waitcnt lgkmcnt(0)')
        nx=[x for p in zip(rdl(V0,AW+2*wp+2,2304),rdl(V1,AW+2*wp+3,2304)) for x in p] if wp<3 else []
        for m in range(9):
            for j in range(4*m,4*m+4):
                a(f'v_perm_b32 v{230+(j%4)}, v{V1+j}, v{V0+j}, s95')
                a(f'v_perm_b32 v{234+(j%4)}, v{V1+j}, v{V0+j}, s96')
            if nx: a(nx[2*m]); a(nx[2*m+1])
            for j in range(4*m,4*m+4):
                c0='0' if wp==0 else f'v{O+2*j}'; c1='0' if wp==0 else f'v{O+2*j+1}'
                a(f'v_dot2_f32_bf16 v{O+2*j}, v{230+(j%4)}, v{L+(j//9)*8+wp}, {c0}')
                a(f'v_dot2_f32_bf16 v{O+2*j+1}, v{234+(j%4)}, v{L+(j//9)*8+wp}, {c1}')
    a(f'''
    v_and_b32 v3, 7, v0
    v_mul_u32_u24 v3, 2304, v3
    v_lshrrev_b32 v2, 3, v0
    v_lshl_add_u32 v3, v2, 4, v3
    s_lshr_b32 s92, s83, 1
    s_lshl_b32 s92, s92, 2
    s_add_u32 s92, s92, s33
    s_mul_i32 s92, s92, 18432
    s_and_b32 s93, s83, 1
    s_lshl_b32 s93, s93, 7
    s_add_u32 s92, s92, s93
    s_add_u32 s92, s92, {O_OFF}
    ''')
    for m in range(9):
        for j in range(4*m,4*m+4): a(f'v_cvt_pk_bf16_f32 v{Q+j}, v{O+2*j}, v{O+2*j+1}')
        a(f'buffer_store_dwordx4 v[{Q+4*m}:{Q+4*m+3}], v3, s[20:23], s92 offen offset:{256*m} sc1')

OST=110592; SSTG=36864
def s_gemm(a):
    AD=44
    BF=64
    WFs=80
    AC=128
    def dma(slot):
        L=[]
        for t3 in range(3):
            L.append(f's_add_u32 m0, s72, {slot*SSTG+t3*3072}')
            L.append(f's_add_u32 s81, s80, {t3*384}')
            for l in range(3): L.append(f'buffer_load_dwordx4 v{C_DV+l}, s[84:87], s81 offen offset:{1024*l} lds')
        L.append('s_add_u32 s80, s80, 36864')
        return L
    a('s_mul_i32 s72, s33, 9216\ns_mov_b32 s80, 0')
    for x in dma(0): a(x)
    for m in range(9): a(f'ds_write_b128 v3, v[{8+4*m}:{8+4*m+3}] offset:{256*m}')
    for x in dma(1)+dma(2): a(x)
    a(f'''
    v_lshrrev_b32 v4, 5, v0
    v_mul_u32_u24 v4, 9216, v4
    v_bfe_u32 v5, v0, 2, 3
    v_lshl_add_u32 v4, v5, 7, v4
    v_lshrrev_b32 v5, 1, v5
    v_and_b32 v6, 3, v0
    v_lshl_add_u32 v4, v6, 3, v4
    s_mul_i32 s92, s33, 9
    v_lshlrev_b32 v7, 4, v0
    v_add_u32 v7, {OST}, v7
    ''')
    for bb in range(9):
        a(f'''
        s_add_u32 s93, s92, {bb}
        s_and_b32 s94, s93, 3
        s_lshr_b32 s93, s93, 2
        s_lshl_b32 s93, s93, 10
        v_xor_b32 v6, s94, v5
        v_lshl_add_u32 v6, v6, 5, v4
        v_add_u32 v{AD+bb}, s93, v6
        v_add_u32 v{AD+9+bb}, {2*SSTG}, v{AD+bb}
        ''')
    for r in range(0,72,2): a(f'v_mov_b64 v[{AC+r}:{AC+r+1}], 0')
    WB=(80,200)
    def reads(k):
        slot=k%3; wb=WB[k%2]; bf=BF+8*(k%2)
        R=[f'ds_read_b128 v[{bf}:{bf+3}], v7',f'ds_read_b128 v[{bf+4}:{bf+7}], v7 offset:18432','v_add_u32 v7, 1024, v7']
        for bb in range(9):
            ad=AD+bb+(9 if slot==2 else 0); off=(slot%2)*SSTG
            R.append(f'ds_read_b64_tr_b16 v[{wb+4*bb}:{wb+4*bb+1}], v{ad} offset:{off}')
            R.append(f'ds_read_b64_tr_b16 v[{wb+4*bb+2}:{wb+4*bb+3}], v{ad} offset:{off+18432}')
        return R
    a('s_waitcnt vmcnt(18) lgkmcnt(0)\ns_barrier')
    for x in reads(0): a(x)
    a('''
    v_lshrrev_b32 v242, 3, v0
    s_lshl_b32 s93, s33, 3
    v_add_u32 v242, s93, v242
    v_mul_u32_u24 v242, 2304, v242
    v_and_b32 v243, 7, v0
    v_lshl_add_u32 v242, v243, 4, v242
    v_add_u32 v242, 2048, v242
    v_bfe_u32 v243, v0, 3, 1
    v_mul_u32_u24 v243, 9216, v243
    v_and_b32 v6, 7, v0
    v_lshl_add_u32 v243, v6, 7, v243
    v_lshrrev_b32 v6, 4, v0
    v_lshl_add_u32 v243, v6, 3, v243
    ''')
    a('s_mov_b32 s82, 3')
    a('S_loop:')
    for k in range(6):
        a('s_waitcnt vmcnt(9) lgkmcnt(0)\ns_barrier')
        if k==3:
            a(f'''
            s_cmp_lg_u32 s82, 1
            s_cbranch_scc1 S_nox
            s_sub_u32 s84, s88, 2048
            s_subb_u32 s85, s89, 0
            s_mov_b32 s86, {2048*1152+2048}
            s_lshr_b32 s80, s83, 1
            s_lshl_b32 s80, s80, 6
            s_and_b32 s93, s83, 1
            s_add_u32 s80, s80, s93
            s_mul_i32 s80, s80, 1152
            v_mov_b32 v{C_DV}, v242
            v_add_u32 v{C_DV+1}, {128-1024}, v242
            v_add_u32 v{C_DV+2}, {256-2048}, v242
            S_nox:
            ''')
        if k==4:
            a(f's_cmp_eq_u32 s82, 1\ns_cselect_b32 s80, {OOB-0x100000}, s80')
        D=dma(k%3); R=reads(k+1); wb=WB[k%2]; bf=BF+8*(k%2)
        for n in range(18):
            bb,j=n//2,n%2; r=AC+n*4
            a(f'v_mfma_f32_16x16x32_bf16 {vr(r,4)}, {vr(wb+4*bb,4)}, {vr(bf+4*j,4)}, {vr(r,4)}')
            for _ in range(2 if n<3 else 1):
                if R: a(R.pop(0))
            if D: a(D.pop(0))
        assert not D and not R
    a('s_sub_u32 s82, s82, 1\ns_cmp_lg_u32 s82, 0\ns_cbranch_scc1 S_loop')
    a('s_waitcnt vmcnt(0) lgkmcnt(0)\ns_barrier')
    a('s_mul_i32 s92, s33, 9')
    for bb in range(9):
        a(f'''
        s_add_u32 s93, s92, {bb}
        s_and_b32 s94, s93, 3
        s_lshl_b32 s94, s94, 5
        s_lshr_b32 s93, s93, 2
        s_lshl_b32 s93, s93, 10
        s_add_u32 s93, s93, s94
        v_add_u32 v6, s93, v243
        ds_read_b64 v[{8+4*bb}:{9+4*bb}], v6
        ds_read_b64 v[{10+4*bb}:{11+4*bb}], v6 offset:18432
        ''')
    st(a,10)
    s_flag_setup(a)
    a('s_waitcnt lgkmcnt(0)')
    s_send(a,AC)
    a('v_mov_b32 v5, s39\ns_waitcnt vmcnt(0)\ns_barrier\nbuffer_store_dword v5, v241, s[20:23], s24 offen sc1')
    a('s_branch C_fin')

def s_send(a,AC=None):
    a(f'''
    s_mul_i32 s92, s33, 9
    v_and_b32 v4, 7, v0
    v_lshrrev_b32 v5, 4, v0
    v_lshl_add_u32 v4, v5, 4, v4
    v_lshlrev_b32 v4, 4, v4
    v_bfe_u32 v5, v0, 3, 1
    v_mul_u32_u24 v5, {4*4*3072}, v5
    v_add_u32 v4, v4, v5
    s_and_b32 s93, s83, 1
    s_lshl_b32 s93, s93, 7
    s_lshr_b32 s94, s83, 2
    s_mul_i32 s94, s94, {3*XT}
    s_add_u32 s93, s93, s94
    s_bfe_u32 s94, s83, 0x10001
    s_mul_i32 s94, s94, 6144
    s_add_u32 s93, s93, s94
    s_add_u32 s93, s93, {X_OFF}
    ''')
    if AC is None: a('v_mov_b64 v[8:9], -1\nv_mov_b64 v[10:11], -1')
    for bb in range(9):
        a(f'''
        s_add_u32 s94, s92, {bb}
        s_mul_i32 s95, s94, 43
        s_lshr_b32 s95, s95, 9
        s_mul_i32 s96, s95, 12
        s_sub_u32 s94, s94, s96
        s_mul_i32 s95, s95, {XT}
        s_and_b32 s96, s94, 3
        s_mul_i32 s96, s96, {XD}
        s_add_u32 s95, s95, s96
        s_lshr_b32 s94, s94, 2
        s_lshl_b32 s94, s94, 10
        s_add_u32 s95, s95, s94
        s_add_u32 s95, s95, s93
        ''')
        for j in range(2):
            d=8
            if AC is not None:
                n=bb*2+j; r=AC+n*4; d=r
                a(f'v_cvt_pk_bf16_f32 v{d}, v{r}, v{r+1}\nv_cvt_pk_bf16_f32 v{d+1}, v{r+2}, v{r+3}')
                a(f'v_mov_b64 v[{d+2}:{d+3}], v[{8+2*n}:{9+2*n}]')
            a(f'buffer_store_dwordx4 v[{d}:{d+3}], v4, s[20:23], s95 offen offset:{3072*j} sc1')
def s_xload(a):
    a(f'''
    v_and_b32 v4, 15, v0
    v_lshlrev_b32 v4, 1, v4
    s_lshr_b32 s92, s83, 1
    s_lshl_b32 s92, s92, 6
    s_and_b32 s93, s83, 1
    s_add_u32 s92, s92, s93
    v_add_u32 v4, s92, v4
    v_mul_u32_u24 v4, 1152, v4
    v_lshrrev_b32 v5, 4, v0
    v_lshl_add_u32 v4, v5, 3, v4
    s_mul_i32 s92, s33, 288
    v_add_u32 v4, s92, v4
    v_add_u32 v5, {32*1152}, v4
    ''')
    for bb in range(9):
        for j in range(2):
            n=bb*2+j
            a(f'global_load_dwordx2 a[{2*n}:{2*n+1}], v{4+j}, s[88:89] offset:{bb*32}')
def s_flag_setup(a):
    a(f'''
    v_min_u32 v4, 11, v0
    v_lshrrev_b32 v5, 2, v4
    v_lshlrev_b32 v5, 7, v5
    v_bfe_u32 v241, v4, 1, 1
    v_lshl_add_u32 v5, v241, 5, v5
    v_and_b32 v4, 1, v4
    v_lshl_add_u32 v241, v4, 2, v5
    s_lshr_b32 s24, s83, 2
    s_mul_i32 s24, s24, 384
    s_bfe_u32 s95, s83, 0x10001
    s_lshl_b32 s95, s95, 6
    s_add_u32 s24, s24, s95
    s_and_b32 s95, s83, 1
    s_lshl_b32 s95, s95, 3
    s_add_u32 s24, s24, s95
    s_add_u32 s24, s24, {FLG_OFF+16}
    s_cmp_eq_u32 s33, 0
    s_cselect_b32 s24, s24, {OOB}
    ''')

def c_loop(a):
    def hook(pos):
        if pos==5: return [f'buffer_load_dword v{V_FL}, v{V_FA}, s[20:23], s26 offen sc1'.replace('buffer_load','buffer_LOAD')]
        if pos==3: return ['@CHK', 'buffer_store_dword v255, off, s[20:23], s25 sc1', f's_mov_b32 s25, {OOB}']
        return []
    def em(x):
        if x=='@CHK':
            a('s_cmp_eq_u32 s27, 0\ns_cbranch_scc1 K_C_sk\ns_add_u32 s6, s67, s27')
            vchk(a,'s26','s6','C'); a('s_mov_b32 s27, 3\nK_C_sk:')
        else: a(x.replace('buffer_LOAD','buffer_load'))
    a('C_loop:')
    for pos,slot in enumerate(ORDER):
        ps=(slot-1)%NS
        extra=hook(pos)+prefetch(ps)
        free=[(t,i) for t in range(24) for i in range(2) if (i==0 or (t%2==0 and t!=18)) and (t,i)>=(0,1)]
        nv=[k for k,x in enumerate(extra) if x.startswith('buffer_load')]
        first=nv[0]
        tgt={k:int(first+n_*(len(free)-1-first)/(len(nv)-1)) for n_,k in enumerate(nv)}
        idx=[None]*len(extra); nxt=len(free)
        for k in range(len(extra)-1,-1,-1):
            want=min(tgt.get(k,nxt-1),nxt-1); idx[k]=want; nxt=want
        cur=-1
        for k in range(len(extra)):
            idx[k]=max(idx[k],cur+1); cur=idx[k]
        assert cur<len(free)
        place={free[idx[k]]:x for k,x in enumerate(extra)}
        nbefore=sum(1 for k in nv if free[idx[k]]<(18,1))
        pend=None
        for t in range(24):
            ks,b_=t//12,t%12; w=C_WF[t%6]
            for i in range(2):
                D=C_ACC+(b_*2+i)*4; h=pos*16+(ks*2+i)*4
                a(f'v_mfma_f32_16x16x32_bf16 {vr(D,4)}, {vr(w,4)}, {ar(h,4)}, {vr(D,4)}')
                if i==0:
                    if pend: a(pend); pend=None
                    if (t,i) in place: em(place[(t,i)])
                else:
                    tn=t+6
                    if tn==24: a(f's_waitcnt vmcnt({26+nbefore})\ns_barrier')
                    s2=slot if tn<24 else (slot+1)%NS
                    if t%2==1: a('s_waitcnt lgkmcnt(6)')
                    a(c_rd(s2,tn%24,0)); pend=c_rd(s2,tn%24,1)
                    if (t,i) in place: em(place[(t,i)])
        a(pend)
        if pos==2: a('s_cmp_eq_u32 s82, 3\ns_cbranch_scc1 C_done')
        if pos==5: a('s_mov_b32 s75, s76\ns_mov_b32 s76, s77\ns_sub_u32 s82, s82, 6\ns_cmp_eq_u32 s82, 0\ns_cbranch_scc0 C_loop')
    a('C_done:')
    for sl in range(5): a(f's_add_u32 s{76+sl}, s97, {sl*4*3072}')

def c_finish(a):
    T=C_T
    st(a,10)
    a(f'''
    v_min_u32 v{T+1}, 4, v0
    v_add_u32 v{T+1}, 1, v{T+1}
    v_xor_b32 v{T+2}, s69, v{T+1}
    v_cmp_gt_u32 vcc, 4, v{T+1}
    s_nop 1
    v_cndmask_b32 v{T+1}, v{T+1}, v{T+2}, vcc
    v_lshlrev_b32 v{V_FA}, 2, v{T+1}
    ''')
    for j in (1,2,3):
        for l in range(3):
            be=l*4+j; D=C_RX+((j-1)*3+l)*4
            for i in range(2):
                A=C_ACC+(be*2+i)*4
                a(f'v_cvt_pk_bf16_f32 v{D+2*i}, v{A}, v{A+1}\nv_cvt_pk_bf16_f32 v{D+2*i+1}, v{A+2}, v{A+3}')
            a(f'buffer_store_dwordx4 v[{D}:{D+3}], v{C_LV}, s[20:23], s{93+j} offen offset:{l*1024} sc1')
    a('s_cmp_eq_u32 s68, 0\ns_cbranch_scc1 C_sent')
    for l in range(3):
        be=l*4; D=32+l*4
        for i in range(2):
            A=C_ACC+(be*2+i)*4
            a(f'v_cvt_pk_bf16_f32 v{D+2*i}, v{A}, v{A+1}\nv_cvt_pk_bf16_f32 v{D+2*i+1}, v{A+2}, v{A+3}')
        a(f'buffer_store_dwordx4 v[{D}:{D+3}], v{C_LV}, s[20:23], s97 offen offset:{l*1024} sc1')
    a(f'v_mov_b32 v{T}, s39\ns_waitcnt vmcnt(0)\nbuffer_store_dword v{T}, off, s[20:23], s63 sc1\ns_branch C_fin')
    a('C_sent:')
    def R(l,sl): return (C_RX+(l*3+sl-1)*4) if sl in (1,2,3) else (32+(l*2+(sl//4))*4)
    a(f'''
    buffer_load_dword v{T+2}, v{V_FA}, s[20:23], s62 offen sc1
    v_mov_b32 v{T}, s39
    s_waitcnt vmcnt(1)
    buffer_store_dword v{T}, off, s[20:23], s63 sc1
    s_waitcnt vmcnt(1)
    ''')
    st(a,11)
    vpoll(a,'x',T+2,V_FA,'s62',sleep=OPT['psl'],first_loaded=True)
    for l in range(3):
        for sl in range(5):
            r=R(l,sl)
            a(f'buffer_load_dwordx4 v[{r}:{r+3}], v{C_LV}, s[20:23], s{76+sl} offen offset:{l*1024} sc1')
    st(a,12)
    a('v_mov_b32 v4, s40\nv_mov_b32 v5, s40')
    for l in range(3):
        a(f's_waitcnt vmcnt({10-3*l})')
        A0=C_ACC+(l*4)*2*4
        t=16; u=64; y=72
        def unp(dst,r):
            for k in range(4): a(f'v_lshlrev_b32 v{dst+2*k}, 16, v{r+k}\nv_and_b32 v{dst+2*k+1}, s41, v{r+k}')
        for sl in (1,2,3):
            d=t if sl!=2 else 24
            unp(d,R(l,sl))
            for k in range(4): a(f'v_pk_add_f32 v[{A0+2*k}:{A0+2*k+1}], v[{A0+2*k}:{A0+2*k+1}], v[{d+2*k}:{d+2*k+1}]')
        for k in range(4): a(f'v_pk_mul_f32 v[{t+2*k}:{t+2*k+1}], v[{A0+2*k}:{A0+2*k+1}], v[4:5]')
        for e in range(8): a(f'v_exp_f32 v{t+e}, v{t+e}')
        unp(u,R(l,0))
        for k in range(4): a(f'v_pk_add_f32 v[{t+2*k}:{t+2*k+1}], v[{t+2*k}:{t+2*k+1}], 1.0 op_sel_hi:[1,0]')
        for e in range(8): a(f'v_rcp_f32 v{t+e}, v{t+e}')
        unp(y,R(l,4))
        for k in range(4): a(f'v_pk_mul_f32 v[{u+2*k}:{u+2*k+1}], v[{u+2*k}:{u+2*k+1}], v[{A0+2*k}:{A0+2*k+1}]')
        for k in range(4): a(f'v_pk_fma_f32 v[{y+2*k}:{y+2*k+1}], v[{t+2*k}:{t+2*k+1}], v[{u+2*k}:{u+2*k+1}], v[{y+2*k}:{y+2*k+1}]')
        x=R(l,4)
        for k in range(4): a(f'v_cvt_pk_bf16_f32 v{x+k}, v{y+2*k}, v{y+2*k+1}')
        for i in range(2): a(f'global_store_dwordx2 v{C_OA+i}, v[{x+2*i}:{x+2*i+1}], s[90:91] offset:{l*128}')
    a('C_fin:')
    st(a,13); st(a,31,rt=True)

def light_after_att(a):
    T=C_T
    a(f'''
    s_lshr_b32 s92, s83, 2
    s_lshl_b32 s92, s92, 7
    s_and_b32 s93, s83, 3
    s_lshl_b32 s93, s93, 2
    s_add_u32 s93, s93, s33
    s_lshl_b32 s93, s93, 2
    s_add_u32 s92, s92, s93
    s_add_u32 s92, s92, {OFL_OFF}
    v_mov_b32 v{T}, s39
    s_barrier
    s_cmp_eq_u32 s68, 2
    s_cbranch_scc1 L_flag
    s_mov_b32 s94, s78
    ''')
    for k in range(2):
        for x in prefetch(ORDER[k],'s94','W'): a(x)
    a(f'''
    s_waitcnt vmcnt(12)
    L_flag:
    s_cmp_eq_u32 s68, 2
    s_cbranch_scc0 L_f2
    s_waitcnt vmcnt(0)
    L_f2:
    buffer_store_dword v{T}, off, s[20:23], s92 sc1
    s_cmp_eq_u32 s68, 2
    s_cbranch_scc1 L_xf
    ''')
    for k in range(2,5):
        for x in prefetch(ORDER[k],'s94','W'): a(x)
    a(f'''
    s_lshl_b32 s93, s57, 7
    s_lshr_b32 s94, s33, 1
    s_lshl_b32 s94, s94, 5
    s_add_u32 s93, s93, s94
    s_and_b32 s94, s33, 1
    s_lshl_b32 s94, s94, 3
    s_add_u32 s93, s93, s94
    s_add_u32 s93, s93, {OFL_OFF}
    v_and_b32 v{T+1}, 1, v0
    v_bfe_u32 v{T+2}, v0, 1, 1
    v_lshlrev_b32 v{T+1}, 2, v{T+1}
    v_lshl_add_u32 v{T+1}, v{T+2}, 4, v{T+1}
    ''')
    for x in c_addr_items(): a(x)
    for r in range(0,96,2): a(f'v_mov_b64 v[{C_ACC+r}:{C_ACC+r+1}], 0')
    vpoll(a,'o',T+2,T+1,'s93',sleep=1)
    for k in range(5):
        for x in prefetch(ORDER[k],'s78','H'): a(x)
    a('s_waitcnt vmcnt(0)\ns_barrier')
def x_forward(a):
    T=C_T
    a(f'''
    L_xf:
    s_lshr_b32 s57, s83, 3
    s_lshl_b32 s57, s57, 1
    s_and_b32 s93, s83, 1
    s_add_u32 s57, s57, s93
    s_lshl_b32 s92, s57, 2
    s_add_u32 s92, s92, s33
    s_mul_i32 s92, s92, 36864
    s_add_u32 s94, s88, s92
    s_addc_u32 s95, s89, 0
    s_mul_i32 s93, s33, 36864
    s_mov_b32 s82, 36
    L_xl:
    s_mov_b32 m0, s93
    s_add_u32 s93, s93, 1024
    global_load_lds_dwordx4 v{C_LV}, s[94:95]
    s_add_u32 s94, s94, 1024
    s_addc_u32 s95, s95, 0
    s_sub_u32 s82, s82, 1
    s_cmp_lg_u32 s82, 0
    s_cbranch_scc1 L_xl
    v_and_b32 v4, 7, v0
    v_lshlrev_b32 v4, 1, v4
    v_bfe_u32 v5, v0, 3, 1
    v_add_u32 v4, v4, v5
    v_mul_u32_u24 v4, 1152, v4
    v_lshrrev_b32 v5, 4, v0
    v_lshl_add_u32 v4, v5, 3, v4
    s_mul_i32 s93, s33, 36864
    v_add_u32 v4, s93, v4
    s_mul_i32 s92, s57, {3*XT}
    s_add_u32 s92, s92, s72
    s_add_u32 s92, s92, {X_OFF+4*4*3072}
    v_min_u32 v5, 2, v0
    v_lshlrev_b32 v5, 7, v5
    s_mul_i32 s24, s57, 384
    s_lshl_b32 s93, s33, 5
    s_add_u32 s24, s24, s93
    s_add_u32 s24, s24, {FLG_OFF+20}
    s_waitcnt vmcnt(0)
    ''')
    for B in range(36):
        d=8+4*B
        a(f'ds_read_b64 v[{d}:{d+1}], v4 offset:{B*32}\nds_read_b64 v[{d+2}:{d+3}], v4 offset:{B*32+18432}')
    a('s_waitcnt lgkmcnt(0)')
    for ct in range(3):
        for r in range(4):
            a(f's_add_u32 s93, s92, {ct*XT+r*XD}')
            for l in range(3):
                d=8+4*(ct*12+l*4+r)
                a(f'buffer_store_dwordx4 v[{d}:{d+3}], v{C_LV}, s[20:23], s93 offen offset:{l*1024} sc1')
    a(f's_waitcnt vmcnt(0)\nbuffer_store_dword v{T}, v5, s[20:23], s24 offen sc1\ns_branch C_fin')

LNS=147456
def ln_loads(a):
    a(f'''
    s_lshl_b32 s35, s30, 2
    s_add_u32 s35, s35, s31
    s_lshr_b32 s36, s35, 1
    s_lshl_b32 s37, s32, 4
    s_add_u32 s36, s36, s37
    s_and_b32 s37, s35, 1
    s_lshl_b32 s38, s36, 4
    s_add_u32 s38, s38, s37
    v_and_b32 v79, 7, v0
    v_lshl_add_u32 v77, v79, 1, s38
    v_mul_u32_u24 v80, 1152, v77
    v_lshrrev_b32 v81, 3, v0
    v_lshl_add_u32 v77, v81, 4, v80
    s_mul_i32 s38, s33, 384
    s_mov_b32 s94, {2048*1152}
    s_mov_b32 s95, 0x20000
    s_waitcnt lgkmcnt(0)
    s_cmp_eq_u32 s33, 3
    s_cbranch_scc1 LN_nold
    buffer_load_dwordx4 v[64:67], v77, s[92:95], s38 offen
    buffer_load_dwordx4 v[68:71], v77, s[92:95], s38 offen offset:128
    buffer_load_dwordx4 v[72:75], v77, s[92:95], s38 offen offset:256
    s_add_u32 s38, s38, 384
    s_cmp_eq_u32 s38, 1152
    s_cselect_b32 s38, 0, s38
    buffer_load_dwordx4 v[120:123], v77, s[92:95], s38 offen
    buffer_load_dwordx4 v[124:127], v77, s[92:95], s38 offen offset:128
    buffer_load_dwordx4 v[128:131], v77, s[92:95], s38 offen offset:256
    s_add_u32 s38, s38, 384
    s_cmp_eq_u32 s38, 1152
    s_cselect_b32 s38, 0, s38
    buffer_load_dwordx4 v[132:135], v77, s[92:95], s38 offen
    buffer_load_dwordx4 v[136:139], v77, s[92:95], s38 offen offset:128
    buffer_load_dwordx4 v[140:143], v77, s[92:95], s38 offen offset:256
    LN_nold:
    s_mul_i32 s36, s36, 18432
    s_lshl_b32 s37, s37, 7
    s_add_u32 s36, s36, s37
    s_mul_i32 s37, s33, 6144
    s_add_u32 s43, s36, s37
    s_add_u32 s39, s43, 4096
    v_lshlrev_b32 v78, 8, v81
    v_lshl_add_u32 v78, v79, 4, v78
    s_lshl_b32 s6, s32, 5
    s_add_u32 s6, s6, s35
    s_lshl_b32 s6, s6, 2
    s_add_u32 s6, s6, s33
    s_lshl_b32 s6, s6, 2
    s_add_u32 s6, s6, {XFL_OFF}
    ''')
def ln_compute(a,nyoung):
    E=96
    a('v_mov_b32 v76, 0x3f803f80')
    a('s_waitcnt vmcnt(6)')
    regs=list(range(64,76))+list(range(120,144))
    for k,r in enumerate(regs):
        if k==12:
            for g in range(3):
                for i in range(4):
                    rr=64+4*g+i; e=E+8*g+2*i
                    a(f'v_lshlrev_b32 v{e}, 16, v{rr}\nv_and_b32 v{e+1}, s41, v{rr}')
            a('s_waitcnt vmcnt(0)')
        s_,q_=82+(k&1)*2,83+(k&1)*2
        a(f'v_dot2_f32_bf16 v{s_}, v{r}, v76, {"0" if k<2 else "v%d"%s_}')
        a(f'v_dot2_f32_bf16 v{q_}, v{r}, v{r}, {"0" if k<2 else "v%d"%q_}')
    a('s_nop 2\nv_add_f32 v82, v82, v84\nv_add_f32 v83, v83, v85\ns_nop 1')
    a('v_add_f32_dpp v82, v82, v82 row_ror:8 row_mask:0xf bank_mask:0xf\nv_add_f32_dpp v83, v83, v83 row_ror:8 row_mask:0xf bank_mask:0xf')
    for sw in ('v_permlane16_swap_b32','v_permlane32_swap_b32'):
        a(f'v_mov_b32 v84, v82\nv_mov_b32 v85, v83\ns_nop 1\n{sw} v82, v84\n{sw} v83, v85\ns_nop 1\nv_add_f32 v82, v82, v84\nv_add_f32 v83, v83, v85')
    a('''
    v_mul_f32 v82, 0x3ae38e39, v82
    v_mul_f32 v83, 0x3ae38e39, v83
    v_fma_f32 v83, -v82, v82, v83
    v_max_f32 v83, 0, v83
    ''')
    def rb(r): a(f'v_cvt_pk_bf16_f32 v{r}, v{r}, v{r}\nv_lshlrev_b32 v{r}, 16, v{r}')
    rb(82); rb(83)
    a('v_add_f32 v83, 0x3727c5ac, v83'); rb(83)
    a('v_sqrt_f32 v83, v83\ns_nop 0'); rb(83)
    a('v_rcp_f32 v83, v83\ns_nop 0')
    def norm(g):
        for i in range(4):
            e=E+8*g+2*i
            a(f'v_sub_f32 v{e}, v{e}, v82\nv_sub_f32 v{e+1}, v{e+1}, v82')
        for i in range(4):
            e=E+8*g+2*i
            a(f'v_cvt_pk_bf16_f32 v{e}, v{e}, v{e+1}')
        for i in range(4):
            e=E+8*g+2*i
            a(f'v_and_b32 v{e+1}, s41, v{e}\nv_lshlrev_b32 v{e}, 16, v{e}')
        for i in range(4):
            e=E+8*g+2*i
            a(f'v_mul_f32 v{e}, v{e}, v83\nv_mul_f32 v{e+1}, v{e+1}, v83')
        for i in range(4):
            e=E+8*g+2*i
            a(f'v_cvt_pk_bf16_f32 v{64+4*g+i}, v{e}, v{e+1}')
    norm(0)
    a('buffer_store_dwordx4 v[64:67], v78, s[20:23], s43 offen sc1')
    norm(1)
    a('buffer_store_dwordx4 v[68:71], v78, s[20:23], s43 offen offset:2048 sc1')
    norm(2)
    a('buffer_store_dwordx4 v[72:75], v78, s[20:23], s39 offen sc1')

def gen_kf(a):
    a(kernel_header(NAME))
    T=V_T
    T0=' nt' if OPT['t0nt'] else ''
    a('''
    s_cmp_ge_u32 s2, 256
    s_cbranch_scc1 KF_end
    s_load_dwordx2 s[92:93], s[0:1], 0
    s_load_dwordx2 s[4:5], s[0:1], 8
    s_load_dwordx4 s[8:11], s[0:1], 32
    s_load_dwordx2 s[20:21], s[0:1], 72
    s_load_dwordx2 s[80:81], s[0:1], 64
    s_load_dwordx2 s[88:89], s[0:1], 16
    s_load_dwordx2 s[90:91], s[0:1], 48
    s_memrealtime s[24:25]
    v_lshrrev_b32 v1, 6, v0
    v_and_b32 v0, 63, v0
    s_bfe_u32 s30, s2, 0x20001
    s_lshl_b32 s30, s30, 1
    s_bfe_u32 s31, s2, 0x10005
    s_add_u32 s30, s30, s31
    s_bfe_u32 s31, s2, 0x20003
    s_and_b32 s32, s2, 1
    s_lshl_b32 s32, s32, 2
    s_lshr_b32 s3, s2, 6
    s_add_u32 s32, s32, s3
    v_readfirstlane_b32 s33, v1
    s_mov_b32 s22, 0x10000000
    s_mov_b32 s23, 0x20000
    s_mov_b32 s40, 0xbfb8aa3b
    s_mov_b32 s41, 0xffff0000
    ''')
    ln_loads(a)
    a(f"""
    v_mov_b32 v2, 0
    s_or_b32 s3, s2, s33
    s_cmp_lg_u32 s3, 0
    s_cbranch_scc1 KF_noep
    s_and_b32 s24, s24, 0xfffffffc
    s_max_u32 s24, s24, 4
    v_mov_b32 v3, s24
    global_store_dword v2, v3, s[80:81] sc1
    KF_noep:
    """)
    st(a,30,True); st(a,0)
    a(f"""
    s_lshl_b32 s66, s33, 10
    s_mul_i32 s62, s30, 3
    s_add_u32 s62, s62, s31
    s_lshl_b32 s62, s62, 7
    s_add_u32 s64, s30, 44
    s_lshl_b32 s64, s64, 6
    s_cmp_lt_u32 s31, 3
    s_cselect_b32 s63, 1, 0
    s_cmp_lt_u32 s30, 6
    s_cbranch_scc1 KF_qok
    s_lshl_b32 s62, s30, 1
    s_add_u32 s62, s62, s31
    s_add_u32 s64, s62, 36
    s_lshl_b32 s64, s64, 6
    s_add_u32 s62, s62, 6
    s_lshl_b32 s62, s62, 7
    s_cmp_lt_u32 s31, 2
    s_cselect_b32 s63, 1, 0
    KF_qok:
    s_cmp_eq_u32 s63, 1
    s_cselect_b32 s62, s62, s64
    s_cselect_b32 s67, 3, 1
    s_mov_b32 s64, s63
    s_mov_b32 s65, 0
    s_mul_i32 s36, s30, 1152
    s_lshl_b32 s37, s31, 8
    s_add_u32 s37, s37, s36
    s_lshl_b32 s38, s31, 6
    s_add_u32 s38, s38, s36
    s_add_u32 s38, s38, 896
    s_add_u32 s16, s8, s37
    s_addc_u32 s17, s9, 0
    s_add_u32 s18, s10, s37
    s_addc_u32 s19, s11, 0
    v_bfe_u32 v{T+1}, v0, 1, 2
    v_bfe_u32 v{T+2}, v0, 4, 1
    v_xor_b32 v{T+1}, v{T+1}, v{T+2}
    v_and_b32 v{T+2}, 1, v0
    v_lshlrev_b32 v{T+2}, 4, v{T+2}
    v_lshrrev_b32 v{T}, 3, v0
    s_add_u32 s60, s4, s62
    s_addc_u32 s61, s5, 0
    """)
    for jj in range(4):
        a(f"""
        v_add_u32 v152, {8*jj}, v{T}
        v_xor_b32 v153, {2*(jj&1)}, v{T+1}
        v_mul_u32_u24 v{144+jj}, 9216, v152
        v_lshl_add_u32 v{144+jj}, v153, 5, v{144+jj}
        v_add_u32 v{144+jj}, v{144+jj}, v{T+2}
        v_and_b32 v153, s67, v153
        v_mul_u32_u24 v{148+jj}, 3456, v152
        v_lshl_add_u32 v{148+jj}, v153, 5, v{148+jj}
        v_add_u32 v{148+jj}, v{148+jj}, v{T+2}
        """)
    a(f"""
    s_cmp_eq_u32 s33, 3
    s_cbranch_scc0 KF_lnw
    s_mov_b32 s94, s60
    s_mov_b32 s95, s61
    s_mov_b32 s92, s16
    s_mov_b32 s93, s17
    """)
    if OPT['tlb']:
        sh=OPT['tlb']
        a(f"""
        s_load_dwordx2 s[96:97], s[0:1], 56
        v_lshlrev_b32 v64, {sh}, v0
        v_min_u32 v65, {0x3006000}, v64
        buffer_load_dword v{V_DUM}, v65, s[20:23], 0 offen
        v_min_u32 v65, {5308416-4}, v64
        global_load_dword v{V_DUM}, v65, s[90:91]
        global_load_dword v{V_DUM}, v65, s[8:9]
        global_load_dword v{V_DUM}, v65, s[10:11]
        v_min_u32 v66, {663552-4}, v64
        global_load_dword v{V_DUM}, v66, s[88:89]
        v_min_u32 v66, {2359296-4}, v64
        s_waitcnt lgkmcnt(0)
        global_load_dword v{V_DUM}, v66, s[96:97]
        """)
    def wloop(lab,end,g=92,q=94):
        a(f'{lab}:')
        for jj in range(4):
            a(f's_add_u32 m0, s35, {jj*1024}\ns_nop 0\nglobal_load_lds_dwordx4 v{144+jj}, s[{g}:{g+1}]')
            a(f's_add_u32 m0, s35, {HALF+jj*1024}\ns_nop 0\nglobal_load_lds_dwordx4 v{148+jj}, s[{q}:{q+1}]')
        a(f"""
        s_add_u32 s{g}, s{g}, 294912
        s_addc_u32 s{g+1}, s{g+1}, 0
        s_add_u32 s{q}, s{q}, 110592
        s_addc_u32 s{q+1}, s{q+1}, 0
        s_add_u32 s35, s35, 4096
        s_waitcnt vmcnt({OPT['w3q']})
        s_cmp_lt_u32 s35, {end}
        s_cbranch_scc1 {lab}
        """)
    a(f"""
    s_mov_b32 s35, 0
    s_getpc_b64 s[24:25]
    KF_pc:
    s_sub_u32 s24, s24, KF_pc-{NAME}
    s_subb_u32 s25, s25, 0
    s_lshr_b32 s3, s2, 3
    s_lshl_b32 s3, s3, 4
    v_and_b32 v4, 15, v0
    v_add_u32 v4, s3, v4
    v_lshlrev_b32 v4, 7, v4
    v_min_u32 v4, KF_last-{NAME}, v4
    v_mov_b32 v5, 0
    v_lshl_add_u64 v[4:5], v[4:5], 0, s[24:25]
    s_and_b32 s3, s32, 3
    s_mul_i32 s3, s3, 144
    v_add_u32 v72, s3, v0
    v_min_u32 v74, 15, v0
    v_add_u32 v74, s3, v74
    v_mul_u32_u24 v73, 9216, v72
    v_mul_u32_u24 v72, 3456, v72
    v_mul_u32_u24 v75, 9216, v74
    v_mul_u32_u24 v74, 3456, v74
    global_load_dword v{V_DUM}, v73, s[92:93]{T0}
    global_load_dword v{V_DUM}, v72, s[94:95]{T0}
    v_add_u32 v73, {64*9216}, v73
    v_add_u32 v72, {64*3456}, v72
    v_add_u32 v75, {128*9216}, v75
    v_add_u32 v74, {128*3456}, v74
    global_load_dword v{V_DUM}, v73, s[92:93]{T0}
    global_load_dword v{V_DUM}, v72, s[94:95]{T0}
    global_load_dword v{V_DUM}, v75, s[92:93]{T0}
    global_load_dword v{V_DUM}, v74, s[94:95]{T0}
    global_load_dword v{V_DUM}, v[4:5], off
    s_waitcnt vmcnt({OPT['w3w']})
    """)
    wloop('KF_w3',OPT['W3N']*4096)
    a(f"""
    s_mov_b32 s6, {OOB}
    KF_lnw:
    """)
    a(f"""
    s_lshl_b32 s35, s33, 3
    v_add_u32 v{T}, s35, v{T}
    s_and_b32 s35, s33, 1
    s_lshl_b32 s35, s35, 1
    v_xor_b32 v{T+1}, s35, v{T+1}
    v_mul_u32_u24 v{T+4}, 9216, v{T}
    v_add_u32 v{T+4}, v{T+4}, v{T+2}
    v_mov_b32 v{T+5}, 0
    v_lshl_add_u32 v{T+8}, v{T+1}, 5, v{T+4}
    v_mov_b32 v{T+9}, 0
    s_mov_b32 s100, 294912
    s_mov_b32 s101, 0
    s_add_u32 s12, s16, 128
    s_addc_u32 s13, s17, 0
    v_lshl_add_u64 v[{V_DA}:{V_DA+1}], v[{T+8}:{T+9}], 0, s[12:13]
    v_lshl_add_u64 v[{V_UA}:{V_UA+1}], v[{T+8}:{T+9}], 0, s[18:19]
    s_and_b32 s3, s32, 3
    s_lshl_b32 s3, s3, 2
    s_add_u32 s3, s3, s33
    s_mul_i32 s3, s3, 36
    v_min_u32 v{V_TR}, 35, v0
    v_add_u32 v{V_TR}, s3, v{V_TR}
    v_mul_u32_u24 v{V_TR}, 9216, v{V_TR}
    s_lshl_b32 s34, s32, 4
    s_lshl_b32 s35, s33, 2
    s_add_u32 s34, s34, s35
    s_mul_i32 s35, s34, 18432
    v_lshlrev_b32 v{T}, 4, v0
    v_add_u32 v{V_XO}, s35, v{T}
    v_add_u32 v{V_XO+1}, 18432, v{V_XO}
    v_add_u32 v{V_XO+2}, 36864, v{V_XO}
    v_add_u32 v{V_XO+3}, 55296, v{V_XO}
    s_mul_i32 s35, s34, 147456
    v_add_u32 v{V_HST}, s35, v{T}
    s_sub_u32 s58, s10, s8
    s_subb_u32 s59, s11, s9
    s_sub_u32 s58, s58, 5308416
    s_subb_u32 s59, s59, 0
    s_add_u32 s12, s8, s38
    s_addc_u32 s13, s9, 0
    s_add_u32 s14, s10, s38
    s_addc_u32 s15, s11, 0
    v_and_b32 v{T+3}, 1, v{T+1}
    v_lshl_add_u32 v{T+4}, v{T+3}, 5, v{T+4}
    v_lshl_add_u64 v[{V_ZA}:{V_ZA+1}], v[{T+4}:{T+5}], 0, s[12:13]
    v_lshl_add_u64 v[{T+12}:{T+13}], v[{T+4}:{T+5}], 0, s[14:15]
    v_cmp_lt_u32 vcc, 1, v{T+1}
    s_nop 1
    v_cndmask_b32 v{V_ZA}, v{V_ZA}, v{T+12}, vcc
    v_cndmask_b32 v{V_ZA+1}, v{V_ZA+1}, v{T+13}, vcc
    """)
    for g in range(5): a(f's_mov_b32 s{52+g}, {XN_OFF+g*4096}')
    c_roles_scalar(a)
    a(f'''
    v_lshrrev_b32 v{T}, 4, v0
    v_bfe_u32 v{T+1}, v0, 2, 2
    v_lshl_add_u32 v{T+2}, v{T}, 3, v{T+1}
    v_lshlrev_b32 v{T+2}, 7, v{T+2}
    v_lshrrev_b32 v{T+1}, 1, v{T+1}
    v_and_b32 v{T}, 1, v{T}
    v_lshl_or_b32 v{T+1}, v{T}, 1, v{T+1}
    v_and_b32 v{T+3}, 3, v0
    ''')
    for b in range(4):
        a(f'''
        v_xor_b32 v{T+4}, {b}, v{T+1}
        v_lshl_add_u32 v{T+4}, v{T+4}, 5, v{T+2}
        v_lshl_add_u32 v{V_BN+b}, v{T+3}, 3, v{T+4}
        v_mov_b32 v{V_AD+b}, v{V_BN+b}
        ''')
    for u in range(2):
        a(f'''
        v_lshrrev_b32 v{T+4}, 1, v{T+3}
        v_add_u32 v{T+4}, {2*u}, v{T+4}
        v_xor_b32 v{T+4}, v{T+4}, v{T+1}
        v_lshl_add_u32 v{T+4}, v{T+4}, 5, v{T+2}
        v_and_b32 v{T+5}, 1, v{T+3}
        v_lshl_add_u32 v{T+4}, v{T+5}, 4, v{T+4}
        v_add_u32 v{V_NB+2*u}, {HALF}, v{T+4}
        v_add_u32 v{V_NB+2*u+1}, {HALF+8}, v{T+4}
        ''')
    a(f'''
    v_and_b32 v{T}, 7, v0
    s_lshl_b32 s35, s34, 3
    v_add_u32 v{T}, s35, v{T}
    v_bfe_u32 v{T+1}, v0, 3, 1
    v_lshl_add_u32 v{T}, v{T+1}, 10, v{T}
    v_mul_u32_u24 v{T}, 3456, v{T}
    v_lshrrev_b32 v{T+1}, 4, v0
    v_lshl_add_u32 v{V_QST}, v{T+1}, 4, v{T}
    s_mul_i32 s35, s30, 18
    s_lshl_b32 s42, s31, 2
    s_add_u32 s35, s35, s42
    s_lshl_b32 s35, s35, 10
    s_add_u32 s44, s35, {H_OFF}
    s_add_u32 s45, s44, 147456
    s_add_u32 s46, s44, 294912
    s_add_u32 s47, s44, 442368
    s_add_u32 s48, s62, {QKV_OFF}
    s_add_u32 s49, s48, 27648
    s_add_u32 s50, s48, 55296
    s_add_u32 s51, s48, 82944
    s_lshl_b32 s24, s32, 5
    s_lshl_b32 s3, s30, 2
    s_add_u32 s24, s24, s3
    s_add_u32 s24, s24, s31
    s_lshl_b32 s24, s24, 2
    s_add_u32 s24, s24, {QFL_OFF}
    s_cmp_eq_u32 s33, 0
    s_cselect_b32 s24, s24, {OOB}
    s_lshl_b32 s25, s32, 2
    s_add_u32 s25, s25, s33
    s_lshl_b32 s25, s25, 5
    s_add_u32 s25, s25, s3
    s_add_u32 s25, s25, s31
    s_lshl_b32 s25, s25, 2
    s_add_u32 s25, s25, {HFL_OFF}
    s_and_b32 s26, s57, 1
    s_lshl_b32 s26, s26, 1
    s_lshr_b32 s3, s33, 1
    s_add_u32 s26, s26, s3
    s_lshl_b32 s3, s32, 2
    s_add_u32 s26, s26, s3
    s_lshl_b32 s26, s26, 7
    s_lshl_b32 s3, s69, 5
    s_add_u32 s26, s26, s3
    s_add_u32 s26, s26, {HFL_OFF}
    s_cmp_eq_u32 s68, 0
    s_cselect_b32 s27, 2, 0
    s_and_b32 s28, s57, 7
    s_mul_i32 s28, s28, 3
    s_add_u32 s28, s28, s31
    s_lshl_b32 s28, s28, 2
    s_add_u32 s28, s28, s33
    s_mul_i32 s28, s28, {108*128}
    s_mul_i32 s3, s69, {1152*1152}
    s_add_u32 s28, s28, s3
    s_and_b32 s3, s83, 7
    s_lshl_b32 s3, s3, 2
    s_add_u32 s3, s3, s33
    s_mul_i32 s3, s3, {162*128}
    s_cmp_eq_u32 s68, 0
    s_cselect_b32 s28, s28, s3
    s_add_u32 s28, s28, 2048
    s_add_u32 s29, s28, 16384
    s_cmp_eq_u32 s68, 0
    s_cselect_b32 s29, {OOB}, s29
    s_lshl_b32 s79, s32, 2
    s_add_u32 s79, s79, s33
    s_lshl_b32 s79, s79, 7
    s_add_u32 s79, s79, {XFL_OFF}
    v_and_b32 v{T}, 3, v0
    v_min_u32 v{T}, 2, v{T}
    v_and_b32 v{T+1}, 28, v0
    v_add_u32 v{T}, v{T}, v{T+1}
    v_lshlrev_b32 v{T}, 2, v{T}
    ''')
    a(f'''
    v_lshrrev_b32 v{T+2}, 4, v0
    v_mul_u32_u24 v{T+2}, 18432, v{T+2}
    v_and_b32 v{T+3}, 15, v0
    v_lshl_add_u32 v{T+2}, v{T+3}, 7, v{T+2}
    s_bfe_u32 s3, s2, 0x30003
    s_lshl_b32 s3, s3, 11
    s_mul_i32 s35, s34, 18432
    s_add_u32 s3, s3, s35
    s_add_u32 s3, s3, {XN_OFF+2048}
    v_add_u32 v{T+2}, s3, v{T+2}
    ''')
    a(f'''
    s_load_dwordx2 s[88:89], s[0:1], 0
    s_load_dwordx2 s[90:91], s[0:1], 56
    s_mul_i32 s92, s70, {XT}
    s_add_u32 s92, s92, s72
    s_add_u32 s92, s92, {X_OFF}
    s_mul_i32 s97, s69, {XD}
    s_add_u32 s97, s97, s92
    s_lshl_b32 s62, s70, 2
    s_add_u32 s62, s62, s33
    s_lshl_b32 s62, s62, 5
    s_add_u32 s62, s62, {FLG_OFF}
    s_lshl_b32 s63, s69, 2
    s_add_u32 s63, s63, s62
    ''')
    for j in (1,2,3):
        a(f's_xor_b32 s{93+j}, s69, {j}\ns_mul_i32 s{93+j}, s{93+j}, {XD}\ns_add_u32 s{93+j}, s{93+j}, {j*4*3072}\ns_add_u32 s{93+j}, s{93+j}, s92')
    a('s_waitcnt lgkmcnt(0)')
    nper=(18-OPT['W3N'])//3
    a(f'''
    s_mul_i32 s3, s33, {nper}
    s_add_u32 s3, s3, {OPT['W3N']}
    s_lshl_b32 s35, s3, 12
    s_add_u32 s36, s35, {nper*4096}
    s_mul_i32 s37, s3, 294912
    s_add_u32 s8, s16, s37
    s_addc_u32 s9, s17, 0
    s_mul_i32 s37, s3, 110592
    s_add_u32 s10, s60, s37
    s_addc_u32 s11, s61, 0
    ''')
    a('''
    s_add_u32 s60, s16, 128
    s_addc_u32 s61, s17, 0
    s_add_u32 s4, s18, 128
    s_addc_u32 s5, s19, 0
    s_cmp_eq_u32 s68, 0
    s_cselect_b64 s[60:61], s[60:61], s[12:13]
    s_cselect_b64 s[4:5], s[4:5], s[14:15]
    ''')
    a('v_mov_b64 v[246:247], 0\nv_mov_b64 v[250:251], 0')
    a('v_mov_b32 v154, 0\ns_cmp_eq_u32 s33, 3\ns_cbranch_scc1 KF_join')
    ln_compute(a,0)
    st(a,16)
    a(f"""
    KF_join:
    global_load_dword v155, v154, s[80:81] sc1
    s_mov_b32 s3, 0
    KF_ep:
    s_waitcnt vmcnt(0)
    v_readfirstlane_b32 s67, v155
    s_add_u32 s3, s3, 1
    s_cmp_gt_u32 s3, {OPT['SPIN']}
    s_cbranch_scc1 KF_epok
    s_cmp_lg_u32 s67, 0
    s_cbranch_scc1 KF_epok
    global_load_dword v155, v154, s[80:81] sc1
    s_branch KF_ep
    KF_epok:
    s_add_u32 s39, s67, 1
    v_mov_b32 v155, s39
    buffer_store_dword v155, off, s[20:23], s6 sc1
    """)
    st(a,1)
    if nper:
        a('s_cmp_eq_u32 s33, 3\ns_cbranch_scc1 KF_now')
        wloop('KF_wl','s36',8,10)
        a('KF_now:')
    vpoll(a,'xn',T+1,T,'s79')
    st(a,2)
    vm=VM()
    for g in range(OPT['FD0']):
        for it in grp_x(g): a(it[0]); vm.issue(it[2])
    if OPT['xt']:
        a(f'buffer_load_dword v{V_DUM}, v{T+2}, s[20:23], 0 offen sc1'); vm.issue('t')
    a('s_mov_b64 vcc, s[64:65]')
    a('s_barrier')
    for sl in range(8):
        w,ad=(V_SG+sl*4,V_NB+sl) if sl<4 else (V_WF+(sl-4)*4,V_AD+sl-4)
        a(f'ds_read_b64_tr_b16 v[{w}:{w+1}], v{ad} offset:0')
        a(f'ds_read_b64_tr_b16 v[{w+2}:{w+3}], v{ad} offset:512')
    a(f's_waitcnt vmcnt({vm.wait_n("g0")})')
    st(a,3)
    bodyF(a,vm)
    a('s_cbranch_vccz KF_noq2\ns_nop 1')
    for s in flat(ch_epiQ(V_ACC[1],2,64)[0]): a(s)
    a('KF_noq2:')
    st(a,4)
    zset=f'''
    s_mov_b32 s43, 1
    v_mov_b32 v{V_DA}, v{V_ZA}
    v_mov_b32 v{V_DA+1}, v{V_ZA+1}
    v_mov_b32 v{V_NB}, v{V_BN}
    v_mov_b32 v{V_NB+1}, v{V_BN+1}
    v_add_u32 v{V_NB+2}, 4096, v{V_BN}
    v_add_u32 v{V_NB+3}, 4096, v{V_BN+1}
    '''
    a(f'''
    s_mov_b32 s43, 0
    v_mov_b32 v{V_ONE}, s39
    v_min_u32 v15, 35, v0
    v_lshlrev_b32 v15, 7, v15
    v_mov_b32 v{V_NB}, v{V_BN}
    v_mov_b32 v{V_NB+1}, v{V_BN+1}
    v_mov_b32 v{V_NB+2}, v{V_BN+2}
    v_mov_b32 v{V_NB+3}, v{V_BN+3}
    s_cmp_eq_u32 s68, 0
    s_cbranch_scc1 KF_loop
    ''')
    a(zset)
    a('KF_loop:\ns_sub_u32 m0, s66, 4096')
    wt=[f'buffer_load_dword v{V_DUM}, v15, s[84:87], s28 offen',f's_add_u32 s28, s28, {36*128}']
    ty=[(100,120,[f'global_load_dword v{V_DUM}, v{V_TR}, s[12:13]',f'global_load_dword v{V_DUM}, v{V_TR}, s[14:15]']),(200,210,wt)]
    body(a,VM(),1,ch_epiG(V_ACC[0]),mid=True,seqs=ty)
    a(f'''
    s_cmp_lg_u32 s43, 0
    s_cbranch_scc1 KF_z
    v_lshl_add_u64 v[{V_DA}:{V_DA+1}], v[{V_DA}:{V_DA+1}], 0, s[58:59]
    v_add_u32 v{V_NB}, {HALF}, v{V_BN}
    v_add_u32 v{V_NB+1}, {HALF}, v{V_BN+1}
    v_add_u32 v{V_NB+2}, {HALF}, v{V_BN+2}
    v_add_u32 v{V_NB+3}, {HALF}, v{V_BN+3}
    ''')
    clr=[f'buffer_store_dwordx4 v[96:99], v{C_LV}, s[20:23], s{93+j} offen offset:{l*1024} sc1' for j in (1,2,3) for l in range(3)]
    xt=[f'global_load_dword v{V_DUM}, v{C_OA+i}, s[88:89] offset:{l*128}' for l in range(3) for i in range(2)]
    st(a,5)
    tx=[(100,110,wt)]
    body(a,VM(),0,ch_epiU(V_ACC[1]),pace=True,epilo=OPT['XEPI'],seqs=tx+[(140,280,c_roles_vector())])
    st(a,6)
    a('''
    s_add_u32 s44, s44, 2048
    s_add_u32 s45, s45, 2048
    s_add_u32 s46, s46, 2048
    s_add_u32 s47, s47, 2048
    s_mov_b32 s24, s25
    ''')
    a(zset)
    a('s_branch KF_loop\nKF_z:')
    st(a,7)
    a('s_cmp_eq_u32 s68, 0\ns_cbranch_scc0 KF_zl')
    a(f'''
    s_mov_b32 s6, s78
    s_mov_b32 s24, s62
    v_min_u32 v{V_FA}, 7, v0
    v_lshlrev_b32 v{V_FA}, 2, v{V_FA}
    v_add_u32 v{V_ONE}, 1, v{V_ONE}
    v_add_u32 v255, 1, v{V_ONE}
    ''')
    pw=[];ph=[]
    for k in range(3): pw+=[x for x in prefetch(ORDER[k],'s6','W') if x!='s_nop 0']
    for k in range(5): ph+=prefetch(ORDER[k],'s78','H')
    zero=[f'v_mov_b64 v[{r}:{r+1}], 0' for r in range(96,192,2)]
    vmz=VM()
    bodyZ(a,vmz,[(60,61,['@FLD']),(62,150,pw),(152,270,['@CHK8']+ph),(2,60,zero[2:16]),(146,286,c_addr_items()+zero[:2]+zero[16:]),(OPT['g2'],OPT['g2']+1,['@G2'])])
    st(a,8)
    a('s_nop 4')
    z_tail(a)
    nH=[k for k,t in enumerate(vmz.ops)]
    a(f'buffer_load_dword v{V_FL}, v{V_FA}, s[20:23], s26 offen sc1')
    a('s_waitcnt vmcnt(17) lgkmcnt(0)\ns_barrier')
    for t in range(6): a(c_rd(ORDER[0],t,0)); a(c_rd(ORDER[0],t,1))
    for k in (3,4):
        for x in prefetch(ORDER[k],'s6','W'): a(x)
    a('s_waitcnt lgkmcnt(0)\ns_branch C_go')
    a('KF_zl:')
    for x in c_roles_vector(): a(x)
    a(f'''
    s_lshr_b32 s26, s83, 3
    s_max_u32 s26, s26, 1
    s_sub_u32 s26, s26, 1
    s_lshl_b32 s26, s26, 7
    s_add_u32 s26, s26, {QFL_OFF}
    v_lshlrev_b32 v253, 2, v0
    s_lshr_b32 s3, s83, 3
    s_cmp_eq_u32 s3, 0
    s_movk_i32 s3, 255
    s_cselect_b32 s3, 127, s3
    v_and_b32 v253, s3, v253
    s_and_b32 s92, s83, 1
    s_lshl_b32 s92, s92, 10
    s_lshr_b32 s93, s83, 1
    s_lshl_b32 s93, s93, 5
    s_add_u32 s92, s92, s93
    s_mul_i32 s92, s92, 3456
    s_add_u32 s92, s92, {QKV_OFF-7*3456}
    s_add_u32 s92, s92, s66
    s_add_u32 s93, s92, 86400
    ''')
    ql=['@QP']
    for n in range(22):
        ql+=[f's_add_u32 m0, s66, {HALF+n*4096}', f'buffer_load_dwordx4 v{C_LV}, s[20:23], s92 offen sc1 lds', 's_add_u32 s92, s92, 4096']
    bodyZ(a,VM(),[(OPT['ql'],OPT['ql']+1,['@QL']),(OPT['qp'],280,ql)])
    a('s_barrier')
    for n in range(12):
        a(f's_add_u32 m0, s66, {n*4096}\ns_nop 0\nbuffer_load_dwordx4 v{C_LV}, s[20:23], s93 offen sc1 lds\ns_add_u32 s93, s93, 4096')
    z_tail(a)
    a(f'v_add_u32 v255, 2, v{V_ONE}')
    st(a,8)
    def wq():
        a('s_waitcnt vmcnt(0)\nbuffer_store_dword v255, off, s[20:23], s25 sc1\ns_barrier'); st(a,14)
        a('v_lshlrev_b32 v5, 7, v0\ns_sub_u32 s28, s29, 8192\ns_sub_u32 s27, s29, 16384')
        for r in ('s27','s28','s29'): a(f'buffer_load_dword v240, v5, s[84:87], {r} offen')
    attention(a,wq,(25,HALF,0))
    st(a,15)
    light_after_att(a)
    a(f'''
    s_mov_b32 s25, {OOB}
    s_mov_b32 s27, 0
    v_mov_b32 v{V_FA}, 0
    s_mul_i32 s97, s70, {XT}
    s_add_u32 s97, s97, s72
    s_add_u32 s97, s97, {X_OFF}
    s_add_u32 s94, s97, {XD}
    s_add_u32 s95, s97, {2*XD}
    s_add_u32 s96, s97, {3*XD}
    s_add_u32 s63, s62, 16
    ''')
    for t in range(6): a(c_rd(ORDER[0],t,0)); a(c_rd(ORDER[0],t,1))
    a('s_waitcnt lgkmcnt(8)\ns_branch C_go')
    x_forward(a)
    a('C_go:')
    st(a,9)
    c_loop(a)
    c_finish(a)
    a('KF_end:\nKF_last:\ns_endpgm')
    return kernel_desc(NAME,512,102,256)

def build():
    a=Asm()
    hdr=open('recurrent_scan__sliding_local_dilated__swiglu_ffn__prompt.s.ref').read().split('\n')
    head=[l for l in hdr if l.startswith(';') and '@launch' not in l]
    d=gen_kf(a)
    s='\n'.join(head)+'\n; @launch grid=(256,1,1) block=(256,1,1) lds=163840\n'
    s+='.amdgcn_target "amdgcn-amd-amdhsa--gfx950"\n.text\n'+a.text()
    s+='.section .rodata,"a"\n.p2align 6\n'+d
    return s
if __name__=='__main__':
    for o in sys.argv[2:]:
        if '=' in o:
            k,v=o.split('='); OPT[k]=int(v)
        else: OPT[o]=True
    open(sys.argv[1],'w').write(build())
```

```python
import sys
from asmlib import *

NAME='recurrent_scan__sliding_local_dilated__swiglu_ffn__prompt_kernel'
XN_OFF=0; O_OFF=0x240000; QKV_OFF=0x480000; H_OFF=0xB40000; X_OFF=0x1D40000; XD=5*4*3072; XT=4*XD
FLG_OFF=0x3000000; OFL_OFF=FLG_OFF+0x2000; HFL_OFF=FLG_OFF+0x3000; QFL_OFF=FLG_OFF+0x4000; XFL_OFF=FLG_OFF+0x5000
PROF_OFF=0x8000000
OOB=0x7ffff000
OPT=dict(prof=False, FD=7, MIDKS=11, XEPI=80, SPIN=1000000, tu0=0, tg1=5, tu1=10, w3q=40, FD0=3, t0nt=0, w3w=63, xt=1, W3N=6, g2=235, psl=2, pp=0, pg=6, tlb=0, ql=60, qp=130)
STF=' sc1'
HALF=73728
V_AD=2; V_NB=6; V_DA=10; V_DUM=12; V_TR=13; V_HST=14; V_QST=15; V_WF=16; V_SG=32; V_ACC=(64,128); V_X=192; V_T=224
V_BN=240; V_ZA=244; V_QA=246; V_UA=248; V_XO=252; V_ONE=254
S_DI='s[100:101]'; S_QI='s[4:5]'
C_AD=[6,7,8,9,10,11,13,15,240,241,242,243]; C_WF=[16,20,24,28,64,68]; C_ACC=96; C_RX=192; C_XV=72; C_T=2
C_DV=246; C_HV=249; C_LV=251; C_OA=252
STG=24576; NS=6; ORDER=[3,4,5,0,1,2]
LAM_H=[0,2,4,6,9,11,13,15,1,3,5,10,12,14,7,8,16,17]; LAM_S=list(range(9))

def st(a,i,rt=False):
    if OPT.get('dbg') is not None and OPT.get('dbg') is not False:
        m={30:1,16:2,1:3,2:4,3:5,4:6,5:7,6:8,7:9,8:10,9:11,10:12,11:13,12:14,13:15,14:7,15:8}
        if i not in m: return
        lab=a.label('DB')
        a(f'''
        s_cmp_lg_u32 s33, 0
        s_cbranch_scc1 {lab}
        s_cmp_lg_u32 s2, {OPT['dbg']}
        s_cbranch_scc1 {lab}
        s_memrealtime s[98:99]
        s_waitcnt lgkmcnt(0)
        v_mov_b32 v1, s98
        s_load_dwordx2 s[98:99], s[0:1], 64
        s_waitcnt lgkmcnt(0)
        s_mov_b64 exec, 1
        global_store_dword v0, v1, s[98:99] offset:{4*m[i]}
        s_mov_b64 exec, -1
        {lab}:
        ''')
        return
    if not OPT['prof'] and not (OPT.get('span') and i>=30): return
    if OPT.get('rtp'): rt=True
    a(f'''
    {"s_memrealtime" if rt else "s_memtime"} s[98:99]
    s_waitcnt lgkmcnt(0)
    v_mov_b32 v1, s98
    s_lshl_b32 s98, s2, 7
    s_add_u32 s98, s98, {PROF_OFF+4*i}
    s_cmp_eq_u32 s33, 0
    s_cselect_b32 s98, s98, {OOB}
    buffer_store_dword v1, off, s[20:23], s98
    ''')

class VM:
    def __init__(self): self.ops=[]
    def issue(self,t): self.ops.append(t)
    def wait_n(self,tag):
        idx=max(i for i,t in enumerate(self.ops) if t==tag)
        return min(63,len(self.ops)-1-idx)

class Sched:
    def __init__(self,nm,cap=2):
        self.nm=nm; self.cap=cap
        self.fill=[[] for _ in range(nm)]; self.post=[[] for _ in range(nm)]; self.pre=[[] for _ in range(nm+1)]
        self.load=[0]*nm; self.tail=[]
    def add_post(self,m,ins,cost=1):
        m=min(m,self.nm-1); self.post[m].append(ins); self.load[m]+=cost
    def add_pre(self,m,ins,cost=1):
        self.pre[m].append(ins)
        if m>0: self.load[m-1]+=cost
    def add_fill(self,m,item):
        self.fill[m].append(item); self.load[m]+=item[1]
    def chains(self,chains,lo,hi,nq,pace=False):
        total=sum(x[1] for c in chains for p in c for x in p)
        free=sum(max(0,self.cap-self.load[m]) for m in range(lo,hi))
        over=max(0,total-int(free*0.97))
        stt=[[0,0,-1] for _ in chains]; done=[None]*len(chains)
        placed=0; ov=0.0; m=lo
        while any(d is None for d in done):
            mm=min(m,self.nm-1)
            capl=self.cap-self.load[mm]
            ov+=over/(hi-lo)
            if ov>=1: capl+=1; ov-=1
            if m>=hi: capl=max(capl,3)
            if pace and over==0 and m<hi:
                capl=min(capl,int(total*(m-lo+1)/(hi-lo)-placed+0.999))
            while capl>0:
                cands=[]
                for k,c in enumerate(chains):
                    if done[k] is not None: continue
                    if k>=nq and (done[k-nq] is None or done[k-nq]>m-2): break
                    ph,ix,pg=stt[k]
                    if ix==0 and pg>=m: continue
                    cands.append(k)
                pick=None
                if capl>=2:
                    for k in cands:
                        if chains[k][stt[k][0]][stt[k][1]][1]>=2: pick=k;break
                if pick is None:
                    for k in cands:
                        if chains[k][stt[k][0]][stt[k][1]][1]<=capl: pick=k;break
                if pick is None: break
                ph,ix,pg=stt[pick]; it=chains[pick][ph][ix]
                if m<self.nm: self.fill[mm].append(it); self.load[mm]+=it[1]
                else: self.tail.append(it)
                capl-=it[1]; placed+=it[1]; ix+=1
                if ix==len(chains[pick][ph]):
                    ph+=1; ix=0; pg=m
                    if ph==len(chains[pick]): done[pick]=m
                stt[pick]=[ph,ix,pg]
            m+=1
            assert m<hi+400
        return m
    def seq(self,lo,hi,L):
        n=len(L); m=lo; nm=self.nm
        for k,x in enumerate(L):
            m=max(m,lo+int(k*(hi-lo)/n))
            lim=max(m,lo+int((k+1)*(hi-lo)/n)-1)
            if m>=nm: self.tail.append((x,1,'x') if x.startswith(('buffer','global')) else (x,1)); continue
            best=min(range(m,min(lim,nm-1)+1),key=lambda g:(self.load[g],g))
            if x.startswith('@'): self.add_post(best,x,2)
            elif x.startswith(('buffer','global')): self.add_fill(best,(x,1,'x'))
            else: self.add_fill(best,(x,1))
            m=best+1
    def emit(self,a,vm,mfma,lds_init,special):
        lds=list(lds_init)
        def out(s):
            nonlocal lds
            if s.startswith('WAITL'):
                need=int(s[5:].split(':')[0]); slack=int(s.split(':')[1]) if ':' in s else 0
                c=[i for i,x in enumerate(lds) if x<=need]
                if c:
                    idx=max(c); n=max(0,len(lds)-1-idx-slack)
                    a(f's_waitcnt lgkmcnt({min(n,15)})'); lds=lds[idx+1:]
            elif s.startswith('@'): special(s[1:])
            else:
                if ';tag=' in s:
                    s,t=s.split(';tag='); lds.append(int(t))
                a(s)
        for s in self.pre[0]: out(s)
        for m in range(self.nm):
            a(mfma(m))
            items=[(f[0],f[2] if len(f)>2 else None) for f in self.fill[m]]+[(s,None) for s in self.post[m]]
            late=[s for s in self.pre[m+1] if s.startswith('@')]
            waits=[s for s in self.pre[m+1] if not s.startswith('@')]
            nv=[x for x in items if not x[0].startswith('v_')]; va=[x for x in items if x[0].startswith('v_')]
            if not late:
                for s in waits: out(s)
            for x in nv+va:
                out(x[0])
                if x[1]: vm.issue(x[1])
            if late:
                for s in late+waits: out(s)
        for f in self.tail:
            out(f[0])
            if len(f)>2: vm.issue(f[2])

def xreg(i,ks):
    if ks<16: return ar((ks*4+i)*4,4)
    return vr(V_X+((ks-16)*4+i)*4,4)

def ch_epiG(acc):
    ch=[]; n=0
    for b in range(4):
        for i in range(4):
            A=acc+(b*4+i)*4; T=V_T+(n%4)*4; n+=1; S=V_SG+(b*4+i)*2
            ch.append([[(f'v_mul_f32 v{T+r}, s40, v{A+r}',1) for r in range(4)],
              [(f'v_exp_f32 v{T+r}, v{T+r}',2) for r in range(4)],
              [(f'v_add_f32 v{T+r}, 1.0, v{T+r}',1) for r in range(4)],
              [(f'v_rcp_f32 v{T+r}, v{T+r}',2) for r in range(4)],
              [(f'v_mul_f32 v{T+r}, v{T+r}, v{A+r}',1) for r in range(4)],
              [(f'v_cvt_pk_bf16_f32 v{S}, v{T}, v{T+1}',1),(f'v_cvt_pk_bf16_f32 v{S+1}, v{T+2}, v{T+3}',1)]])
    return ch,4
def ch_epiU(acc):
    ch=[]; n=0
    for p in range(2):
        for i in range(4):
            T=V_T+(n%2)*8; n+=1; p1=[];p2=[]
            for hb in range(2):
                b=2*p+hb; A=acc+(b*4+i)*4; S=V_SG+(b*4+i)*2; t=T+4*hb
                p1+=[(f'v_lshlrev_b32 v{t}, 16, v{S}',1),(f'v_and_b32 v{t+1}, s41, v{S}',1),
                     (f'v_lshlrev_b32 v{t+2}, 16, v{S+1}',1),(f'v_and_b32 v{t+3}, s41, v{S+1}',1)]
                p2+=[(f'v_mul_f32 v{t+r}, v{t+r}, v{A+r}',1) for r in range(4)]
            p3=[(f'v_cvt_pk_bf16_f32 v{T+j}, v{T+2*j}, v{T+2*j+1}',1) for j in range(4)]
            p4=[(f'buffer_store_dwordx4 v[{T}:{T+3}], v{V_HST}, s[20:23], s{44+i} offen offset:{p*1024}{STF}',2,'st')]
            ch.append([p1,p2,p3,p4])
    return ch,2
def ch_epiQ(acc,b0,coff):
    ch=[]
    for i in range(4):
        D=V_T+i*4; p1=[]
        for hb in range(2):
            A=acc+((b0+hb)*4+i)*4
            p1+=[(f'v_cvt_pk_bf16_f32 v{D+2*hb}, v{A}, v{A+1}',1),(f'v_cvt_pk_bf16_f32 v{D+2*hb+1}, v{A+2}, v{A+3}',1)]
        ch.append([p1,[(f'buffer_store_dwordx4 v[{D}:{D+3}], v{V_QST}, s[20:23], s{48+i} offen offset:{coff}{STF}',2,'st')]])
    return ch,4
def flat(ch):
    out=[]
    for p in range(max(len(c) for c in ch)):
        for c in ch:
            if p<len(c): out+=[x[0] for x in c[p]]
    return out
def epiZ_tail(a,acc):
    a(f'''
    s_mul_i32 s35, s30, 18
    s_lshr_b32 s42, s31, 1
    s_add_u32 s35, s35, s42
    s_add_u32 s35, s35, 16
    s_lshl_b32 s35, s35, 10
    s_and_b32 s42, s31, 1
    s_lshl_b32 s42, s42, 3
    s_add_u32 s35, s35, s42
    s_add_u32 s44, s35, {H_OFF}
    s_add_u32 s45, s44, 147456
    s_add_u32 s46, s44, 294912
    s_add_u32 s47, s44, 442368
    ''')
    ch=[]
    for i in range(4):
        Gr=acc+i*4; U=acc+(4+i)*4; T=V_T+i*4; D=V_SG+2*i
        ch.append([[(f'v_mul_f32 v{T+r}, s40, v{Gr+r}',1) for r in range(4)],
          [(f'v_exp_f32 v{T+r}, v{T+r}',2) for r in range(4)],
          [(f'v_add_f32 v{T+r}, 1.0, v{T+r}',1) for r in range(4)],
          [(f'v_rcp_f32 v{T+r}, v{T+r}',2) for r in range(4)],
          [(f'v_mul_f32 v{T+r}, v{T+r}, v{Gr+r}',1) for r in range(4)],
          [(f'v_cvt_pk_bf16_f32 v{T}, v{T}, v{T+1}',1),(f'v_cvt_pk_bf16_f32 v{T+2}, v{T+2}, v{T+3}',1)],
          [(f'v_and_b32 v{T+1}, s41, v{T}',1),(f'v_lshlrev_b32 v{T}, 16, v{T}',1),(f'v_and_b32 v{T+3}, s41, v{T+2}',1),(f'v_lshlrev_b32 v{T+2}, 16, v{T+2}',1)],
          [(f'v_mul_f32 v{T+r}, v{T+r}, v{U+r}',1) for r in range(4)],
          [(f'v_cvt_pk_bf16_f32 v{D}, v{T}, v{T+1}',1),(f'v_cvt_pk_bf16_f32 v{D+1}, v{T+2}, v{T+3}',1)],
          [(f'buffer_store_dwordx2 v[{D}:{D+1}], v{V_HST}, s[20:23], s{44+i} offen{STF}',2,'st')]])
    for s in flat(ch): a(s)

def chk8(a,off,thr,lab):
    a(f's_mov_b32 s3, 0\nK_{lab}_c:\ns_waitcnt lgkmcnt(0)')
    for i in range(8): a(f's_sub_u32 s{88+i}, s{88+i}, {thr}')
    a(f'''
    s_max_u32 s88, s88, s89
    s_max_u32 s90, s90, s91
    s_max_u32 s92, s92, s93
    s_max_u32 s94, s94, s95
    s_max_u32 s88, s88, s90
    s_max_u32 s92, s92, s94
    s_max_u32 s88, s88, s92
    s_cmp_le_u32 s88, 2
    s_cbranch_scc1 K_{lab}_ok
    s_add_u32 s3, s3, 1
    s_cmp_gt_u32 s3, {OPT['SPIN']}
    s_cbranch_scc1 K_{lab}_ok
    s_load_dwordx8 s[88:95], s[20:21], {off} glc
    s_branch K_{lab}_c
    K_{lab}_ok:
    ''')
V_FL=245; V_FA=244
def vchk(a,off,thr,lab):
    a(f'''
    v_subrev_u32 v{V_FL}, {thr}, v{V_FL}
    v_cmp_lt_u32 vcc, 2, v{V_FL}
    s_mov_b32 s3, 0
    s_cbranch_vccz K_{lab}_ok
    K_{lab}_c:
    buffer_load_dword v{V_FL}, v{V_FA}, s[20:23], {off} offen sc1
    s_add_u32 s3, s3, 1
    s_cmp_gt_u32 s3, {OPT['SPIN']}
    s_cbranch_scc1 K_{lab}_ok
    s_waitcnt vmcnt(0)
    v_subrev_u32 v{V_FL}, {thr}, v{V_FL}
    v_cmp_lt_u32 vcc, 2, v{V_FL}
    s_nop 0
    s_cbranch_vccnz K_{lab}_c
    K_{lab}_ok:
    ''')
def vpoll(a,lab,vdst,vaddr,soff,sleep=0,first_loaded=False):
    a('s_mov_b32 s3, 0')
    if first_loaded: a(f's_branch P_{lab}_t')
    a(f'''
    P_{lab}:
    s_add_u32 s3, s3, 1
    s_cmp_gt_u32 s3, {OPT['SPIN']}
    s_cbranch_scc1 P_{lab}_ok
    buffer_load_dword v{vdst}, v{vaddr}, s[20:23], {soff} offen sc1
    s_waitcnt vmcnt(0)
    P_{lab}_t:
    v_cmp_ne_u32 vcc, s39, v{vdst}
    s_nop 1
    s_cmp_eq_u64 vcc, 0
    s_cbranch_scc1 P_{lab}_ok
    ''')
    if sleep: a(f's_sleep {sleep}')
    a(f's_branch P_{lab}\nP_{lab}_ok:')

def ppoll(a,lab,vd,vaddr,soff,gap,first=None):
    ld=lambda r: f'buffer_load_dword v{r}, v{vaddr}, s[20:23], {soff} offen sc1'
    if first is not None:
        a(f'v_cmp_ne_u32 vcc, s39, v{first}\ns_nop 0\ns_cbranch_vccz P_{lab}_ok')
    a(f's_mov_b32 s3, 0\n{ld(vd[0])}\ns_sleep {gap}\n{ld(vd[1])}\ns_sleep {gap}\n{ld(vd[2])}\nP_{lab}:')
    for r in vd:
        a(f'''
        s_waitcnt vmcnt(2)
        v_cmp_ne_u32 vcc, s39, v{r}
        s_nop 0
        s_cbranch_vccz P_{lab}_ok
        {ld(r)}
        ''')
    a(f's_add_u32 s3, s3, 1\ns_cmp_lt_u32 s3, {OPT["SPIN"]}\ns_cbranch_scc1 P_{lab}\nP_{lab}_ok:')

def body(a,vm,accset,epi,kind='full',dma=True,last=False,mid=False,seqs=(),pace=True,cap=2,epilo=1):
    acc=V_ACC[accset]; ns=72 if kind=='full' else 36; nm=ns*4
    S=Sched(nm,cap)
    step=4096 if kind=='full' else 8192; midg=9 if kind=='full' else 5
    def rd_off(t):
        g=t//4
        return (g*step if g<midg else (g-midg)*step), g>=midg
    for t in range(ns):
        m0=t*4
        if t%2==0: S.add_pre(m0,f'WAITL{min(t+1,ns-1)}')
        tn=t+4; w=V_WF+(t%4)*4; ad=V_AD+(t%4)
        if tn<ns:
            off,hi=rd_off(tn); _,hip=rd_off(t)
            if hi and not hip: S.add_post(m0+1,f'v_add_u32 v{ad}, {midg*step}, v{ad}')
            S.add_post(m0+3,f'ds_read_b64_tr_b16 v[{w}:{w+1}], v{ad} offset:{off};tag={tn}')
            S.add_post(m0+4,f'ds_read_b64_tr_b16 v[{w+2}:{w+3}], v{ad} offset:{off+512};tag={tn}')
        elif not last:
            S.add_post(m0+1,f'v_mov_b32 v{ad}, v{V_NB+(t%4)}')
            if tn==ns: S.add_post(m0+2,'@SUB',2)
            S.add_post(m0+3,f'ds_read_b64_tr_b16 v[{w}:{w+1}], v{ad} offset:0;tag={tn}')
            S.add_post(m0+4,f'ds_read_b64_tr_b16 v[{w+2}:{w+3}], v{ad} offset:512;tag={tn}')
    if dma:
        for n in range(18):
            m=(n//3)*16+(n%3)*5+1
            S.add_fill(m,('s_add_u32 m0, m0, 4096',1))
            S.add_fill(m+1,(f'global_load_lds_dwordx4 v[{V_DA}:{V_DA+1}], off',1,'dma'))
            S.add_fill(m+1,(f'v_lshl_add_u64 v[{V_DA}:{V_DA+1}], v[{V_DA}:{V_DA+1}], 0, {S_DI}',1))
    if mid: S.add_post(OPT['MIDKS']*16+1,'@MID',3)
    endm=0
    if epi: endm=S.chains(epi[0],epilo,nm-6,epi[1],pace=pace)
    for lo,hi,L in seqs:
        S.seq(endm+1 if lo=='epi' else lo,hi,L)
    def mf(m):
        t=m//4;i=m%4
        ks,b=(t//4,t%4) if kind=='full' else (t//2,t%2)
        D=acc+(b*4+i)*4; w=V_WF+(t%4)*4
        return f'v_mfma_f32_16x16x32_bf16 {vr(D,4)}, {vr(w,4)}, {xreg(i,ks)}, {"0" if ks==0 else vr(D,4)}'
    def special(n):
        if n=='SUB': a(f's_waitcnt vmcnt({vm.wait_n("dma")})\ns_barrier')
        elif n=='MID':
            a(f's_waitcnt vmcnt({min(63,len(vm.ops))})\ns_barrier')
            a(f'buffer_store_dword v{V_ONE}, off, s[20:23], s24 sc1'); vm.issue('fl')
        elif n=='CHK8': chk8(a,'s26','s39','Zh')
    S.emit(a,vm,mf,[0,0,1,1,2,2,3,3],special)

def grp_w(g):
    return [(f's_add_u32 m0, s66, {g*4096}',1),
       (f'global_load_lds_dwordx4 v[{V_DA}:{V_DA+1}], off',1,f'g{g}'),
       (f's_add_u32 m0, s66, {HALF+g*4096}',1),
       (f'v_lshl_add_u64 v[{V_DA}:{V_DA+1}], v[{V_DA}:{V_DA+1}], 0, {S_DI}',1),
       (f'global_load_lds_dwordx4 v[{V_QA}:{V_QA+1}], off',1,f'g{g}'),
       (f'v_lshl_add_u64 v[{V_QA}:{V_QA+1}], v[{V_QA}:{V_QA+1}], 0, {S_QI}',1)]
def grp_x(g):
    return [(f'buffer_load_dwordx4 {xreg(i,g)}, v{V_XO+i}, s[20:23], s{52+g//4} offen offset:{(g%4)*1024} sc1',1,f'g{g}') for i in range(4)]
def u0_items(g):
    return [(f's_add_u32 m0, s66, {HALF+g*4096}',1),
            (f'global_load_lds_dwordx4 v[{V_UA}:{V_UA+1}], off',1,f'u{g}'),
            (f'v_lshl_add_u64 v[{V_UA}:{V_UA+1}], v[{V_UA}:{V_UA+1}], 0, {S_DI}',1)]

def bodyF(a,vm):
    FD=OPT['FD']; nm=18*32; nxt=OPT['FD0']
    S=Sched(nm)
    def regs(sl):
        if sl<4: return V_SG+sl*4, V_NB+sl, V_ACC[1]+sl*16
        return V_WF+(sl-4)*4, V_AD+(sl-4), V_ACC[0]+(sl-4)*16
    for ks in range(18):
        for sl in range(8):
            t=ks*8+sl; m0=t*4; w,ad,_=regs(sl)
            if sl==2: S.add_pre(m0,f'@SKIP{ks}')
            if sl==4: S.pre[m0].append(f'@LAB{ks}')
            if sl%2==0: S.add_pre(m0,f'WAITL{t+1}:4')
            kn=ks+1
            m2=m0+4 if sl not in (1,3) else m0+3
            if kn<18:
                if kn==9: S.add_post(m0+1,f'v_add_u32 v{ad}, 36864, v{ad}')
                off=(kn%9)*4096
                S.add_post(m0+3,f'ds_read_b64_tr_b16 v[{w}:{w+1}], v{ad} offset:{off};tag={t+8}')
                S.add_post(m2,f'ds_read_b64_tr_b16 v[{w+2}:{w+3}], v{ad} offset:{off+512};tag={t+8}')
            elif sl>=4:
                S.add_post(m0+1,f'v_add_u32 v{ad}, {HALF}, v{V_BN+sl-4}')
                if sl==4: S.add_post(m0+2,'@SUB',2)
                S.add_post(m0+3,f'ds_read_b64_tr_b16 v[{w}:{w+1}], v{ad} offset:0;tag={t+8}')
                S.add_post(m2,f'ds_read_b64_tr_b16 v[{w+2}:{w+3}], v{ad} offset:512;tag={t+8}')
        base=ks*32
        if ks<17: S.add_post(base+30,f'@READY{ks+1}',1)
        if ks%3==0 and 0<ks<17: S.add_post(base+1,'s_barrier',1)
        mand=[base+2,base+4,base+5,base+6]+[base+16+j for j in (0,1,2,4,5,6,8,9,10,12,13)]
        items=[]
        for _ in range(2):
            if nxt<18 and nxt<=ks+FD: items+=grp_x(nxt); nxt+=1
        if len(items)<=4: mand=[base+2,base+5]+[base+16+j for j in (0,2,4,6,8,10,12)]
        if 3<=ks<17: items=items[:2]+u0_items(ks-3)+items[2:] if len(items)>=2 else u0_items(ks-3)
        if ks==OPT['tu0']: items+=[(f'global_load_dword v{V_DUM}, v{V_TR}, s[18:19]',1,'t')]
        if ks==OPT['tg1']: items+=[(f'global_load_dword v{V_DUM}, v{V_TR}, s[60:61]',1,'t')]
        if ks==OPT['tu1']: items+=[(f'global_load_dword v{V_DUM}, v{V_TR}, s[4:5]',1,'t')]
        if ks<17:
            for j,it in enumerate(items): S.add_fill(mand[j],it)
        else:
            for j,it in enumerate(u0_items(14)): S.add_fill(base+2+j,it)
            for j,it in enumerate(u0_items(15)+u0_items(16)+u0_items(17)): S.add_fill(base+16+4+j,it)
    ch,nq=ch_epiQ(V_ACC[1],0,0)
    S.chains(ch,17*32+18,nm,nq)
    def mf(m):
        t=m//4;i=m%4;ks=t//8;sl=t%8
        w,_,ac=regs(sl); D=ac+i*4
        return f'v_mfma_f32_16x16x32_bf16 {vr(D,4)}, {vr(w,4)}, {xreg(i,ks)}, {"0" if ks==0 else vr(D,4)}'
    def special(n):
        if n.startswith('SKIP'): a(f's_cbranch_vccz KF_s{n[4:]}')
        elif n.startswith('LAB'): a(f'KF_s{n[3:]}:')
        elif n.startswith('READY'): a(f's_waitcnt vmcnt({vm.wait_n("g"+n[5:])})')
        elif n=='SUB': a(f's_waitcnt vmcnt({vm.wait_n("u%d"%OPT["MIDKS"])})\ns_barrier')
    S.emit(a,vm,mf,[t for t in range(8) for _ in range(2)],special)

def lamword(seq,start):
    w=0
    for k in range(6): w|=(seq[start+k] if start+k<len(seq) else 31)<<(5*k)
    return w
def c_roles_scalar(a):
    a(f'''
    s_and_b32 s92, s2, 1
    s_bfe_u32 s69, s2, 0x20001
    s_bfe_u32 s93, s2, 0x20003
    s_bfe_u32 s94, s2, 0x10005
    s_lshr_b32 s95, s2, 6
    s_lshl_b32 s95, s95, 1
    s_add_u32 s95, s95, s94
    s_lshl_b32 s57, s92, 3
    s_add_u32 s57, s57, s95
    s_mov_b32 s68, 0
    s_mov_b32 s83, 0
    s_mov_b32 s7, 147456
    s_mul_i32 s73, s69, {18*64*1152}
    s_mul_i32 s74, s69, {18*2048}
    s_add_u32 s74, s74, {H_OFF}
    s_mov_b32 s86, {4608*1152+2048}
    s_mov_b32 s75, {lamword(LAM_H,5)}
    s_mov_b32 s76, {lamword(LAM_H,11)}
    s_mov_b32 s77, {lamword(LAM_H,17)}
    s_mov_b32 s78, {lamword(LAM_H,0)}
    s_mov_b32 s82, 18
    s_cmp_lt_u32 s93, 3
    s_cbranch_scc1 C_rh
    s_lshl_b32 s57, s92, 2
    s_add_u32 s57, s57, s69
    s_lshl_b32 s83, s57, 3
    s_add_u32 s83, s83, s95
    s_lshl_b32 s57, s57, 1
    s_cmp_ge_u32 s95, 3
    s_cselect_b32 s94, 1, 0
    s_add_u32 s57, s57, s94
    s_mul_i32 s94, s94, 3
    s_sub_u32 s93, s95, s94
    s_cmp_lt_u32 s95, 6
    s_cselect_b32 s68, 1, 2
    s_cselect_b32 s93, s93, 0
    s_mov_b32 s69, 0
    s_mov_b32 s7, 18432
    s_mov_b32 s73, 0
    s_mov_b32 s74, {O_OFF}
    s_mov_b32 s86, {576*1152+2048}
    s_mov_b32 s75, {lamword(LAM_S,5)}
    s_mov_b32 s76, {lamword(LAM_S,11)}
    s_mov_b32 s77, {lamword(LAM_S,17)}
    s_mov_b32 s78, {lamword(LAM_S,0)}
    s_mov_b32 s82, 9
    s_mov_b32 s90, s88
    s_mov_b32 s91, s89
    C_rh:
    s_sub_u32 s84, s90, 2048
    s_subb_u32 s85, s91, 0
    s_mov_b32 s87, 0x20000
    s_mul_i32 s70, s57, 3
    s_add_u32 s70, s70, s93
    s_mul_i32 s71, s93, 384
    s_add_u32 s73, s73, s71
    s_mul_i32 s72, s33, 3072
    ''')
def c_roles_vector():
    A,B,C='v1','v255','v253'
    t=f'''
    v_lshlrev_b32 v{C_LV}, 4, v0
    v_lshrrev_b32 {A}, 3, v0
    s_lshl_b32 s92, s33, 3
    v_add_u32 {A}, s92, {A}
    v_bfe_u32 {B}, {A}, 2, 2
    v_lshlrev_b32 {B}, 3, {B}
    v_lshrrev_b32 {C}, 4, {A}
    v_lshl_add_u32 {B}, {C}, 2, {B}
    v_and_b32 {C}, 3, {A}
    v_add_u32 {B}, {B}, {C}
    s_cmp_eq_u32 s68, 0
    s_cselect_b64 s[92:93], -1, 0
    v_cndmask_b32 {A}, {B}, {A}, s[92:93]
    v_mul_u32_u24 {A}, 1152, {A}
    v_bfe_u32 {B}, v0, 1, 2
    v_lshrrev_b32 {C}, 4, v0
    v_xor_b32 {B}, {B}, {C}
    v_lshl_add_u32 {A}, {B}, 5, {A}
    v_and_b32 {B}, 1, v0
    v_lshl_add_u32 {A}, {B}, 4, {A}
    v_add_u32 v{C_DV}, 2048, {A}
    v_add_u32 v{C_DV+1}, {2048+128-1024}, {A}
    v_add_u32 v{C_DV+2}, {2048+256-2048}, {A}
    s_lshl_b32 s92, s57, 3
    s_lshl_b32 s93, s33, 1
    s_add_u32 s92, s92, s93
    s_mul_i32 s93, s92, s7
    v_add_u32 v{C_HV}, s93, v{C_LV}
    v_add_u32 v{C_HV+1}, s7, v{C_HV}
    v_and_b32 {A}, 7, v0
    v_lshlrev_b32 {A}, 1, {A}
    v_bfe_u32 {B}, v0, 3, 1
    s_lshl_b32 s92, s92, 4
    v_add3_u32 {A}, {A}, {B}, s92
    v_mul_u32_u24 {A}, 1152, {A}
    v_lshrrev_b32 {B}, 4, v0
    v_lshl_add_u32 {A}, {B}, 3, {A}
    s_lshl_b32 s92, s69, 5
    s_add_u32 s92, s92, s71
    v_add_u32 v{C_OA}, s92, {A}
    v_add_u32 v{C_OA+1}, 18432, v{C_OA}
    '''
    return [l.strip() for l in t.split('\n') if l.strip()]
def prefetch(slot,tabreg='s75',parts='WH'):
    W=lambda l: f'buffer_load_dwordx4 v{C_DV+l}, s[84:87], s80 offen offset:{1024*l} lds'
    def H(n):
        ks,i=n//2,n%2; r=ORDER.index(slot)*16+n*4
        return f'buffer_load_dwordx4 a[{r}:{r+3}], v{C_HV+i}, s[20:23], s81 offen offset:{ks*1024} sc1'
    L=[f's_and_b32 s79, {tabreg}, 31', f's_mul_i32 s80, s79, {64*1152}', 's_lshl_b32 s81, s79, 11', 's_add_u32 s80, s80, s73', 's_add_u32 s81, s81, s74',
       's_cmp_lt_u32 s79, 18', f's_cselect_b32 s80, s80, {OOB}', f's_cselect_b32 s81, s81, {OOB}',
       f's_add_u32 m0, s72, {slot*STG}', H(0), W(0), f's_lshr_b32 {tabreg}, {tabreg}, 5', W(1), W(2),
       f's_add_u32 m0, s72, {slot*STG+4*3072}', H(1), 's_add_u32 s80, s80, 36864', W(0), W(1), W(2), H(2), H(3)]
    if 'W' not in parts: L=[x for x in L if ' lds' not in x and 'm0' not in x and 's80' not in x]
    if 'H' not in parts: L=[x if not x.startswith('buffer_load_dwordx4 a') else 's_nop 0' for x in L if 's81' not in x or x.startswith('buffer')]
    return L
def c_addr_items():
    A,B,C='v1','v96','v97'
    L=[f'v_lshrrev_b32 {A}, 5, v0', f'v_mul_u32_u24 {A}, 3072, {A}', f'v_bfe_u32 {B}, v0, 2, 3', f'v_lshl_add_u32 {A}, {B}, 7, {A}',
       f'v_lshrrev_b32 {B}, 1, {B}', f'v_xor_b32 {B}, s69, {B}', f'v_and_b32 {C}, 3, v0', f'v_lshl_add_u32 {A}, {C}, 3, {A}']
    for b_ in range(4):
        L+=[f'v_xor_b32 {C}, {b_}, {B}', f'v_lshl_add_u32 v{C_AD[b_]}, {C}, 5, {A}']
        for hs in range(1,3): L.append(f'v_add_u32 v{C_AD[4*hs+b_]}, {2*STG*hs}, v{C_AD[b_]}')
    return L
def c_rd(slot,t,half):
    ks,b_=t//12,t%12
    w=C_WF[t%6]+2*half; ad=C_AD[4*(slot//2)+(b_&3)]
    off=(slot%2)*STG+ks*12288+(b_//4)*1024+half*6144
    return f'ds_read_b64_tr_b16 v[{w}:{w+1}], v{ad} offset:{off}'

def bodyZ(a,vm,seqs,capa=2):
    ns=72; nm=288
    S=Sched(nm,capa)
    for t in range(ns):
        m0=t*4
        if t%2==0: S.add_pre(m0,f'WAITL{min(t+1,ns-1)}')
        tn=t+4; w=V_WF+(t%4)*4; ad=V_AD+(t%4)
        if tn<ns:
            g=(tn%36)//4; gp=(t%36)//4
            if tn>=36 and t<36:
                S.add_post(m0+1,f'v_add_u32 v{ad}, {4096*((t%4)//2)}, v{V_BN+2+(t%2)}')
            elif g==5 and gp==4: S.add_post(m0+1,f'v_add_u32 v{ad}, 40960, v{ad}')
            off=(g if g<5 else g-5)*8192
            S.add_post(m0+3,f'ds_read_b64_tr_b16 v[{w}:{w+1}], v{ad} offset:{off};tag={tn}')
            S.add_post(m0+4,f'ds_read_b64_tr_b16 v[{w+2}:{w+3}], v{ad} offset:{off+512};tag={tn}')
    ch,nq=ch_epiU(V_ACC[1])
    e1=S.chains(ch,1,138,nq,pace=False)
    assert e1<=143,e1
    ch2=[]
    for n in range(8):
        A=64+n*4; T=V_T+(n%4)*4
        ch2.append([[(f'v_mul_f32 v{T+r}, s40, v{A+r}',1) for r in range(4)],
          [(f'v_exp_f32 v{T+r}, v{T+r}',2) for r in range(4)],
          [(f'v_add_f32 v{T+r}, 1.0, v{T+r}',1) for r in range(4)],
          [(f'v_rcp_f32 v{T+r}, v{T+r}',2) for r in range(4)],
          [(f'v_mul_f32 v{A+r}, v{T+r}, v{A+r}',1) for r in range(4)]])
    for lo,hi,L in seqs: S.seq(lo,hi,L)
    S.chains(ch2,148,nm-2,4,pace=False)
    def mf(m):
        t=m//4;i=m%4; p=t//36; ks=(t%36)//2; b=t%2
        D=(64 if p==0 else 32)+(b*4+i)*4; w=V_WF+(t%4)*4
        return f'v_mfma_f32_16x16x32_bf16 {vr(D,4)}, {vr(w,4)}, {xreg(i,ks)}, {"0" if ks==0 else vr(D,4)}'
    def special(n):
        if n=='CHK8':
            a(f's_waitcnt vmcnt({vm.wait_n("fld")})'); vchk(a,'s26','s39','Zh')
        elif n=='FLD':
            a(f'buffer_load_dword v{V_FL}, v{V_FA}, s[20:23], s26 offen sc1'); vm.issue('fld')
        elif n=='G2':
            a(f's_waitcnt vmcnt({vm.wait_n("st")})\nbuffer_store_dword v{V_ONE}, off, s[20:23], s25 sc1'); vm.issue('x')
        elif n=='QL':
            a('buffer_load_dword v255, v253, s[20:23], s26 offen sc1'); vm.issue('ql')
        elif n=='QP':
            a(f's_waitcnt vmcnt({vm.wait_n("ql")})'); vpoll(a,'q',255,253,'s26',first_loaded=True)
    S.emit(a,vm,mf,[0,0,1,1,2,2,3,3],special)
def z_tail(a):
    a(f'''
    s_mul_i32 s35, s30, 18
    s_add_u32 s35, s35, s31
    s_add_u32 s35, s35, 14
    s_lshl_b32 s35, s35, 10
    s_add_u32 s44, s35, {H_OFF}
    s_add_u32 s45, s44, 147456
    s_add_u32 s46, s44, 294912
    s_add_u32 s47, s44, 442368
    ''')
    for i in range(4):
        D=V_T+i*4
        for hb in range(2):
            G=64+(hb*4+i)*4; U=32+(hb*4+i)*4
            for r in range(4): a(f'v_mul_f32 v{U+r}, v{U+r}, v{G+r}')
            a(f'v_cvt_pk_bf16_f32 v{D+2*hb}, v{U}, v{U+1}\nv_cvt_pk_bf16_f32 v{D+2*hb+1}, v{U+2}, v{U+3}')
        a(f'buffer_store_dwordx4 v[{D}:{D+3}], v{V_HST}, s[20:23], s{44+i} offen{STF}')

def attention(a,waitq,rows_split):
    Q=8; KB=(44,80); L=116; O=148; AW=220; V0,V1=44,80
    a(f'''
    v_lshrrev_b32 v2, 3, v0
    v_and_b32 v3, 7, v0
    v_mul_u32_u24 v3, 144, v3
    s_lshl_b32 s92, s33, 3
    v_add_u32 v2, s92, v2
    s_lshr_b32 s93, s83, 1
    s_lshl_b32 s93, s93, 5
    v_add_u32 v229, s93, v2
    v_add_u32 v4, 7, v2
    s_mov_b32 s94, 3456
    s_mov_b32 s95, 0x05040100
    s_mov_b32 s96, 0x07060302
    s_mov_b32 s97, 0x3eae1a93
    ''')
    n1,b1,b2=rows_split
    a(f'v_mov_b32 v6, {(b2-n1*3456)&0xffffffff}\nv_mov_b32 v7, {b1}')
    for w in range(8):
        a(f'v_min_u32 v5, {w}, v229\nv_sub_u32 v5, v4, v5\nv_cmp_gt_u32 vcc, {n1}, v5\nv_mad_u32_u24 v{AW+w}, v5, s94, v3\ns_nop 0\nv_cndmask_b32 v5, v6, v7, vcc\nv_add_u32 v{AW+w}, v{AW+w}, v5')
    waitq()
    def rd(dst,ad,off):
        for m in range(9): a(f'ds_read_b128 v[{dst+4*m}:{dst+4*m+3}], v{ad} offset:{off+16*m}')
    def rdl(dst,ad,off): return [f'ds_read_b128 v[{dst+4*m}:{dst+4*m+3}], v{ad} offset:{off+16*m}' for m in range(9)]
    rd(Q,AW,0); rd(KB[0],AW,1152)
    for w in range(8):
        a('s_waitcnt lgkmcnt(0)')
        nx=rdl(KB[(w+1)%2],AW+w+1,1152) if w<7 else rdl(V0,AW,2304)
        k=KB[w%2]
        for j in range(9):
            a(nx[j])
            for hh in range(4):
                c='0' if j==0 else f'v{L+hh*8+w}'
                a(f'v_dot2_f32_bf16 v{L+hh*8+w}, v{Q+9*hh+j}, v{k+9*hh+j}, {c}')
    rd(V1,AW+1,2304)
    a('v_mov_b32 v5, 0xff800000')
    for w in range(1,8):
        a(f'v_cmp_le_u32 vcc, {w}, v229\ns_nop 1')
        for hh in range(4): a(f'v_cndmask_b32 v{L+hh*8+w}, v5, v{L+hh*8+w}, vcc')
    M=Q
    for step in range(4):
        for hh in range(4):
            l=L+hh*8
            a([f'v_max3_f32 v{M+hh}, v{l}, v{l+1}, v{l+2}',f'v_max3_f32 v{M+hh}, v{M+hh}, v{l+3}, v{l+4}',f'v_max3_f32 v{M+hh}, v{M+hh}, v{l+5}, v{l+6}',f'v_max_f32 v{M+hh}, v{M+hh}, v{l+7}'][step])
    for hh in range(4): a(f'v_mul_f32 v{M+hh}, s97, v{M+hh}')
    for hh in range(4):
        for w in range(8): a(f'v_fma_f32 v{L+hh*8+w}, v{L+hh*8+w}, s97, -v{M+hh}')
    for r in range(32): a(f'v_exp_f32 v{L+r}, v{L+r}')
    for hh in range(4): a(f'v_add_f32 v{M+hh}, v{L+hh*8}, v{L+hh*8+1}')
    for w in range(2,8):
        for hh in range(4): a(f'v_add_f32 v{M+hh}, v{M+hh}, v{L+hh*8+w}')
    for hh in range(4): a(f'v_rcp_f32 v{M+hh}, v{M+hh}')
    a('s_nop 0')
    for hh in range(4):
        for w in range(8): a(f'v_mul_f32 v{L+hh*8+w}, v{L+hh*8+w}, v{M+hh}')
    for hh in range(4):
        for wp in range(4): a(f'v_cvt_pk_bf16_f32 v{L+hh*8+wp}, v{L+hh*8+2*wp}, v{L+hh*8+2*wp+1}')
    for wp in range(4):
        a('s_waitcnt lgkmcnt(0)')
        nx=[x for p in zip(rdl(V0,AW+2*wp+2,2304),rdl(V1,AW+2*wp+3,2304)) for x in p] if wp<3 else []
        for m in range(9):
            for j in range(4*m,4*m+4):
                a(f'v_perm_b32 v{230+(j%4)}, v{V1+j}, v{V0+j}, s95')
                a(f'v_perm_b32 v{234+(j%4)}, v{V1+j}, v{V0+j}, s96')
            if nx: a(nx[2*m]); a(nx[2*m+1])
            for j in range(4*m,4*m+4):
                c0='0' if wp==0 else f'v{O+2*j}'; c1='0' if wp==0 else f'v{O+2*j+1}'
                a(f'v_dot2_f32_bf16 v{O+2*j}, v{230+(j%4)}, v{L+(j//9)*8+wp}, {c0}')
                a(f'v_dot2_f32_bf16 v{O+2*j+1}, v{234+(j%4)}, v{L+(j//9)*8+wp}, {c1}')
    a(f'''
    v_and_b32 v3, 7, v0
    v_mul_u32_u24 v3, 2304, v3
    v_lshrrev_b32 v2, 3, v0
    v_lshl_add_u32 v3, v2, 4, v3
    s_lshr_b32 s92, s83, 1
    s_lshl_b32 s92, s92, 2
    s_add_u32 s92, s92, s33
    s_mul_i32 s92, s92, 18432
    s_and_b32 s93, s83, 1
    s_lshl_b32 s93, s93, 7
    s_add_u32 s92, s92, s93
    s_add_u32 s92, s92, {O_OFF}
    ''')
    for m in range(9):
        for j in range(4*m,4*m+4): a(f'v_cvt_pk_bf16_f32 v{Q+j}, v{O+2*j}, v{O+2*j+1}')
        a(f'buffer_store_dwordx4 v[{Q+4*m}:{Q+4*m+3}], v3, s[20:23], s92 offen offset:{256*m} sc1')

OST=110592; SSTG=36864
def s_gemm(a):
    AD=44
    BF=64
    WFs=80
    AC=128
    def dma(slot):
        L=[]
        for t3 in range(3):
            L.append(f's_add_u32 m0, s72, {slot*SSTG+t3*3072}')
            L.append(f's_add_u32 s81, s80, {t3*384}')
            for l in range(3): L.append(f'buffer_load_dwordx4 v{C_DV+l}, s[84:87], s81 offen offset:{1024*l} lds')
        L.append('s_add_u32 s80, s80, 36864')
        return L
    a('s_mul_i32 s72, s33, 9216\ns_mov_b32 s80, 0')
    for x in dma(0): a(x)
    for m in range(9): a(f'ds_write_b128 v3, v[{8+4*m}:{8+4*m+3}] offset:{256*m}')
    for x in dma(1)+dma(2): a(x)
    a(f'''
    v_lshrrev_b32 v4, 5, v0
    v_mul_u32_u24 v4, 9216, v4
    v_bfe_u32 v5, v0, 2, 3
    v_lshl_add_u32 v4, v5, 7, v4
    v_lshrrev_b32 v5, 1, v5
    v_and_b32 v6, 3, v0
    v_lshl_add_u32 v4, v6, 3, v4
    s_mul_i32 s92, s33, 9
    v_lshlrev_b32 v7, 4, v0
    v_add_u32 v7, {OST}, v7
    ''')
    for bb in range(9):
        a(f'''
        s_add_u32 s93, s92, {bb}
        s_and_b32 s94, s93, 3
        s_lshr_b32 s93, s93, 2
        s_lshl_b32 s93, s93, 10
        v_xor_b32 v6, s94, v5
        v_lshl_add_u32 v6, v6, 5, v4
        v_add_u32 v{AD+bb}, s93, v6
        v_add_u32 v{AD+9+bb}, {2*SSTG}, v{AD+bb}
        ''')
    for r in range(0,72,2): a(f'v_mov_b64 v[{AC+r}:{AC+r+1}], 0')
    WB=(80,200)
    def reads(k):
        slot=k%3; wb=WB[k%2]; bf=BF+8*(k%2)
        R=[f'ds_read_b128 v[{bf}:{bf+3}], v7',f'ds_read_b128 v[{bf+4}:{bf+7}], v7 offset:18432','v_add_u32 v7, 1024, v7']
        for bb in range(9):
            ad=AD+bb+(9 if slot==2 else 0); off=(slot%2)*SSTG
            R.append(f'ds_read_b64_tr_b16 v[{wb+4*bb}:{wb+4*bb+1}], v{ad} offset:{off}')
            R.append(f'ds_read_b64_tr_b16 v[{wb+4*bb+2}:{wb+4*bb+3}], v{ad} offset:{off+18432}')
        return R
    a('s_waitcnt vmcnt(18) lgkmcnt(0)\ns_barrier')
    for x in reads(0): a(x)
    a('''
    v_lshrrev_b32 v242, 3, v0
    s_lshl_b32 s93, s33, 3
    v_add_u32 v242, s93, v242
    v_mul_u32_u24 v242, 2304, v242
    v_and_b32 v243, 7, v0
    v_lshl_add_u32 v242, v243, 4, v242
    v_add_u32 v242, 2048, v242
    v_bfe_u32 v243, v0, 3, 1
    v_mul_u32_u24 v243, 9216, v243
    v_and_b32 v6, 7, v0
    v_lshl_add_u32 v243, v6, 7, v243
    v_lshrrev_b32 v6, 4, v0
    v_lshl_add_u32 v243, v6, 3, v243
    ''')
    a('s_mov_b32 s82, 3')
    a('S_loop:')
    for k in range(6):
        a('s_waitcnt vmcnt(9) lgkmcnt(0)\ns_barrier')
        if k==3:
            a(f'''
            s_cmp_lg_u32 s82, 1
            s_cbranch_scc1 S_nox
            s_sub_u32 s84, s88, 2048
            s_subb_u32 s85, s89, 0
            s_mov_b32 s86, {2048*1152+2048}
            s_lshr_b32 s80, s83, 1
            s_lshl_b32 s80, s80, 6
            s_and_b32 s93, s83, 1
            s_add_u32 s80, s80, s93
            s_mul_i32 s80, s80, 1152
            v_mov_b32 v{C_DV}, v242
            v_add_u32 v{C_DV+1}, {128-1024}, v242
            v_add_u32 v{C_DV+2}, {256-2048}, v242
            S_nox:
            ''')
        if k==4:
            a(f's_cmp_eq_u32 s82, 1\ns_cselect_b32 s80, {OOB-0x100000}, s80')
        D=dma(k%3); R=reads(k+1); wb=WB[k%2]; bf=BF+8*(k%2)
        for n in range(18):
            bb,j=n//2,n%2; r=AC+n*4
            a(f'v_mfma_f32_16x16x32_bf16 {vr(r,4)}, {vr(wb+4*bb,4)}, {vr(bf+4*j,4)}, {vr(r,4)}')
            for _ in range(2 if n<3 else 1):
                if R: a(R.pop(0))
            if D: a(D.pop(0))
        assert not D and not R
    a('s_sub_u32 s82, s82, 1\ns_cmp_lg_u32 s82, 0\ns_cbranch_scc1 S_loop')
    a('s_waitcnt vmcnt(0) lgkmcnt(0)\ns_barrier')
    a('s_mul_i32 s92, s33, 9')
    for bb in range(9):
        a(f'''
        s_add_u32 s93, s92, {bb}
        s_and_b32 s94, s93, 3
        s_lshl_b32 s94, s94, 5
        s_lshr_b32 s93, s93, 2
        s_lshl_b32 s93, s93, 10
        s_add_u32 s93, s93, s94
        v_add_u32 v6, s93, v243
        ds_read_b64 v[{8+4*bb}:{9+4*bb}], v6
        ds_read_b64 v[{10+4*bb}:{11+4*bb}], v6 offset:18432
        ''')
    st(a,10)
    s_flag_setup(a)
    a('s_waitcnt lgkmcnt(0)')
    s_send(a,AC)
    a('v_mov_b32 v5, s39\ns_waitcnt vmcnt(0)\ns_barrier\nbuffer_store_dword v5, v241, s[20:23], s24 offen sc1')
    a('s_branch C_fin')

def s_send(a,AC=None):
    a(f'''
    s_mul_i32 s92, s33, 9
    v_and_b32 v4, 7, v0
    v_lshrrev_b32 v5, 4, v0
    v_lshl_add_u32 v4, v5, 4, v4
    v_lshlrev_b32 v4, 4, v4
    v_bfe_u32 v5, v0, 3, 1
    v_mul_u32_u24 v5, {4*4*3072}, v5
    v_add_u32 v4, v4, v5
    s_and_b32 s93, s83, 1
    s_lshl_b32 s93, s93, 7
    s_lshr_b32 s94, s83, 2
    s_mul_i32 s94, s94, {3*XT}
    s_add_u32 s93, s93, s94
    s_bfe_u32 s94, s83, 0x10001
    s_mul_i32 s94, s94, 6144
    s_add_u32 s93, s93, s94
    s_add_u32 s93, s93, {X_OFF}
    ''')
    if AC is None: a('v_mov_b64 v[8:9], -1\nv_mov_b64 v[10:11], -1')
    for bb in range(9):
        a(f'''
        s_add_u32 s94, s92, {bb}
        s_mul_i32 s95, s94, 43
        s_lshr_b32 s95, s95, 9
        s_mul_i32 s96, s95, 12
        s_sub_u32 s94, s94, s96
        s_mul_i32 s95, s95, {XT}
        s_and_b32 s96, s94, 3
        s_mul_i32 s96, s96, {XD}
        s_add_u32 s95, s95, s96
        s_lshr_b32 s94, s94, 2
        s_lshl_b32 s94, s94, 10
        s_add_u32 s95, s95, s94
        s_add_u32 s95, s95, s93
        ''')
        for j in range(2):
            d=8
            if AC is not None:
                n=bb*2+j; r=AC+n*4; d=r
                a(f'v_cvt_pk_bf16_f32 v{d}, v{r}, v{r+1}\nv_cvt_pk_bf16_f32 v{d+1}, v{r+2}, v{r+3}')
                a(f'v_mov_b64 v[{d+2}:{d+3}], v[{8+2*n}:{9+2*n}]')
            a(f'buffer_store_dwordx4 v[{d}:{d+3}], v4, s[20:23], s95 offen offset:{3072*j} sc1')
def s_xload(a):
    a(f'''
    v_and_b32 v4, 15, v0
    v_lshlrev_b32 v4, 1, v4
    s_lshr_b32 s92, s83, 1
    s_lshl_b32 s92, s92, 6
    s_and_b32 s93, s83, 1
    s_add_u32 s92, s92, s93
    v_add_u32 v4, s92, v4
    v_mul_u32_u24 v4, 1152, v4
    v_lshrrev_b32 v5, 4, v0
    v_lshl_add_u32 v4, v5, 3, v4
    s_mul_i32 s92, s33, 288
    v_add_u32 v4, s92, v4
    v_add_u32 v5, {32*1152}, v4
    ''')
    for bb in range(9):
        for j in range(2):
            n=bb*2+j
            a(f'global_load_dwordx2 a[{2*n}:{2*n+1}], v{4+j}, s[88:89] offset:{bb*32}')
def s_flag_setup(a):
    a(f'''
    v_min_u32 v4, 11, v0
    v_lshrrev_b32 v5, 2, v4
    v_lshlrev_b32 v5, 7, v5
    v_bfe_u32 v241, v4, 1, 1
    v_lshl_add_u32 v5, v241, 5, v5
    v_and_b32 v4, 1, v4
    v_lshl_add_u32 v241, v4, 2, v5
    s_lshr_b32 s24, s83, 2
    s_mul_i32 s24, s24, 384
    s_bfe_u32 s95, s83, 0x10001
    s_lshl_b32 s95, s95, 6
    s_add_u32 s24, s24, s95
    s_and_b32 s95, s83, 1
    s_lshl_b32 s95, s95, 3
    s_add_u32 s24, s24, s95
    s_add_u32 s24, s24, {FLG_OFF+16}
    s_cmp_eq_u32 s33, 0
    s_cselect_b32 s24, s24, {OOB}
    ''')

def c_loop(a):
    def hook(pos):
        if pos==5: return [f'buffer_load_dword v{V_FL}, v{V_FA}, s[20:23], s26 offen sc1'.replace('buffer_load','buffer_LOAD')]
        if pos==3: return ['@CHK', 'buffer_store_dword v255, off, s[20:23], s25 sc1', f's_mov_b32 s25, {OOB}']
        return []
    def em(x):
        if x=='@CHK':
            a('s_cmp_eq_u32 s27, 0\ns_cbranch_scc1 K_C_sk\ns_add_u32 s6, s67, s27')
            vchk(a,'s26','s6','C'); a('s_mov_b32 s27, 3\nK_C_sk:')
        else: a(x.replace('buffer_LOAD','buffer_load'))
    a('C_loop:')
    for pos,slot in enumerate(ORDER):
        ps=(slot-1)%NS
        extra=hook(pos)+prefetch(ps)
        free=[(t,i) for t in range(24) for i in range(2) if (i==0 or (t%2==0 and t!=18)) and (t,i)>=(0,1)]
        nv=[k for k,x in enumerate(extra) if x.startswith('buffer_load')]
        first=nv[0]
        tgt={k:int(first+n_*(len(free)-1-first)/(len(nv)-1)) for n_,k in enumerate(nv)}
        idx=[None]*len(extra); nxt=len(free)
        for k in range(len(extra)-1,-1,-1):
            want=min(tgt.get(k,nxt-1),nxt-1); idx[k]=want; nxt=want
        cur=-1
        for k in range(len(extra)):
            idx[k]=max(idx[k],cur+1); cur=idx[k]
        assert cur<len(free)
        place={free[idx[k]]:x for k,x in enumerate(extra)}
        nbefore=sum(1 for k in nv if free[idx[k]]<(18,1))
        pend=None
        for t in range(24):
            ks,b_=t//12,t%12; w=C_WF[t%6]
            for i in range(2):
                D=C_ACC+(b_*2+i)*4; h=pos*16+(ks*2+i)*4
                a(f'v_mfma_f32_16x16x32_bf16 {vr(D,4)}, {vr(w,4)}, {ar(h,4)}, {vr(D,4)}')
                if i==0:
                    if pend: a(pend); pend=None
                    if (t,i) in place: em(place[(t,i)])
                else:
                    tn=t+6
                    if tn==24: a(f's_waitcnt vmcnt({26+nbefore})\ns_barrier')
                    s2=slot if tn<24 else (slot+1)%NS
                    if t%2==1: a('s_waitcnt lgkmcnt(6)')
                    a(c_rd(s2,tn%24,0)); pend=c_rd(s2,tn%24,1)
                    if (t,i) in place: em(place[(t,i)])
        a(pend)
        if pos==2: a('s_cmp_eq_u32 s82, 3\ns_cbranch_scc1 C_done')
        if pos==5: a('s_mov_b32 s75, s76\ns_mov_b32 s76, s77\ns_sub_u32 s82, s82, 6\ns_cmp_eq_u32 s82, 0\ns_cbranch_scc0 C_loop')
    a('C_done:')
    for sl in range(5): a(f's_add_u32 s{76+sl}, s97, {sl*4*3072}')

def c_finish(a):
    T=C_T
    st(a,10)
    a(f'''
    v_min_u32 v{T+1}, 4, v0
    v_add_u32 v{T+1}, 1, v{T+1}
    v_xor_b32 v{T+2}, s69, v{T+1}
    v_cmp_gt_u32 vcc, 4, v{T+1}
    s_nop 1
    v_cndmask_b32 v{T+1}, v{T+1}, v{T+2}, vcc
    v_lshlrev_b32 v{V_FA}, 2, v{T+1}
    ''')
    for j in (1,2,3):
        for l in range(3):
            be=l*4+j; D=C_RX+((j-1)*3+l)*4
            for i in range(2):
                A=C_ACC+(be*2+i)*4
                a(f'v_cvt_pk_bf16_f32 v{D+2*i}, v{A}, v{A+1}\nv_cvt_pk_bf16_f32 v{D+2*i+1}, v{A+2}, v{A+3}')
            a(f'buffer_store_dwordx4 v[{D}:{D+3}], v{C_LV}, s[20:23], s{93+j} offen offset:{l*1024} sc1')
    a('s_cmp_eq_u32 s68, 0\ns_cbranch_scc1 C_sent')
    for l in range(3):
        be=l*4; D=32+l*4
        for i in range(2):
            A=C_ACC+(be*2+i)*4
            a(f'v_cvt_pk_bf16_f32 v{D+2*i}, v{A}, v{A+1}\nv_cvt_pk_bf16_f32 v{D+2*i+1}, v{A+2}, v{A+3}')
        a(f'buffer_store_dwordx4 v[{D}:{D+3}], v{C_LV}, s[20:23], s97 offen offset:{l*1024} sc1')
    a(f'v_mov_b32 v{T}, s39\ns_waitcnt vmcnt(0)\nbuffer_store_dword v{T}, off, s[20:23], s63 sc1\ns_branch C_fin')
    a('C_sent:')
    def R(l,sl): return (C_RX+(l*3+sl-1)*4) if sl in (1,2,3) else (32+(l*2+(sl//4))*4)
    a(f'''
    buffer_load_dword v{T+2}, v{V_FA}, s[20:23], s62 offen sc1
    v_mov_b32 v{T}, s39
    s_waitcnt vmcnt(1)
    buffer_store_dword v{T}, off, s[20:23], s63 sc1
    s_waitcnt vmcnt(1)
    ''')
    st(a,11)
    if OPT['pp']&2: ppoll(a,'x',[80,81,82],V_FA,'s62',OPT['pg'],first=T+2)
    else: vpoll(a,'x',T+2,V_FA,'s62',sleep=OPT['psl'],first_loaded=True)
    for l in range(3):
        for sl in range(5):
            r=R(l,sl)
            a(f'buffer_load_dwordx4 v[{r}:{r+3}], v{C_LV}, s[20:23], s{76+sl} offen offset:{l*1024} sc1')
    st(a,12)
    a('v_mov_b32 v4, s40\nv_mov_b32 v5, s40')
    for l in range(3):
        a(f's_waitcnt vmcnt({10-3*l})')
        A0=C_ACC+(l*4)*2*4
        t=16; u=64; y=72
        def unp(dst,r):
            for k in range(4): a(f'v_lshlrev_b32 v{dst+2*k}, 16, v{r+k}\nv_and_b32 v{dst+2*k+1}, s41, v{r+k}')
        for sl in (1,2,3):
            d=t if sl!=2 else 24
            unp(d,R(l,sl))
            for k in range(4): a(f'v_pk_add_f32 v[{A0+2*k}:{A0+2*k+1}], v[{A0+2*k}:{A0+2*k+1}], v[{d+2*k}:{d+2*k+1}]')
        for k in range(4): a(f'v_pk_mul_f32 v[{t+2*k}:{t+2*k+1}], v[{A0+2*k}:{A0+2*k+1}], v[4:5]')
        for e in range(8): a(f'v_exp_f32 v{t+e}, v{t+e}')
        unp(u,R(l,0))
        for k in range(4): a(f'v_pk_add_f32 v[{t+2*k}:{t+2*k+1}], v[{t+2*k}:{t+2*k+1}], 1.0 op_sel_hi:[1,0]')
        for e in range(8): a(f'v_rcp_f32 v{t+e}, v{t+e}')
        unp(y,R(l,4))
        for k in range(4): a(f'v_pk_mul_f32 v[{u+2*k}:{u+2*k+1}], v[{u+2*k}:{u+2*k+1}], v[{A0+2*k}:{A0+2*k+1}]')
        for k in range(4): a(f'v_pk_fma_f32 v[{y+2*k}:{y+2*k+1}], v[{t+2*k}:{t+2*k+1}], v[{u+2*k}:{u+2*k+1}], v[{y+2*k}:{y+2*k+1}]')
        x=R(l,4)
        for k in range(4): a(f'v_cvt_pk_bf16_f32 v{x+k}, v{y+2*k}, v{y+2*k+1}')
        for i in range(2): a(f'global_store_dwordx2 v{C_OA+i}, v[{x+2*i}:{x+2*i+1}], s[90:91] offset:{l*128}')
    a('C_fin:')
    st(a,13); st(a,31,rt=True)

def light_after_att(a):
    T=C_T
    a(f'''
    s_lshr_b32 s92, s83, 2
    s_lshl_b32 s92, s92, 7
    s_and_b32 s93, s83, 3
    s_lshl_b32 s93, s93, 2
    s_add_u32 s93, s93, s33
    s_lshl_b32 s93, s93, 2
    s_add_u32 s92, s92, s93
    s_add_u32 s92, s92, {OFL_OFF}
    v_mov_b32 v{T}, s39
    s_barrier
    s_cmp_eq_u32 s68, 2
    s_cbranch_scc1 L_flag
    s_mov_b32 s94, s78
    ''')
    for k in range(2):
        for x in prefetch(ORDER[k],'s94','W'): a(x)
    a(f'''
    s_waitcnt vmcnt(12)
    L_flag:
    s_cmp_eq_u32 s68, 2
    s_cbranch_scc0 L_f2
    s_waitcnt vmcnt(0)
    L_f2:
    buffer_store_dword v{T}, off, s[20:23], s92 sc1
    s_cmp_eq_u32 s68, 2
    s_cbranch_scc1 L_xf
    ''')
    for k in range(2,5):
        for x in prefetch(ORDER[k],'s94','W'): a(x)
    a(f'''
    s_lshl_b32 s93, s57, 7
    s_lshr_b32 s94, s33, 1
    s_lshl_b32 s94, s94, 5
    s_add_u32 s93, s93, s94
    s_and_b32 s94, s33, 1
    s_lshl_b32 s94, s94, 3
    s_add_u32 s93, s93, s94
    s_add_u32 s93, s93, {OFL_OFF}
    v_and_b32 v{T+1}, 1, v0
    v_bfe_u32 v{T+2}, v0, 1, 1
    v_lshlrev_b32 v{T+1}, 2, v{T+1}
    v_lshl_add_u32 v{T+1}, v{T+2}, 4, v{T+1}
    ''')
    for x in c_addr_items(): a(x)
    for r in range(0,96,2): a(f'v_mov_b64 v[{C_ACC+r}:{C_ACC+r+1}], 0')
    vpoll(a,'o',T+2,T+1,'s93',sleep=1)
    for k in range(5):
        for x in prefetch(ORDER[k],'s78','H'): a(x)
    a('s_waitcnt vmcnt(0)\ns_barrier')
def x_forward(a):
    T=C_T
    a(f'''
    L_xf:
    s_lshr_b32 s57, s83, 3
    s_lshl_b32 s57, s57, 1
    s_and_b32 s93, s83, 1
    s_add_u32 s57, s57, s93
    s_lshl_b32 s92, s57, 2
    s_add_u32 s92, s92, s33
    s_mul_i32 s92, s92, 36864
    s_add_u32 s94, s88, s92
    s_addc_u32 s95, s89, 0
    s_mul_i32 s93, s33, 36864
    s_mov_b32 s82, 36
    L_xl:
    s_mov_b32 m0, s93
    s_add_u32 s93, s93, 1024
    global_load_lds_dwordx4 v{C_LV}, s[94:95]
    s_add_u32 s94, s94, 1024
    s_addc_u32 s95, s95, 0
    s_sub_u32 s82, s82, 1
    s_cmp_lg_u32 s82, 0
    s_cbranch_scc1 L_xl
    v_and_b32 v4, 7, v0
    v_lshlrev_b32 v4, 1, v4
    v_bfe_u32 v5, v0, 3, 1
    v_add_u32 v4, v4, v5
    v_mul_u32_u24 v4, 1152, v4
    v_lshrrev_b32 v5, 4, v0
    v_lshl_add_u32 v4, v5, 3, v4
    s_mul_i32 s93, s33, 36864
    v_add_u32 v4, s93, v4
    s_mul_i32 s92, s57, {3*XT}
    s_add_u32 s92, s92, s72
    s_add_u32 s92, s92, {X_OFF+4*4*3072}
    v_min_u32 v5, 2, v0
    v_lshlrev_b32 v5, 7, v5
    s_mul_i32 s24, s57, 384
    s_lshl_b32 s93, s33, 5
    s_add_u32 s24, s24, s93
    s_add_u32 s24, s24, {FLG_OFF+20}
    s_waitcnt vmcnt(0)
    ''')
    for B in range(36):
        d=8+4*B
        a(f'ds_read_b64 v[{d}:{d+1}], v4 offset:{B*32}\nds_read_b64 v[{d+2}:{d+3}], v4 offset:{B*32+18432}')
    a('s_waitcnt lgkmcnt(0)')
    for ct in range(3):
        for r in range(4):
            a(f's_add_u32 s93, s92, {ct*XT+r*XD}')
            for l in range(3):
                d=8+4*(ct*12+l*4+r)
                a(f'buffer_store_dwordx4 v[{d}:{d+3}], v{C_LV}, s[20:23], s93 offen offset:{l*1024} sc1')
    a(f's_waitcnt vmcnt(0)\nbuffer_store_dword v{T}, v5, s[20:23], s24 offen sc1\ns_branch C_fin')

LNS=147456
def ln_loads(a):
    a(f'''
    s_lshl_b32 s35, s30, 2
    s_add_u32 s35, s35, s31
    s_lshr_b32 s36, s35, 1
    s_lshl_b32 s37, s32, 4
    s_add_u32 s36, s36, s37
    s_and_b32 s37, s35, 1
    s_lshl_b32 s38, s36, 4
    s_add_u32 s38, s38, s37
    v_and_b32 v79, 7, v0
    v_lshl_add_u32 v77, v79, 1, s38
    v_mul_u32_u24 v80, 1152, v77
    v_lshrrev_b32 v81, 3, v0
    v_lshl_add_u32 v77, v81, 4, v80
    s_mul_i32 s38, s33, 384
    s_mov_b32 s94, {2048*1152}
    s_mov_b32 s95, 0x20000
    s_waitcnt lgkmcnt(0)
    s_cmp_eq_u32 s33, 3
    s_cbranch_scc1 LN_nold
    buffer_load_dwordx4 v[64:67], v77, s[92:95], s38 offen
    buffer_load_dwordx4 v[68:71], v77, s[92:95], s38 offen offset:128
    buffer_load_dwordx4 v[72:75], v77, s[92:95], s38 offen offset:256
    s_add_u32 s38, s38, 384
    s_cmp_eq_u32 s38, 1152
    s_cselect_b32 s38, 0, s38
    buffer_load_dwordx4 v[120:123], v77, s[92:95], s38 offen
    buffer_load_dwordx4 v[124:127], v77, s[92:95], s38 offen offset:128
    buffer_load_dwordx4 v[128:131], v77, s[92:95], s38 offen offset:256
    s_add_u32 s38, s38, 384
    s_cmp_eq_u32 s38, 1152
    s_cselect_b32 s38, 0, s38
    buffer_load_dwordx4 v[132:135], v77, s[92:95], s38 offen
    buffer_load_dwordx4 v[136:139], v77, s[92:95], s38 offen offset:128
    buffer_load_dwordx4 v[140:143], v77, s[92:95], s38 offen offset:256
    LN_nold:
    s_mul_i32 s36, s36, 18432
    s_lshl_b32 s37, s37, 7
    s_add_u32 s36, s36, s37
    s_mul_i32 s37, s33, 6144
    s_add_u32 s96, s36, s37
    s_add_u32 s97, s96, 4096
    v_lshlrev_b32 v78, 8, v81
    v_lshl_add_u32 v78, v79, 4, v78
    s_lshl_b32 s6, s32, 5
    s_add_u32 s6, s6, s35
    s_lshl_b32 s6, s6, 2
    s_add_u32 s6, s6, s33
    s_lshl_b32 s6, s6, 2
    s_add_u32 s6, s6, {XFL_OFF}
    ''')
def ln_compute(a,nyoung):
    E=96
    a('v_mov_b32 v76, 0x3f803f80')
    a('s_waitcnt vmcnt(6)')
    regs=list(range(64,76))+list(range(120,144))
    for k,r in enumerate(regs):
        if k==12:
            for g in range(3):
                for i in range(4):
                    rr=64+4*g+i; e=E+8*g+2*i
                    a(f'v_lshlrev_b32 v{e}, 16, v{rr}\nv_and_b32 v{e+1}, s41, v{rr}')
            a('s_waitcnt vmcnt(0)')
        s_,q_=82+(k&1)*2,83+(k&1)*2
        a(f'v_dot2_f32_bf16 v{s_}, v{r}, v76, {"0" if k<2 else "v%d"%s_}')
        a(f'v_dot2_f32_bf16 v{q_}, v{r}, v{r}, {"0" if k<2 else "v%d"%q_}')
    a('s_nop 2\nv_add_f32 v82, v82, v84\nv_add_f32 v83, v83, v85\ns_nop 1')
    a('v_add_f32_dpp v82, v82, v82 row_ror:8 row_mask:0xf bank_mask:0xf\nv_add_f32_dpp v83, v83, v83 row_ror:8 row_mask:0xf bank_mask:0xf')
    for sw in ('v_permlane16_swap_b32','v_permlane32_swap_b32'):
        a(f'v_mov_b32 v84, v82\nv_mov_b32 v85, v83\ns_nop 1\n{sw} v82, v84\n{sw} v83, v85\ns_nop 1\nv_add_f32 v82, v82, v84\nv_add_f32 v83, v83, v85')
    a('''
    v_mul_f32 v82, 0x3ae38e39, v82
    v_mul_f32 v83, 0x3ae38e39, v83
    v_fma_f32 v83, -v82, v82, v83
    v_max_f32 v83, 0, v83
    ''')
    def rb(r): a(f'v_cvt_pk_bf16_f32 v{r}, v{r}, v{r}\nv_lshlrev_b32 v{r}, 16, v{r}')
    rb(82); rb(83)
    a('v_add_f32 v83, 0x3727c5ac, v83'); rb(83)
    a('v_sqrt_f32 v83, v83\ns_nop 0'); rb(83)
    a('v_rcp_f32 v83, v83\ns_nop 0')
    def norm(g):
        for i in range(4):
            e=E+8*g+2*i
            a(f'v_sub_f32 v{e}, v{e}, v82\nv_sub_f32 v{e+1}, v{e+1}, v82')
        for i in range(4):
            e=E+8*g+2*i
            a(f'v_cvt_pk_bf16_f32 v{e}, v{e}, v{e+1}')
        for i in range(4):
            e=E+8*g+2*i
            a(f'v_and_b32 v{e+1}, s41, v{e}\nv_lshlrev_b32 v{e}, 16, v{e}')
        for i in range(4):
            e=E+8*g+2*i
            a(f'v_mul_f32 v{e}, v{e}, v83\nv_mul_f32 v{e+1}, v{e+1}, v83')
        for i in range(4):
            e=E+8*g+2*i
            a(f'v_cvt_pk_bf16_f32 v{64+4*g+i}, v{e}, v{e+1}')
    norm(0)
    a('buffer_store_dwordx4 v[64:67], v78, s[20:23], s96 offen sc1')
    norm(1)
    a('buffer_store_dwordx4 v[68:71], v78, s[20:23], s96 offen offset:2048 sc1')
    norm(2)
    a('buffer_store_dwordx4 v[72:75], v78, s[20:23], s97 offen sc1')

def gen_kf(a):
    a(kernel_header(NAME))
    T=V_T
    T0=' nt' if OPT['t0nt'] else ''
    a('''
    s_cmp_ge_u32 s2, 256
    s_cbranch_scc1 KF_end
    s_load_dwordx2 s[92:93], s[0:1], 0
    s_load_dwordx2 s[4:5], s[0:1], 8
    s_load_dwordx4 s[8:11], s[0:1], 32
    s_load_dwordx2 s[20:21], s[0:1], 72
    s_load_dwordx2 s[28:29], s[0:1], 64
    s_load_dwordx2 s[88:89], s[0:1], 16
    s_load_dwordx2 s[90:91], s[0:1], 48
    s_memrealtime s[24:25]
    v_lshrrev_b32 v1, 6, v0
    v_and_b32 v0, 63, v0
    s_bfe_u32 s30, s2, 0x20001
    s_lshl_b32 s30, s30, 1
    s_bfe_u32 s31, s2, 0x10005
    s_add_u32 s30, s30, s31
    s_bfe_u32 s31, s2, 0x20003
    s_and_b32 s32, s2, 1
    s_lshl_b32 s32, s32, 2
    s_lshr_b32 s3, s2, 6
    s_add_u32 s32, s32, s3
    v_readfirstlane_b32 s33, v1
    s_mov_b32 s22, 0x10000000
    s_mov_b32 s23, 0x20000
    s_mov_b32 s40, 0xbfb8aa3b
    s_mov_b32 s41, 0xffff0000
    ''')
    ln_loads(a)
    a(f"""
    v_mov_b32 v2, 0
    s_or_b32 s3, s2, s33
    s_cmp_lg_u32 s3, 0
    s_cbranch_scc1 KF_noep
    s_and_b32 s24, s24, 0xfffffffc
    s_max_u32 s24, s24, 4
    v_mov_b32 v3, s24
    global_store_dword v2, v3, s[28:29] sc1
    KF_noep:
    """)
    st(a,30,True); st(a,0)
    a(f"""
    s_lshl_b32 s66, s33, 10
    s_mul_i32 s62, s30, 3
    s_add_u32 s62, s62, s31
    s_lshl_b32 s62, s62, 7
    s_add_u32 s64, s30, 44
    s_lshl_b32 s64, s64, 6
    s_cmp_lt_u32 s31, 3
    s_cselect_b32 s63, 1, 0
    s_cmp_lt_u32 s30, 6
    s_cbranch_scc1 KF_qok
    s_lshl_b32 s62, s30, 1
    s_add_u32 s62, s62, s31
    s_add_u32 s64, s62, 36
    s_lshl_b32 s64, s64, 6
    s_add_u32 s62, s62, 6
    s_lshl_b32 s62, s62, 7
    s_cmp_lt_u32 s31, 2
    s_cselect_b32 s63, 1, 0
    KF_qok:
    s_cmp_eq_u32 s63, 1
    s_cselect_b32 s62, s62, s64
    s_cselect_b32 s67, 3, 1
    s_mov_b32 s64, s63
    s_mov_b32 s65, 0
    s_mul_i32 s36, s30, 1152
    s_lshl_b32 s37, s31, 8
    s_add_u32 s37, s37, s36
    s_lshl_b32 s38, s31, 6
    s_add_u32 s38, s38, s36
    s_add_u32 s38, s38, 896
    s_add_u32 s16, s8, s37
    s_addc_u32 s17, s9, 0
    s_add_u32 s18, s10, s37
    s_addc_u32 s19, s11, 0
    v_bfe_u32 v{T+1}, v0, 1, 2
    v_bfe_u32 v{T+2}, v0, 4, 1
    v_xor_b32 v{T+1}, v{T+1}, v{T+2}
    v_and_b32 v{T+2}, 1, v0
    v_lshlrev_b32 v{T+2}, 4, v{T+2}
    v_lshrrev_b32 v{T}, 3, v0
    s_add_u32 s60, s4, s62
    s_addc_u32 s61, s5, 0
    """)
    for jj in range(4):
        a(f"""
        v_add_u32 v152, {8*jj}, v{T}
        v_xor_b32 v153, {2*(jj&1)}, v{T+1}
        v_mul_u32_u24 v{144+jj}, 9216, v152
        v_lshl_add_u32 v{144+jj}, v153, 5, v{144+jj}
        v_add_u32 v{144+jj}, v{144+jj}, v{T+2}
        v_and_b32 v153, s67, v153
        v_mul_u32_u24 v{148+jj}, 3456, v152
        v_lshl_add_u32 v{148+jj}, v153, 5, v{148+jj}
        v_add_u32 v{148+jj}, v{148+jj}, v{T+2}
        """)
    a(f"""
    s_cmp_eq_u32 s33, 3
    s_cbranch_scc0 KF_lnw
    s_mov_b32 s94, s60
    s_mov_b32 s95, s61
    s_mov_b32 s92, s16
    s_mov_b32 s93, s17
    """)
    if OPT['tlb']:
        sh=OPT['tlb']
        a(f"""
        s_load_dwordx2 s[96:97], s[0:1], 56
        v_lshlrev_b32 v64, {sh}, v0
        v_min_u32 v65, {0x3006000}, v64
        buffer_load_dword v{V_DUM}, v65, s[20:23], 0 offen
        v_min_u32 v65, {5308416-4}, v64
        global_load_dword v{V_DUM}, v65, s[90:91]
        global_load_dword v{V_DUM}, v65, s[8:9]
        global_load_dword v{V_DUM}, v65, s[10:11]
        v_min_u32 v66, {663552-4}, v64
        global_load_dword v{V_DUM}, v66, s[88:89]
        v_min_u32 v66, {2359296-4}, v64
        s_waitcnt lgkmcnt(0)
        global_load_dword v{V_DUM}, v66, s[96:97]
        """)
    def wloop(lab,end):
        a(f'{lab}:')
        for jj in range(4):
            a(f's_add_u32 m0, s35, {jj*1024}\ns_nop 0\nglobal_load_lds_dwordx4 v{144+jj}, s[92:93]')
            a(f's_add_u32 m0, s35, {HALF+jj*1024}\ns_nop 0\nglobal_load_lds_dwordx4 v{148+jj}, s[94:95]')
        a(f"""
        s_add_u32 s92, s92, 294912
        s_addc_u32 s93, s93, 0
        s_add_u32 s94, s94, 110592
        s_addc_u32 s95, s95, 0
        s_add_u32 s35, s35, 4096
        s_waitcnt vmcnt({OPT['w3q']})
        s_cmp_lt_u32 s35, {end}
        s_cbranch_scc1 {lab}
        """)
    a(f"""
    s_mov_b32 s35, 0
    s_getpc_b64 s[24:25]
    KF_pc:
    s_sub_u32 s24, s24, KF_pc-{NAME}
    s_subb_u32 s25, s25, 0
    s_lshr_b32 s3, s2, 3
    s_lshl_b32 s3, s3, 4
    v_and_b32 v4, 15, v0
    v_add_u32 v4, s3, v4
    v_lshlrev_b32 v4, 7, v4
    v_min_u32 v4, KF_last-{NAME}, v4
    v_mov_b32 v5, 0
    v_lshl_add_u64 v[4:5], v[4:5], 0, s[24:25]
    s_and_b32 s3, s32, 3
    s_mul_i32 s3, s3, 144
    v_add_u32 v72, s3, v0
    v_min_u32 v74, 15, v0
    v_add_u32 v74, s3, v74
    v_mul_u32_u24 v73, 9216, v72
    v_mul_u32_u24 v72, 3456, v72
    v_mul_u32_u24 v75, 9216, v74
    v_mul_u32_u24 v74, 3456, v74
    global_load_dword v{V_DUM}, v73, s[92:93]{T0}
    global_load_dword v{V_DUM}, v72, s[94:95]{T0}
    v_add_u32 v73, {64*9216}, v73
    v_add_u32 v72, {64*3456}, v72
    v_add_u32 v75, {128*9216}, v75
    v_add_u32 v74, {128*3456}, v74
    global_load_dword v{V_DUM}, v73, s[92:93]{T0}
    global_load_dword v{V_DUM}, v72, s[94:95]{T0}
    global_load_dword v{V_DUM}, v75, s[92:93]{T0}
    global_load_dword v{V_DUM}, v74, s[94:95]{T0}
    global_load_dword v{V_DUM}, v[4:5], off
    s_waitcnt vmcnt({OPT['w3w']})
    """)
    wloop('KF_w3',OPT['W3N']*4096)
    a(f"""
    s_mov_b32 s6, {OOB}
    s_branch KF_join
    KF_lnw:
    """)
    ln_compute(a,0)
    st(a,16)
    a('KF_join:')
    a('v_mov_b32 v2, 0\nglobal_load_dword v3, v2, s[28:29] sc1')
    a(f"""
    s_lshl_b32 s35, s33, 3
    v_add_u32 v{T}, s35, v{T}
    s_and_b32 s35, s33, 1
    s_lshl_b32 s35, s35, 1
    v_xor_b32 v{T+1}, s35, v{T+1}
    v_mul_u32_u24 v{T+4}, 9216, v{T}
    v_add_u32 v{T+4}, v{T+4}, v{T+2}
    v_mov_b32 v{T+5}, 0
    v_lshl_add_u32 v{T+8}, v{T+1}, 5, v{T+4}
    v_mov_b32 v{T+9}, 0
    s_mov_b32 s100, 294912
    s_mov_b32 s101, 0
    s_add_u32 s12, s16, 128
    s_addc_u32 s13, s17, 0
    v_lshl_add_u64 v[{V_DA}:{V_DA+1}], v[{T+8}:{T+9}], 0, s[12:13]
    v_lshl_add_u64 v[{V_UA}:{V_UA+1}], v[{T+8}:{T+9}], 0, s[18:19]
    s_and_b32 s3, s32, 3
    s_lshl_b32 s3, s3, 2
    s_add_u32 s3, s3, s33
    s_mul_i32 s3, s3, 36
    v_min_u32 v{V_TR}, 35, v0
    v_add_u32 v{V_TR}, s3, v{V_TR}
    v_mul_u32_u24 v{V_TR}, 9216, v{V_TR}
    s_lshl_b32 s34, s32, 4
    s_lshl_b32 s35, s33, 2
    s_add_u32 s34, s34, s35
    s_mul_i32 s35, s34, 18432
    v_lshlrev_b32 v{T}, 4, v0
    v_add_u32 v{V_XO}, s35, v{T}
    v_add_u32 v{V_XO+1}, 18432, v{V_XO}
    v_add_u32 v{V_XO+2}, 36864, v{V_XO}
    v_add_u32 v{V_XO+3}, 55296, v{V_XO}
    s_mul_i32 s35, s34, 147456
    v_add_u32 v{V_HST}, s35, v{T}
    s_sub_u32 s58, s10, s8
    s_subb_u32 s59, s11, s9
    s_sub_u32 s58, s58, 5308416
    s_subb_u32 s59, s59, 0
    s_add_u32 s12, s8, s38
    s_addc_u32 s13, s9, 0
    s_add_u32 s14, s10, s38
    s_addc_u32 s15, s11, 0
    v_and_b32 v{T+3}, 1, v{T+1}
    v_lshl_add_u32 v{T+4}, v{T+3}, 5, v{T+4}
    v_lshl_add_u64 v[{V_ZA}:{V_ZA+1}], v[{T+4}:{T+5}], 0, s[12:13]
    v_lshl_add_u64 v[{T+12}:{T+13}], v[{T+4}:{T+5}], 0, s[14:15]
    v_cmp_lt_u32 vcc, 1, v{T+1}
    s_nop 1
    v_cndmask_b32 v{V_ZA}, v{V_ZA}, v{T+12}, vcc
    v_cndmask_b32 v{V_ZA+1}, v{V_ZA+1}, v{T+13}, vcc
    """)
    for g in range(5): a(f's_mov_b32 s{52+g}, {XN_OFF+g*4096}')
    c_roles_scalar(a)
    a(f"""
    s_mov_b32 s3, 0
    KF_ep:
    s_waitcnt vmcnt(0)
    v_readfirstlane_b32 s67, v3
    s_add_u32 s3, s3, 1
    s_cmp_gt_u32 s3, {OPT['SPIN']}
    s_cbranch_scc1 KF_epok
    s_cmp_lg_u32 s67, 0
    s_cbranch_scc1 KF_epok
    global_load_dword v3, v2, s[28:29] sc1
    s_branch KF_ep
    KF_epok:
    s_add_u32 s39, s67, 1
    v_mov_b32 v3, s39
    buffer_store_dword v3, off, s[20:23], s6 sc1
    """)
    st(a,1)
    nper=(18-OPT['W3N'])//3
    if nper:
        a(f"""
        s_cmp_eq_u32 s33, 3
        s_cbranch_scc1 KF_now
        s_mul_i32 s3, s33, {nper}
        s_add_u32 s3, s3, {OPT['W3N']}
        s_lshl_b32 s35, s3, 12
        s_add_u32 s36, s35, {nper*4096}
        s_mul_i32 s37, s3, 294912
        s_add_u32 s92, s16, s37
        s_addc_u32 s93, s17, 0
        s_mul_i32 s37, s3, 110592
        s_add_u32 s94, s60, s37
        s_addc_u32 s95, s61, 0
        """)
        wloop('KF_wl','s36')
        a('KF_now:')
    a(f'''
    v_lshrrev_b32 v{T}, 4, v0
    v_bfe_u32 v{T+1}, v0, 2, 2
    v_lshl_add_u32 v{T+2}, v{T}, 3, v{T+1}
    v_lshlrev_b32 v{T+2}, 7, v{T+2}
    v_lshrrev_b32 v{T+1}, 1, v{T+1}
    v_and_b32 v{T}, 1, v{T}
    v_lshl_or_b32 v{T+1}, v{T}, 1, v{T+1}
    v_and_b32 v{T+3}, 3, v0
    ''')
    for b in range(4):
        a(f'''
        v_xor_b32 v{T+4}, {b}, v{T+1}
        v_lshl_add_u32 v{T+4}, v{T+4}, 5, v{T+2}
        v_lshl_add_u32 v{V_BN+b}, v{T+3}, 3, v{T+4}
        v_mov_b32 v{V_AD+b}, v{V_BN+b}
        ''')
    for u in range(2):
        a(f'''
        v_lshrrev_b32 v{T+4}, 1, v{T+3}
        v_add_u32 v{T+4}, {2*u}, v{T+4}
        v_xor_b32 v{T+4}, v{T+4}, v{T+1}
        v_lshl_add_u32 v{T+4}, v{T+4}, 5, v{T+2}
        v_and_b32 v{T+5}, 1, v{T+3}
        v_lshl_add_u32 v{T+4}, v{T+5}, 4, v{T+4}
        v_add_u32 v{V_NB+2*u}, {HALF}, v{T+4}
        v_add_u32 v{V_NB+2*u+1}, {HALF+8}, v{T+4}
        ''')
    a(f'''
    v_and_b32 v{T}, 7, v0
    s_lshl_b32 s35, s34, 3
    v_add_u32 v{T}, s35, v{T}
    v_bfe_u32 v{T+1}, v0, 3, 1
    v_lshl_add_u32 v{T}, v{T+1}, 10, v{T}
    v_mul_u32_u24 v{T}, 3456, v{T}
    v_lshrrev_b32 v{T+1}, 4, v0
    v_lshl_add_u32 v{V_QST}, v{T+1}, 4, v{T}
    s_mul_i32 s35, s30, 18
    s_lshl_b32 s42, s31, 2
    s_add_u32 s35, s35, s42
    s_lshl_b32 s35, s35, 10
    s_add_u32 s44, s35, {H_OFF}
    s_add_u32 s45, s44, 147456
    s_add_u32 s46, s44, 294912
    s_add_u32 s47, s44, 442368
    s_add_u32 s48, s62, {QKV_OFF}
    s_add_u32 s49, s48, 27648
    s_add_u32 s50, s48, 55296
    s_add_u32 s51, s48, 82944
    s_lshl_b32 s24, s32, 5
    s_lshl_b32 s3, s30, 2
    s_add_u32 s24, s24, s3
    s_add_u32 s24, s24, s31
    s_lshl_b32 s24, s24, 2
    s_add_u32 s24, s24, {QFL_OFF}
    s_cmp_eq_u32 s33, 0
    s_cselect_b32 s24, s24, {OOB}
    s_lshl_b32 s25, s32, 2
    s_add_u32 s25, s25, s33
    s_lshl_b32 s25, s25, 5
    s_add_u32 s25, s25, s3
    s_add_u32 s25, s25, s31
    s_lshl_b32 s25, s25, 2
    s_add_u32 s25, s25, {HFL_OFF}
    s_and_b32 s26, s57, 1
    s_lshl_b32 s26, s26, 1
    s_lshr_b32 s3, s33, 1
    s_add_u32 s26, s26, s3
    s_lshl_b32 s3, s32, 2
    s_add_u32 s26, s26, s3
    s_lshl_b32 s26, s26, 7
    s_lshl_b32 s3, s69, 5
    s_add_u32 s26, s26, s3
    s_add_u32 s26, s26, {HFL_OFF}
    s_cmp_eq_u32 s68, 0
    s_cselect_b32 s27, 2, 0
    s_and_b32 s28, s57, 7
    s_mul_i32 s28, s28, 3
    s_add_u32 s28, s28, s31
    s_lshl_b32 s28, s28, 2
    s_add_u32 s28, s28, s33
    s_mul_i32 s28, s28, {108*128}
    s_mul_i32 s3, s69, {1152*1152}
    s_add_u32 s28, s28, s3
    s_and_b32 s3, s83, 7
    s_lshl_b32 s3, s3, 2
    s_add_u32 s3, s3, s33
    s_mul_i32 s3, s3, {162*128}
    s_cmp_eq_u32 s68, 0
    s_cselect_b32 s28, s28, s3
    s_add_u32 s28, s28, 2048
    s_add_u32 s29, s28, 16384
    s_cmp_eq_u32 s68, 0
    s_cselect_b32 s29, {OOB}, s29
    s_lshl_b32 s6, s32, 2
    s_add_u32 s6, s6, s33
    s_lshl_b32 s6, s6, 7
    s_add_u32 s6, s6, {XFL_OFF}
    v_and_b32 v{T}, 3, v0
    v_min_u32 v{T}, 2, v{T}
    v_and_b32 v{T+1}, 28, v0
    v_add_u32 v{T}, v{T}, v{T+1}
    v_lshlrev_b32 v{T}, 2, v{T}
    ''')
    a(f'''
    v_lshrrev_b32 v{T+2}, 4, v0
    v_mul_u32_u24 v{T+2}, 18432, v{T+2}
    v_and_b32 v{T+3}, 15, v0
    v_lshl_add_u32 v{T+2}, v{T+3}, 7, v{T+2}
    s_bfe_u32 s3, s2, 0x30003
    s_lshl_b32 s3, s3, 11
    s_mul_i32 s35, s34, 18432
    s_add_u32 s3, s3, s35
    s_add_u32 s3, s3, {XN_OFF+2048}
    v_add_u32 v{T+2}, s3, v{T+2}
    ''')
    a(f'''
    s_load_dwordx2 s[88:89], s[0:1], 0
    s_load_dwordx2 s[90:91], s[0:1], 56
    s_mul_i32 s92, s70, {XT}
    s_add_u32 s92, s92, s72
    s_add_u32 s92, s92, {X_OFF}
    s_mul_i32 s97, s69, {XD}
    s_add_u32 s97, s97, s92
    s_lshl_b32 s62, s70, 2
    s_add_u32 s62, s62, s33
    s_lshl_b32 s62, s62, 5
    s_add_u32 s62, s62, {FLG_OFF}
    s_lshl_b32 s63, s69, 2
    s_add_u32 s63, s63, s62
    ''')
    for j in (1,2,3):
        a(f's_xor_b32 s{93+j}, s69, {j}\ns_mul_i32 s{93+j}, s{93+j}, {XD}\ns_add_u32 s{93+j}, s{93+j}, {j*4*3072}\ns_add_u32 s{93+j}, s{93+j}, s92')
    a('s_waitcnt lgkmcnt(0)')
    a('''
    s_add_u32 s60, s16, 128
    s_addc_u32 s61, s17, 0
    s_add_u32 s4, s18, 128
    s_addc_u32 s5, s19, 0
    s_cmp_eq_u32 s68, 0
    s_cselect_b64 s[60:61], s[60:61], s[12:13]
    s_cselect_b64 s[4:5], s[4:5], s[14:15]
    ''')
    if OPT['pp']&1: ppoll(a,'xn',[156,157,158],T,'s6',OPT['pg'])
    else: vpoll(a,'xn',T+1,T,'s6')
    st(a,2)
    vm=VM()
    for g in range(OPT['FD0']):
        for it in grp_x(g): a(it[0]); vm.issue(it[2])
    if OPT['xt']:
        a(f'buffer_load_dword v{V_DUM}, v{T+2}, s[20:23], 0 offen sc1'); vm.issue('t')
    a('s_mov_b64 vcc, s[64:65]')
    a('s_barrier')
    for sl in range(8):
        w,ad=(V_SG+sl*4,V_NB+sl) if sl<4 else (V_WF+(sl-4)*4,V_AD+sl-4)
        a(f'ds_read_b64_tr_b16 v[{w}:{w+1}], v{ad} offset:0')
        a(f'ds_read_b64_tr_b16 v[{w+2}:{w+3}], v{ad} offset:512')
    a(f's_waitcnt vmcnt({vm.wait_n("g0")})')
    st(a,3)
    bodyF(a,vm)
    a('s_cbranch_vccz KF_noq2\ns_nop 1')
    for s in flat(ch_epiQ(V_ACC[1],2,64)[0]): a(s)
    a('KF_noq2:')
    st(a,4)
    zset=f'''
    s_mov_b32 s43, 1
    v_mov_b32 v{V_DA}, v{V_ZA}
    v_mov_b32 v{V_DA+1}, v{V_ZA+1}
    v_mov_b32 v{V_NB}, v{V_BN}
    v_mov_b32 v{V_NB+1}, v{V_BN+1}
    v_add_u32 v{V_NB+2}, 4096, v{V_BN}
    v_add_u32 v{V_NB+3}, 4096, v{V_BN+1}
    '''
    a(f'''
    s_mov_b32 s43, 0
    v_mov_b32 v{V_ONE}, s39
    v_min_u32 v15, 35, v0
    v_lshlrev_b32 v15, 7, v15
    v_mov_b32 v{V_NB}, v{V_BN}
    v_mov_b32 v{V_NB+1}, v{V_BN+1}
    v_mov_b32 v{V_NB+2}, v{V_BN+2}
    v_mov_b32 v{V_NB+3}, v{V_BN+3}
    s_cmp_eq_u32 s68, 0
    s_cbranch_scc1 KF_loop
    ''')
    a(zset)
    a('KF_loop:\ns_sub_u32 m0, s66, 4096')
    wt=[f'buffer_load_dword v{V_DUM}, v15, s[84:87], s28 offen',f's_add_u32 s28, s28, {36*128}']
    ty=[(100,120,[f'global_load_dword v{V_DUM}, v{V_TR}, s[12:13]',f'global_load_dword v{V_DUM}, v{V_TR}, s[14:15]']),(200,210,wt)]
    body(a,VM(),1,ch_epiG(V_ACC[0]),mid=True,seqs=ty)
    a(f'''
    s_cmp_lg_u32 s43, 0
    s_cbranch_scc1 KF_z
    v_lshl_add_u64 v[{V_DA}:{V_DA+1}], v[{V_DA}:{V_DA+1}], 0, s[58:59]
    v_add_u32 v{V_NB}, {HALF}, v{V_BN}
    v_add_u32 v{V_NB+1}, {HALF}, v{V_BN+1}
    v_add_u32 v{V_NB+2}, {HALF}, v{V_BN+2}
    v_add_u32 v{V_NB+3}, {HALF}, v{V_BN+3}
    ''')
    clr=[f'buffer_store_dwordx4 v[96:99], v{C_LV}, s[20:23], s{93+j} offen offset:{l*1024} sc1' for j in (1,2,3) for l in range(3)]
    xt=[f'global_load_dword v{V_DUM}, v{C_OA+i}, s[88:89] offset:{l*128}' for l in range(3) for i in range(2)]
    st(a,5)
    tx=[(100,110,wt)]
    body(a,VM(),0,ch_epiU(V_ACC[1]),pace=True,epilo=OPT['XEPI'],seqs=tx+[(140,280,c_roles_vector())])
    st(a,6)
    a('''
    s_add_u32 s44, s44, 2048
    s_add_u32 s45, s45, 2048
    s_add_u32 s46, s46, 2048
    s_add_u32 s47, s47, 2048
    s_mov_b32 s24, s25
    ''')
    a(zset)
    a('s_branch KF_loop\nKF_z:')
    st(a,7)
    a('s_cmp_eq_u32 s68, 0\ns_cbranch_scc0 KF_zl')
    a(f'''
    s_mov_b32 s6, s78
    s_mov_b32 s24, s62
    v_min_u32 v{V_FA}, 7, v0
    v_lshlrev_b32 v{V_FA}, 2, v{V_FA}
    v_add_u32 v{V_ONE}, 1, v{V_ONE}
    v_add_u32 v255, 1, v{V_ONE}
    ''')
    pw=[];ph=[]
    for k in range(3): pw+=[x for x in prefetch(ORDER[k],'s6','W') if x!='s_nop 0']
    for k in range(5): ph+=prefetch(ORDER[k],'s78','H')
    zero=[f'v_mov_b64 v[{r}:{r+1}], 0' for r in range(96,192,2)]
    vmz=VM()
    bodyZ(a,vmz,[(60,61,['@FLD']),(62,150,pw),(152,270,['@CHK8']+ph),(2,60,zero[2:16]),(146,286,c_addr_items()+zero[:2]+zero[16:]),(OPT['g2'],OPT['g2']+1,['@G2'])])
    st(a,8)
    a('s_nop 4')
    z_tail(a)
    nH=[k for k,t in enumerate(vmz.ops)]
    a(f'buffer_load_dword v{V_FL}, v{V_FA}, s[20:23], s26 offen sc1')
    a('s_waitcnt vmcnt(17) lgkmcnt(0)\ns_barrier')
    for t in range(6): a(c_rd(ORDER[0],t,0)); a(c_rd(ORDER[0],t,1))
    for k in (3,4):
        for x in prefetch(ORDER[k],'s6','W'): a(x)
    a('s_waitcnt lgkmcnt(0)\ns_branch C_go')
    a('KF_zl:')
    for x in c_roles_vector(): a(x)
    a(f'''
    s_lshr_b32 s26, s83, 3
    s_max_u32 s26, s26, 1
    s_sub_u32 s26, s26, 1
    s_lshl_b32 s26, s26, 7
    s_add_u32 s26, s26, {QFL_OFF}
    v_lshlrev_b32 v253, 2, v0
    s_lshr_b32 s3, s83, 3
    s_cmp_eq_u32 s3, 0
    s_movk_i32 s3, 255
    s_cselect_b32 s3, 127, s3
    v_and_b32 v253, s3, v253
    s_and_b32 s92, s83, 1
    s_lshl_b32 s92, s92, 10
    s_lshr_b32 s93, s83, 1
    s_lshl_b32 s93, s93, 5
    s_add_u32 s92, s92, s93
    s_mul_i32 s92, s92, 3456
    s_add_u32 s92, s92, {QKV_OFF-7*3456}
    s_add_u32 s92, s92, s66
    s_add_u32 s93, s92, 86400
    ''')
    ql=['@QP']
    for n in range(22):
        ql+=[f's_add_u32 m0, s66, {HALF+n*4096}', f'buffer_load_dwordx4 v{C_LV}, s[20:23], s92 offen sc1 lds', 's_add_u32 s92, s92, 4096']
    bodyZ(a,VM(),[(OPT['ql'],OPT['ql']+1,['@QL']),(OPT['qp'],280,ql)])
    a('s_barrier')
    for n in range(12):
        a(f's_add_u32 m0, s66, {n*4096}\ns_nop 0\nbuffer_load_dwordx4 v{C_LV}, s[20:23], s93 offen sc1 lds\ns_add_u32 s93, s93, 4096')
    z_tail(a)
    a(f'v_add_u32 v255, 2, v{V_ONE}')
    st(a,8)
    def wq():
        a('s_waitcnt vmcnt(0)\nbuffer_store_dword v255, off, s[20:23], s25 sc1\ns_barrier'); st(a,14)
        a('v_lshlrev_b32 v5, 7, v0\ns_sub_u32 s28, s29, 8192\ns_sub_u32 s27, s29, 16384')
        for r in ('s27','s28','s29'): a(f'buffer_load_dword v240, v5, s[84:87], {r} offen')
    attention(a,wq,(25,HALF,0))
    st(a,15)
    light_after_att(a)
    a(f'''
    s_mov_b32 s25, {OOB}
    s_mov_b32 s27, 0
    v_mov_b32 v{V_FA}, 0
    s_mul_i32 s97, s70, {XT}
    s_add_u32 s97, s97, s72
    s_add_u32 s97, s97, {X_OFF}
    s_add_u32 s94, s97, {XD}
    s_add_u32 s95, s97, {2*XD}
    s_add_u32 s96, s97, {3*XD}
    s_add_u32 s63, s62, 16
    ''')
    for t in range(6): a(c_rd(ORDER[0],t,0)); a(c_rd(ORDER[0],t,1))
    a('s_waitcnt lgkmcnt(8)\ns_branch C_go')
    x_forward(a)
    a('C_go:')
    st(a,9)
    c_loop(a)
    c_finish(a)
    a('KF_end:\nKF_last:\ns_endpgm')
    return kernel_desc(NAME,512,102,256)

def build():
    a=Asm()
    hdr=open('recurrent_scan__sliding_local_dilated__swiglu_ffn__prompt.s.ref').read().split('\n')
    head=[l for l in hdr if l.startswith(';') and '@launch' not in l]
    d=gen_kf(a)
    s='\n'.join(head)+'\n; @launch grid=(256,1,1) block=(256,1,1) lds=163840\n'
    s+='.amdgcn_target "amdgcn-amd-amdhsa--gfx950"\n.text\n'+a.text()
    s+='.section .rodata,"a"\n.p2align 6\n'+d
    return s
if __name__=='__main__':
    for o in sys.argv[2:]:
        if '=' in o:
            k,v=o.split('='); OPT[k]=int(v)
        else: OPT[o]=True
    open(sys.argv[1],'w').write(build())
```
